```python
import torch

def _softmax(x, axis=-1):
    return torch.softmax(x, dim=axis)
def _gelu(x):
    return torch.nn.functional.gelu(x, approximate="tanh")
def _silu(x):
    return torch.nn.functional.silu(x)
def _sigmoid(x):
    return torch.sigmoid(x)
def _layernorm(x, axis=-1, eps=1e-5):
    m = x.mean(dim=axis, keepdim=True)
    v = x.var(dim=axis, keepdim=True, unbiased=False)
    return (x - m) / torch.sqrt(v + eps)
def _scatter_add(tgt, idx, src, axis=0):
    return tgt.clone().index_add_(axis, idx, src)
def _segment_sum(src, seg, n):
    out = torch.zeros((n,) + src.shape[1:], dtype=src.dtype)
    return out.index_add_(0, seg, src)
def _pad(x, pw):
    flat = tuple(v for pair in reversed(pw) for v in pair)
    return torch.nn.functional.pad(x, flat)

kernel_name = 'standalone__edge_featured_mpnn_mpnn__graph'

def setup_inputs():

    _w = (lambda a: (lambda t: t.to(torch.bfloat16) if t.is_floating_point() else t)(torch.as_tensor(a)))
    N, deg, D, De = 12500, 64, 64, max(0, 1)
    E = N * deg
    H = 2 * D
    return {
        "x": _w((lambda *s: torch.randn(*s, dtype=torch.bfloat16) * 0.05)(N, D)),
        "e_attr": _w((lambda *s: torch.randn(*s, dtype=torch.bfloat16) * 1.6)(E, De)),
        "src": _w((lambda lo, hi, *s: torch.randint(lo, hi, s))(0, N, E).to(torch.int64)),
        "dst": _w((lambda lo, hi, *s: torch.randint(lo, hi, s))(0, N, E).to(torch.int64)),
        "w1": _w((lambda *s: torch.randn(*s, dtype=torch.bfloat16) * 1.6)(2 * D + De, H) * (1.0 / (2 * D + De) ** 0.5)),
        "b1": _w((lambda *s: torch.randn(*s, dtype=torch.bfloat16) * 1.6)(H) * 0.01),
        "w2": _w((lambda *s: torch.randn(*s, dtype=torch.bfloat16) * 0.05)(H, D) * (1.0 / H ** 0.5)),
        "b2": _w((lambda *s: torch.randn(*s, dtype=torch.bfloat16) * 0.05)(D) * 0.01),
    }

def reference(x, e_attr, src, dst, w1, b1, w2, b2):
    N, D = x.shape
    h_src = x[src]
    h_dst = x[dst]
    m_in = torch.concatenate([h_src, h_dst, e_attr], axis=-1)
    h = _silu(m_in @ w1 + b1)
    msg = h @ w2 + b2
    return _segment_sum(msg, dst, N)
```

```python
import struct, sys
import numpy as np

N, E = 12500, 800000
NPB, SPLIT = 49, 25
NCH, CH = 250, 3200
LOG2E = 1.4426950408889634
LN2 = 0.6931471805599453

def f2u(x): return struct.unpack("<I", struct.pack("<f", x))[0]
def u2f(u): return struct.unpack("<f", struct.pack("<I", u))[0]

WS_ENT = 0
WS_DESC = 6553600
WS_WA = WS_DESC + 262144
WS_WB = WS_WA + 16384
WS_W2 = WS_WB + 16384
WS_EXT = WS_W2 + 16384
WS_B1 = WS_EXT + 2048
WS_SIZE = WS_B1 + 512

TBW = 8704
L_TB = 0
L_LIST = 8 * TBW
LISTCAP = 4096
MAXT = 116
L_SEL = L_LIST + LISTCAP * 4
SELS = 200
SELSZ = 23552
L_GQ = L_SEL + SELSZ
L_CNT = L_GQ + 2048
L_FLAG = L_CNT + 256
L_DEG = L_FLAG + 64
L_EXT = L_DEG + 256 + 192
assert L_EXT % 256 == 0 and L_CNT % 256 == 0
L_QT = L_EXT + 1280
QS = 584
L_W2 = (L_QT + NPB * QS + 15) // 16 * 16
L_END = L_W2 + 16384
assert L_END <= 163840, L_END
L_WA_STG = 0
L_X_STG = 16384
PADENT = 0x00007000
XSH = 3264

out = []
def e(s): out.append("    " + s)
def lab(s): out.append(s + ":")
def c(s): out.append("    ; " + s)

def srd(base, plo, size, sub=0):
    if sub:
        e(f"s_sub_u32 s{base}, s{plo}, {sub}")
        e(f"s_subb_u32 s{base+1}, s{plo+1}, 0")
    else:
        e(f"s_mov_b32 s{base}, s{plo}")
        e(f"s_mov_b32 s{base+1}, s{plo+1}")
    e(f"s_mov_b32 s{base+2}, {size}")
    e(f"s_mov_b32 s{base+3}, 0x00020000")

def kdesc(name, nv, ns):
    return f""".p2align 6
.amdhsa_kernel {name}
  .amdhsa_next_free_vgpr {nv}
  .amdhsa_next_free_sgpr {ns}
  .amdhsa_accum_offset {(nv + 3) // 4 * 4}
  .amdhsa_group_segment_fixed_size 0
  .amdhsa_kernarg_size 88
  .amdhsa_user_sgpr_count 2
  .amdhsa_user_sgpr_kernarg_segment_ptr 1
  .amdhsa_system_sgpr_workgroup_id_x 1
.end_amdhsa_kernel
"""

def scan64(v, t, halves=False):
    for sh in (1, 2, 4, 8):
        e("s_nop 1")
        e(f"v_add_u32_dpp v{v}, v{v}, v{v} row_shr:{sh} row_mask:0xf bank_mask:0xf bound_ctrl:1")
    e("s_nop 1")
    e(f"v_add_u32_dpp v{v}, v{v}, v{v} row_bcast:15 row_mask:0xa bank_mask:0xf")
    if not halves:
        e("s_nop 1")
        e(f"v_add_u32_dpp v{v}, v{v}, v{v} row_bcast:31 row_mask:0xc bank_mask:0xf")

K1_CNT, K1_BASE, K1_STG = 0, 1024, 2048
K1_LDS = K1_STG + CH * 8

def k1():
    out.append(".p2align 8")
    out.append(".type bin_kernel,@function")
    lab("bin_kernel")
    e("s_cmp_ge_u32 s2, 256")
    e("s_cbranch_scc1 K1_END")
    e("s_cmp_ge_u32 s2, 250")
    e("s_cbranch_scc1 K1_PREP")
    e("s_load_dwordx2 s[4:5], s[0:1], 8")
    e("s_load_dwordx4 s[8:11], s[0:1], 16")
    e("s_load_dwordx2 s[6:7], s[0:1], 80")
    e("s_mul_i32 s3, s2, 12800")
    e("v_lshl_add_u32 v1, v0, 4, s3")
    e("v_lshrrev_b32 v2, 1, v1")
    e("v_lshlrev_b32 v3, 2, v0")
    e("v_mov_b32 v4, 0")
    e("s_waitcnt lgkmcnt(0)")
    srd(12, 10, E * 4)
    e("buffer_load_dwordx4 v[8:11], v1, s[12:15], 0 offen")
    srd(16, 8, E * 4)
    e("buffer_load_dwordx4 v[12:15], v1, s[16:19], 0 offen")
    srd(20, 4, E * 2)
    e("buffer_load_dwordx2 v[16:17], v2, s[20:23], 0 offen")
    srd(24, 6, WS_SIZE)
    e("v_cmp_gt_u32 vcc, 256, v0")
    e("s_and_saveexec_b64 s[28:29], vcc")
    e(f"ds_write_b32 v3, v4 offset:{K1_CNT}")
    e("s_mov_b64 exec, s[28:29]")
    e("v_mov_b32 v5, 1")
    e("s_movk_i32 s30, 10700")
    e(f"s_mov_b32 s36, {L_CNT}")
    e("s_waitcnt lgkmcnt(0)")
    e("s_barrier")
    e("s_waitcnt vmcnt(2)")
    for j in range(4):
        e(f"v_mul_u32_u24 v{20+j}, s30, v{8+j}")
        e(f"v_lshrrev_b32 v{20+j}, 19, v{20+j}")
        e(f"v_lshlrev_b32 v{24+j}, 2, v{20+j}")
        e(f"ds_add_rtn_u32 v{28+j}, v{24+j}, v5 offset:{K1_CNT}")
    for j in range(4):
        e(f"v_mul_u32_u24 v{20+j}, {NPB}, v{20+j}")
        e(f"v_sub_u32 v{20+j}, v{8+j}, v{20+j}")
        e(f"v_cmp_le_u32 vcc, {SPLIT}, v{20+j}")
        e(f"v_lshl_add_u32 v{20+j}, v{20+j}, 2, s36")
        e(f"v_add_u32 v6, {4*(32-SPLIT)}, v{20+j}")
        e(f"v_cndmask_b32 v{33+2*j}, v{20+j}, v6, vcc")
    e("s_mov_b32 s31, 0x8000")
    e("s_waitcnt vmcnt(0)")
    for j in range(4):
        if j % 2 == 0:
            e(f"v_lshlrev_b32 v6, 16, v{16+j//2}")
        else:
            e(f"v_and_b32 v6, 0xffff0000, v{16+j//2}")
        e(f"v_or3_b32 v{32+2*j}, v6, v{12+j}, s31")
    e("s_waitcnt lgkmcnt(0)")
    e("s_barrier")
    e("v_readfirstlane_b32 s32, v0")
    e("s_cmp_lg_u32 s32, 0")
    e("s_cbranch_scc1 K1_NOSCAN")
    e("v_lshlrev_b32 v40, 4, v0")
    e(f"ds_read_b128 v[44:47], v40 offset:{K1_CNT}")
    e("s_and_b32 s33, s2, 7")
    e("s_lshl_b32 s33, s33, 5")
    e("s_lshr_b32 s34, s2, 3")
    e("s_add_u32 s33, s33, s34")
    e("s_lshl_b32 s33, s33, 2")
    e(f"s_add_u32 s33, s33, {WS_DESC}")
    e("v_lshlrev_b32 v41, 12, v0")
    e("s_waitcnt lgkmcnt(0)")
    e("v_add_u32 v49, v44, v45")
    e("v_add_u32 v50, v49, v46")
    e("v_add_u32 v42, v50, v47")
    e("v_mov_b32 v43, v42")
    scan64(42, 0)
    e("v_sub_u32 v52, v42, v43")
    e("v_add_u32 v53, v52, v44")
    e("v_add_u32 v54, v52, v49")
    e("v_add_u32 v55, v52, v50")
    e(f"ds_write_b128 v40, v[52:55] offset:{K1_BASE}")
    for j in range(4):
        e(f"v_lshl_or_b32 v{44+j}, v{44+j}, 16, v{52+j}")
        e(f"buffer_store_dword v{44+j}, v41, s[24:27], s33 offen offset:{1024*j}")
    e("s_waitcnt lgkmcnt(0)")
    lab("K1_NOSCAN")
    e("s_barrier")
    for j in range(4):
        e(f"ds_read_b32 v{20+j}, v{24+j} offset:{K1_BASE}")
    for j in range(4):
        e(f"s_waitcnt lgkmcnt({3-j})" if j == 0 else f"s_waitcnt lgkmcnt(3)")
        e(f"v_add_lshl_u32 v{20+j}, v{20+j}, v{28+j}, 3")
        e(f"ds_write_b64 v{20+j}, v[{32+2*j}:{33+2*j}] offset:{K1_STG}")
    e("v_lshlrev_b32 v40, 4, v0")
    e("s_lshl_b32 s3, s3, 1")
    e("s_add_u32 s35, s3, 12800")
    e("s_waitcnt lgkmcnt(0)")
    e("s_barrier")
    e(f"ds_read_b128 v[8:11], v40 offset:{K1_STG}")
    e(f"ds_read_b128 v[12:15], v40 offset:{K1_STG+12800}")
    e("s_waitcnt lgkmcnt(1)")
    e("buffer_store_dwordx4 v[8:11], v40, s[24:27], s3 offen")
    e("s_waitcnt lgkmcnt(0)")
    e("buffer_store_dwordx4 v[12:15], v40, s[24:27], s35 offen")
    lab("K1_END")
    e("s_endpgm")

    lab("K1_PREP")
    e("s_load_dwordx8 s[4:11], s[0:1], 32")
    e("s_load_dwordx2 s[12:13], s[0:1], 80")
    e("s_sub_u32 s3, s2, 250")
    e("s_waitcnt lgkmcnt(0)")
    srd(16, 4, 129 * 256)
    srd(20, 8, 128 * 128)
    srd(24, 12, WS_SIZE)
    srd(28, 6, 256)
    srd(32, 10, 128)
    e("v_readfirstlane_b32 s36, v0")
    e("s_cmp_ge_u32 s36, 512")
    e("s_cbranch_scc1 K1_PEXT")
    e("s_and_b32 s37, s3, 1")
    e("s_lshl_b32 s37, s37, 3")
    e("s_lshr_b32 s36, s36, 6")
    e("s_add_u32 s36, s36, s37")
    e("s_lshr_b32 s37, s3, 1")
    e("v_and_b32 v1, 31, v0")
    e("v_lshlrev_b32 v1, 1, v1")
    e("v_bfe_u32 v2, v0, 5, 1")
    e("v_and_b32 v3, 63, v0")
    e("v_lshlrev_b32 v3, 4, v3")
    e("s_lshl_b32 s38, s36, 10")
    e("s_lshl_b32 s39, s37, 14")
    e("s_add_u32 s38, s38, s39")
    e(f"s_add_u32 s38, s38, {WS_WA}")
    e("s_cmp_eq_u32 s37, 2")
    e("s_cbranch_scc1 K1_PW2")
    e("s_and_b32 s39, s36, 3")
    e("s_lshl_b32 s39, s39, 12")
    e("s_lshr_b32 s40, s36, 2")
    e("s_lshl_b32 s40, s40, 6")
    e("s_add_u32 s39, s39, s40")
    e("s_lshl_b32 s40, s37, 14")
    e("s_add_u32 s39, s39, s40")
    e("v_lshl_add_u32 v1, v2, 11, v1")
    for j in range(8):
        e(f"buffer_load_ushort v{8+j}, v1, s[16:19], s39 offen offset:{256*j}")
    e("s_branch K1_PPACK")
    lab("K1_PW2")
    e("s_and_b32 s39, s36, 7")
    e("s_lshl_b32 s39, s39, 11")
    e("s_lshr_b32 s40, s36, 3")
    e("s_lshl_b32 s40, s40, 6")
    e("s_add_u32 s39, s39, s40")
    e("v_lshl_add_u32 v1, v2, 9, v1")
    for j in range(8):
        e(f"buffer_load_ushort v{8+j}, v1, s[20:23], s39 offen offset:{(8*(j>>2)+(j&3))*128}")
    lab("K1_PPACK")
    e(f"s_mov_b32 s41, {hex(f2u(-LOG2E))}")
    e("s_cmp_eq_u32 s37, 0")
    e("s_cselect_b32 s41, s41, 1.0")
    e("s_waitcnt vmcnt(0)")
    for j in range(8):
        e(f"v_lshlrev_b32 v{8+j}, 16, v{8+j}")
    e("s_cbranch_scc0 K1_PNOS")
    for j in range(8):
        e(f"v_mul_f32 v{8+j}, s41, v{8+j}")
    for j in range(4):
        e(f"v_cvt_pk_bf16_f32 v{16+j}, v{8+2*j}, v{9+2*j}")
    e("s_branch K1_PST")
    lab("K1_PNOS")
    for j in range(4):
        e(f"v_lshrrev_b32 v{16+j}, 16, v{8+2*j}")
        e(f"v_or_b32 v{16+j}, v{16+j}, v{9+2*j}")
    lab("K1_PST")
    e("buffer_store_dwordx4 v[16:19], v3, s[24:27], s38 offen")
    e("s_endpgm")
    lab("K1_PEXT")
    e("v_subrev_u32 v1, 512, v0")
    e("s_cmp_eq_u32 s3, 0")
    e("s_cbranch_scc1 K1_PEXT0")
    e("s_cmp_eq_u32 s3, 1")
    e("s_cbranch_scc0 K1_END")
    e("v_lshlrev_b32 v2, 1, v1")
    e("buffer_load_ushort v4, v2, s[28:31], 0 offen")
    e("v_lshlrev_b32 v3, 2, v1")
    e(f"s_mov_b32 s38, {WS_B1}")
    e("v_cmp_gt_u32 vcc, 128, v1")
    e("s_waitcnt vmcnt(0)")
    e("v_lshlrev_b32 v4, 16, v4")
    e("s_and_saveexec_b64 s[40:41], vcc")
    e("s_cbranch_execz K1_END")
    e("buffer_store_dword v4, v3, s[24:27], s38 offen")
    e("s_endpgm")
    lab("K1_PEXT0")
    e("v_subrev_u32 v2, 80, v1")
    e("v_subrev_u32 v3, 160, v1")
    e("v_cmp_gt_u32 vcc, 152, v1")
    e("s_nop 1")
    e("v_cndmask_b32 v2, v3, v2, vcc")
    e("v_and_b32 v5, 63, v2")
    e("v_lshlrev_b32 v5, 2, v5")
    e(f"s_mov_b32 s39, {128*256}")
    e("buffer_load_dword v6, v5, s[16:19], s39 offen")
    e("v_subrev_u32 v7, 224, v1")
    e("v_and_b32 v8, 63, v7")
    e("v_lshlrev_b32 v8, 1, v8")
    e("buffer_load_ushort v9, v8, s[32:35], 0 offen")
    e(f"s_mov_b32 s41, {hex(f2u(-LOG2E))}")
    e("s_waitcnt vmcnt(0)")
    e("v_lshlrev_b32 v10, 16, v6")
    e("v_and_b32 v11, 0xffff0000, v6")
    e("v_mul_f32 v10, s41, v10")
    e("v_mul_f32 v11, s41, v11")
    e("v_cvt_pk_bf16_f32 v12, v10, v11")
    e("v_lshlrev_b32 v13, 16, v12")
    e("v_and_b32 v14, 0xffff0000, v12")
    e("v_sub_f32 v13, v10, v13")
    e("v_sub_f32 v14, v11, v14")
    e("v_cvt_pk_bf16_f32 v13, v13, v14")
    e("v_cndmask_b32 v12, v13, v12, vcc")
    e("v_cmp_gt_u32 vcc, 64, v2")
    e("v_lshlrev_b32 v9, 16, v9")
    e("s_nop 0")
    e("v_cndmask_b32 v12, 0, v12, vcc")
    e("v_cmp_gt_u32 vcc, 64, v7")
    e("v_lshlrev_b32 v3, 2, v1")
    e(f"s_mov_b32 s38, {WS_EXT}")
    e("v_cndmask_b32 v12, v12, v9, vcc")
    e("buffer_store_dword v12, v3, s[24:27], s38 offen")
    e("s_endpgm")

W, H = 192, 128
D = (96, 112)
T = 80
AF = 64
AX = 60
BX = (52, 56)
P = 36
SL = 32
NN, DD, RR = 30, 28, 26
CX = 20
IDX = 16
V_AFA = (0, 1)
V_DMAC, V_LI, V_LM, V_GQA, V_SELA, V_PSEL, V_QMUL, V_QC, V_GQ, V_QA, V_DMAX = 2, 3, 4, 5, 6, 7, 8, 9, 10, 11, 12
V_M = 24
V_TID = 13
S_WS, S_X, S_OUT = 8, 12, 16
S_SOFF = (20, 21, 22)
S_128, S_REM, S_M0, S_WN, S_RB, S_MORE, S_SAFE, S_FIRST, S_TA, S_TT, S_NT, S_T0 = 24, 25, (26, 27), 28, 29, 30, 31, 32, 33, 34, 35, 36
S_MASK = 40

def vr(a, n): return f"v[{a}:{a+n-1}]"
def mfma(d, a, b, cc):
    e(f"v_mfma_f32_32x32x16_bf16 {vr(d,16)}, {vr(a,4)}, {vr(b,4)}, {cc}")

def dma(buf):
    e(f"s_mov_b32 m0, s{S_M0[buf]}")
    e("s_nop 0")
    for j in range(4):
        so = f"s{S_SOFF[j]}" if j < 3 else "0"
        e(f"buffer_load_dwordx4 v{IDX+j}, s[{S_X}:{S_X+3}], {so} offen offset:{1088*j} lds")
def mads():
    return [f"v_mad_i32_i16 v{IDX+j}, v{IDX+j}, s{S_128}, v{V_DMAC}" for j in range(4)]
def af_read(ks, buf):
    return f"ds_read_b128 {vr(AF+4*ks,4)}, v{V_AFA[ks&1]} offset:{buf*4352 + 64*(ks>>1)}"
def tr_reads(ct, b):
    return [f"ds_read_b64_tr_b16 {vr(BX[b],2)}, v{V_QA} offset:{64*ct}",
            f"ds_read_b64_tr_b16 {vr(BX[b]+2,2)}, v{V_QA} offset:{64*ct+256}"]
def ax_build():
    return [f"v_pk_mul_f32 {vr(AX,2)}, {vr(CX,2)}, {vr(V_M,2)} op_sel_hi:[1,0]",
            f"v_pk_mul_f32 {vr(AX+2,2)}, {vr(CX+2,2)}, {vr(V_M,2)} op_sel_hi:[1,0]"]

def block(tau, ct, safe):
    cur, nxt = D[ct & 1], D[(ct + 1) & 1]
    nct = (ct + 1) & 3
    pc, pt = (ct - 1) & 3, (tau if ct > 0 else (tau - 1) & 3)
    c(f"---- block tau={tau} ct={ct}")
    if ct == 2:
        e("s_waitcnt vmcnt(4) lgkmcnt(0)")
    else:
        e("s_waitcnt lgkmcnt(0)")
    ex = [f"v_exp_f32 v{T+i}, v{cur+i}" for i in range(16)]
    fill = []
    early = []
    if ct == 2:
        e(f"v_mad_u32_u24 v{V_QA}, v{V_GQ}, v{V_QMUL}, v{V_QC}")
    early += tr_reads((ct + 2) & 3, ct & 1)
    if ct == 0:
        early.append(f"ds_read_b32 v{V_M}, v{V_LM} offset:{(tau+1)*512}")
        early.append(f"ds_read_b32 v{V_GQ}, v{V_GQA} offset:{(tau+1)*64}")
        if tau == 1:
            early.append(f"ds_read_b32 v{SL}, v{V_SELA} offset:0")
        if tau >= 1:
            early.append(f"ds_read_b32 v{SL+tau}, v{V_SELA} offset:{tau*4*SELS}")
    if ct == 1:
        fill.append(f"v_perm_b32 v{V_M}, v{V_M}, v{V_M}, v{V_PSEL}")
    if ct == 2:
        early.append(f"ds_read_b128 {vr(IDX,4)}, v{V_LI} offset:{(tau+3)*512}")
    if ct == 3:
        fill += mads()
        if tau == 3:
            fill += [f"v_add_u32 v{V_LI}, 2048, v{V_LI}", f"v_add_u32 v{V_LM}, 2048, v{V_LM}",
                     f"v_add_u32 v{V_GQA}, 256, v{V_GQA}", f"v_add_u32 v{V_SELA}, {16*SELS}, v{V_SELA}"]
    if not safe:
        fill.append(f"v_max3_f32 v{V_DMAX}, v{DD}, v{DD+1}, v{V_DMAX}")
    tr = ex + [f"v_rcp_f32 v{RR}, v{DD}", f"v_rcp_f32 v{RR+1}, v{DD+1}"]
    k = 0
    mfma(nxt, AX, BX[nct & 1], "0")
    for s in early: e(s)
    for ks in range(4):
        for s in tr[k:k+3]: e(s)
        k += 3
        mfma(nxt, AF + 4 * ks, W + 4 * (nct * 4 + ks), vr(nxt, 16))
        if ct == 2:
            e(af_read(ks, (tau + 1) & 1))
    if tau == 0:
        for s in tr[k:k+3]: e(s)
        k += 3
        mfma(H + 16 * ct, P + 4 * ct, SL, vr(H + 16 * ct, 16))
    for s in tr[k:]: e(s)
    for s in fill: e(s)
    if not fill: e("s_nop 0")
    if ct == 3:
        dma((tau + 1) & 1)
    e(f"v_pk_mul_f32 {vr(RR,2)}, {vr(NN,2)}, {vr(RR,2)}")
    if not safe:
        e(f"v_pk_add_f32 {vr(DD,2)}, {vr(T,2)}, 1.0 op_sel_hi:[1,0]")
        e(f"v_cvt_pk_bf16_f32 v{P+4*pc+pt}, v{RR}, v{RR+1}")
        for j in range(1, 8):
            n_in = vr(cur, 2) if j == 1 else vr(NN, 2)
            e(f"v_pk_fma_f32 {vr(NN,2)}, {n_in}, {vr(T+2*j,2)}, {n_in}")
            e(f"v_pk_fma_f32 {vr(NN,2)}, {vr(cur+2*j,2)}, {vr(DD,2)}, {vr(NN,2)}")
            e(f"v_pk_fma_f32 {vr(DD,2)}, {vr(DD,2)}, {vr(T+2*j,2)}, {vr(DD,2)}")
            if ct == 2 and j == 1:
                for s in ax_build(): e(s)
    else:
        for j in range(8):
            e(f"v_pk_add_f32 {vr(T+2*j,2)}, {vr(T+2*j,2)}, 1.0 op_sel_hi:[1,0]")
        e(f"v_cvt_pk_bf16_f32 v{P+4*pc+pt}, v{RR}, v{RR+1}")
        for i in range(16):
            e(f"v_rcp_f32 v{T+i}, v{T+i}")
        if ct == 2:
            for s in ax_build(): e(s)
        e(f"v_pk_mul_f32 {vr(NN,2)}, {vr(cur,2)}, {vr(T,2)}")
        for j in range(1, 8):
            e(f"v_pk_fma_f32 {vr(NN,2)}, {vr(cur+2*j,2)}, {vr(T+2*j,2)}, {vr(NN,2)}")

def mainloop(safe):
    sfx = "S" if safe else "F"
    out.append(".p2align 6")
    lab(f"LOOP{sfx}")
    for tau in range(4):
        for ct in range(4):
            block(tau, ct, safe)
        e(f"s_sub_u32 s{S_REM}, s{S_REM}, 1")
        e(f"s_cmp_eq_u32 s{S_REM}, 0")
        if tau < 3:
            e(f"s_cbranch_scc1 DRAIN{tau}")
        else:
            e(f"s_cbranch_scc0 LOOP{sfx}")
            e(f"s_branch DRAIN3")

def find_cx(target):
    m = np.float32(u2f(0x00FF0000))
    t = np.float64(u2f(target))
    g = f2u(float(np.float32(t / np.float64(m))))
    for d in range(-3, 4):
        cc = np.float64(u2f(g + d))
        if f2u(float(np.float32(cc * np.float64(m)))) == target:
            return g + d
    raise SystemExit("no cx")

def k2():
    out.append(".p2align 8")
    out.append(".type mpnn_kernel,@function")
    lab("mpnn_kernel")
    e("s_cmp_ge_u32 s2, 256")
    e("s_cbranch_scc1 K2_END")
    e("s_load_dwordx2 s[74:75], s[0:1], 80")
    e("s_load_dwordx2 s[72:73], s[0:1], 0")
    e("s_load_dwordx2 s[76:77], s[0:1], 64")
    e(f"v_mov_b32 v{V_TID}, v0")
    e("v_readfirstlane_b32 s4, v0")
    e("s_and_b32 s3, s2, 7")
    e("s_lshl_b32 s3, s3, 5")
    e("s_lshr_b32 s5, s2, 3")
    e("s_add_u32 s3, s3, s5")
    e("s_lshr_b32 s4, s4, 6")
    e(f"s_mov_b32 s{S_FIRST}, 1")
    e(f"s_mov_b32 s{S_WN}, 32")
    e(f"s_mov_b32 s{S_RB}, 0")
    e(f"s_mov_b32 s{S_SAFE}, 0")
    e(f"s_mov_b32 s{S_128}, 128")
    for j in range(3):
        e(f"s_mov_b32 s{S_SOFF[j]}, {XSH - 1088*j}")
    e(f"s_mul_i32 s{S_M0[0]}, s4, {TBW}")
    e(f"s_add_u32 s{S_M0[1]}, s{S_M0[0]}, 4352")
    e("s_waitcnt lgkmcnt(0)")
    srd(S_WS, 74, WS_SIZE)
    srd(S_X, 72, N * 128 + XSH, sub=XSH)
    srd(S_OUT, 76, N * 128)

    lab("ROUND")
    e(f"v_and_b32 v14, 63, v{V_TID}")
    e("v_lshrrev_b32 v15, 4, v14")
    e("v_lshlrev_b32 v16, 5, v15")
    e("s_lshl_b32 s5, s3, 10")
    e("s_lshl_b32 s6, s4, 7")
    e("s_add_u32 s5, s5, s6")
    e(f"s_add_u32 s5, s5, {WS_DESC}")
    e(f"buffer_load_dwordx4 v[32:35], v16, s[{S_WS}:{S_WS+3}], s5 offen")
    e(f"buffer_load_dwordx4 v[36:39], v16, s[{S_WS}:{S_WS+3}], s5 offen offset:16")
    e(f"s_cmp_eq_u32 s{S_FIRST}, 0")
    e("s_cbranch_scc1 R_NOLOAD")
    e("v_lshlrev_b32 v17, 4, v14")
    e("s_lshl_b32 s5, s4, 11")
    e(f"s_add_u32 m0, s5, {L_WA_STG}")
    e(f"s_add_u32 s6, s5, {WS_WA}")
    e(f"buffer_load_dwordx4 v17, s[{S_WS}:{S_WS+3}], s6 offen lds")
    e(f"buffer_load_dwordx4 v17, s[{S_WS}:{S_WS+3}], s6 offen offset:1024 lds")
    e("v_lshrrev_b32 v18, 3, v14")
    e("v_and_b32 v19, 4, v18")
    e("v_and_b32 v20, 1, v18")
    e("v_lshl_add_u32 v19, v20, 1, v19")
    e("v_bfe_u32 v20, v18, 1, 1")
    e("v_add_u32 v19, v19, v20")
    e("v_and_b32 v20, 7, v14")
    e("v_xor_b32 v20, v20, v15")
    e("v_lshlrev_b32 v20, 4, v20")
    e(f"v_add_u32 v{V_DMAC}, 0x400000, v20")
    e("v_lshl_add_u32 v19, v19, 7, v20")
    e(f"s_mul_i32 s6, s3, {NPB*128}")
    e("s_lshl_b32 s7, s4, 10")
    e("s_add_u32 s6, s6, s7")
    e("v_add_u32 v19, s6, v19")
    e("s_mul_i32 s7, s4, 1088")
    e(f"s_add_u32 m0, s7, {L_X_STG}")
    e("s_nop 0")
    e(f"buffer_load_dwordx4 v19, s[{S_X}:{S_X+3}], s{S_SOFF[0]} offen lds")
    e("s_and_b32 s6, s4, 3")
    e("s_lshl_b32 s7, s6, 12")
    e(f"s_add_u32 s7, s7, {WS_WB}")
    for ks in range(4):
        e(f"buffer_load_dwordx4 {vr(112+4*ks,4)}, v17, s[{S_WS}:{S_WS+3}], s7 offen offset:{1024*ks}")
    e("v_lshrrev_b32 v18, 5, v14")
    e("v_lshlrev_b32 v18, 4, v18")
    e("s_lshl_b32 s7, s6, 7")
    e(f"s_add_u32 s7, s7, {WS_B1}")
    for q in range(4):
        e(f"buffer_load_dwordx4 {vr(H+4*q,4)}, v18, s[{S_WS}:{S_WS+3}], s7 offen offset:{32*q}")
    e("s_mul_i32 s7, s4, 144")
    e(f"s_add_u32 m0, s7, {L_EXT}")
    e(f"s_add_u32 s7, s7, {WS_EXT}")
    e("s_mov_b64 exec, 0x1ff")
    e(f"buffer_load_dwordx4 v17, s[{S_WS}:{S_WS+3}], s7 offen lds")
    e("s_mov_b64 exec, -1")
    e(f"s_add_u32 m0, s5, {L_W2}")
    e(f"s_add_u32 s6, s5, {WS_W2}")
    e(f"buffer_load_dwordx4 v17, s[{S_WS}:{S_WS+3}], s6 offen lds")
    e(f"buffer_load_dwordx4 v17, s[{S_WS}:{S_WS+3}], s6 offen offset:1024 lds")
    lab("R_NOLOAD")
    e(f"v_lshlrev_b32 v18, 4, v{V_TID}")
    e(f"v_add_u32 v18, {L_LIST}, v18")
    for i in range(4): e(f"v_mov_b32 v{40+i}, {hex(PADENT)}")
    for i in range(4): e(f"v_mov_b32 v{44+i}, 0")
    e("ds_write_b128 v18, v[40:43]")
    e("ds_write_b128 v18, v[40:43] offset:8192")
    e(f"ds_write_b128 v18, v[44:47] offset:{L_SEL-L_LIST}")
    e(f"ds_write_b128 v18, v[44:47] offset:{L_SEL-L_LIST+8192}")
    e(f"ds_write_b128 v18, v[44:47] offset:{L_SEL-L_LIST+SELSZ-8192}")
    e(f"v_lshlrev_b32 v19, 2, v{V_TID}")
    e(f"v_add_u32 v19, {L_GQ}, v19")
    e(f"v_mov_b32 v20, {L_QT}")
    e("ds_write_b32 v19, v20")
    e(f"s_lshl_b32 s5, s{S_FIRST}, 6")
    e("s_add_u32 s5, s5, 80")
    e(f"v_cmp_gt_u32 vcc, s5, v{V_TID}")
    e("s_and_saveexec_b64 s[6:7], vcc")
    e(f"ds_write_b32 v19, v44 offset:{L_CNT-L_GQ}")
    e("s_mov_b64 exec, s[6:7]")
    e("v_and_b32 v20, 15, v14")
    e("v_add_u32 v21, 16, v20")
    e(f"v_add_u32 v22, s{S_RB}, v20")
    e(f"v_add_u32 v23, s{S_RB}, v21")
    e("v_bfrev_b32 v24, -2")
    e(f"v_cmp_gt_u32 vcc, s{S_WN}, v20")
    e("v_lshlrev_b32 v25, 6, v15")
    e("v_add_u32 v25, s4, v25")
    e("v_cndmask_b32 v26, v24, v22, vcc")
    e(f"v_cmp_gt_u32 vcc, s{S_WN}, v21")
    e(f"v_mul_u32_u24 v28, {CH}, v25")
    e("v_add_u32 v28, v28, v22")
    e("v_cndmask_b32 v27, v24, v23, vcc")
    e(f"v_cmp_gt_u32 vcc, {NCH-56}, v25")
    e(f"s_add_u32 s5, s{S_RB}, s{S_WN}")
    e(f"s_cmp_eq_u32 s{S_FIRST}, 0")
    e("s_cbranch_scc1 R_W0")
    e("s_waitcnt vmcnt(14)")
    e("s_branch R_W1")
    lab("R_W0")
    e("s_waitcnt vmcnt(0)")
    lab("R_W1")
    e("v_cndmask_b32 v39, 0, v39, vcc")
    for i in range(8):
        e(f"v_and_b32 v29, 0xffff, v{32+i}")
        e(f"v_lshrrev_b32 v{32+i}, 16, v{32+i}")
        e(f"v_add_lshl_u32 v{40+i}, v29, v28, 3")
        e(f"v_cmp_lt_u32 s[{S_MASK+2*i}:{S_MASK+2*i+1}], v26, v{32+i}")
        e(f"v_cmp_lt_u32 s[{S_MASK+16+2*i}:{S_MASK+17+2*i}], v27, v{32+i}")
    for ps in range(2):
        for i in range(8):
            k = ps * 8 + i
            e(f"s_mov_b32 s6, {i*8*CH*8}")
            e(f"s_or_b64 exec, s[{S_MASK+2*k}:{S_MASK+2*k+1}], 1")
            e(f"buffer_load_dwordx2 {vr(64+2*k,2)}, v{40+i}, s[{S_WS}:{S_WS+3}], s6 offen offset:{128*ps}")
    e("s_mov_b64 exec, -1")
    e("v_max3_u32 v29, v32, v33, v34")
    e("v_max3_u32 v29, v29, v35, v36")
    e("v_max3_u32 v29, v29, v37, v38")
    e("v_max_u32 v29, v29, v39")
    e("v_cmp_lt_u32 s[38:39], s5, v29")
    e("s_lshr_b32 s6, s2, 3")
    e(f"s_mul_i32 s6, s6, {391*128}")
    e(f"v_min_u32 v30, 390, v{V_TID}")
    e("v_lshl_add_u32 v30, v30, 7, s6")
    e(f"buffer_load_dword v31, v30, s[{S_X}:{S_X+3}], s{S_SOFF[0]} offen")
    e("s_waitcnt vmcnt(17) lgkmcnt(0)")
    e("s_barrier")
    e(f"s_cmp_eq_u32 s{S_FIRST}, 0")
    e("s_cbranch_scc1 R_NOQ")
    e("v_and_b32 v18, 31, v14")
    e("v_lshrrev_b32 v19, 5, v14")
    e("v_bfe_u32 v20, v18, 2, 1")
    e("v_and_b32 v21, 1, v18")
    e("v_lshl_add_u32 v20, v20, 1, v21")
    e("v_bfe_u32 v21, v18, 1, 1")
    e("v_lshrrev_b32 v22, 3, v18")
    e("v_lshl_add_u32 v23, v20, 1, v21")
    e("v_mul_u32_u24 v24, 1088, v22")
    e("v_lshl_add_u32 v24, v23, 7, v24")
    e("v_xor_b32 v25, v19, v20")
    e("v_lshl_add_u32 v26, v25, 4, v24")
    e("v_xor_b32 v25, 2, v25")
    e("v_lshl_add_u32 v27, v25, 4, v24")
    e(f"v_add_u32 v{V_AFA[0]}, s{S_M0[0]}, v26")
    e(f"v_add_u32 v{V_AFA[1]}, s{S_M0[0]}, v27")
    e("s_lshr_b32 s6, s4, 2")
    e("s_mul_i32 s7, s6, 4352")
    e(f"s_add_u32 s7, s7, {L_X_STG}")
    e("v_add_u32 v26, s7, v26")
    e("v_add_u32 v27, s7, v27")
    for ks in range(4):
        e(f"ds_read_b128 {vr(144+4*ks,4)}, v{26+(ks&1)} offset:{64*(ks>>1)}")
    for f in range(16):
        e(f"ds_read_b128 {vr(W+4*f,4)}, v17 offset:{L_WA_STG+1024*f}")
        if f == 7: e("s_waitcnt lgkmcnt(8)")
    for ks in range(4):
        mfma(H, 112 + 4 * ks, 144 + 4 * ks, vr(H, 16))
    cx_hi, cx_lo = find_cx(0x3F800000), find_cx(0x00803F80)
    e("v_cmp_eq_u32 vcc, 0, v19")
    e(f"v_mov_b32 v28, 0x03020100")
    e(f"v_mov_b32 v29, 0x0c080c0c")
    e(f"v_cndmask_b32 v{V_PSEL}, v28, v29, vcc")
    e(f"v_cndmask_b32 v{V_QMUL}, 0, 1, vcc")
    e("v_and_b32 v28, 3, v14")
    e("v_lshlrev_b32 v28, 3, v28")
    e("v_and_b32 v29, 1, v15")
    e("v_lshl_add_u32 v28, v29, 5, v28")
    e("v_bfe_u32 v29, v14, 2, 2")
    e("v_add_u32 v30, 1, v29")
    e("v_lshrrev_b32 v30, 1, v30")
    e("v_and_b32 v48, 1, v29")
    e("v_mul_u32_u24 v30, v30, v48")
    e("v_mul_u32_u24 v30, 320, v30")
    e(f"v_add_u32 v30, {L_EXT}, v30")
    e("v_cndmask_b32 v30, v30, 0, vcc")
    e(f"v_add_u32 v{V_QC}, v28, v30")
    e(f"v_mov_b32 v48, {hex(cx_lo)}")
    e(f"v_mov_b32 v49, {hex(cx_hi)}")
    e("v_and_b32 v50, 1, v20")
    e("v_cmp_eq_u32 s[6:7], 1, v50")
    e("v_lshrrev_b32 v51, 1, v20")
    e("s_nop 0")
    e("v_cndmask_b32 v48, v48, v49, s[6:7]")
    e("v_cmp_eq_u32 s[6:7], 0, v51")
    e("s_nop 1")
    e("v_cndmask_b32 v49, 0, v48, s[6:7]")
    e("v_cndmask_b32 v50, v48, 0, s[6:7]")
    e("v_cndmask_b32 v60, 1.0, v49, vcc")
    e("v_cndmask_b32 v61, 1.0, v50, vcc")
    e("v_cndmask_b32 v62, 0, v49, vcc")
    e("v_cndmask_b32 v63, 0, v50, vcc")
    e(f"s_mov_b32 s6, {hex(f2u(-LOG2E))}")
    e("s_lshr_b32 s7, s4, 2")
    e("s_lshl_b32 s7, s7, 5")
    e("v_add_u32 v28, s7, v18")
    e(f"v_cmp_gt_u32 vcc, {NPB}, v28")
    e(f"v_mul_u32_u24 v28, {QS}, v28")
    e("v_lshl_add_u32 v28, v19, 3, v28")
    e("s_and_b32 s7, s4, 3")
    e("s_lshl_b32 s7, s7, 6")
    e(f"s_add_u32 s7, s7, {L_QT}")
    e("v_add_u32 v28, s7, v28")
    for i in range(16):
        e(f"v_mul_f32 v{H+i}, s6, v{H+i}")
    for i in range(8):
        e(f"v_cvt_pk_bf16_f32 v{112+i}, v{H+2*i}, v{H+2*i+1}")
    for i in range(8):
        e(f"v_lshlrev_b32 v29, 16, v{112+i}")
        e(f"v_and_b32 v30, 0xffff0000, v{112+i}")
        e(f"v_sub_f32 v29, v{H+2*i}, v29")
        e(f"v_sub_f32 v30, v{H+2*i+1}, v30")
        e(f"v_cvt_pk_bf16_f32 v{120+i}, v29, v30")
    e("s_and_saveexec_b64 s[6:7], vcc")
    for q in range(4):
        e(f"ds_write_b64 v28, {vr(112+2*q,2)} offset:{16*q}")
        e(f"ds_write_b64 v28, {vr(120+2*q,2)} offset:{256+16*q}")
    e("s_mov_b64 exec, s[6:7]")
    for i in range(64):
        e(f"v_mov_b32 v{H+i}, 0")
    e("s_branch R_Q1")
    lab("R_NOQ")
    lab("R_Q1")
    e("v_mov_b32 v29, 1")
    e(f"v_mov_b32 v30, {L_FLAG}")
    e("s_mov_b64 exec, s[38:39]")
    e("ds_write_b32 v30, v29")
    for k in range(16):
        e(f"s_mov_b64 exec, s[{S_MASK+2*k}:{S_MASK+2*k+1}]")
        e(f"s_waitcnt vmcnt({16-k})")
        e(f"ds_add_rtn_u32 v{96+k}, v{65+2*k}, v29")
    e("s_mov_b64 exec, -1")
    e("v_lshlrev_b32 v28, 2, v14")
    e(f"v_add_u32 v28, {L_CNT}, v28")
    e("s_waitcnt lgkmcnt(0)")
    e("s_barrier")
    e("ds_read_b32 v32, v28")
    e("ds_read_b32 v33, v30")
    e(f"ds_read_b32 v34, v28 offset:{L_DEG-L_CNT}")
    e("s_waitcnt lgkmcnt(2)")
    e("v_add_u32 v35, 7, v32")
    e("v_and_b32 v35, -8, v35")
    e("v_mov_b32 v36, v35")
    scan64(36, 0, halves=True)
    e("s_nop 0")
    e("v_readlane_b32 s6, v36, 31")
    e("v_readlane_b32 s7, v36, 63")
    e("s_waitcnt lgkmcnt(0)")
    e(f"v_readfirstlane_b32 s{S_MORE}, v33")
    e("s_add_u32 s6, s6, 31")
    e(f"s_lshr_b32 s{S_TA}, s6, 5")
    e("s_add_u32 s7, s7, 31")
    e("s_lshr_b32 s7, s7, 5")
    e(f"s_add_u32 s{S_TT}, s{S_TA}, s7")
    e(f"s_mov_b32 s{S_FIRST}, 0")
    e(f"s_cmp_gt_u32 s{S_TT}, {MAXT}")
    e("s_cbranch_scc0 R_FITS")
    e(f"s_mov_b32 s{S_WN}, 12")
    e("s_waitcnt vmcnt(0)")
    e("s_barrier")
    e("s_branch ROUND")
    lab("R_FITS")
    e(f"s_lshl_b32 s6, s{S_TA}, 5")
    e("v_lshrrev_b32 v37, 5, v14")
    e("v_sub_u32 v36, v36, v35")
    e("v_mad_u32_u24 v36, v37, s6, v36")
    e(f"s_mov_b32 s7, {L_LIST // 4}")
    e("v_add_u32 v38, s7, v36")
    for k in range(16):
        e(f"ds_bpermute_b32 v{65+2*k}, v{65+2*k}, v38")
        if k == 7: e("s_waitcnt lgkmcnt(4)")
    e("v_add_u32 v34, v34, v32")
    e("s_cmp_eq_u32 s4, 0")
    e("s_cselect_b64 exec, -1, 0")
    e(f"ds_write_b32 v28, v34 offset:{L_DEG-L_CNT}")
    e("s_waitcnt lgkmcnt(0)")
    for k in range(16):
        e(f"s_mov_b64 exec, s[{S_MASK+2*k}:{S_MASK+2*k+1}]")
        e(f"v_add_lshl_u32 v48, v{65+2*k}, v{96+k}, 2")
        e(f"ds_write_b32 v48, v{64+2*k}")
    e("s_mov_b64 exec, -1")
    e("v_lshrrev_b32 v35, 3, v35")
    e("v_lshrrev_b32 v36, 3, v36")
    e(f"v_mul_u32_u24 v38, {32-SPLIT}, v37")
    e("v_sub_u32 v38, v14, v38")
    e(f"v_mul_u32_u24 v38, {QS}, v38")
    e(f"v_add_u32 v38, {L_QT}, v38")
    e("v_and_b32 v39, 31, v14")
    e("v_lshlrev_b32 v39, 2, v39")
    e(f"v_add_u32 v39, {L_SEL}, v39")
    e("v_mov_b32 v40, 0x3f80")
    e("s_mov_b32 s6, s4")
    lab("R_GT")
    e("v_cmp_lt_u32 vcc, s6, v35")
    e("s_and_b64 exec, exec, vcc")
    e("s_cbranch_execz R_GTE")
    e("v_add_u32 v41, s6, v36")
    e("v_lshlrev_b32 v42, 2, v41")
    e(f"v_add_u32 v42, {L_GQ}, v42")
    e("ds_write_b32 v42, v38")
    e("v_lshrrev_b32 v43, 1, v41")
    e(f"v_mul_u32_u24 v43, {SELS//2}, v43")
    e("v_and_b32 v41, 1, v41")
    e("v_lshl_add_u32 v43, v41, 1, v43")
    e("v_add_u32 v43, v43, v39")
    e("ds_write_b16 v43, v40")
    e("s_add_u32 s6, s6, 8")
    e("s_branch R_GT")
    lab("R_GTE")
    e("s_mov_b64 exec, -1")
    e("s_cmp_ge_u32 s4, 4")
    e(f"s_cselect_b32 s6, s{S_TA}, 0")
    e(f"s_cselect_b32 s7, s{S_TT}, s{S_TA}")
    e("s_sub_u32 s5, s4, s6")
    e("s_and_b32 s5, s5, 3")
    e(f"s_add_u32 s{S_T0}, s6, s5")
    e(f"s_sub_u32 s7, s7, s{S_T0}")
    e("s_add_u32 s7, s7, 3")
    e(f"s_ashr_i32 s{S_NT}, s7, 2")
    e(f"s_or_b32 s6, s{S_MORE}, s{S_RB}")
    e(f"s_or_b32 s{S_SAFE}, s{S_SAFE}, s6")
    for i in range(4): e(f"v_mov_b32 v{CX+i}, v{60+i}")
    e("s_waitcnt vmcnt(0) lgkmcnt(0)")
    e("s_barrier")

    lab("WAVE_START")
    e(f"v_mov_b32 v{V_DMAX}, 0")
    e(f"s_cmp_lt_i32 s{S_NT}, 1")
    e("s_cbranch_scc1 WAVE_DONE")
    e(f"s_mov_b32 s{S_REM}, s{S_NT}")
    e(f"v_and_b32 v14, 63, v{V_TID}")
    e(f"s_lshl_b32 s6, s{S_T0}, 7")
    e(f"s_add_u32 s6, s6, {L_LIST}")
    e("v_lshrrev_b32 v15, 3, v14")
    e(f"v_lshl_add_u32 v{V_LI}, v15, 4, s6")
    e(f"ds_read_b128 {vr(IDX,4)}, v{V_LI}")
    e(f"ds_read_b128 {vr(80,4)}, v{V_LI} offset:512")
    e(f"ds_read_b128 {vr(84,4)}, v{V_LI} offset:1024")
    e("v_bfe_u32 v15, v14, 2, 1")
    e("v_and_b32 v25, 1, v14")
    e("v_lshl_add_u32 v15, v15, 1, v25")
    e("v_bfe_u32 v25, v14, 1, 1")
    e("v_lshl_add_u32 v15, v15, 1, v25")
    e("v_bfe_u32 v25, v14, 3, 2")
    e("v_lshl_add_u32 v15, v15, 2, v25")
    e(f"v_lshl_add_u32 v{V_LM}, v15, 2, s6")
    e(f"s_lshl_b32 s6, s{S_T0}, 4")
    e(f"s_add_u32 s6, s6, {L_GQ}")
    e("v_bfe_u32 v15, v14, 2, 2")
    e(f"v_lshl_add_u32 v{V_GQA}, v15, 2, s6")
    e(f"ds_read_b32 v{V_M}, v{V_LM}")
    e(f"ds_read_b32 v{V_GQ}, v{V_GQA}")
    e("s_waitcnt lgkmcnt(4)")
    for s in mads(): e(s)
    dma(0)
    e("s_waitcnt lgkmcnt(3)")
    for j in range(4): e(f"v_mad_i32_i16 v{IDX+j}, v{80+j}, s{S_128}, v{V_DMAC}")
    dma(1)
    e(f"s_mul_i32 s6, s{S_T0}, {SELS}")
    e(f"s_add_u32 s6, s6, {L_SEL}")
    e("v_lshrrev_b32 v15, 5, v14")
    e(f"v_mul_u32_u24 v15, {SELS//2}, v15")
    e("v_and_b32 v25, 31, v14")
    e("v_lshl_add_u32 v15, v25, 2, v15")
    e(f"v_add_u32 v{V_SELA}, s6, v15")
    e("s_waitcnt lgkmcnt(0)")
    e(f"v_mad_u32_u24 v{V_QA}, v{V_GQ}, v{V_QMUL}, v{V_QC}")
    e(f"v_perm_b32 v{V_M}, v{V_M}, v{V_M}, v{V_PSEL}")
    for s in tr_reads(0, 0): e(s)
    for s in tr_reads(1, 1): e(s)
    for s in ax_build(): e(s)
    for i in range(20): e(f"v_mov_b32 v{SL+i}, 0")
    for i in range(2):
        e(f"v_mov_b32 v{NN+i}, 0")
        e(f"v_mov_b32 v{DD+i}, 1.0")
    for j in range(4): e(f"v_mad_i32_i16 v{IDX+j}, v{84+j}, s{S_128}, v{V_DMAC}")
    e("s_waitcnt vmcnt(4)")
    for ks in range(4): e(af_read(ks, 0))
    e("s_waitcnt lgkmcnt(0)")
    dma(0)
    mfma(D[0], AX, BX[0], "0")
    for ks in range(4):
        mfma(D[0], AF + 4 * ks, W + 4 * ks, vr(D[0], 16))
    e("s_nop 7")
    e("s_nop 3")
    e(f"s_cmp_lg_u32 s{S_SAFE}, 0")
    e("s_cbranch_scc1 LOOPS")
    mainloop(False)
    mainloop(True)
    for tau in range(4):
        lab(f"DRAIN{tau}")
        if tau == 0:
            e(f"ds_read_b32 v{SL}, v{V_SELA}")
        e(f"v_rcp_f32 v{RR}, v{DD}")
        e(f"v_rcp_f32 v{RR+1}, v{DD+1}")
        e(f"v_max3_f32 v{V_DMAX}, v{DD}, v{DD+1}, v{V_DMAX}")
        e(f"v_pk_mul_f32 {vr(RR,2)}, {vr(NN,2)}, {vr(RR,2)}")
        for t2 in range(tau + 1, 4): e(f"v_mov_b32 v{SL+t2}, 0")
        e(f"v_cvt_pk_bf16_f32 v{P+12+tau}, v{RR}, v{RR+1}")
        if tau < 3: e("s_branch DRAIN")
    lab("DRAIN")
    e("s_waitcnt lgkmcnt(0)")
    e("s_nop 1")
    for ct in range(4):
        mfma(H + 16 * ct, P + 4 * ct, SL, vr(H + 16 * ct, 16))
    lab("WAVE_DONE")
    e(f"s_cmp_eq_u32 s{S_MORE}, 0")
    e("s_cbranch_scc1 EPI")
    e(f"s_add_u32 s{S_RB}, s{S_RB}, s{S_WN}")
    for i in range(4): e(f"v_mov_b32 v{60+i}, v{CX+i}")
    e("s_waitcnt vmcnt(0) lgkmcnt(0)")
    e("s_barrier")
    e("s_branch ROUND")

    lab("EPI")
    e(f"v_and_b32 v14, 63, v{V_TID}")
    e("v_lshlrev_b32 v15, 4, v14")
    e(f"v_add_u32 v15, {L_W2}, v15")
    e("s_nop 7")
    for f in range(16):
        e(f"ds_read_b128 {vr(64+4*f,4)}, v15 offset:{1024*f}")
        if f == 7: e("s_waitcnt lgkmcnt(4)")
    for i in range(32):
        e(f"v_cvt_pk_bf16_f32 v{32+i}, v{H+2*i}, v{H+2*i+1}")
    e("s_waitcnt lgkmcnt(0)")
    for ks in range(8):
        for mt in range(2):
            mfma(H + 16 * mt, 64 + 4 * (mt * 8 + ks), 32 + 4 * ks, "0" if ks == 0 else vr(H + 16 * mt, 16))
    e("v_and_b32 v15, 31, v14")
    e("v_mul_u32_u24 v15, 272, v15")
    e("v_lshrrev_b32 v25, 5, v14")
    e("v_lshl_add_u32 v15, v25, 4, v15")
    e(f"v_add_u32 v15, s{S_M0[0]}, v15")
    e(f"s_mov_b32 s6, {hex(f2u(2.0**120))}")
    e(f"v_cmp_nge_f32 s[38:39], s6, v{V_DMAX}")
    e("s_movk_i32 s7, 0x207")
    e("s_nop 7")
    e(f"v_cmp_class_f32 vcc, v{H+16}, s7")
    e("s_or_b64 s[38:39], s[38:39], vcc")
    e("s_cbranch_scc0 EPI_OK")
    e(f"s_cmp_lg_u32 s{S_SAFE}, 0")
    e("s_cbranch_scc1 EPI_OK")
    e(f"s_mov_b32 s{S_SAFE}, 1")
    for i in range(64): e(f"v_mov_b32 v{H+i}, 0")
    e("s_waitcnt vmcnt(0)")
    e("s_branch WAVE_START")
    lab("EPI_OK")
    e("s_waitcnt vmcnt(0)")
    for mt in range(2):
        for q in range(4):
            e(f"ds_write_b128 v15, {vr(H+16*mt+4*q,4)} offset:{128*mt+32*q}")
    e(f"v_lshrrev_b32 v16, 3, v{V_TID}")
    e(f"v_and_b32 v17, 7, v{V_TID}")
    e(f"v_cmp_le_u32 vcc, {SPLIT}, v16")
    e("v_mul_u32_u24 v18, 272, v16")
    e("v_lshl_add_u32 v18, v17, 5, v18")
    e(f"v_add_u32 v19, {4*TBW - SPLIT*272}, v18")
    e("v_cndmask_b32 v18, v18, v19, vcc")
    e("v_lshlrev_b32 v19, 2, v16")
    e(f"v_add_u32 v19, {L_DEG}, v19")
    e(f"v_add_u32 v20, {4*(32-SPLIT)}, v19")
    e("v_cndmask_b32 v19, v19, v20, vcc")
    e("v_lshlrev_b32 v20, 5, v17")
    e(f"v_add_u32 v20, {L_EXT+896}, v20")
    e(f"v_cmp_gt_u32 vcc, {NPB}, v16")
    e(f"v_lshlrev_b32 v21, 4, v{V_TID}")
    e(f"s_mul_i32 s6, s3, {NPB*128}")
    e("v_add_u32 v21, s6, v21")
    e("s_waitcnt lgkmcnt(0)")
    e("s_barrier")
    e("s_and_b64 exec, exec, vcc")
    e("s_cbranch_execz K2_END")
    for s in range(4):
        e(f"ds_read_b128 {vr(32+8*s,4)}, v18 offset:{s*TBW}")
        e(f"ds_read_b128 {vr(36+8*s,4)}, v18 offset:{s*TBW+16}")
    e("ds_read_b32 v22, v19")
    e("ds_read_b128 v[64:67], v20")
    e("ds_read_b128 v[68:71], v20 offset:16")
    e(f"s_mov_b32 s6, {hex(f2u(-LN2))}")
    e("s_waitcnt lgkmcnt(7)")
    for i in range(8): e(f"v_add_f32 v{32+i}, v{32+i}, v{40+i}")
    e("s_waitcnt lgkmcnt(3)")
    for i in range(8): e(f"v_add_f32 v{48+i}, v{48+i}, v{56+i}")
    for i in range(8): e(f"v_add_f32 v{32+i}, v{32+i}, v{48+i}")
    e("s_waitcnt lgkmcnt(0)")
    e("v_cvt_f32_u32 v22, v22")
    for i in range(8): e(f"v_mul_f32 v{64+i}, v22, v{64+i}")
    for i in range(8): e(f"v_fma_f32 v{32+i}, v{32+i}, s6, v{64+i}")
    for i in range(4): e(f"v_cvt_pk_bf16_f32 v{40+i}, v{32+2*i}, v{33+2*i}")
    e(f"buffer_store_dwordx4 v[40:43], v21, s[{S_OUT}:{S_OUT+3}], 0 offen")
    lab("K2_END")
    e("s_endpgm")

hdr = open("standalone__edge_featured_mpnn_mpnn__graph.s.ref").read().split("; Override")[0]
out.append(hdr.rstrip())
out.append(f"; @launch kernel=bin_kernel grid=(256,1,1) block=(800,1,1) lds={K1_LDS}")
out.append(f"; @launch kernel=mpnn_kernel grid=(256,1,1) block=(512,1,1) lds={L_END}")
out.append('.amdgcn_target "amdgcn-amd-amdhsa--gfx950"')
out.append(".text")
k1()
k2()
out.append('.section .rodata,"a"')
out.append(kdesc("bin_kernel", 64, 48))
out.append(kdesc("mpnn_kernel", 256, 96))
dst = sys.argv[1] if len(sys.argv) > 1 else "standalone__edge_featured_mpnn_mpnn__graph.s"
open(dst, "w").write("\n".join(out) + "\n")
print("written", dst, "LDS", L_END)
```

```python
import re
def isize(s):
    s = s.strip()
    op = s.split()[0]
    if op.startswith(("ds_", "buffer_", "global_", "v_mfma", "v_pk_", "v_perm", "v_mad_", "v_max3", "v_cvt_pk_bf16", "v_fma_", "v_lshl_add", "v_and_or", "v_add3", "v_lshl_or", "v_bfe", "v_add_lshl", "s_load", "v_writelane", "s_memtime", "s_memrealtime")) or op.endswith(("_e64", "_dpp", "_sdwa")):
        return 8
    if op in ("s_waitcnt", "s_setprio", "s_nop", "s_barrier", "s_branch", "v_nop", "s_sleep") or op.startswith(("s_cbranch", "s_movk", "s_addk", "s_cmpk")):
        return 4
    for tok in re.split(r"[,\s]+", s)[1:]:
        if re.fullmatch(r"-?(0x[0-9a-fA-F]+|\d+)", tok):
            v = int(tok, 0)
            if not (-16 <= v <= 64): return 8
    return 4
def align(L, start=0):
    out = []; off = start
    for s in L:
        z = isize(s)
        if z == 8 and off % 8 == 4:
            k = len(out) - 1; done = False; o = off
            while k >= 0 and isize(out[k]) == 4:
                o -= 4
                op = out[k].split()[0]
                if op.startswith("v_") and op != "v_nop" and o % 8 == 0:
                    out[k] = out[k].replace(op, op + "_e64", 1); done = True; break
                k -= 1
            if not done: out.append("s_nop 0")
            off += 4
        out.append(s); off += z
    return out
```

```python
import struct, sys, os
import numpy as np
from align import align, isize

N, E = 12500, 800000
NPB, SPLIT = 49, 25
CH, CHS = 3128, 25088
NQ, NQL = CH // 4, (E - 255 * CH) // 4
LOG2E = 1.4426950408889634
LN2 = 0.6931471805599453
KN = "standalone__edge_featured_mpnn_mpnn__graph_kernel"
DIAG = int(os.environ.get("DIAG", "0"))
PREF = int(os.environ.get("PREF", "0"))
X_NOP = int(os.environ.get("X_NOP", "0"))
STF = os.environ.get("STF", "sc1")
LDF = os.environ.get("LDF", "")

def f2u(x): return struct.unpack("<I", struct.pack("<f", x))[0]
def u2f(u): return struct.unpack("<f", struct.pack("<I", u))[0]

WS_EPOCH = 0
WS_PT = 4096
WS_DESC = WS_PT + 12544 * 256
WS_ENT = WS_DESC + 256 * 2048
WS_SIZE = WS_ENT + 256 * CHS
WS_STAMP = 12 << 20
if DIAG: WS_SIZE = 16 << 20

L_CNT1, L_BASE1 = 0, 1024
L_CNT2, L_FLAG, L_DEG, L_B2 = 2048, 2304, 2368, 2816
L_EXT = 3072
L_TB = 4096
TBW = 8704
L_W1S, L_XS, L_PS, L_STG = L_TB, L_TB + 32768, L_TB + 41472, L_TB
PS = 272
assert L_PS + NPB * PS <= L_TB + 8 * TBW
L_LIST = L_TB + 8 * TBW
LISTCAP, MAXT = 4096, 116
L_SEL = L_LIST + LISTCAP * 4
SELS, SELSZ = 200, 23552
L_GQ = L_SEL + SELSZ
L_QT = L_GQ + 2048
QS = 328
L_W2 = (L_QT + NPB * QS + 255) // 256 * 256
L_END = L_W2 + 16384
assert L_END <= 163840, L_END
PADENT = 0x00007000
PSH = 3072

out = []
def e(s): out.append("    " + s)
def lab(s): out.append(s + ":")
def c(s): out.append("    ; " + s)
def vr(a, n): return f"v[{a}:{a+n-1}]"
def sr(a, n=4): return f"s[{a}:{a+n-1}]"

def stamp(i, real=False):
    if not DIAG: return
    e("s_waitcnt lgkmcnt(0)")
    e(f"{'s_memrealtime' if real else 's_memtime'} s[98:99]")
    e("s_waitcnt lgkmcnt(0)")
    e(f"v_writelane_b32 v255, s98, {i}")

def scan64(v):
    for sh in (1, 2, 4, 8):
        e("s_nop 1")
        e(f"v_add_u32_dpp v{v}, v{v}, v{v} row_shr:{sh} row_mask:0xf bank_mask:0xf bound_ctrl:1")
    e("s_nop 1")
    e(f"v_add_u32_dpp v{v}, v{v}, v{v} row_bcast:15 row_mask:0xa bank_mask:0xf")
    e("s_nop 1")
    e(f"v_add_u32_dpp v{v}, v{v}, v{v} row_bcast:31 row_mask:0xc bank_mask:0xf")

H = 192 - 8 if False else 176
C = (144, 160)
D = (112, 128)
T = 96
P = 80
SL = 76
BX = (72, 74)
IDX, IDR = 64, 68
NN, DD, RR, AX, CX, V_M = 16, 18, 20, 22, 24, 26
V_CA, V_DMAC, V_LI, V_LM, V_GQA, V_SELA, V_PSEL, V_QMUL, V_QC, V_GQ, V_QA, V_DMAX, V_TID, V_LANE = range(1, 15)
V_LIO, V_LMO, V_GQO, V_SELO = 28, 29, 30, 31
S_X, S_E, S_SRC, S_DST, S_W1, S_B1, S_W2, S_B2, S_OUT, S_WS, S_P = 8, 12, 16, 20, 24, 28, 32, 36, 40, 44, 48
S_MASK = 8
S_SOFF = 52
S_256, S_REM, S_M0, S_WN, S_RB, S_MORE, S_SAFE, S_TA, S_TT, S_NT, S_T0, S_TAGA, S_TAGB = 60, 61, (62, 63), 64, 65, 66, 67, 68, 69, 70, 71, 72, 73
S_B, S_W = 3, 4

def mf16(d, a, b, cc): return f"v_mfma_f32_32x32x16_bf16 {vr(d,16)}, {vr(a,4)}, {vr(b,4)}, {cc}"
def mfext(ct): return f"v_mfma_f32_32x32x8_bf16 {vr(D[ct&1],16)}, {vr(AX,2)}, {vr(BX[ct&1],2)}, {vr(C[ct&1],16)}"
def mfsel(ct): return mf16(H + 16 * ct, P + 4 * ct, SL, vr(H + 16 * ct, 16))
def dma(half):
    return [f"buffer_load_dwordx4 v{IDX+j}, {sr(S_P)}, s{S_SOFF+4*half+j} offen offset:{1024*j} lds" for j in range(4)]
def mads(src=IDR): return [f"v_mad_i32_i16 v{IDX+j}, v{src+j}, s{S_256}, v{V_DMAC}" for j in range(4)]
def c_reads(half):
    L = []
    for ctl in range(2):
        for r in range(16):
            mm = r >> 1
            L.append(f"ds_read_u16_d16_hi v{C[ctl]+r}, v{V_CA} offset:{half*4096 + (mm&3)*1024 + (2*(r&1) + (mm>>2))*128 + ctl*64}")
    return L
def tr_read(ct): return f"ds_read_b64_tr_b16 {vr(BX[ct&1],2)}, v{V_QA} offset:{64*ct}"
AXB = f"v_pk_mul_f32 {vr(AX,2)}, {vr(CX,2)}, {vr(V_M,2)} op_sel_hi:[1,0]"
QAB = f"v_mad_u32_u24 v{V_QA}, v{V_GQ}, v{V_QMUL}, v{V_QC}"
PERM = f"v_perm_b32 v{V_M}, v{V_M}, v{V_M}, v{V_PSEL}"

def block(tau, ct, safe, gate=False, last=False):
    cur = D[ct & 1]
    pc, pt = (ct - 1) & 3, (tau if ct > 0 else (tau - 1) & 3)
    tr = [f"v_exp_f32 v{T+i}, v{cur+i}" for i in range(16)] + [f"v_rcp_f32 v{RR}, v{DD}", f"v_rcp_f32 v{RR+1}, v{DD+1}"]
    mf = [] if last else [mfext((ct + 1) & 3)]
    if tau == 0: mf.append(mfsel(ct))
    fill = []
    if ct == 1: fill += mads() + [PERM]
    if ct == 2:
        fill += [QAB]
        if tau == 3:
            fill += [f"v_add_u32 v{V_LI}, 2048, v{V_LI}", f"v_add_u32 v{V_LM}, 2048, v{V_LM}",
                     f"v_add_u32 v{V_GQA}, 256, v{V_GQA}", f"v_add_u32 v{V_SELA}, {16*SELS}, v{V_SELA}"]
    fill.append(f"v_max3_f32 v{V_DMAX}, v{DD}, v{DD+1}, v{V_DMAX}")
    L = []
    k = 0
    if gate:
        L += [tr[0], "s_setprio 3"]; k = 1
    for m in mf:
        L.append(m); L += tr[k:k+4]; k += 4
    L += tr[k:] + fill
    L.append(f"v_pk_mul_f32 {vr(RR,2)}, {vr(NN,2)}, {vr(RR,2)}")
    cvt = f"v_cvt_pk_bf16_f32 v{P+4*pc+pt}, v{RR}, v{RR+1}"
    if not safe:
        L += [f"v_pk_add_f32 {vr(DD,2)}, {vr(T,2)}, 1.0 op_sel_hi:[1,0]", cvt]
        if ct == 2: L.append(AXB)
        for j in range(1, 8):
            n_in = vr(cur, 2) if j == 1 else vr(NN, 2)
            L += [f"v_pk_fma_f32 {vr(NN,2)}, {n_in}, {vr(T+2*j,2)}, {n_in}",
                  f"v_pk_fma_f32 {vr(NN,2)}, {vr(cur+2*j,2)}, {vr(DD,2)}, {vr(NN,2)}",
                  f"v_pk_fma_f32 {vr(DD,2)}, {vr(DD,2)}, {vr(T+2*j,2)}, {vr(DD,2)}"]
    else:
        L += [f"v_pk_add_f32 {vr(T+2*j,2)}, {vr(T+2*j,2)}, 1.0 op_sel_hi:[1,0]" for j in range(8)] + [cvt]
        if ct == 2: L.append(AXB)
        L += [f"v_rcp_f32 v{T+i}, v{T+i}" for i in range(16)]
        L.append(f"v_pk_mul_f32 {vr(NN,2)}, {vr(cur,2)}, {vr(T,2)}")
        L += [f"v_pk_fma_f32 {vr(NN,2)}, {vr(cur+2*j,2)}, {vr(T+2*j,2)}, {vr(NN,2)}" for j in range(1, 8)]
    return L

def memphase(tau, half):
    L = ["s_setprio 0", "s_waitcnt vmcnt(4)"]
    L += c_reads(half) + [tr_read(2 * half), tr_read(2 * half + 1)]
    if half == 1:
        L += [f"ds_read_b128 {vr(IDR,4)}, v{V_LI} offset:{(tau+2)*512}",
              f"ds_read_b32 v{V_M}, v{V_LM} offset:{(tau+1)*512}",
              f"ds_read_b32 v{V_GQ}, v{V_GQA} offset:{(tau+1)*64}"]
        if tau == 1: L.append(f"ds_read_b32 v{SL}, v{V_SELA}")
        if tau >= 1: L.append(f"ds_read_b32 v{SL+tau}, v{V_SELA} offset:{tau*4*SELS}")
    L += [f"s_mov_b32 m0, s{S_M0[half]}", "s_waitcnt lgkmcnt(0)"]
    L += dma(half)
    return L

def emit(L):
    L = align(L)
    assert sum(isize(x) for x in L) % 8 == 0
    for s in L: e(s)

def mainloop(safe):
    x = "S" if safe else "F"
    out.append(".p2align 6")
    lab(f"LOOP{x}")
    for tau in range(4):
        c(f"==== tile slot {tau}")
        emit(memphase(tau, 0))
        emit(block((tau - 1) & 3, 3, safe, gate=True))
        if tau == 0: lab(f"ENTER{x}")
        emit(block(tau, 0, safe))
        emit(memphase(tau, 1))
        emit(block(tau, 1, safe, gate=True))
        emit(block(tau, 2, safe))
        e(f"s_sub_u32 s{S_REM}, s{S_REM}, 1")
        if tau < 3: e(f"s_cbranch_scc1 TAIL{x}{tau}")
        else: e(f"s_cbranch_scc0 LOOP{x}")
    for tau in (3, 0, 1, 2):
        lab(f"TAIL{x}{tau}")
        emit(block(tau, 3, safe, last=True))
        if tau == 0: e(f"ds_read_b32 v{SL}, v{V_SELA}")
        e(f"v_rcp_f32 v{RR}, v{DD}")
        e(f"v_rcp_f32 v{RR+1}, v{DD+1}")
        e(f"v_max3_f32 v{V_DMAX}, v{DD}, v{DD+1}, v{V_DMAX}")
        e(f"v_pk_mul_f32 {vr(RR,2)}, {vr(NN,2)}, {vr(RR,2)}")
        for t2 in range(tau + 1, 4): e(f"v_mov_b32_e64 v{SL+t2}, 0")
        e(f"v_cvt_pk_bf16_f32 v{P+12+tau}, v{RR}, v{RR+1}")
        e("s_setprio 0")
        e("s_branch DRAIN")

def find_cx(target):
    m = np.float64(u2f(0x00FF0000))
    g = f2u(float(np.float32(np.float64(u2f(target)) / m)))
    for d in range(-3, 4):
        if f2u(float(np.float32(np.float64(u2f(g + d)) * m))) == target: return g + d
    raise SystemExit("no cx")

def lds_init_tables(tmp):
    e(f"v_lshlrev_b32 v{tmp+8}, 4, v{V_TID}")
    e(f"v_add_u32 v{tmp+8}, {L_LIST}, v{tmp+8}")
    for i in range(4): e(f"v_mov_b32 v{tmp+i}, {hex(PADENT)}")
    for i in range(4): e(f"v_mov_b32 v{tmp+4+i}, 0")
    e(f"ds_write_b128 v{tmp+8}, {vr(tmp,4)}")
    e(f"ds_write_b128 v{tmp+8}, {vr(tmp,4)} offset:8192")
    for o in (0, 8192, SELSZ - 8192):
        e(f"ds_write_b128 v{tmp+8}, {vr(tmp+4,4)} offset:{L_SEL-L_LIST+o}")
    e(f"v_lshlrev_b32 v{tmp+8}, 2, v{V_TID}")
    e(f"v_add_u32 v{tmp+9}, {L_GQ}, v{tmp+8}")
    e(f"v_mov_b32 v{tmp}, {L_QT}")
    e(f"ds_write_b32 v{tmp+9}, v{tmp}")

def kernel():
    lab(KN)
    e("s_cmp_ge_u32 s2, 256")
    e("s_cbranch_scc1 K_END")
    if DIAG: e("v_mov_b32 v255, 0")
    stamp(30, True); stamp(0)
    for s, off in ((S_DST, 24), (S_SRC, 16), (S_E, 8), (S_W1, 32), (S_X, 0), (S_WS, 80), (S_B1, 40), (S_W2, 48), (S_B2, 56), (S_OUT, 64)):
        e(f"s_load_dwordx2 {sr(s,2)}, s[0:1], {off}")
    e(f"v_mov_b32 v{V_TID}, v0")
    e(f"v_readfirstlane_b32 s{S_W}, v0")
    e(f"v_and_b32 v{V_LANE}, 63, v0")
    for s, sz in ((S_DST, E*4), (S_SRC, E*4), (S_E, E*2), (S_W1, 129*256), (S_X, N*128), (S_WS, WS_SIZE), (S_B1, 256), (S_W2, 16384), (S_B2, 128), (S_OUT, N*128), (S_P, N*256 + PSH)):
        e(f"s_mov_b32 s{s+2}, {sz}")
        e(f"s_mov_b32 s{s+3}, 0x00020000")
    e(f"s_lshr_b32 s{S_W}, s{S_W}, 6")
    e(f"s_and_b32 s{S_B}, s2, 7")
    e(f"s_lshl_b32 s{S_B}, s{S_B}, 5")
    e("s_lshr_b32 s5, s2, 3")
    e(f"s_add_u32 s{S_B}, s{S_B}, s5")
    e(f"s_mul_i32 s5, s2, {CH*4}")
    e("v_lshl_add_u32 v32, v0, 4, s5")
    e("s_cmp_eq_u32 s2, 255")
    e(f"s_movk_i32 s6, {NQ-512}")
    e(f"s_cmovk_i32 s6, {NQL-512}")
    e("v_cmp_gt_u32 s[74:75], s6, v0")
    e("v_add_u32 v33, 8192, v32")
    e("v_bfrev_b32 v36, 1")
    e("v_lshrrev_b32 v34, 1, v32")
    e("v_cndmask_b32 v33, v36, v33, s[74:75]")
    e("v_lshrrev_b32 v35, 1, v33")
    e(f"v_lshrrev_b32 v37, 4, v{V_LANE}")
    e(f"v_lshrrev_b32 v38, 5, v{V_LANE}")
    e(f"s_cmp_lt_u32 s{S_W}, 4")
    e("s_cbranch_scc1 P0_LO")
    e(f"v_lshlrev_b32 v39, 2, v37")
    e(f"v_xor_b32 v39, v39, v{V_LANE}")
    e("v_lshlrev_b32 v39, 4, v39")
    e(f"v_lshrrev_b32 v40, 3, v{V_LANE}")
    e("v_and_b32 v41, 4, v40")
    e("v_and_b32 v42, 1, v40")
    e("v_lshl_add_u32 v41, v42, 1, v41")
    e("v_and_b32 v42, 1, v37")
    e("v_add_u32 v41, v41, v42")
    e(f"v_and_b32 v43, 7, v{V_LANE}")
    e("v_xor_b32 v43, v43, v37")
    e("v_lshlrev_b32 v43, 4, v43")
    e("v_lshl_add_u32 v41, v41, 15, v43")
    e("v_lshlrev_b32 v42, 2, v42")
    e(f"v_xor_b32 v42, v42, v{V_LANE}")
    e("v_lshlrev_b32 v42, 4, v42")
    e(f"s_and_b32 s5, s{S_W}, 3")
    e("s_lshl_b32 s6, s5, 13")
    e("s_add_u32 s7, s6, 4096")
    e(f"s_add_u32 m0, s6, {L_W1S}")
    e("s_lshl_b32 s76, s5, 19")
    e(f"s_lshl_b32 s77, s{S_B}, 7")
    e("s_add_u32 s76, s76, s77")
    e("v_add_u32 v41, s76, v41")
    e("v_add_u32 v44, 0x40000, v41")
    e("v_lshlrev_b32 v43, 3, v38")
    e("s_lshl_b32 s77, s5, 6")
    e("s_waitcnt lgkmcnt(0)")
    for k in range(4): e(f"buffer_load_dwordx4 v39, {sr(S_W1)}, s6 offen offset:{1024*k} lds")
    e(f"s_add_u32 m0, s7, {L_W1S}")
    e("s_mul_i32 s76, s5, 2176")
    for k in range(4): e(f"buffer_load_dwordx4 v39, {sr(S_W1)}, s7 offen offset:{1024*k} lds")
    e(f"s_add_u32 m0, s76, {L_XS}")
    e("s_lshl_b32 s6, s5, 12")
    e(f"buffer_load_dwordx4 v41, {sr(S_X)}, 0 offen lds")
    e(f"s_add_u32 m0, s76, {L_XS+1088}")
    for q in range(4): e(f"buffer_load_dwordx2 {vr(104+2*q,2)}, v43, {sr(S_B1)}, s77 offen offset:{16*q}")
    e(f"buffer_load_dwordx4 v44, {sr(S_X)}, 0 offen lds")
    e(f"v_lshlrev_b32 v45, 2, v{V_LANE}")
    e(f"v_lshlrev_b32 v46, 1, v{V_LANE}")
    e(f"s_mov_b32 s7, {128*256}")
    e(f"buffer_load_dword v47, v45, {sr(S_W1)}, s7 offen")
    e(f"s_add_u32 m0, s6, {L_W2}")
    e(f"buffer_load_ushort v48, v46, {sr(S_B2)}, 0 offen")
    for k in range(4): e(f"buffer_load_dwordx4 v42, {sr(S_W2)}, s6 offen offset:{1024*k} lds")
    e("s_branch P0_EDGE")
    lab("P0_LO")
    for q in range(8): e(f"v_mov_b32 v{104+q}, 0")
    e("s_waitcnt lgkmcnt(0)")
    lab("P0_EDGE")
    e(f"buffer_load_dwordx4 v[64:67], v32, {sr(S_DST)}, 0 offen {LDF}")
    e(f"buffer_load_dwordx4 v[68:71], v33, {sr(S_DST)}, 0 offen {LDF}")
    e(f"buffer_load_dwordx4 v[72:75], v32, {sr(S_SRC)}, 0 offen {LDF}")
    e(f"buffer_load_dwordx4 v[76:79], v33, {sr(S_SRC)}, 0 offen {LDF}")
    e(f"buffer_load_dwordx2 v[80:81], v34, {sr(S_E)}, 0 offen {LDF}")
    e(f"buffer_load_dwordx2 v[82:83], v35, {sr(S_E)}, 0 offen {LDF}")
    e(f"s_load_dwordx2 s[78:79], {sr(S_WS,2)}, {WS_EPOCH}")
    e(f"s_add_u32 s{S_P}, s{S_WS}, {WS_PT - PSH}")
    e(f"s_addc_u32 s{S_P+1}, s{S_WS+1}, 0")
    for j in range(8): e(f"s_movk_i32 s{S_SOFF+j}, {PSH - 1024*(j&3) + 128*(j>>2)}")
    e(f"s_movk_i32 s{S_256}, 256")
    e(f"s_mul_i32 s{S_M0[0]}, s{S_W}, {TBW}")
    e(f"s_add_u32 s{S_M0[0]}, s{S_M0[0]}, {L_TB}")
    e(f"s_add_u32 s{S_M0[1]}, s{S_M0[0]}, 4096")
    e(f"s_mov_b32 s{S_WN}, 32")
    e(f"s_mov_b32 s{S_RB}, 0")
    e(f"s_mov_b32 s{S_SAFE}, 0")
    lds_init_tables(52)
    e(f"v_lshlrev_b32 v61, 3, v{V_TID}")
    e("ds_write_b64 v61, v[56:57]")
    e(f"v_and_b32 v39, 31, v{V_LANE}")
    e("v_lshlrev_b32 v40, 1, v39")
    e("v_lshl_add_u32 v40, v38, 9, v40")
    e(f"v_add_u32 v{V_CA}, s{S_M0[0]}, v40")
    e(f"v_and_b32 v40, 7, v{V_LANE}")
    e("v_lshlrev_b32 v40, 4, v40")
    e(f"v_add_u32 v{V_DMAC}, 0x800000, v40")
    e(f"v_lshrrev_b32 v40, 3, v{V_LANE}")
    e(f"v_lshlrev_b32 v40, 4, v40")
    e(f"v_add_u32 v{V_LIO}, {L_LIST}, v40")
    e("v_bfe_u32 v40, v39, 2, 1")
    e("v_and_b32 v41, 1, v39")
    e("v_lshl_add_u32 v40, v40, 1, v41")
    e("v_lshrrev_b32 v42, 3, v39")
    e("v_bfe_u32 v43, v39, 1, 1")
    e("v_lshl_add_u32 v44, v40, 2, v42")
    e("v_lshl_add_u32 v44, v44, 1, v43")
    e("v_lshlrev_b32 v44, 2, v44")
    e(f"v_add_u32 v{V_LMO}, {L_LIST}, v44")
    e(f"v_bfe_u32 v44, v{V_LANE}, 2, 2")
    e(f"v_lshlrev_b32 v49, 2, v44")
    e(f"v_add_u32 v{V_GQO}, {L_GQ}, v49")
    e(f"v_mul_u32_u24 v49, {SELS//2}, v38")
    e("v_lshl_add_u32 v49, v39, 2, v49")
    e(f"v_add_u32 v{V_SELO}, {L_SEL}, v49")
    e("v_cmp_eq_u32 vcc, 0, v38")
    e("v_mov_b32 v49, 0x03020100")
    e("v_mov_b32 v50, 0x0c080c0c")
    e(f"v_cndmask_b32 v{V_PSEL}, v49, v50, vcc")
    e(f"v_cndmask_b32 v{V_QMUL}, 0, 1, vcc")
    e(f"v_and_b32 v49, 3, v{V_LANE}")
    e("v_lshlrev_b32 v49, 3, v49")
    e("v_and_b32 v50, 1, v37")
    e("v_lshl_add_u32 v49, v50, 5, v49")
    e("v_add_u32 v50, 1, v44")
    e("v_lshrrev_b32 v50, 1, v50")
    e("v_and_b32 v51, 1, v44")
    e("v_mul_u32_u24 v50, v50, v51")
    e("v_mul_u32_u24 v50, 320, v50")
    e(f"v_add_u32 v50, {L_EXT}, v50")
    e("v_cndmask_b32 v50, v50, 0, vcc")
    e(f"v_add_u32 v{V_QC}, v49, v50")
    e(f"v_mov_b32 v50, {hex(find_cx(0x00803F80))}")
    e(f"v_mov_b32 v51, {hex(find_cx(0x3F800000))}")
    e("v_cmp_eq_u32 s[6:7], 1, v41")
    e("v_cmp_gt_u32 s[76:77], 2, v40")
    e("s_nop 0")
    e("v_cndmask_b32 v50, v50, v51, s[6:7]")
    e("v_cndmask_b32 v51, 0, v50, s[76:77]")
    e("v_cndmask_b32 v50, v50, 0, s[76:77]")
    e(f"v_cndmask_b32 v{CX}, 1.0, v51, vcc")
    e(f"v_cndmask_b32 v{CX+1}, 1.0, v50, vcc")
    for i in range(64): e(f"v_mov_b32 v{H+i}, 0")
    e(f"s_and_b32 s5, s{S_W}, 3")
    e("v_xor_b32 v50, s5, v44")
    e("v_lshl_add_u32 v50, v50, 6, v49")
    e("v_lshl_add_u32 v51, v38, 3, v44")
    e("v_lshl_add_u32 v50, v51, 8, v50")
    e(f"s_lshr_b32 s6, s{S_W}, 2")
    e("s_lshl_b32 s7, s6, 14")
    e(f"s_add_u32 s7, s7, {L_W1S}")
    e("v_add_u32 v50, s7, v50")
    e("v_lshl_add_u32 v51, v40, 1, v43")
    e("v_mul_u32_u24 v52, 1088, v42")
    e("v_lshl_add_u32 v52, v51, 7, v52")
    e("v_xor_b32 v53, v38, v40")
    e("v_lshl_add_u32 v51, v53, 4, v52")
    e("v_xor_b32 v53, 2, v53")
    e("v_lshl_add_u32 v52, v53, 4, v52")
    e("s_cmp_eq_u32 s6, 0")
    e(f"s_movk_i32 s6, {QS}")
    e(f"s_cmovk_i32 s6, {PS}")
    e(f"s_mov_b32 s7, {L_QT}")
    e(f"s_cmov_b32 s7, {L_PS}")
    e("s_lshl_b32 s5, s5, 6")
    e("s_add_u32 s7, s7, s5")
    e("v_mul_u32_u24 v53, s6, v39")
    e("v_lshl_add_u32 v53, v38, 3, v53")
    e("v_add_u32 v53, s7, v53")
    e("s_lshl_b32 s6, s6, 5")
    e("v_add_u32 v54, s6, v53")
    e(f"v_cmp_gt_u32 s[76:77], {NPB-32}, v39")
    e("s_waitcnt vmcnt(10) lgkmcnt(0)")
    e(f"s_mul_i32 s{S_TAGB}, s78, 1664525")
    e(f"s_add_u32 s{S_TAGB}, s{S_TAGB}, 1013904223")
    e(f"s_add_u32 s{S_TAGA}, s79, 0x01000000")
    e(f"s_and_b32 s{S_TAGA}, s{S_TAGA}, 0xff000000")
    e("s_barrier")
    stamp(1)
    for ks in range(4):
        e(f"ds_read_b64_tr_b16 {vr(88+4*ks,2)}, v50 offset:{4096*ks}")
        e(f"ds_read_b64_tr_b16 {vr(90+4*ks,2)}, v50 offset:{4096*ks+1024}")
        e(f"ds_read_b128 {vr(144+4*ks,4)}, v{51+(ks&1)} offset:{L_XS+64*(ks>>1)}")
    for ks in range(4):
        e(f"ds_read_b128 {vr(160+4*ks,4)}, v{51+(ks&1)} offset:{L_XS+4352+64*(ks>>1)}")
    for q in range(8):
        e(f"v_lshlrev_b32 v{128+2*q}, 16, v{104+q}")
        e(f"v_and_b32 v{129+2*q}, 0xffff0000, v{104+q}")
    e(f"s_cmp_eq_u32 s{S_W}, 4")
    e(f"s_mov_b32 s5, {hex(f2u(-LOG2E))}")
    e("s_cbranch_scc0 P0_NOEXT")
    e("v_lshlrev_b32 v56, 16, v47")
    e("v_and_b32 v57, 0xffff0000, v47")
    e("v_mul_f32 v56, s5, v56")
    e("v_mul_f32 v57, s5, v57")
    e("v_cvt_pk_bf16_f32 v58, v56, v57")
    e("v_lshlrev_b32 v59, 16, v58")
    e("v_and_b32 v60, 0xffff0000, v58")
    e("v_sub_f32 v59, v56, v59")
    e("v_sub_f32 v60, v57, v60")
    e("v_cvt_pk_bf16_f32 v59, v59, v60")
    e("v_lshlrev_b32 v48, 16, v48")
    e(f"ds_write_b32 v45, v58 offset:{L_EXT+320}")
    e(f"ds_write_b32 v45, v59 offset:{L_EXT+640}")
    e(f"ds_write_b32 v45, v48 offset:{L_B2}")
    lab("P0_NOEXT")
    e("s_waitcnt lgkmcnt(0)")
    for ks in range(4):
        e(mf16(112, 88 + 4*ks, 144 + 4*ks, vr(128 if ks == 0 else 112, 16)))
    for ks in range(4):
        e(mf16(128, 88 + 4*ks, 160 + 4*ks, vr(128, 16)))
    e("s_nop 7")
    for t in range(2):
        b = 112 + 16 * t
        for i in range(16): e(f"v_mul_f32 v{b+i}, s5, v{b+i}")
        for i in range(8): e(f"v_cvt_pk_bf16_f32 v{88+8*t+i}, v{b+2*i}, v{b+2*i+1}")
        if t == 1: e("s_mov_b64 exec, s[76:77]")
        for q in range(4): e(f"ds_write_b64 v{53+t}, {vr(88+8*t+2*q,2)} offset:{16*q}")
    e("s_mov_b64 exec, -1")
    stamp(2)
    e("v_mov_b32 v55, 1")
    e("s_movk_i32 s5, 0x7fff")
    e("s_add_u32 s5, s5, 1")
    e("s_waitcnt vmcnt(4)")
    stamp(3)
    SD = "dst_sel:DWORD dst_unused:UNUSED_PAD src0_sel:DWORD"
    def binA(j):
        e(f"v_lshlrev_b32_sdwa v{112+j}, 2, v{64+j} {SD} src1_sel:BYTE_0")
        e(f"v_lshlrev_b32_sdwa v{129+2*j}, 2, v{64+j} {SD} src1_sel:BYTE_1")
        e(f"ds_add_rtn_u32 v{120+j}, v{112+j}, v55 offset:{L_CNT1}")
    def binB(j):
        if j % 2 == 0: e(f"v_lshlrev_b32 v56, 16, v{80+j//2}")
        else: e(f"v_and_b32 v56, 0xffff0000, v{80+j//2}")
        e(f"v_or3_b32 v{128+2*j}, v56, v{72+j}, s5")
    for j in range(4): binA(j)
    e("s_mov_b64 exec, s[74:75]")
    e("s_cbranch_execz P1_A")
    for j in range(4, 8): binA(j)
    lab("P1_A")
    e("s_mov_b64 exec, -1")
    e("s_waitcnt lgkmcnt(0)")
    e("s_barrier")
    stamp(4)
    e(f"s_cmp_eq_u32 s{S_W}, 0")
    e("s_cbranch_scc1 P1_SCAN")
    e(f"v_subrev_u32 v56, 64, v{V_TID}")
    e("v_lshrrev_b32 v57, 4, v56")
    e("v_and_b32 v58, 15, v56")
    e("v_lshlrev_b32 v58, 4, v58")
    e(f"v_mul_u32_u24 v59, {PS}, v57")
    e("v_add_u32 v59, v59, v58")
    e(f"ds_read_b128 v[144:147], v59 offset:{L_PS}")
    e(f"ds_read_b128 v[148:151], v59 offset:{L_PS+28*PS}")
    e("v_lshl_add_u32 v58, v57, 16, v58")
    e(f"s_lshl_b32 s6, s{S_B}, 8")
    e(f"s_add_u32 s6, s6, {WS_PT}")
    e(f"s_add_u32 s7, s6, {28*65536}")
    e(f"v_cmp_gt_u32 vcc, {NPB-28}, v57")
    e("s_waitcnt vmcnt(0) lgkmcnt(1)")
    if not X_NOP: e(f"buffer_store_dwordx4 v[144:147], v58, {sr(S_WS)}, s6 offen {STF}")
    e("s_waitcnt lgkmcnt(0)")
    e("s_and_b64 exec, exec, vcc")
    e("s_cbranch_execz P1_P")
    if not X_NOP: e(f"buffer_store_dwordx4 v[148:151], v58, {sr(S_WS)}, s7 offen {STF}")
    lab("P1_P")
    e("s_mov_b64 exec, -1")
    for j in range(8): binB(j)
    e("s_barrier")
    e("s_branch P1_NOSCAN")
    lab("P1_SCAN")
    e(f"v_lshlrev_b32 v56, 4, v{V_LANE}")
    e(f"ds_read_b128 v[144:147], v56 offset:{L_CNT1}")
    e("s_waitcnt lgkmcnt(0)")
    e("v_add_u32 v57, v144, v145")
    e("v_add_u32 v58, v57, v146")
    e("v_add_u32 v59, v58, v147")
    e("v_mov_b32 v60, v59")
    scan64(59)
    e("v_sub_u32 v152, v59, v60")
    e("v_add_u32 v153, v152, v144")
    e("v_add_u32 v154, v152, v57")
    e("v_add_u32 v155, v152, v58")
    e(f"ds_write_b128 v56, v[152:155] offset:{L_BASE1}")
    e("s_waitcnt lgkmcnt(0)")
    e("s_barrier")
    for j in range(4):
        e(f"v_lshl_or_b32 v{160+2*j}, v{144+j}, 12, v{152+j}")
        e(f"v_or_b32 v{160+2*j}, s{S_TAGA}, v{160+2*j}")
        e(f"v_mov_b32 v{161+2*j}, s{S_TAGB}")
    e("s_waitcnt vmcnt(0)")
    for j in range(8): binB(j)
    lab("P1_NOSCAN")
    stamp(5)
    for j in range(4): e(f"ds_read_b32 v{112+j}, v{112+j} offset:{L_BASE1}")
    e("s_mov_b64 exec, s[74:75]")
    e("s_cbranch_execz P1_B0")
    for j in range(4, 8): e(f"ds_read_b32 v{112+j}, v{112+j} offset:{L_BASE1}")
    lab("P1_B0")
    e("s_mov_b64 exec, -1")
    e("s_waitcnt lgkmcnt(0)")
    for j in range(8):
        if j == 4:
            e("s_mov_b64 exec, s[74:75]")
            e("s_cbranch_execz P1_B")
        e(f"v_add_lshl_u32 v{112+j}, v{112+j}, v{120+j}, 3")
        e(f"ds_write_b64 v{112+j}, {vr(128+2*j,2)} offset:{L_STG}")
    lab("P1_B")
    e("s_mov_b64 exec, -1")
    e(f"v_lshlrev_b32 v56, 4, v{V_TID}")
    e(f"s_mul_i32 s5, s2, {CHS}")
    e(f"s_add_u32 s5, s5, {WS_ENT}")
    e("s_add_u32 s6, s5, 8192")
    e("s_add_u32 s7, s5, 16384")
    e(f"s_add_u32 s76, s5, {CHS-8192}")
    e("s_waitcnt lgkmcnt(0)")
    e("s_barrier")
    stamp(6)
    for k in range(3): e(f"ds_read_b128 {vr(112+4*k,4)}, v56 offset:{L_STG+8192*k}")
    e(f"s_cmp_eq_u32 s{S_W}, 7")
    e("s_cbranch_scc0 P1_C")
    e(f"ds_read_b128 v[124:127], v56 offset:{L_STG+CHS-8192}")
    e("s_waitcnt lgkmcnt(0)")
    e(f"buffer_store_dwordx4 v[124:127], v56, {sr(S_WS)}, s76 offen {STF}")
    lab("P1_C")
    for k in range(3):
        e(f"s_waitcnt lgkmcnt({2-k})")
        e(f"buffer_store_dwordx4 {vr(112+4*k,4)}, v56, {sr(S_WS)}, s{5+k} offen {STF}")
    e(f"v_lshlrev_b32 v56, 5, v{V_LANE}")
    e("s_lshl_b32 s5, s2, 11")
    e(f"s_add_u32 s5, s5, {WS_DESC}")
    e("s_waitcnt vmcnt(0)")
    e("s_barrier")
    stamp(7)
    e(f"s_cmp_eq_u32 s{S_W}, 0")
    e("s_cbranch_scc0 POLL0")
    e(f"buffer_store_dwordx4 v[160:163], v56, {sr(S_WS)}, s5 offen sc1")
    e(f"buffer_store_dwordx4 v[164:167], v56, {sr(S_WS)}, s5 offen offset:16 sc1")

    lab("POLL0")
    e(f"v_lshrrev_b32 v32, 4, v{V_LANE}")
    e(f"v_and_b32 v33, 7, v{V_LANE}")
    e("v_lshl_add_u32 v32, v32, 3, v33")
    e(f"s_lshl_b32 s5, s{S_W}, 5")
    e("v_add_u32 v32, s5, v32")
    e("v_lshlrev_b32 v33, 11, v32")
    e(f"s_lshl_b32 s5, s{S_B}, 3")
    e(f"s_add_u32 s5, s5, {WS_DESC}")
    e(f"buffer_load_dwordx2 v[34:35], v33, {sr(S_WS)}, s5 offen sc1")
    e(f"v_mul_u32_u24 v32, {CHS}, v32")
    e(f"v_and_b32 v36, 15, v{V_LANE}")
    e("v_add_u32 v37, 16, v36")
    e("v_bfrev_b32 v40, -2")
    e(f"v_cmp_gt_u32 vcc, s{S_WN}, v36")
    e(f"v_add_u32 v38, s{S_RB}, v36")
    e(f"v_add_u32 v39, s{S_RB}, v37")
    e("v_lshlrev_b32 v41, 3, v38")
    e("v_cndmask_b32 v38, v40, v38, vcc")
    e(f"v_cmp_gt_u32 vcc, s{S_WN}, v37")
    e("s_mov_b32 s6, 0x40000")
    e(f"s_mov_b32 s7, {WS_ENT}")
    e("v_cndmask_b32 v39, v40, v39, vcc")
    lab("POLL")
    e("s_waitcnt vmcnt(0)")
    e(f"v_xor_b32 v34, s{S_TAGA}, v34")
    e(f"v_cmp_ne_u32 s[76:77], s{S_TAGB}, v35")
    e("v_cmp_le_u32 vcc, 0x1000000, v34")
    e("s_or_b64 vcc, vcc, s[76:77]")
    e("s_cbranch_scc0 POLLED")
    e("s_sub_u32 s6, s6, 1")
    e("s_cbranch_scc1 K_END")
    e("s_sleep 1")
    e(f"buffer_load_dwordx2 v[34:35], v33, {sr(S_WS)}, s5 offen sc1")
    e("s_branch POLL")
    lab("POLLED")
    stamp(8)
    e("v_and_b32 v35, 0xfff, v34")
    e("v_lshrrev_b32 v34, 12, v34")
    e("v_lshl_add_u32 v35, v35, 3, v32")
    e(f"s_add_u32 s5, s{S_RB}, s{S_WN}")
    e("v_cmp_lt_u32 s[74:75], s5, v34")
    DP = "row_mask:0xf bank_mask:0xf"
    for i in range(8):
        e(f"v_mov_b32_dpp v42, v34 row_newbcast:{i} {DP}")
        e(f"v_add_u32_dpp v{44+i}, v35, v41 row_newbcast:{i} {DP}")
        e(f"v_cmp_lt_u32 {sr(S_MASK+2*i,2)}, v38, v42")
        e(f"v_cmp_lt_u32 {sr(S_MASK+16+2*i,2)}, v39, v42")
        e(f"s_or_b64 exec, {sr(S_MASK+2*i,2)}, 1")
        e(f"buffer_load_dwordx2 {vr(112+2*i,2)}, v{44+i}, {sr(S_WS)}, s7 offen sc1")
        e("s_mov_b64 exec, -1")
    for i in range(8):
        e(f"s_or_b64 exec, {sr(S_MASK+16+2*i,2)}, 1")
        e(f"buffer_load_dwordx2 {vr(128+2*i,2)}, v{44+i}, {sr(S_WS)}, s7 offen offset:128 sc1")
    e("s_mov_b64 exec, -1")
    e("v_mov_b32 v55, 1")
    e(f"v_lshlrev_b32 v54, 2, v{V_LANE}")
    e("v_mov_b32 v53, 0")
    e("s_mov_b64 exec, s[74:75]")
    e(f"ds_write_b32 v53, v55 offset:{L_FLAG}")
    for k in range(16):
        e(f"s_mov_b64 exec, {sr(S_MASK+2*k,2)}")
        if k >= 8: e(f"s_cbranch_execz R_A{k}")
        e(f"s_waitcnt vmcnt({15-k})")
        e(f"ds_add_rtn_u32 v{144+k}, v{113+2*k}, v55 offset:{L_CNT2}")
        if k >= 8: lab(f"R_A{k}")
    e("s_mov_b64 exec, -1")
    e("s_waitcnt vmcnt(0) lgkmcnt(0)")
    e("s_barrier")
    stamp(9)
    e(f"ds_read_b32 v32, v54 offset:{L_CNT2}")
    e(f"ds_read_b32 v33, v53 offset:{L_FLAG}")
    e(f"ds_read_b32 v34, v54 offset:{L_DEG}")
    if PREF:
        e("s_lshr_b32 s6, s2, 3")
        e(f"s_mul_i32 s6, s6, {782*128}")
        e(f"s_add_u32 s6, s6, {PSH}")
        e(f"v_min_u32 v56, 390, v{V_TID}")
        e("v_lshlrev_b32 v56, 8, v56")
        e(f"buffer_load_dword v57, v56, {sr(S_P)}, s6 offen")
        e(f"buffer_load_dword v58, v56, {sr(S_P)}, s6 offen offset:128")
    e("s_waitcnt lgkmcnt(2)")
    e("v_add_u32 v35, 7, v32")
    e("v_and_b32 v35, -8, v35")
    e("v_mov_b32 v36, v35")
    scan64(36)
    e(f"v_cmp_le_u32 vcc, {SPLIT}, v{V_LANE}")
    e(f"v_readlane_b32 s6, v36, {SPLIT-1}")
    e("v_readlane_b32 s7, v36, 63")
    e("s_waitcnt lgkmcnt(0)")
    e(f"v_readfirstlane_b32 s{S_MORE}, v33")
    e("v_sub_u32 v36, v36, v35")
    e("s_add_u32 s5, s6, 31")
    e(f"s_lshr_b32 s{S_TA}, s5, 5")
    e("s_and_b32 s5, s5, -32")
    e("s_sub_u32 s5, s5, s6")
    e("s_add_u32 s7, s7, s5")
    e("s_add_u32 s7, s7, 31")
    e(f"s_lshr_b32 s{S_TT}, s7, 5")
    e(f"s_cmp_gt_u32 s{S_TT}, {MAXT}")
    e("s_cbranch_scc0 R_FITS")
    e(f"s_mov_b32 s{S_WN}, 12")
    e("s_branch NEXT_ROUND")
    lab("R_FITS")
    e("v_add_u32 v37, s5, v36")
    e("v_cndmask_b32 v36, v36, v37, vcc")
    e(f"v_add_u32 v38, {L_LIST//4}, v36")
    for k in range(8): e(f"ds_bpermute_b32 v{113+2*k}, v{113+2*k}, v38")
    for k in range(8, 16):
        e(f"s_cmp_eq_u64 {sr(S_MASK+2*k,2)}, 0")
        e(f"s_cbranch_scc1 R_B{k}")
        e(f"ds_bpermute_b32 v{113+2*k}, v{113+2*k}, v38")
        lab(f"R_B{k}")
    e("v_add_u32 v34, v34, v32")
    e("v_lshrrev_b32 v35, 3, v35")
    e("v_lshrrev_b32 v36, 3, v36")
    e(f"v_mul_u32_u24 v39, {QS}, v{V_LANE}")
    e(f"v_add_u32 v39, {L_QT}, v39")
    e(f"v_add_u32 v40, {L_SEL}, v54")
    e(f"v_add_u32 v41, {L_SEL-4*SPLIT}, v54")
    e("v_cndmask_b32 v40, v40, v41, vcc")
    e("v_mov_b32 v41, 0x3f80")
    e(f"s_cmp_eq_u32 s{S_W}, 0")
    e("s_cbranch_scc0 R_ND")
    e(f"ds_write_b32 v54, v34 offset:{L_DEG}")
    e("s_cmp_eq_u32 s2, 0")
    e("s_cbranch_scc0 R_ND")
    e(f"v_mov_b32 v42, s{S_TAGB}")
    e(f"v_mov_b32 v43, s{S_TAGA}")
    e("s_mov_b64 exec, 1")
    e(f"buffer_store_dwordx2 v[42:43], v53, {sr(S_WS)}, 0 offen offset:{WS_EPOCH}")
    e("s_mov_b64 exec, -1")
    lab("R_ND")
    e("s_waitcnt lgkmcnt(0)")
    for k in range(16):
        e(f"s_mov_b64 exec, {sr(S_MASK+2*k,2)}")
        if k >= 8: e(f"s_cbranch_execz R_C{k}")
        e(f"v_add_lshl_u32 v{113+2*k}, v{113+2*k}, v{144+k}, 2")
        e(f"ds_write_b32 v{113+2*k}, v{112+2*k}")
        if k >= 8: lab(f"R_C{k}")
    e("s_mov_b64 exec, -1")
    e(f"s_mov_b32 s6, s{S_W}")
    lab("R_GT")
    e("v_cmp_lt_u32 vcc, s6, v35")
    e("s_and_b64 exec, exec, vcc")
    e("s_cbranch_execz R_GTE")
    e("v_add_u32 v44, s6, v36")
    e("v_lshlrev_b32 v45, 2, v44")
    e(f"v_add_u32 v45, {L_GQ}, v45")
    e("ds_write_b32 v45, v39")
    e("v_lshrrev_b32 v46, 1, v44")
    e(f"v_mul_u32_u24 v46, {SELS//2}, v46")
    e("v_and_b32 v44, 1, v44")
    e("v_lshl_add_u32 v46, v44, 1, v46")
    e("v_add_u32 v46, v46, v40")
    e("ds_write_b16 v46, v41")
    e("s_add_u32 s6, s6, 8")
    e("s_branch R_GT")
    lab("R_GTE")
    e("s_mov_b64 exec, -1")
    e(f"s_cmp_ge_u32 s{S_W}, 4")
    e(f"s_cselect_b32 s6, s{S_TA}, 0")
    e(f"s_cselect_b32 s7, s{S_TT}, s{S_TA}")
    e(f"s_sub_u32 s5, s{S_W}, s6")
    e("s_and_b32 s5, s5, 3")
    e(f"s_add_u32 s{S_T0}, s6, s5")
    e(f"s_sub_u32 s7, s7, s{S_T0}")
    e("s_add_u32 s7, s7, 3")
    e(f"s_ashr_i32 s{S_NT}, s7, 2")
    e(f"s_or_b32 s6, s{S_MORE}, s{S_RB}")
    e(f"s_or_b32 s{S_SAFE}, s{S_SAFE}, s6")
    e("s_waitcnt lgkmcnt(0)")
    e("s_barrier")
    lab("WAVE_START")
    stamp(10)
    e(f"v_mov_b32 v{V_DMAX}, 0")
    e(f"s_cmp_lt_i32 s{S_NT}, 1")
    e("s_cbranch_scc1 WAVE_DONE")
    e(f"s_lshl_b32 s6, s{S_T0}, 7")
    e(f"v_add_u32 v{V_LI}, s6, v{V_LIO}")
    e(f"ds_read_b128 {vr(IDX,4)}, v{V_LI}")
    e(f"ds_read_b128 {vr(IDR,4)}, v{V_LI} offset:512")
    e(f"v_add_u32 v{V_LM}, s6, v{V_LMO}")
    e(f"s_lshl_b32 s6, s{S_T0}, 4")
    e(f"v_add_u32 v{V_GQA}, s6, v{V_GQO}")
    e(f"ds_read_b32 v{V_M}, v{V_LM}")
    e(f"ds_read_b32 v{V_GQ}, v{V_GQA}")
    e(f"s_mul_i32 s6, s{S_T0}, {SELS}")
    e(f"v_add_u32 v{V_SELA}, s6, v{V_SELO}")
    e(f"s_sub_u32 s{S_REM}, s{S_NT}, 1")
    e(f"s_mov_b32 m0, s{S_M0[0]}")
    e("s_waitcnt lgkmcnt(3)")
    for s in mads(IDX): e(s)
    for s in dma(0): e(s)
    e(f"s_mov_b32 m0, s{S_M0[1]}")
    e("s_waitcnt lgkmcnt(0)")
    for s in dma(1): e(s)
    for s in mads(): e(s)
    e(QAB); e(PERM)
    for i in range(20): e(f"v_mov_b32 v{SL+i}, 0")
    for i in range(32): e(f"v_mov_b32 v{C[0]+i}, 0")
    for i in range(2):
        e(f"v_mov_b32 v{NN+i}, 0")
        e(f"v_mov_b32 v{DD+i}, 1.0")
    e(AXB)
    for s in memphase(0, 0): e(s)
    e(mfext(0))
    e("s_nop 7")
    e("s_nop 1")
    stamp(11); stamp(28, True)
    e(f"s_cmp_lg_u32 s{S_SAFE}, 0")
    e("s_cbranch_scc1 ENTERS")
    e("s_branch ENTERF")
    mainloop(False)
    mainloop(True)
    lab("DRAIN")
    e("s_waitcnt lgkmcnt(0)")
    for ct in range(4): e(mfsel(ct))
    lab("WAVE_DONE")
    stamp(12); stamp(29, True)
    e(f"s_cmp_eq_u32 s{S_MORE}, 0")
    e("s_cbranch_scc1 EPI")
    e(f"s_add_u32 s{S_RB}, s{S_RB}, s{S_WN}")
    lab("NEXT_ROUND")
    e("s_waitcnt vmcnt(0) lgkmcnt(0)")
    e("s_barrier")
    lds_init_tables(32)
    e(f"v_cmp_gt_u32 vcc, 80, v{V_TID}")
    e("s_and_saveexec_b64 s[6:7], vcc")
    e(f"ds_write_b32 v40, v36 offset:{L_CNT2}")
    e("s_mov_b64 exec, s[6:7]")
    e("s_waitcnt lgkmcnt(0)")
    e("s_barrier")
    e("s_branch POLL0")

    lab("EPI")
    e(f"v_bfe_u32 v32, v{V_LANE}, 2, 2")
    e(f"v_lshrrev_b32 v33, 5, v{V_LANE}")
    e("v_lshl_add_u32 v34, v33, 2, v32")
    e("v_lshlrev_b32 v34, 7, v34")
    e("v_lshrrev_b32 v32, 1, v32")
    e("v_lshl_add_u32 v34, v32, 6, v34")
    e(f"v_and_b32 v35, 63, v{V_QC}")
    e("v_add_u32 v34, v34, v35")
    e(f"v_add_u32 v34, {L_W2}, v34")
    e("v_xor_b32 v35, 64, v34")
    for ks in range(8):
        for mt in range(2):
            for t in range(2):
                e(f"ds_read_b64_tr_b16 {vr(112+8*ks+4*mt+2*t,2)}, v{34+mt} offset:{2048*ks+1024*t}")
    for i in range(32): e(f"v_cvt_pk_bf16_f32 v{64+i}, v{H+2*i}, v{H+2*i+1}")
    e("s_waitcnt lgkmcnt(0)")
    for ks in range(8):
        for mt in range(2):
            e(mf16(H + 16*mt, 112 + 8*ks + 4*mt, 64 + 4*ks, "0" if ks == 0 else vr(H + 16*mt, 16)))
    e(f"v_and_b32 v32, 31, v{V_LANE}")
    e("v_mul_u32_u24 v32, 272, v32")
    e("v_lshl_add_u32 v32, v33, 4, v32")
    e(f"v_add_u32 v32, s{S_M0[0]}, v32")
    e(f"s_mov_b32 s6, {hex(f2u(2.0**120))}")
    e(f"v_cmp_nge_f32 s[76:77], s6, v{V_DMAX}")
    e(f"v_lshrrev_b32 v36, 3, v{V_TID}")
    e(f"v_and_b32 v37, 7, v{V_TID}")
    e(f"v_cmp_le_u32 vcc, {SPLIT}, v36")
    e("v_mul_u32_u24 v38, 272, v36")
    e("v_lshl_add_u32 v38, v37, 5, v38")
    e(f"v_add_u32 v39, {4*TBW - SPLIT*272}, v38")
    e("v_cndmask_b32 v38, v38, v39, vcc")
    e("v_lshlrev_b32 v39, 2, v36")
    e("v_lshlrev_b32 v40, 5, v37")
    e("v_lshlrev_b32 v41, 15, v36")
    e("v_lshl_add_u32 v41, v37, 4, v41")
    e(f"s_lshl_b32 s5, s{S_B}, 7")
    e("v_add_u32 v41, s5, v41")
    e("s_movk_i32 s7, 0x207")
    e(f"v_cmp_class_f32 vcc, v{H+16}, s7")
    e("s_or_b64 s[76:77], s[76:77], vcc")
    e("s_cbranch_scc0 EPI_OK")
    e(f"s_cmp_lg_u32 s{S_SAFE}, 0")
    e("s_cbranch_scc1 EPI_OK")
    e(f"s_mov_b32 s{S_SAFE}, 1")
    for i in range(64): e(f"v_mov_b32 v{H+i}, 0")
    e("s_waitcnt vmcnt(0)")
    e("s_branch WAVE_START")
    lab("EPI_OK")
    e("s_waitcnt vmcnt(0)")
    for mt in range(2):
        for q in range(4):
            e(f"ds_write_b128 v32, {vr(H+16*mt+4*q,4)} offset:{128*mt+32*q}")
    e(f"v_cmp_gt_u32 vcc, {NPB}, v36")
    e("s_waitcnt lgkmcnt(0)")
    e("s_barrier")
    stamp(13)
    e("s_and_b64 exec, exec, vcc")
    e("s_cbranch_execz K_FIN")
    for s in range(4):
        e(f"ds_read_b128 {vr(64+8*s,4)}, v38 offset:{L_TB+s*TBW}")
        e(f"ds_read_b128 {vr(68+8*s,4)}, v38 offset:{L_TB+s*TBW+16}")
    e(f"ds_read_b32 v42, v39 offset:{L_DEG}")
    e(f"ds_read_b128 v[96:99], v40 offset:{L_B2}")
    e(f"ds_read_b128 v[100:103], v40 offset:{L_B2+16}")
    e(f"s_mov_b32 s6, {hex(f2u(-LN2))}")
    e("s_waitcnt lgkmcnt(7)")
    for i in range(4): e(f"v_pk_add_f32 {vr(64+2*i,2)}, {vr(64+2*i,2)}, {vr(72+2*i,2)}")
    e("s_waitcnt lgkmcnt(3)")
    for i in range(4): e(f"v_pk_add_f32 {vr(80+2*i,2)}, {vr(80+2*i,2)}, {vr(88+2*i,2)}")
    for i in range(4): e(f"v_pk_add_f32 {vr(64+2*i,2)}, {vr(64+2*i,2)}, {vr(80+2*i,2)}")
    e("s_waitcnt lgkmcnt(0)")
    e("v_cvt_f32_u32 v42, v42")
    for i in range(4): e(f"v_pk_mul_f32 {vr(96+2*i,2)}, {vr(96+2*i,2)}, v[42:43] op_sel_hi:[1,0]")
    for i in range(8): e(f"v_fma_f32 v{64+i}, v{64+i}, s6, v{96+i}")
    for i in range(4): e(f"v_cvt_pk_bf16_f32 v{72+i}, v{64+2*i}, v{65+2*i}")
    e(f"buffer_store_dwordx4 v[72:75], v41, {sr(S_OUT)}, 0 offen")
    lab("K_FIN")
    if DIAG:
        e("s_mov_b64 exec, -1")
        e("s_waitcnt vmcnt(0)")
        stamp(14); stamp(31, True)
        e(f"v_writelane_b32 v255, s{S_NT}, 27")
        e("s_lshl_b32 s5, s2, 11")
        e(f"s_add_u32 s5, s5, {WS_STAMP}")
        e(f"v_lshlrev_b32 v1, 2, v{V_TID}")
        e(f"buffer_store_dword v255, v1, {sr(S_WS)}, s5 offen")
    lab("K_END")
    e("s_endpgm")

hdr = open("standalone__edge_featured_mpnn_mpnn__graph.s.ref").read().split("; Override")[0]
out.append(hdr.rstrip())
out.append(f"; @launch grid=(256,1,1) block=(512,1,1) lds={L_END}")
out.append('.amdgcn_target "amdgcn-amd-amdhsa--gfx950"')
out.append(".text")
out.append(f".globl {KN}")
out.append(".p2align 8")
out.append(f".type {KN},@function")
kernel()
out.append(f""".section .rodata,"a"
.p2align 6
.amdhsa_kernel {KN}
  .amdhsa_next_free_vgpr 256
  .amdhsa_next_free_sgpr 102
  .amdhsa_accum_offset 256
  .amdhsa_group_segment_fixed_size 0
  .amdhsa_kernarg_size 88
  .amdhsa_user_sgpr_count 2
  .amdhsa_user_sgpr_kernarg_segment_ptr 1
  .amdhsa_system_sgpr_workgroup_id_x 1
.end_amdhsa_kernel""")
dst = sys.argv[1] if len(sys.argv) > 1 else "standalone__edge_featured_mpnn_mpnn__graph.s"
open(dst, "w").write("\n".join(out) + "\n")
print("written", dst, "LDS", L_END)
```

```python
import struct, sys, os
import numpy as np
from align import align, isize

N, E = 12500, 800000
NPB, SPLIT = 49, 25
CH, CHS = 3128, 25088
NQ, NQL = CH // 4, (E - 255 * CH) // 4
LOG2E = 1.4426950408889634
LN2 = 0.6931471805599453
KN = "standalone__edge_featured_mpnn_mpnn__graph_kernel"
DIAG = int(os.environ.get("DIAG", "0"))
PREF = int(os.environ.get("PREF", "0"))
X_NOP = int(os.environ.get("X_NOP", "0"))
STF = os.environ.get("STF", "sc1")
LDF = os.environ.get("LDF", "")

def f2u(x): return struct.unpack("<I", struct.pack("<f", x))[0]
def u2f(u): return struct.unpack("<f", struct.pack("<I", u))[0]

WS_EPOCH = 0
WS_PT = 4096
WS_DESC = WS_PT + 12544 * 256
WS_ENT = WS_DESC + 256 * 2048
WS_SIZE = WS_ENT + 256 * CHS
WS_STAMP = 12 << 20
if DIAG: WS_SIZE = 16 << 20

L_CNT1, L_BASE1 = 0, 1024
L_CNT2, L_FLAG, L_DEG, L_B2 = 2048, 2304, 2368, 2816
L_EXT = 3072
L_TB = 4096
TBW = 8704
L_W1S, L_XS, L_PS, L_STG = L_TB, L_TB + 32768, L_TB + 41472, L_TB
PS = 272
assert L_PS + NPB * PS <= L_TB + 8 * TBW
L_LIST = L_TB + 8 * TBW
LISTCAP, MAXT = 4096, 116
L_SEL = L_LIST + LISTCAP * 4
SELS, SELSZ = 200, 23552
L_GQ = L_SEL + SELSZ
L_QT = L_GQ + 2048
QS = 328
L_W2 = (L_QT + NPB * QS + 255) // 256 * 256
L_END = L_W2 + 16384
assert L_END <= 163840, L_END
PADENT = 0x00007000
PSH = 3072

out = []
def e(s): out.append("    " + s)
def lab(s): out.append(s + ":")
def c(s): out.append("    ; " + s)
def vr(a, n): return f"v[{a}:{a+n-1}]"
def sr(a, n=4): return f"s[{a}:{a+n-1}]"

SPIN = int(os.environ.get("SPIN", "-1"))
def stamp(i, real=False):
    if SPIN == i:
        e("s_waitcnt lgkmcnt(0)")
        e("s_memrealtime s[96:97]")
        e("s_waitcnt lgkmcnt(0)")
    if not DIAG: return
    e("s_waitcnt lgkmcnt(0)")
    e(f"{'s_memrealtime' if real else 's_memtime'} s[98:99]")
    e("s_waitcnt lgkmcnt(0)")
    e(f"v_writelane_b32 v255, s98, {i}")

def scan64(v):
    for sh in (1, 2, 4, 8):
        e("s_nop 1")
        e(f"v_add_u32_dpp v{v}, v{v}, v{v} row_shr:{sh} row_mask:0xf bank_mask:0xf bound_ctrl:1")
    e("s_nop 1")
    e(f"v_add_u32_dpp v{v}, v{v}, v{v} row_bcast:15 row_mask:0xa bank_mask:0xf")
    e("s_nop 1")
    e(f"v_add_u32_dpp v{v}, v{v}, v{v} row_bcast:31 row_mask:0xc bank_mask:0xf")

H = 192 - 8 if False else 176
C = (144, 160)
D = (112, 128)
T = 96
P = 80
SL = 76
BX = (72, 74)
IDX, IDR = 64, 68
NN, DD, RR, AX, CX, V_M = 16, 18, 20, 22, 24, 26
V_CA, V_DMAC, V_LI, V_LM, V_GQA, V_SELA, V_PSEL, V_QMUL, V_QC, V_GQ, V_QA, V_DMAX, V_TID, V_LANE = range(1, 15)
V_LIO, V_LMO, V_GQO, V_SELO = 28, 29, 30, 31
S_X, S_E, S_SRC, S_DST, S_W1, S_B1, S_W2, S_B2, S_OUT, S_WS, S_P = 8, 12, 16, 20, 24, 28, 32, 36, 40, 44, 48
S_MASK = 8
S_SOFF = 52
S_256, S_REM, S_M0, S_WN, S_RB, S_MORE, S_SAFE, S_TA, S_TT, S_NT, S_T0, S_TAGA, S_TAGB = 60, 61, (62, 63), 64, 65, 66, 67, 68, 69, 70, 71, 72, 73
S_B, S_W = 3, 4

def mf16(d, a, b, cc): return f"v_mfma_f32_32x32x16_bf16 {vr(d,16)}, {vr(a,4)}, {vr(b,4)}, {cc}"
def mfext(ct): return f"v_mfma_f32_32x32x8_bf16 {vr(D[ct&1],16)}, {vr(AX,2)}, {vr(BX[ct&1],2)}, {vr(C[ct&1],16)}"
def mfsel(ct): return mf16(H + 16 * ct, P + 4 * ct, SL, vr(H + 16 * ct, 16))
def dma(half):
    return [f"buffer_load_dwordx4 v{IDX+j}, {sr(S_P)}, s{S_SOFF+4*half+j} offen offset:{1024*j} lds" for j in range(4)]
def mads(src=IDR): return [f"v_mad_i32_i16 v{IDX+j}, v{src+j}, s{S_256}, v{V_DMAC}" for j in range(4)]
def c_reads(half):
    L = []
    for ctl in range(2):
        for r in range(16):
            mm = r >> 1
            L.append(f"ds_read_u16_d16_hi v{C[ctl]+r}, v{V_CA} offset:{half*4096 + (mm&3)*1024 + (2*(r&1) + (mm>>2))*128 + ctl*64}")
    return L
def tr_read(ct): return f"ds_read_b64_tr_b16 {vr(BX[ct&1],2)}, v{V_QA} offset:{64*ct}"
AXB = f"v_pk_mul_f32 {vr(AX,2)}, {vr(CX,2)}, {vr(V_M,2)} op_sel_hi:[1,0]"
QAB = f"v_mad_u32_u24 v{V_QA}, v{V_GQ}, v{V_QMUL}, v{V_QC}"
PERM = f"v_perm_b32 v{V_M}, v{V_M}, v{V_M}, v{V_PSEL}"

def block(tau, ct, safe, gate=False, last=False):
    cur = D[ct & 1]
    pc, pt = (ct - 1) & 3, (tau if ct > 0 else (tau - 1) & 3)
    tr = [f"v_exp_f32 v{T+i}, v{cur+i}" for i in range(16)] + [f"v_rcp_f32 v{RR}, v{DD}", f"v_rcp_f32 v{RR+1}, v{DD+1}"]
    mf = [] if last else [mfext((ct + 1) & 3)]
    if tau == 0: mf.append(mfsel(ct))
    fill = []
    if ct == 1: fill += mads() + [PERM]
    if ct == 2:
        fill += [QAB]
        if tau == 3:
            fill += [f"v_add_u32 v{V_LI}, 2048, v{V_LI}", f"v_add_u32 v{V_LM}, 2048, v{V_LM}",
                     f"v_add_u32 v{V_GQA}, 256, v{V_GQA}", f"v_add_u32 v{V_SELA}, {16*SELS}, v{V_SELA}"]
    fill.append(f"v_max3_f32 v{V_DMAX}, v{DD}, v{DD+1}, v{V_DMAX}")
    L = []
    k = 0
    if gate:
        L += [tr[0], "s_setprio 3"]; k = 1
    for m in mf:
        L.append(m); L += tr[k:k+4]; k += 4
    L += tr[k:] + fill
    L.append(f"v_pk_mul_f32 {vr(RR,2)}, {vr(NN,2)}, {vr(RR,2)}")
    cvt = f"v_cvt_pk_bf16_f32 v{P+4*pc+pt}, v{RR}, v{RR+1}"
    if not safe:
        L += [f"v_pk_add_f32 {vr(DD,2)}, {vr(T,2)}, 1.0 op_sel_hi:[1,0]", cvt]
        if ct == 2: L.append(AXB)
        for j in range(1, 8):
            n_in = vr(cur, 2) if j == 1 else vr(NN, 2)
            L += [f"v_pk_fma_f32 {vr(NN,2)}, {n_in}, {vr(T+2*j,2)}, {n_in}",
                  f"v_pk_fma_f32 {vr(NN,2)}, {vr(cur+2*j,2)}, {vr(DD,2)}, {vr(NN,2)}",
                  f"v_pk_fma_f32 {vr(DD,2)}, {vr(DD,2)}, {vr(T+2*j,2)}, {vr(DD,2)}"]
    else:
        L += [f"v_pk_add_f32 {vr(T+2*j,2)}, {vr(T+2*j,2)}, 1.0 op_sel_hi:[1,0]" for j in range(8)] + [cvt]
        if ct == 2: L.append(AXB)
        L += [f"v_rcp_f32 v{T+i}, v{T+i}" for i in range(16)]
        L.append(f"v_pk_mul_f32 {vr(NN,2)}, {vr(cur,2)}, {vr(T,2)}")
        L += [f"v_pk_fma_f32 {vr(NN,2)}, {vr(cur+2*j,2)}, {vr(T+2*j,2)}, {vr(NN,2)}" for j in range(1, 8)]
    return L

def memphase(tau, half):
    L = ["s_setprio 0", "s_waitcnt vmcnt(4)"]
    L += c_reads(half) + [tr_read(2 * half), tr_read(2 * half + 1)]
    if half == 1:
        L += [f"ds_read_b128 {vr(IDR,4)}, v{V_LI} offset:{(tau+2)*512}",
              f"ds_read_b32 v{V_M}, v{V_LM} offset:{(tau+1)*512}",
              f"ds_read_b32 v{V_GQ}, v{V_GQA} offset:{(tau+1)*64}"]
        if tau == 1: L.append(f"ds_read_b32 v{SL}, v{V_SELA}")
        if tau >= 1: L.append(f"ds_read_b32 v{SL+tau}, v{V_SELA} offset:{tau*4*SELS}")
    L += [f"s_mov_b32 m0, s{S_M0[half]}", "s_waitcnt lgkmcnt(0)"]
    L += dma(half)
    return L

def emit(L):
    L = align(L)
    assert sum(isize(x) for x in L) % 8 == 0
    for s in L: e(s)

def mainloop(safe):
    x = "S" if safe else "F"
    out.append(".p2align 6")
    lab(f"LOOP{x}")
    for tau in range(4):
        c(f"==== tile slot {tau}")
        emit(memphase(tau, 0))
        emit(block((tau - 1) & 3, 3, safe, gate=True))
        if tau == 0: lab(f"ENTER{x}")
        emit(block(tau, 0, safe))
        emit(memphase(tau, 1))
        emit(block(tau, 1, safe, gate=True))
        emit(block(tau, 2, safe))
        e(f"s_sub_u32 s{S_REM}, s{S_REM}, 1")
        if tau < 3: e(f"s_cbranch_scc1 TAIL{x}{tau}")
        else: e(f"s_cbranch_scc0 LOOP{x}")
    for tau in (3, 0, 1, 2):
        lab(f"TAIL{x}{tau}")
        emit(block(tau, 3, safe, last=True))
        if tau == 0: e(f"ds_read_b32 v{SL}, v{V_SELA}")
        e(f"v_rcp_f32 v{RR}, v{DD}")
        e(f"v_rcp_f32 v{RR+1}, v{DD+1}")
        e(f"v_max3_f32 v{V_DMAX}, v{DD}, v{DD+1}, v{V_DMAX}")
        e(f"v_pk_mul_f32 {vr(RR,2)}, {vr(NN,2)}, {vr(RR,2)}")
        for t2 in range(tau + 1, 4): e(f"v_mov_b32_e64 v{SL+t2}, 0")
        e(f"v_cvt_pk_bf16_f32 v{P+12+tau}, v{RR}, v{RR+1}")
        e("s_setprio 0")
        e("s_branch DRAIN")

def find_cx(target):
    m = np.float64(u2f(0x00FF0000))
    g = f2u(float(np.float32(np.float64(u2f(target)) / m)))
    for d in range(-3, 4):
        if f2u(float(np.float32(np.float64(u2f(g + d)) * m))) == target: return g + d
    raise SystemExit("no cx")

def lds_init_tables(tmp):
    e(f"v_lshlrev_b32 v{tmp+8}, 4, v{V_TID}")
    e(f"v_add_u32 v{tmp+8}, {L_LIST}, v{tmp+8}")
    for i in range(4): e(f"v_mov_b32 v{tmp+i}, {hex(PADENT)}")
    for i in range(4): e(f"v_mov_b32 v{tmp+4+i}, 0")
    e(f"ds_write_b128 v{tmp+8}, {vr(tmp,4)}")
    e(f"ds_write_b128 v{tmp+8}, {vr(tmp,4)} offset:8192")
    for o in (0, 8192, SELSZ - 8192):
        e(f"ds_write_b128 v{tmp+8}, {vr(tmp+4,4)} offset:{L_SEL-L_LIST+o}")
    e(f"v_lshlrev_b32 v{tmp+8}, 2, v{V_TID}")
    e(f"v_add_u32 v{tmp+9}, {L_GQ}, v{tmp+8}")
    e(f"v_mov_b32 v{tmp}, {L_QT}")
    e(f"ds_write_b32 v{tmp+9}, v{tmp}")

def kernel():
    lab(KN)
    e("s_cmp_ge_u32 s2, 256")
    e("s_cbranch_scc1 K_END")
    if DIAG: e("v_mov_b32 v255, 0")
    stamp(30, True); stamp(0)
    for s, off in ((S_DST, 24), (S_SRC, 16), (S_E, 8), (S_W1, 32), (S_X, 0), (S_WS, 80), (S_B1, 40), (S_W2, 48), (S_B2, 56), (S_OUT, 64)):
        e(f"s_load_dwordx2 {sr(s,2)}, s[0:1], {off}")
    e(f"v_mov_b32 v{V_TID}, v0")
    e(f"v_readfirstlane_b32 s{S_W}, v0")
    e(f"v_and_b32 v{V_LANE}, 63, v0")
    for s, sz in ((S_DST, E*4), (S_SRC, E*4), (S_E, E*2), (S_W1, 129*256), (S_X, N*128), (S_WS, WS_SIZE), (S_B1, 256), (S_W2, 16384), (S_B2, 128), (S_OUT, N*128), (S_P, N*256 + PSH)):
        e(f"s_mov_b32 s{s+2}, {sz}")
        e(f"s_mov_b32 s{s+3}, 0x00020000")
    e(f"s_lshr_b32 s{S_W}, s{S_W}, 6")
    e(f"s_and_b32 s{S_B}, s2, 7")
    e(f"s_lshl_b32 s{S_B}, s{S_B}, 5")
    e("s_lshr_b32 s5, s2, 3")
    e(f"s_add_u32 s{S_B}, s{S_B}, s5")
    e(f"s_mul_i32 s5, s2, {CH*4}")
    e("v_lshl_add_u32 v32, v0, 4, s5")
    e("s_cmp_eq_u32 s2, 255")
    e(f"s_movk_i32 s6, {NQ-512}")
    e(f"s_cmovk_i32 s6, {NQL-512}")
    e("v_cmp_gt_u32 s[74:75], s6, v0")
    e("v_add_u32 v33, 8192, v32")
    e("v_bfrev_b32 v36, 1")
    e("v_lshrrev_b32 v34, 1, v32")
    e("v_cndmask_b32 v33, v36, v33, s[74:75]")
    e("v_lshrrev_b32 v35, 1, v33")
    e(f"v_lshrrev_b32 v37, 4, v{V_LANE}")
    e(f"v_lshrrev_b32 v38, 5, v{V_LANE}")
    e(f"s_cmp_lt_u32 s{S_W}, 4")
    e("s_cbranch_scc1 P0_LO")
    e(f"v_lshlrev_b32 v39, 2, v37")
    e(f"v_xor_b32 v39, v39, v{V_LANE}")
    e("v_lshlrev_b32 v39, 4, v39")
    e(f"v_lshrrev_b32 v40, 3, v{V_LANE}")
    e("v_and_b32 v41, 4, v40")
    e("v_and_b32 v42, 1, v40")
    e("v_lshl_add_u32 v41, v42, 1, v41")
    e("v_and_b32 v42, 1, v37")
    e("v_add_u32 v41, v41, v42")
    e(f"v_and_b32 v43, 7, v{V_LANE}")
    e("v_xor_b32 v43, v43, v37")
    e("v_lshlrev_b32 v43, 4, v43")
    e("v_lshl_add_u32 v41, v41, 15, v43")
    e("v_lshlrev_b32 v42, 2, v42")
    e(f"v_xor_b32 v42, v42, v{V_LANE}")
    e("v_lshlrev_b32 v42, 4, v42")
    e(f"s_and_b32 s5, s{S_W}, 3")
    e("s_lshl_b32 s6, s5, 13")
    e("s_add_u32 s7, s6, 4096")
    e(f"s_add_u32 m0, s6, {L_W1S}")
    e("s_lshl_b32 s76, s5, 19")
    e(f"s_lshl_b32 s77, s{S_B}, 7")
    e("s_add_u32 s76, s76, s77")
    e("v_add_u32 v41, s76, v41")
    e("v_add_u32 v44, 0x40000, v41")
    e("v_lshlrev_b32 v43, 3, v38")
    e("s_lshl_b32 s77, s5, 6")
    e("s_waitcnt lgkmcnt(0)")
    for k in range(4): e(f"buffer_load_dwordx4 v39, {sr(S_W1)}, s6 offen offset:{1024*k} lds")
    e(f"s_add_u32 m0, s7, {L_W1S}")
    e("s_mul_i32 s76, s5, 2176")
    for k in range(4): e(f"buffer_load_dwordx4 v39, {sr(S_W1)}, s7 offen offset:{1024*k} lds")
    e(f"s_add_u32 m0, s76, {L_XS}")
    e("s_lshl_b32 s6, s5, 12")
    e(f"buffer_load_dwordx4 v41, {sr(S_X)}, 0 offen lds")
    e(f"s_add_u32 m0, s76, {L_XS+1088}")
    for q in range(4): e(f"buffer_load_dwordx2 {vr(104+2*q,2)}, v43, {sr(S_B1)}, s77 offen offset:{16*q}")
    e(f"buffer_load_dwordx4 v44, {sr(S_X)}, 0 offen lds")
    e(f"v_lshlrev_b32 v45, 2, v{V_LANE}")
    e(f"v_lshlrev_b32 v46, 1, v{V_LANE}")
    e(f"s_mov_b32 s7, {128*256}")
    e(f"buffer_load_dword v47, v45, {sr(S_W1)}, s7 offen")
    e(f"s_add_u32 m0, s6, {L_W2}")
    e(f"buffer_load_ushort v48, v46, {sr(S_B2)}, 0 offen")
    for k in range(4): e(f"buffer_load_dwordx4 v42, {sr(S_W2)}, s6 offen offset:{1024*k} lds")
    e("s_branch P0_EDGE")
    lab("P0_LO")
    for q in range(8): e(f"v_mov_b32 v{104+q}, 0")
    e("s_waitcnt lgkmcnt(0)")
    lab("P0_EDGE")
    e(f"buffer_load_dwordx4 v[64:67], v32, {sr(S_DST)}, 0 offen {LDF}")
    e(f"buffer_load_dwordx4 v[68:71], v33, {sr(S_DST)}, 0 offen {LDF}")
    e(f"buffer_load_dwordx4 v[72:75], v32, {sr(S_SRC)}, 0 offen {LDF}")
    e(f"buffer_load_dwordx4 v[76:79], v33, {sr(S_SRC)}, 0 offen {LDF}")
    e(f"buffer_load_dwordx2 v[80:81], v34, {sr(S_E)}, 0 offen {LDF}")
    e(f"buffer_load_dwordx2 v[82:83], v35, {sr(S_E)}, 0 offen {LDF}")
    e(f"s_load_dwordx2 s[78:79], {sr(S_WS,2)}, {WS_EPOCH}")
    e(f"s_add_u32 s{S_P}, s{S_WS}, {WS_PT - PSH}")
    e(f"s_addc_u32 s{S_P+1}, s{S_WS+1}, 0")
    for j in range(8): e(f"s_movk_i32 s{S_SOFF+j}, {PSH - 1024*(j&3) + 128*(j>>2)}")
    e(f"s_movk_i32 s{S_256}, 256")
    e(f"s_mul_i32 s{S_M0[0]}, s{S_W}, {TBW}")
    e(f"s_add_u32 s{S_M0[0]}, s{S_M0[0]}, {L_TB}")
    e(f"s_add_u32 s{S_M0[1]}, s{S_M0[0]}, 4096")
    e(f"s_mov_b32 s{S_WN}, 32")
    e(f"s_mov_b32 s{S_RB}, 0")
    e(f"s_mov_b32 s{S_SAFE}, 0")
    lds_init_tables(52)
    e(f"v_lshlrev_b32 v61, 3, v{V_TID}")
    e("ds_write_b64 v61, v[56:57]")
    e(f"v_and_b32 v39, 31, v{V_LANE}")
    e("v_lshlrev_b32 v40, 1, v39")
    e("v_lshl_add_u32 v40, v38, 9, v40")
    e(f"v_add_u32 v{V_CA}, s{S_M0[0]}, v40")
    e(f"v_and_b32 v40, 7, v{V_LANE}")
    e("v_lshlrev_b32 v40, 4, v40")
    e(f"v_add_u32 v{V_DMAC}, 0x800000, v40")
    e(f"v_lshrrev_b32 v40, 3, v{V_LANE}")
    e(f"v_lshlrev_b32 v40, 4, v40")
    e(f"v_add_u32 v{V_LIO}, {L_LIST}, v40")
    e("v_bfe_u32 v40, v39, 2, 1")
    e("v_and_b32 v41, 1, v39")
    e("v_lshl_add_u32 v40, v40, 1, v41")
    e("v_lshrrev_b32 v42, 3, v39")
    e("v_bfe_u32 v43, v39, 1, 1")
    e("v_lshl_add_u32 v44, v40, 2, v42")
    e("v_lshl_add_u32 v44, v44, 1, v43")
    e("v_lshlrev_b32 v44, 2, v44")
    e(f"v_add_u32 v{V_LMO}, {L_LIST}, v44")
    e(f"v_bfe_u32 v44, v{V_LANE}, 2, 2")
    e(f"v_lshlrev_b32 v49, 2, v44")
    e(f"v_add_u32 v{V_GQO}, {L_GQ}, v49")
    e(f"v_mul_u32_u24 v49, {SELS//2}, v38")
    e("v_lshl_add_u32 v49, v39, 2, v49")
    e(f"v_add_u32 v{V_SELO}, {L_SEL}, v49")
    e("v_cmp_eq_u32 vcc, 0, v38")
    e("v_mov_b32 v49, 0x03020100")
    e("v_mov_b32 v50, 0x0c080c0c")
    e(f"v_cndmask_b32 v{V_PSEL}, v49, v50, vcc")
    e(f"v_cndmask_b32 v{V_QMUL}, 0, 1, vcc")
    e(f"v_and_b32 v49, 3, v{V_LANE}")
    e("v_lshlrev_b32 v49, 3, v49")
    e("v_and_b32 v50, 1, v37")
    e("v_lshl_add_u32 v49, v50, 5, v49")
    e("v_add_u32 v50, 1, v44")
    e("v_lshrrev_b32 v50, 1, v50")
    e("v_and_b32 v51, 1, v44")
    e("v_mul_u32_u24 v50, v50, v51")
    e("v_mul_u32_u24 v50, 320, v50")
    e(f"v_add_u32 v50, {L_EXT}, v50")
    e("v_cndmask_b32 v50, v50, 0, vcc")
    e(f"v_add_u32 v{V_QC}, v49, v50")
    e(f"v_mov_b32 v50, {hex(find_cx(0x00803F80))}")
    e(f"v_mov_b32 v51, {hex(find_cx(0x3F800000))}")
    e("v_cmp_eq_u32 s[6:7], 1, v41")
    e("v_cmp_gt_u32 s[76:77], 2, v40")
    e("s_nop 0")
    e("v_cndmask_b32 v50, v50, v51, s[6:7]")
    e("v_cndmask_b32 v51, 0, v50, s[76:77]")
    e("v_cndmask_b32 v50, v50, 0, s[76:77]")
    e(f"v_cndmask_b32 v{CX}, 1.0, v51, vcc")
    e(f"v_cndmask_b32 v{CX+1}, 1.0, v50, vcc")
    for i in range(64): e(f"v_mov_b32 v{H+i}, 0")
    e(f"s_and_b32 s5, s{S_W}, 3")
    e("v_xor_b32 v50, s5, v44")
    e("v_lshl_add_u32 v50, v50, 6, v49")
    e("v_lshl_add_u32 v51, v38, 3, v44")
    e("v_lshl_add_u32 v50, v51, 8, v50")
    e(f"s_lshr_b32 s6, s{S_W}, 2")
    e("s_lshl_b32 s7, s6, 14")
    e(f"s_add_u32 s7, s7, {L_W1S}")
    e("v_add_u32 v50, s7, v50")
    e("v_lshl_add_u32 v51, v40, 1, v43")
    e("v_mul_u32_u24 v52, 1088, v42")
    e("v_lshl_add_u32 v52, v51, 7, v52")
    e("v_xor_b32 v53, v38, v40")
    e("v_lshl_add_u32 v51, v53, 4, v52")
    e("v_xor_b32 v53, 2, v53")
    e("v_lshl_add_u32 v52, v53, 4, v52")
    e("s_cmp_eq_u32 s6, 0")
    e(f"s_movk_i32 s6, {QS}")
    e(f"s_cmovk_i32 s6, {PS}")
    e(f"s_mov_b32 s7, {L_QT}")
    e(f"s_cmov_b32 s7, {L_PS}")
    e("s_lshl_b32 s5, s5, 6")
    e("s_add_u32 s7, s7, s5")
    e("v_mul_u32_u24 v53, s6, v39")
    e("v_lshl_add_u32 v53, v38, 3, v53")
    e("v_add_u32 v53, s7, v53")
    e("s_lshl_b32 s6, s6, 5")
    e("v_add_u32 v54, s6, v53")
    e(f"v_cmp_gt_u32 s[76:77], {NPB-32}, v39")
    e("s_waitcnt vmcnt(10) lgkmcnt(0)")
    e(f"s_mul_i32 s{S_TAGB}, s78, 1664525")
    e(f"s_add_u32 s{S_TAGB}, s{S_TAGB}, 1013904223")
    e(f"s_add_u32 s{S_TAGA}, s79, 0x01000000")
    e(f"s_and_b32 s{S_TAGA}, s{S_TAGA}, 0xff000000")
    e("s_barrier")
    stamp(1)
    for ks in range(4):
        e(f"ds_read_b64_tr_b16 {vr(88+4*ks,2)}, v50 offset:{4096*ks}")
        e(f"ds_read_b64_tr_b16 {vr(90+4*ks,2)}, v50 offset:{4096*ks+1024}")
        e(f"ds_read_b128 {vr(144+4*ks,4)}, v{51+(ks&1)} offset:{L_XS+64*(ks>>1)}")
    for ks in range(4):
        e(f"ds_read_b128 {vr(160+4*ks,4)}, v{51+(ks&1)} offset:{L_XS+4352+64*(ks>>1)}")
    for q in range(8):
        e(f"v_lshlrev_b32 v{128+2*q}, 16, v{104+q}")
        e(f"v_and_b32 v{129+2*q}, 0xffff0000, v{104+q}")
    e(f"s_cmp_eq_u32 s{S_W}, 4")
    e(f"s_mov_b32 s5, {hex(f2u(-LOG2E))}")
    e("s_cbranch_scc0 P0_NOEXT")
    e("v_lshlrev_b32 v56, 16, v47")
    e("v_and_b32 v57, 0xffff0000, v47")
    e("v_mul_f32 v56, s5, v56")
    e("v_mul_f32 v57, s5, v57")
    e("v_cvt_pk_bf16_f32 v58, v56, v57")
    e("v_lshlrev_b32 v59, 16, v58")
    e("v_and_b32 v60, 0xffff0000, v58")
    e("v_sub_f32 v59, v56, v59")
    e("v_sub_f32 v60, v57, v60")
    e("v_cvt_pk_bf16_f32 v59, v59, v60")
    e("v_lshlrev_b32 v48, 16, v48")
    e(f"ds_write_b32 v45, v58 offset:{L_EXT+320}")
    e(f"ds_write_b32 v45, v59 offset:{L_EXT+640}")
    e(f"ds_write_b32 v45, v48 offset:{L_B2}")
    lab("P0_NOEXT")
    e("s_waitcnt lgkmcnt(0)")
    for ks in range(4):
        e(mf16(112, 88 + 4*ks, 144 + 4*ks, vr(128 if ks == 0 else 112, 16)))
    for ks in range(4):
        e(mf16(128, 88 + 4*ks, 160 + 4*ks, vr(128, 16)))
    e("s_nop 7")
    for t in range(2):
        b = 112 + 16 * t
        for i in range(16): e(f"v_mul_f32 v{b+i}, s5, v{b+i}")
        for i in range(8): e(f"v_cvt_pk_bf16_f32 v{88+8*t+i}, v{b+2*i}, v{b+2*i+1}")
        if t == 1: e("s_mov_b64 exec, s[76:77]")
        for q in range(4): e(f"ds_write_b64 v{53+t}, {vr(88+8*t+2*q,2)} offset:{16*q}")
    e("s_mov_b64 exec, -1")
    stamp(2)
    e("v_mov_b32 v55, 1")
    e("s_movk_i32 s5, 0x7fff")
    e("s_add_u32 s5, s5, 1")
    e("s_waitcnt vmcnt(4)")
    stamp(3)
    SD = "dst_sel:DWORD dst_unused:UNUSED_PAD src0_sel:DWORD"
    def binA(j):
        e(f"v_lshlrev_b32_sdwa v{112+j}, 2, v{64+j} {SD} src1_sel:BYTE_0")
        e(f"v_lshlrev_b32_sdwa v{129+2*j}, 2, v{64+j} {SD} src1_sel:BYTE_1")
        e(f"ds_add_rtn_u32 v{120+j}, v{112+j}, v55 offset:{L_CNT1}")
    def binB(j):
        if j % 2 == 0: e(f"v_lshlrev_b32 v56, 16, v{80+j//2}")
        else: e(f"v_and_b32 v56, 0xffff0000, v{80+j//2}")
        e(f"v_or3_b32 v{128+2*j}, v56, v{72+j}, s5")
    for j in range(4): binA(j)
    e("s_mov_b64 exec, s[74:75]")
    e("s_cbranch_execz P1_A")
    for j in range(4, 8): binA(j)
    lab("P1_A")
    e("s_mov_b64 exec, -1")
    e("s_waitcnt lgkmcnt(0)")
    e("s_barrier")
    stamp(4)
    e(f"s_cmp_eq_u32 s{S_W}, 0")
    e("s_cbranch_scc1 P1_SCAN")
    e(f"v_subrev_u32 v56, 64, v{V_TID}")
    e("v_lshrrev_b32 v57, 4, v56")
    e("v_and_b32 v58, 15, v56")
    e("v_lshlrev_b32 v58, 4, v58")
    e(f"v_mul_u32_u24 v59, {PS}, v57")
    e("v_add_u32 v59, v59, v58")
    e(f"ds_read_b128 v[144:147], v59 offset:{L_PS}")
    e(f"ds_read_b128 v[148:151], v59 offset:{L_PS+28*PS}")
    e("v_lshl_add_u32 v58, v57, 16, v58")
    e(f"s_lshl_b32 s6, s{S_B}, 8")
    e(f"s_add_u32 s6, s6, {WS_PT}")
    e(f"s_add_u32 s7, s6, {28*65536}")
    e(f"v_cmp_gt_u32 vcc, {NPB-28}, v57")
    e("s_waitcnt vmcnt(0) lgkmcnt(1)")
    if not X_NOP: e(f"buffer_store_dwordx4 v[144:147], v58, {sr(S_WS)}, s6 offen {STF}")
    e("s_waitcnt lgkmcnt(0)")
    e("s_and_b64 exec, exec, vcc")
    e("s_cbranch_execz P1_P")
    if not X_NOP: e(f"buffer_store_dwordx4 v[148:151], v58, {sr(S_WS)}, s7 offen {STF}")
    lab("P1_P")
    e("s_mov_b64 exec, -1")
    for j in range(8): binB(j)
    e("s_barrier")
    e("s_branch P1_NOSCAN")
    lab("P1_SCAN")
    e(f"v_lshlrev_b32 v56, 4, v{V_LANE}")
    e(f"ds_read_b128 v[144:147], v56 offset:{L_CNT1}")
    e("s_waitcnt lgkmcnt(0)")
    e("v_add_u32 v57, v144, v145")
    e("v_add_u32 v58, v57, v146")
    e("v_add_u32 v59, v58, v147")
    e("v_mov_b32 v60, v59")
    scan64(59)
    e("v_sub_u32 v152, v59, v60")
    e("v_add_u32 v153, v152, v144")
    e("v_add_u32 v154, v152, v57")
    e("v_add_u32 v155, v152, v58")
    e(f"ds_write_b128 v56, v[152:155] offset:{L_BASE1}")
    e("s_waitcnt lgkmcnt(0)")
    e("s_barrier")
    for j in range(4):
        e(f"v_lshl_or_b32 v{160+2*j}, v{144+j}, 12, v{152+j}")
        e(f"v_or_b32 v{160+2*j}, s{S_TAGA}, v{160+2*j}")
        e(f"v_mov_b32 v{161+2*j}, s{S_TAGB}")
    e("s_waitcnt vmcnt(0)")
    for j in range(8): binB(j)
    lab("P1_NOSCAN")
    stamp(5)
    for j in range(4): e(f"ds_read_b32 v{112+j}, v{112+j} offset:{L_BASE1}")
    e("s_mov_b64 exec, s[74:75]")
    e("s_cbranch_execz P1_B0")
    for j in range(4, 8): e(f"ds_read_b32 v{112+j}, v{112+j} offset:{L_BASE1}")
    lab("P1_B0")
    e("s_mov_b64 exec, -1")
    e("s_waitcnt lgkmcnt(0)")
    for j in range(8):
        if j == 4:
            e("s_mov_b64 exec, s[74:75]")
            e("s_cbranch_execz P1_B")
        e(f"v_add_lshl_u32 v{112+j}, v{112+j}, v{120+j}, 3")
        e(f"ds_write_b64 v{112+j}, {vr(128+2*j,2)} offset:{L_STG}")
    lab("P1_B")
    e("s_mov_b64 exec, -1")
    e(f"v_lshlrev_b32 v56, 4, v{V_TID}")
    e(f"s_mul_i32 s5, s2, {CHS}")
    e(f"s_add_u32 s5, s5, {WS_ENT}")
    e("s_add_u32 s6, s5, 8192")
    e("s_add_u32 s7, s5, 16384")
    e(f"s_add_u32 s76, s5, {CHS-8192}")
    e("s_waitcnt lgkmcnt(0)")
    e("s_barrier")
    stamp(6)
    for k in range(3): e(f"ds_read_b128 {vr(112+4*k,4)}, v56 offset:{L_STG+8192*k}")
    e(f"s_cmp_eq_u32 s{S_W}, 7")
    e("s_cbranch_scc0 P1_C")
    e(f"ds_read_b128 v[124:127], v56 offset:{L_STG+CHS-8192}")
    e("s_waitcnt lgkmcnt(0)")
    e(f"buffer_store_dwordx4 v[124:127], v56, {sr(S_WS)}, s76 offen {STF}")
    lab("P1_C")
    for k in range(3):
        e(f"s_waitcnt lgkmcnt({2-k})")
        e(f"buffer_store_dwordx4 {vr(112+4*k,4)}, v56, {sr(S_WS)}, s{5+k} offen {STF}")
    e(f"v_lshlrev_b32 v56, 5, v{V_LANE}")
    e("s_lshl_b32 s5, s2, 11")
    e(f"s_add_u32 s5, s5, {WS_DESC}")
    e("s_waitcnt vmcnt(0)")
    e("s_barrier")
    stamp(7)
    e(f"s_cmp_eq_u32 s{S_W}, 0")
    e("s_cbranch_scc0 POLL0")
    e(f"buffer_store_dwordx4 v[160:163], v56, {sr(S_WS)}, s5 offen sc1")
    e(f"buffer_store_dwordx4 v[164:167], v56, {sr(S_WS)}, s5 offen offset:16 sc1")

    lab("POLL0")
    e(f"v_lshrrev_b32 v32, 4, v{V_LANE}")
    e(f"v_and_b32 v33, 7, v{V_LANE}")
    e("v_lshl_add_u32 v32, v32, 3, v33")
    e(f"s_lshl_b32 s5, s{S_W}, 5")
    e("v_add_u32 v32, s5, v32")
    e("v_lshlrev_b32 v33, 11, v32")
    e(f"s_lshl_b32 s5, s{S_B}, 3")
    e(f"s_add_u32 s5, s5, {WS_DESC}")
    e(f"buffer_load_dwordx2 v[34:35], v33, {sr(S_WS)}, s5 offen sc1")
    e(f"v_mul_u32_u24 v32, {CHS}, v32")
    e(f"v_and_b32 v36, 15, v{V_LANE}")
    e("v_add_u32 v37, 16, v36")
    e("v_bfrev_b32 v40, -2")
    e(f"v_cmp_gt_u32 vcc, s{S_WN}, v36")
    e(f"v_add_u32 v38, s{S_RB}, v36")
    e(f"v_add_u32 v39, s{S_RB}, v37")
    e("v_lshlrev_b32 v41, 3, v38")
    e("v_cndmask_b32 v38, v40, v38, vcc")
    e(f"v_cmp_gt_u32 vcc, s{S_WN}, v37")
    e("s_mov_b32 s6, 0x40000")
    e(f"s_mov_b32 s7, {WS_ENT}")
    e("v_cndmask_b32 v39, v40, v39, vcc")
    lab("POLL")
    e("s_waitcnt vmcnt(0)")
    e(f"v_xor_b32 v34, s{S_TAGA}, v34")
    e(f"v_cmp_ne_u32 s[76:77], s{S_TAGB}, v35")
    e("v_cmp_le_u32 vcc, 0x1000000, v34")
    e("s_or_b64 vcc, vcc, s[76:77]")
    e("s_cbranch_scc0 POLLED")
    e("s_sub_u32 s6, s6, 1")
    e("s_cbranch_scc1 K_END")
    e("s_sleep 1")
    e(f"buffer_load_dwordx2 v[34:35], v33, {sr(S_WS)}, s5 offen sc1")
    e("s_branch POLL")
    lab("POLLED")
    stamp(8)
    e("v_and_b32 v35, 0xfff, v34")
    e("v_lshrrev_b32 v34, 12, v34")
    e("v_lshl_add_u32 v35, v35, 3, v32")
    e(f"s_add_u32 s5, s{S_RB}, s{S_WN}")
    e("v_cmp_lt_u32 s[74:75], s5, v34")
    DP = "row_mask:0xf bank_mask:0xf"
    for i in range(8):
        e(f"v_mov_b32_dpp v42, v34 row_newbcast:{i} {DP}")
        e(f"v_add_u32_dpp v{44+i}, v35, v41 row_newbcast:{i} {DP}")
        e(f"v_cmp_lt_u32 {sr(S_MASK+2*i,2)}, v38, v42")
        e(f"v_cmp_lt_u32 {sr(S_MASK+16+2*i,2)}, v39, v42")
        e(f"s_or_b64 exec, {sr(S_MASK+2*i,2)}, 1")
        e(f"buffer_load_dwordx2 {vr(112+2*i,2)}, v{44+i}, {sr(S_WS)}, s7 offen sc1")
        e("s_mov_b64 exec, -1")
    for i in range(8):
        e(f"s_or_b64 exec, {sr(S_MASK+16+2*i,2)}, 1")
        e(f"buffer_load_dwordx2 {vr(128+2*i,2)}, v{44+i}, {sr(S_WS)}, s7 offen offset:128 sc1")
    e("s_mov_b64 exec, -1")
    e("v_mov_b32 v55, 1")
    e(f"v_lshlrev_b32 v54, 2, v{V_LANE}")
    e("v_mov_b32 v53, 0")
    e("s_mov_b64 exec, s[74:75]")
    e(f"ds_write_b32 v53, v55 offset:{L_FLAG}")
    for k in range(16):
        e(f"s_mov_b64 exec, {sr(S_MASK+2*k,2)}")
        if k >= 8: e(f"s_cbranch_execz R_A{k}")
        e(f"s_waitcnt vmcnt({15-k})")
        e(f"ds_add_rtn_u32 v{144+k}, v{113+2*k}, v55 offset:{L_CNT2}")
        if k >= 8: lab(f"R_A{k}")
    e("s_mov_b64 exec, -1")
    e("s_waitcnt vmcnt(0) lgkmcnt(0)")
    e("s_barrier")
    stamp(9)
    e(f"ds_read_b32 v32, v54 offset:{L_CNT2}")
    e(f"ds_read_b32 v33, v53 offset:{L_FLAG}")
    e(f"ds_read_b32 v34, v54 offset:{L_DEG}")
    if PREF:
        e("s_lshr_b32 s6, s2, 3")
        e(f"s_mul_i32 s6, s6, {782*128}")
        e(f"s_add_u32 s6, s6, {PSH}")
        e(f"v_min_u32 v56, 390, v{V_TID}")
        e("v_lshlrev_b32 v56, 8, v56")
        e(f"buffer_load_dword v57, v56, {sr(S_P)}, s6 offen")
        e(f"buffer_load_dword v58, v56, {sr(S_P)}, s6 offen offset:128")
    e("s_waitcnt lgkmcnt(2)")
    e("v_add_u32 v35, 7, v32")
    e("v_and_b32 v35, -8, v35")
    e("v_mov_b32 v36, v35")
    scan64(36)
    e(f"v_cmp_le_u32 vcc, {SPLIT}, v{V_LANE}")
    e(f"v_readlane_b32 s6, v36, {SPLIT-1}")
    e("v_readlane_b32 s7, v36, 63")
    e("s_waitcnt lgkmcnt(0)")
    e(f"v_readfirstlane_b32 s{S_MORE}, v33")
    e("v_sub_u32 v36, v36, v35")
    e("s_add_u32 s5, s6, 31")
    e(f"s_lshr_b32 s{S_TA}, s5, 5")
    e("s_and_b32 s5, s5, -32")
    e("s_sub_u32 s5, s5, s6")
    e("s_add_u32 s7, s7, s5")
    e("s_add_u32 s7, s7, 31")
    e(f"s_lshr_b32 s{S_TT}, s7, 5")
    e(f"s_cmp_gt_u32 s{S_TT}, {MAXT}")
    e("s_cbranch_scc0 R_FITS")
    e(f"s_mov_b32 s{S_WN}, 12")
    e("s_branch NEXT_ROUND")
    lab("R_FITS")
    e("v_add_u32 v37, s5, v36")
    e("v_cndmask_b32 v36, v36, v37, vcc")
    e(f"v_add_u32 v38, {L_LIST//4}, v36")
    for k in range(8): e(f"ds_bpermute_b32 v{113+2*k}, v{113+2*k}, v38")
    for k in range(8, 16):
        e(f"s_cmp_eq_u64 {sr(S_MASK+2*k,2)}, 0")
        e(f"s_cbranch_scc1 R_B{k}")
        e(f"ds_bpermute_b32 v{113+2*k}, v{113+2*k}, v38")
        lab(f"R_B{k}")
    e("v_add_u32 v34, v34, v32")
    e("v_lshrrev_b32 v35, 3, v35")
    e("v_lshrrev_b32 v36, 3, v36")
    e(f"v_mul_u32_u24 v39, {QS}, v{V_LANE}")
    e(f"v_add_u32 v39, {L_QT}, v39")
    e(f"v_add_u32 v40, {L_SEL}, v54")
    e(f"v_add_u32 v41, {L_SEL-4*SPLIT}, v54")
    e("v_cndmask_b32 v40, v40, v41, vcc")
    e("v_mov_b32 v41, 0x3f80")
    e(f"s_cmp_eq_u32 s{S_W}, 0")
    e("s_cbranch_scc0 R_ND")
    e(f"ds_write_b32 v54, v34 offset:{L_DEG}")
    e("s_cmp_eq_u32 s2, 0")
    e("s_cbranch_scc0 R_ND")
    e(f"v_mov_b32 v42, s{S_TAGB}")
    e(f"v_mov_b32 v43, s{S_TAGA}")
    e("s_mov_b64 exec, 1")
    e(f"buffer_store_dwordx2 v[42:43], v53, {sr(S_WS)}, 0 offen offset:{WS_EPOCH}")
    e("s_mov_b64 exec, -1")
    lab("R_ND")
    e("s_waitcnt lgkmcnt(0)")
    for k in range(16):
        e(f"s_mov_b64 exec, {sr(S_MASK+2*k,2)}")
        if k >= 8: e(f"s_cbranch_execz R_C{k}")
        e(f"v_add_lshl_u32 v{113+2*k}, v{113+2*k}, v{144+k}, 2")
        e(f"ds_write_b32 v{113+2*k}, v{112+2*k}")
        if k >= 8: lab(f"R_C{k}")
    e("s_mov_b64 exec, -1")
    e(f"s_mov_b32 s6, s{S_W}")
    lab("R_GT")
    e("v_cmp_lt_u32 vcc, s6, v35")
    e("s_and_b64 exec, exec, vcc")
    e("s_cbranch_execz R_GTE")
    e("v_add_u32 v44, s6, v36")
    e("v_lshlrev_b32 v45, 2, v44")
    e(f"v_add_u32 v45, {L_GQ}, v45")
    e("ds_write_b32 v45, v39")
    e("v_lshrrev_b32 v46, 1, v44")
    e(f"v_mul_u32_u24 v46, {SELS//2}, v46")
    e("v_and_b32 v44, 1, v44")
    e("v_lshl_add_u32 v46, v44, 1, v46")
    e("v_add_u32 v46, v46, v40")
    e("ds_write_b16 v46, v41")
    e("s_add_u32 s6, s6, 8")
    e("s_branch R_GT")
    lab("R_GTE")
    e("s_mov_b64 exec, -1")
    e(f"s_cmp_ge_u32 s{S_W}, 4")
    e(f"s_cselect_b32 s6, s{S_TA}, 0")
    e(f"s_cselect_b32 s7, s{S_TT}, s{S_TA}")
    e(f"s_sub_u32 s5, s{S_W}, s6")
    e("s_and_b32 s5, s5, 3")
    e(f"s_add_u32 s{S_T0}, s6, s5")
    e(f"s_sub_u32 s7, s7, s{S_T0}")
    e("s_add_u32 s7, s7, 3")
    e(f"s_ashr_i32 s{S_NT}, s7, 2")
    e(f"s_or_b32 s6, s{S_MORE}, s{S_RB}")
    e(f"s_or_b32 s{S_SAFE}, s{S_SAFE}, s6")
    e("s_waitcnt lgkmcnt(0)")
    e("s_barrier")
    lab("WAVE_START")
    stamp(10)
    e(f"v_mov_b32 v{V_DMAX}, 0")
    e(f"s_cmp_lt_i32 s{S_NT}, 1")
    e("s_cbranch_scc1 WAVE_DONE")
    e(f"s_lshl_b32 s6, s{S_T0}, 7")
    e(f"v_add_u32 v{V_LI}, s6, v{V_LIO}")
    e(f"ds_read_b128 {vr(IDX,4)}, v{V_LI}")
    e(f"ds_read_b128 {vr(IDR,4)}, v{V_LI} offset:512")
    e(f"v_add_u32 v{V_LM}, s6, v{V_LMO}")
    e(f"s_lshl_b32 s6, s{S_T0}, 4")
    e(f"v_add_u32 v{V_GQA}, s6, v{V_GQO}")
    e(f"ds_read_b32 v{V_M}, v{V_LM}")
    e(f"ds_read_b32 v{V_GQ}, v{V_GQA}")
    e(f"s_mul_i32 s6, s{S_T0}, {SELS}")
    e(f"v_add_u32 v{V_SELA}, s6, v{V_SELO}")
    e(f"s_sub_u32 s{S_REM}, s{S_NT}, 1")
    e(f"s_mov_b32 m0, s{S_M0[0]}")
    e("s_waitcnt lgkmcnt(3)")
    for s in mads(IDX): e(s)
    for s in dma(0): e(s)
    e(f"s_mov_b32 m0, s{S_M0[1]}")
    e("s_waitcnt lgkmcnt(0)")
    for s in dma(1): e(s)
    for s in mads(): e(s)
    e(QAB); e(PERM)
    for i in range(20): e(f"v_mov_b32 v{SL+i}, 0")
    for i in range(32): e(f"v_mov_b32 v{C[0]+i}, 0")
    for i in range(2):
        e(f"v_mov_b32 v{NN+i}, 0")
        e(f"v_mov_b32 v{DD+i}, 1.0")
    e(AXB)
    for s in memphase(0, 0): e(s)
    e(mfext(0))
    e("s_nop 7")
    e("s_nop 1")
    stamp(11); stamp(28, True)
    e(f"s_cmp_lg_u32 s{S_SAFE}, 0")
    e("s_cbranch_scc1 ENTERS")
    e("s_branch ENTERF")
    mainloop(False)
    mainloop(True)
    lab("DRAIN")
    e("s_waitcnt lgkmcnt(0)")
    for ct in range(4): e(mfsel(ct))
    lab("WAVE_DONE")
    stamp(12); stamp(29, True)
    e(f"s_cmp_eq_u32 s{S_MORE}, 0")
    e("s_cbranch_scc1 EPI")
    e(f"s_add_u32 s{S_RB}, s{S_RB}, s{S_WN}")
    lab("NEXT_ROUND")
    e("s_waitcnt vmcnt(0) lgkmcnt(0)")
    e("s_barrier")
    lds_init_tables(32)
    e(f"v_cmp_gt_u32 vcc, 80, v{V_TID}")
    e("s_and_saveexec_b64 s[6:7], vcc")
    e(f"ds_write_b32 v40, v36 offset:{L_CNT2}")
    e("s_mov_b64 exec, s[6:7]")
    e("s_waitcnt lgkmcnt(0)")
    e("s_barrier")
    e("s_branch POLL0")

    lab("EPI")
    e(f"v_bfe_u32 v32, v{V_LANE}, 2, 2")
    e(f"v_lshrrev_b32 v33, 5, v{V_LANE}")
    e("v_lshl_add_u32 v34, v33, 2, v32")
    e("v_lshlrev_b32 v34, 7, v34")
    e("v_lshrrev_b32 v32, 1, v32")
    e("v_lshl_add_u32 v34, v32, 6, v34")
    e(f"v_and_b32 v35, 63, v{V_QC}")
    e("v_add_u32 v34, v34, v35")
    e(f"v_add_u32 v34, {L_W2}, v34")
    e("v_xor_b32 v35, 64, v34")
    for ks in range(8):
        for mt in range(2):
            for t in range(2):
                e(f"ds_read_b64_tr_b16 {vr(112+8*ks+4*mt+2*t,2)}, v{34+mt} offset:{2048*ks+1024*t}")
    for i in range(32): e(f"v_cvt_pk_bf16_f32 v{64+i}, v{H+2*i}, v{H+2*i+1}")
    e("s_waitcnt lgkmcnt(0)")
    for ks in range(8):
        for mt in range(2):
            e(mf16(H + 16*mt, 112 + 8*ks + 4*mt, 64 + 4*ks, "0" if ks == 0 else vr(H + 16*mt, 16)))
    e(f"v_and_b32 v32, 31, v{V_LANE}")
    e("v_mul_u32_u24 v32, 272, v32")
    e("v_lshl_add_u32 v32, v33, 4, v32")
    e(f"v_add_u32 v32, s{S_M0[0]}, v32")
    e(f"s_mov_b32 s6, {hex(f2u(2.0**120))}")
    e(f"v_cmp_nge_f32 s[76:77], s6, v{V_DMAX}")
    e(f"v_lshrrev_b32 v36, 3, v{V_TID}")
    e(f"v_and_b32 v37, 7, v{V_TID}")
    e(f"v_cmp_le_u32 vcc, {SPLIT}, v36")
    e("v_mul_u32_u24 v38, 272, v36")
    e("v_lshl_add_u32 v38, v37, 5, v38")
    e(f"v_add_u32 v39, {4*TBW - SPLIT*272}, v38")
    e("v_cndmask_b32 v38, v38, v39, vcc")
    e("v_lshlrev_b32 v39, 2, v36")
    e("v_lshlrev_b32 v40, 5, v37")
    e("v_lshlrev_b32 v41, 15, v36")
    e("v_lshl_add_u32 v41, v37, 4, v41")
    e(f"s_lshl_b32 s5, s{S_B}, 7")
    e("v_add_u32 v41, s5, v41")
    e("s_movk_i32 s7, 0x207")
    e(f"v_cmp_class_f32 vcc, v{H+16}, s7")
    e("s_or_b64 s[76:77], s[76:77], vcc")
    e("s_cbranch_scc0 EPI_OK")
    e(f"s_cmp_lg_u32 s{S_SAFE}, 0")
    e("s_cbranch_scc1 EPI_OK")
    e(f"s_mov_b32 s{S_SAFE}, 1")
    for i in range(64): e(f"v_mov_b32 v{H+i}, 0")
    e("s_waitcnt vmcnt(0)")
    e("s_branch WAVE_START")
    lab("EPI_OK")
    e("s_waitcnt vmcnt(0)")
    for mt in range(2):
        for q in range(4):
            e(f"ds_write_b128 v32, {vr(H+16*mt+4*q,4)} offset:{128*mt+32*q}")
    e(f"v_cmp_gt_u32 vcc, {NPB}, v36")
    e("s_waitcnt lgkmcnt(0)")
    e("s_barrier")
    stamp(13)
    e("s_and_b64 exec, exec, vcc")
    e("s_cbranch_execz K_FIN")
    for s in range(4):
        e(f"ds_read_b128 {vr(64+8*s,4)}, v38 offset:{L_TB+s*TBW}")
        e(f"ds_read_b128 {vr(68+8*s,4)}, v38 offset:{L_TB+s*TBW+16}")
    e(f"ds_read_b32 v42, v39 offset:{L_DEG}")
    e(f"ds_read_b128 v[96:99], v40 offset:{L_B2}")
    e(f"ds_read_b128 v[100:103], v40 offset:{L_B2+16}")
    e(f"s_mov_b32 s6, {hex(f2u(-LN2))}")
    e("s_waitcnt lgkmcnt(7)")
    for i in range(4): e(f"v_pk_add_f32 {vr(64+2*i,2)}, {vr(64+2*i,2)}, {vr(72+2*i,2)}")
    e("s_waitcnt lgkmcnt(3)")
    for i in range(4): e(f"v_pk_add_f32 {vr(80+2*i,2)}, {vr(80+2*i,2)}, {vr(88+2*i,2)}")
    for i in range(4): e(f"v_pk_add_f32 {vr(64+2*i,2)}, {vr(64+2*i,2)}, {vr(80+2*i,2)}")
    e("s_waitcnt lgkmcnt(0)")
    e("v_cvt_f32_u32 v42, v42")
    for i in range(4): e(f"v_pk_mul_f32 {vr(96+2*i,2)}, {vr(96+2*i,2)}, v[42:43] op_sel_hi:[1,0]")
    for i in range(8): e(f"v_fma_f32 v{64+i}, v{64+i}, s6, v{96+i}")
    for i in range(4): e(f"v_cvt_pk_bf16_f32 v{72+i}, v{64+2*i}, v{65+2*i}")
    e(f"buffer_store_dwordx4 v[72:75], v41, {sr(S_OUT)}, 0 offen")
    lab("K_FIN")
    if SPIN >= 0:
        lab("SPINL")
        e("s_memrealtime s[98:99]")
        e("s_waitcnt lgkmcnt(0)")
        e("s_sub_u32 s98, s98, s96")
        e("s_cmp_lt_u32 s98, 6000")
        e("s_cbranch_scc1 SPINL")
    if DIAG:
        e("s_mov_b64 exec, -1")
        e("s_waitcnt vmcnt(0)")
        stamp(14); stamp(31, True)
        e(f"v_writelane_b32 v255, s{S_NT}, 27")
        e("s_lshl_b32 s5, s2, 11")
        e(f"s_add_u32 s5, s5, {WS_STAMP}")
        e(f"v_lshlrev_b32 v1, 2, v{V_TID}")
        e(f"buffer_store_dword v255, v1, {sr(S_WS)}, s5 offen")
    lab("K_END")
    e("s_endpgm")

hdr = open("standalone__edge_featured_mpnn_mpnn__graph.s.ref").read().split("; Override")[0]
out.append(hdr.rstrip())
out.append(f"; @launch grid=(256,1,1) block=(512,1,1) lds={L_END}")
out.append('.amdgcn_target "amdgcn-amd-amdhsa--gfx950"')
out.append(".text")
out.append(f".globl {KN}")
out.append(".p2align 8")
out.append(f".type {KN},@function")
kernel()
out.append(f""".section .rodata,"a"
.p2align 6
.amdhsa_kernel {KN}
  .amdhsa_next_free_vgpr 256
  .amdhsa_next_free_sgpr 102
  .amdhsa_accum_offset 256
  .amdhsa_group_segment_fixed_size 0
  .amdhsa_kernarg_size 88
  .amdhsa_user_sgpr_count 2
  .amdhsa_user_sgpr_kernarg_segment_ptr 1
  .amdhsa_system_sgpr_workgroup_id_x 1
.end_amdhsa_kernel""")
dst = sys.argv[1] if len(sys.argv) > 1 else "standalone__edge_featured_mpnn_mpnn__graph.s"
open(dst, "w").write("\n".join(out) + "\n")
print("written", dst, "LDS", L_END)
```

```python
import struct, sys, os
import numpy as np
from align import align, isize

N, E = 12500, 800000
NPB, SPLIT = 49, 25
CH, CHS = 3128, 25088
NQ, NQL = CH // 4, (E - 255 * CH) // 4
LOG2E = 1.4426950408889634
LN2 = 0.6931471805599453
KN = "standalone__edge_featured_mpnn_mpnn__graph_kernel"
DIAG = int(os.environ.get("DIAG", "0"))
PREF = int(os.environ.get("PREF", "0"))
X_NOP = int(os.environ.get("X_NOP", "0"))
STF = os.environ.get("STF", "sc1")
LDF = os.environ.get("LDF", "")
TRANS = int(os.environ.get("TRANS", "0"))
ELF = os.environ.get("ELF", "sc1")
SLP = int(os.environ.get("SLP", "1"))

def f2u(x): return struct.unpack("<I", struct.pack("<f", x))[0]
def u2f(u): return struct.unpack("<f", struct.pack("<I", u))[0]

WS_EPOCH = 0
WS_PT = 4096
WS_DESC = WS_PT + 12544 * 256
WS_ENT = WS_DESC + 256 * 2048
WS_SIZE = WS_ENT + 256 * CHS
WS_STAMP = 12 << 20
if DIAG: WS_SIZE = 16 << 20

L_CNT1, L_BASE1 = 0, 1024
L_CNT2, L_FLAG, L_DEG, L_B2 = 2048, 2304, 2368, 2816
L_EXT = 3072
L_TB = 4096
TBW = 8704
L_W1S, L_XS, L_PS, L_STG = L_TB, L_TB + 32768, L_TB + 41472, L_TB
PS = 272
assert L_PS + NPB * PS <= L_TB + 8 * TBW
L_LIST = L_TB + 8 * TBW
LISTCAP, MAXT = 4096, 116
L_SEL = L_LIST + LISTCAP * 4
SELS, SELSZ = 200, 23552
L_GQ = L_SEL + SELSZ
L_QT = L_GQ + 2048
QS = 328
L_W2 = (L_QT + NPB * QS + 255) // 256 * 256
L_END = L_W2 + 16384
assert L_END <= 163840, L_END
PADENT = 0x00007000
PSH = 3072

out = []
def e(s): out.append("    " + s)
def lab(s): out.append(s + ":")
def c(s): out.append("    ; " + s)
def vr(a, n): return f"v[{a}:{a+n-1}]"
def sr(a, n=4): return f"s[{a}:{a+n-1}]"

SPIN = int(os.environ.get("SPIN", "-1"))
def stamp(i, real=False):
    if SPIN == i:
        e("s_waitcnt lgkmcnt(0)")
        e("s_memrealtime s[96:97]")
        e("s_waitcnt lgkmcnt(0)")
    if not DIAG: return
    e("s_waitcnt lgkmcnt(0)")
    e(f"{'s_memrealtime' if real else 's_memtime'} s[98:99]")
    e("s_waitcnt lgkmcnt(0)")
    e(f"v_writelane_b32 v255, s98, {i}")

def scan64(v):
    for sh in (1, 2, 4, 8):
        e("s_nop 1")
        e(f"v_add_u32_dpp v{v}, v{v}, v{v} row_shr:{sh} row_mask:0xf bank_mask:0xf bound_ctrl:1")
    e("s_nop 1")
    e(f"v_add_u32_dpp v{v}, v{v}, v{v} row_bcast:15 row_mask:0xa bank_mask:0xf")
    e("s_nop 1")
    e(f"v_add_u32_dpp v{v}, v{v}, v{v} row_bcast:31 row_mask:0xc bank_mask:0xf")

H = 192 - 8 if False else 176
C = (144, 160)
D = (112, 128)
T = 96
P = 80
SL = 76
BX = (72, 74)
IDX, IDR = 64, 68
NN, DD, RR, AX, CX, V_M = 16, 18, 20, 22, 24, 26
V_CA, V_DMAC, V_LI, V_LM, V_GQA, V_SELA, V_PSEL, V_QMUL, V_QC, V_GQ, V_QA, V_DMAX, V_TID, V_LANE = range(1, 15)
V_LIO, V_LMO, V_GQO, V_SELO = 28, 29, 30, 31
S_X, S_E, S_SRC, S_DST, S_W1, S_B1, S_W2, S_B2, S_OUT, S_WS, S_P = 8, 12, 16, 20, 24, 28, 32, 36, 40, 44, 48
S_MASK = 8
S_SOFF = 52
S_256, S_REM, S_M0, S_WN, S_RB, S_MORE, S_SAFE, S_TA, S_TT, S_NT, S_T0, S_TAGA, S_TAGB = 60, 61, (62, 63), 64, 65, 66, 67, 68, 69, 70, 71, 72, 73
S_B, S_W = 3, 4

def mf16(d, a, b, cc): return f"v_mfma_f32_32x32x16_bf16 {vr(d,16)}, {vr(a,4)}, {vr(b,4)}, {cc}"
def mfext(ct): return f"v_mfma_f32_32x32x8_bf16 {vr(D[ct&1],16)}, {vr(AX,2)}, {vr(BX[ct&1],2)}, {vr(C[ct&1],16)}"
def mfsel(ct): return mf16(H + 16 * ct, P + 4 * ct, SL, vr(H + 16 * ct, 16))
def dma(half):
    return [f"buffer_load_dwordx4 v{IDX+j}, {sr(S_P)}, s{S_SOFF+4*half+j} offen offset:{1024*j} lds" for j in range(4)]
def mads(src=IDR): return [f"v_mad_i32_i16 v{IDX+j}, v{src+j}, s{S_256}, v{V_DMAC}" for j in range(4)]
def c_reads(half):
    L = []
    for ctl in range(2):
        for r in range(16):
            mm = r >> 1
            L.append(f"ds_read_u16_d16_hi v{C[ctl]+r}, v{V_CA} offset:{half*4096 + (mm&3)*1024 + (2*(r&1) + (mm>>2))*128 + ctl*64}")
    return L
def tr_read(ct): return f"ds_read_b64_tr_b16 {vr(BX[ct&1],2)}, v{V_QA} offset:{64*ct}"
AXB = f"v_pk_mul_f32 {vr(AX,2)}, {vr(CX,2)}, {vr(V_M,2)} op_sel_hi:[1,0]"
QAB = f"v_mad_u32_u24 v{V_QA}, v{V_GQ}, v{V_QMUL}, v{V_QC}"
PERM = f"v_perm_b32 v{V_M}, v{V_M}, v{V_M}, v{V_PSEL}"

def block(tau, ct, safe, gate=False, last=False):
    cur = D[ct & 1]
    pc, pt = (ct - 1) & 3, (tau if ct > 0 else (tau - 1) & 3)
    tr = [f"v_exp_f32 v{T+i}, v{cur+i}" for i in range(16)] + [f"v_rcp_f32 v{RR}, v{DD}", f"v_rcp_f32 v{RR+1}, v{DD+1}"]
    mf = [] if last else [mfext((ct + 1) & 3)]
    if tau == 0: mf.append(mfsel(ct))
    fill = []
    if ct == 1: fill += mads() + [PERM]
    if ct == 2:
        fill += [QAB]
        if tau == 3:
            fill += [f"v_add_u32 v{V_LI}, 2048, v{V_LI}", f"v_add_u32 v{V_LM}, 2048, v{V_LM}",
                     f"v_add_u32 v{V_GQA}, 256, v{V_GQA}", f"v_add_u32 v{V_SELA}, {16*SELS}, v{V_SELA}"]
    fill.append(f"v_max3_f32 v{V_DMAX}, v{DD}, v{DD+1}, v{V_DMAX}")
    L = []
    k = 0
    if gate:
        L += [tr[0], "s_setprio 3"]; k = 1
    for m in mf:
        L.append(m); L += tr[k:k+4]; k += 4
    L += tr[k:] + fill
    L.append(f"v_pk_mul_f32 {vr(RR,2)}, {vr(NN,2)}, {vr(RR,2)}")
    cvt = f"v_cvt_pk_bf16_f32 v{P+4*pc+pt}, v{RR}, v{RR+1}"
    if not safe:
        L += [f"v_pk_add_f32 {vr(DD,2)}, {vr(T,2)}, 1.0 op_sel_hi:[1,0]", cvt]
        if ct == 2: L.append(AXB)
        for j in range(1, 8):
            n_in = vr(cur, 2) if j == 1 else vr(NN, 2)
            L += [f"v_pk_fma_f32 {vr(NN,2)}, {n_in}, {vr(T+2*j,2)}, {n_in}",
                  f"v_pk_fma_f32 {vr(NN,2)}, {vr(cur+2*j,2)}, {vr(DD,2)}, {vr(NN,2)}",
                  f"v_pk_fma_f32 {vr(DD,2)}, {vr(DD,2)}, {vr(T+2*j,2)}, {vr(DD,2)}"]
    else:
        L += [f"v_pk_add_f32 {vr(T+2*j,2)}, {vr(T+2*j,2)}, 1.0 op_sel_hi:[1,0]" for j in range(8)] + [cvt]
        if ct == 2: L.append(AXB)
        L += [f"v_rcp_f32 v{T+i}, v{T+i}" for i in range(16)]
        L.append(f"v_pk_mul_f32 {vr(NN,2)}, {vr(cur,2)}, {vr(T,2)}")
        L += [f"v_pk_fma_f32 {vr(NN,2)}, {vr(cur+2*j,2)}, {vr(T+2*j,2)}, {vr(NN,2)}" for j in range(1, 8)]
    return L

def memphase(tau, half):
    L = ["s_setprio 0", "s_waitcnt vmcnt(4)"]
    L += c_reads(half) + [tr_read(2 * half), tr_read(2 * half + 1)]
    if half == 1:
        L += [f"ds_read_b128 {vr(IDR,4)}, v{V_LI} offset:{(tau+2)*512}",
              f"ds_read_b32 v{V_M}, v{V_LM} offset:{(tau+1)*512}",
              f"ds_read_b32 v{V_GQ}, v{V_GQA} offset:{(tau+1)*64}"]
        if tau == 1: L.append(f"ds_read_b32 v{SL}, v{V_SELA}")
        if tau >= 1: L.append(f"ds_read_b32 v{SL+tau}, v{V_SELA} offset:{tau*4*SELS}")
    L += [f"s_mov_b32 m0, s{S_M0[half]}", "s_waitcnt lgkmcnt(0)"]
    L += dma(half)
    return L

def emit(L):
    L = align(L)
    assert sum(isize(x) for x in L) % 8 == 0
    for s in L: e(s)

def mainloop(safe):
    x = "S" if safe else "F"
    out.append(".p2align 6")
    lab(f"LOOP{x}")
    for tau in range(4):
        c(f"==== tile slot {tau}")
        emit(memphase(tau, 0))
        emit(block((tau - 1) & 3, 3, safe, gate=True))
        if tau == 0: lab(f"ENTER{x}")
        emit(block(tau, 0, safe))
        emit(memphase(tau, 1))
        emit(block(tau, 1, safe, gate=True))
        emit(block(tau, 2, safe))
        e(f"s_sub_u32 s{S_REM}, s{S_REM}, 1")
        if tau < 3: e(f"s_cbranch_scc1 TAIL{x}{tau}")
        else: e(f"s_cbranch_scc0 LOOP{x}")
    for tau in (3, 0, 1, 2):
        lab(f"TAIL{x}{tau}")
        emit(block(tau, 3, safe, last=True))
        if tau == 0: e(f"ds_read_b32 v{SL}, v{V_SELA}")
        e(f"v_rcp_f32 v{RR}, v{DD}")
        e(f"v_rcp_f32 v{RR+1}, v{DD+1}")
        e(f"v_max3_f32 v{V_DMAX}, v{DD}, v{DD+1}, v{V_DMAX}")
        e(f"v_pk_mul_f32 {vr(RR,2)}, {vr(NN,2)}, {vr(RR,2)}")
        for t2 in range(tau + 1, 4): e(f"v_mov_b32_e64 v{SL+t2}, 0")
        e(f"v_cvt_pk_bf16_f32 v{P+12+tau}, v{RR}, v{RR+1}")
        e("s_setprio 0")
        e("s_branch DRAIN")

def find_cx(target):
    m = np.float64(u2f(0x00FF0000))
    g = f2u(float(np.float32(np.float64(u2f(target)) / m)))
    for d in range(-3, 4):
        if f2u(float(np.float32(np.float64(u2f(g + d)) * m))) == target: return g + d
    raise SystemExit("no cx")

def lds_init_tables(tmp):
    e(f"v_lshlrev_b32 v{tmp+8}, 4, v{V_TID}")
    e(f"v_add_u32 v{tmp+8}, {L_LIST}, v{tmp+8}")
    for i in range(4): e(f"v_mov_b32 v{tmp+i}, {hex(PADENT)}")
    for i in range(4): e(f"v_mov_b32 v{tmp+4+i}, 0")
    e(f"ds_write_b128 v{tmp+8}, {vr(tmp,4)}")
    e(f"ds_write_b128 v{tmp+8}, {vr(tmp,4)} offset:8192")
    for o in (0, 8192, SELSZ - 8192):
        e(f"ds_write_b128 v{tmp+8}, {vr(tmp+4,4)} offset:{L_SEL-L_LIST+o}")
    e(f"v_lshlrev_b32 v{tmp+8}, 2, v{V_TID}")
    e(f"v_add_u32 v{tmp+9}, {L_GQ}, v{tmp+8}")
    e(f"v_mov_b32 v{tmp}, {L_QT}")
    e(f"ds_write_b32 v{tmp+9}, v{tmp}")

def kernel():
    lab(KN)
    e("s_cmp_ge_u32 s2, 256")
    e("s_cbranch_scc1 K_END")
    if DIAG: e("v_mov_b32 v255, 0")
    stamp(30, True); stamp(0)
    for s, off in ((S_DST, 24), (S_SRC, 16), (S_E, 8), (S_W1, 32), (S_X, 0), (S_WS, 80), (S_B1, 40), (S_W2, 48), (S_B2, 56), (S_OUT, 64)):
        e(f"s_load_dwordx2 {sr(s,2)}, s[0:1], {off}")
    e(f"v_mov_b32 v{V_TID}, v0")
    e(f"v_readfirstlane_b32 s{S_W}, v0")
    e(f"v_and_b32 v{V_LANE}, 63, v0")
    for s, sz in ((S_DST, E*4), (S_SRC, E*4), (S_E, E*2), (S_W1, 129*256), (S_X, N*128), (S_WS, WS_SIZE), (S_B1, 256), (S_W2, 16384), (S_B2, 128), (S_OUT, N*128), (S_P, N*256 + PSH)):
        e(f"s_mov_b32 s{s+2}, {sz}")
        e(f"s_mov_b32 s{s+3}, 0x00020000")
    e(f"s_lshr_b32 s{S_W}, s{S_W}, 6")
    e(f"s_and_b32 s{S_B}, s2, 7")
    e(f"s_lshl_b32 s{S_B}, s{S_B}, 5")
    e("s_lshr_b32 s5, s2, 3")
    e(f"s_add_u32 s{S_B}, s{S_B}, s5")
    e(f"s_mul_i32 s5, s2, {CH*4}")
    e("v_lshl_add_u32 v32, v0, 4, s5")
    e("s_cmp_eq_u32 s2, 255")
    e(f"s_movk_i32 s6, {NQ-512}")
    e(f"s_cmovk_i32 s6, {NQL-512}")
    e("v_cmp_gt_u32 s[74:75], s6, v0")
    e("v_add_u32 v33, 8192, v32")
    e("v_bfrev_b32 v36, 1")
    e("v_lshrrev_b32 v34, 1, v32")
    e("v_cndmask_b32 v33, v36, v33, s[74:75]")
    e("v_lshrrev_b32 v35, 1, v33")
    e(f"v_lshrrev_b32 v37, 4, v{V_LANE}")
    e(f"v_lshrrev_b32 v38, 5, v{V_LANE}")
    e(f"s_cmp_lt_u32 s{S_W}, 4")
    e("s_cbranch_scc1 P0_LO")
    e(f"v_lshlrev_b32 v39, 2, v37")
    e(f"v_xor_b32 v39, v39, v{V_LANE}")
    e("v_lshlrev_b32 v39, 4, v39")
    e(f"v_lshrrev_b32 v40, 3, v{V_LANE}")
    e("v_and_b32 v41, 4, v40")
    e("v_and_b32 v42, 1, v40")
    e("v_lshl_add_u32 v41, v42, 1, v41")
    e("v_and_b32 v42, 1, v37")
    e("v_add_u32 v41, v41, v42")
    e(f"v_and_b32 v43, 7, v{V_LANE}")
    e("v_xor_b32 v43, v43, v37")
    e("v_lshlrev_b32 v43, 4, v43")
    e("v_lshl_add_u32 v41, v41, 15, v43")
    e("v_lshlrev_b32 v42, 2, v42")
    e(f"v_xor_b32 v42, v42, v{V_LANE}")
    e("v_lshlrev_b32 v42, 4, v42")
    e(f"s_and_b32 s5, s{S_W}, 3")
    e("s_lshl_b32 s6, s5, 13")
    e("s_add_u32 s7, s6, 4096")
    e(f"s_add_u32 m0, s6, {L_W1S}")
    e("s_lshl_b32 s76, s5, 19")
    e(f"s_lshl_b32 s77, s{S_B}, 7")
    e("s_add_u32 s76, s76, s77")
    e("v_add_u32 v41, s76, v41")
    e("v_add_u32 v44, 0x40000, v41")
    e("v_lshlrev_b32 v43, 3, v38")
    e("s_lshl_b32 s77, s5, 6")
    e("s_waitcnt lgkmcnt(0)")
    for k in range(4): e(f"buffer_load_dwordx4 v39, {sr(S_W1)}, s6 offen offset:{1024*k} lds")
    e(f"s_add_u32 m0, s7, {L_W1S}")
    e("s_mul_i32 s76, s5, 2176")
    for k in range(4): e(f"buffer_load_dwordx4 v39, {sr(S_W1)}, s7 offen offset:{1024*k} lds")
    e(f"s_add_u32 m0, s76, {L_XS}")
    e("s_lshl_b32 s6, s5, 12")
    e(f"buffer_load_dwordx4 v41, {sr(S_X)}, 0 offen lds")
    e(f"s_add_u32 m0, s76, {L_XS+1088}")
    for q in range(4): e(f"buffer_load_dwordx2 {vr(104+2*q,2)}, v43, {sr(S_B1)}, s77 offen offset:{16*q}")
    e(f"buffer_load_dwordx4 v44, {sr(S_X)}, 0 offen lds")
    e(f"v_lshlrev_b32 v45, 2, v{V_LANE}")
    e(f"v_lshlrev_b32 v46, 1, v{V_LANE}")
    e(f"s_mov_b32 s7, {128*256}")
    e(f"buffer_load_dword v47, v45, {sr(S_W1)}, s7 offen")
    e(f"s_add_u32 m0, s6, {L_W2}")
    e(f"buffer_load_ushort v48, v46, {sr(S_B2)}, 0 offen")
    for k in range(4): e(f"buffer_load_dwordx4 v42, {sr(S_W2)}, s6 offen offset:{1024*k} lds")
    e("s_branch P0_EDGE")
    lab("P0_LO")
    for q in range(8): e(f"v_mov_b32 v{104+q}, 0")
    e("s_waitcnt lgkmcnt(0)")
    lab("P0_EDGE")
    e(f"buffer_load_dwordx4 v[64:67], v32, {sr(S_DST)}, 0 offen {LDF}")
    e(f"buffer_load_dwordx4 v[68:71], v33, {sr(S_DST)}, 0 offen {LDF}")
    e(f"buffer_load_dwordx4 v[72:75], v32, {sr(S_SRC)}, 0 offen {LDF}")
    e(f"buffer_load_dwordx4 v[76:79], v33, {sr(S_SRC)}, 0 offen {LDF}")
    e(f"buffer_load_dwordx2 v[80:81], v34, {sr(S_E)}, 0 offen {LDF}")
    e(f"buffer_load_dwordx2 v[82:83], v35, {sr(S_E)}, 0 offen {LDF}")
    e(f"s_load_dwordx2 s[78:79], {sr(S_WS,2)}, {WS_EPOCH}")
    e(f"s_add_u32 s{S_P}, s{S_WS}, {WS_PT - PSH}")
    e(f"s_addc_u32 s{S_P+1}, s{S_WS+1}, 0")
    for j in range(8): e(f"s_movk_i32 s{S_SOFF+j}, {PSH - 1024*(j&3) + 128*(j>>2)}")
    e(f"s_movk_i32 s{S_256}, 256")
    e(f"s_mul_i32 s{S_M0[0]}, s{S_W}, {TBW}")
    e(f"s_add_u32 s{S_M0[0]}, s{S_M0[0]}, {L_TB}")
    e(f"s_add_u32 s{S_M0[1]}, s{S_M0[0]}, 4096")
    e(f"s_mov_b32 s{S_WN}, 32")
    e(f"s_mov_b32 s{S_RB}, 0")
    e(f"s_mov_b32 s{S_SAFE}, 0")
    lds_init_tables(52)
    e(f"v_lshlrev_b32 v61, 3, v{V_TID}")
    e("ds_write_b64 v61, v[56:57]")
    e(f"v_and_b32 v39, 31, v{V_LANE}")
    e("v_lshlrev_b32 v40, 1, v39")
    e("v_lshl_add_u32 v40, v38, 9, v40")
    e(f"v_add_u32 v{V_CA}, s{S_M0[0]}, v40")
    e(f"v_and_b32 v40, 7, v{V_LANE}")
    e("v_lshlrev_b32 v40, 4, v40")
    e(f"v_add_u32 v{V_DMAC}, 0x800000, v40")
    e(f"v_lshrrev_b32 v40, 3, v{V_LANE}")
    e(f"v_lshlrev_b32 v40, 4, v40")
    e(f"v_add_u32 v{V_LIO}, {L_LIST}, v40")
    e("v_bfe_u32 v40, v39, 2, 1")
    e("v_and_b32 v41, 1, v39")
    e("v_lshl_add_u32 v40, v40, 1, v41")
    e("v_lshrrev_b32 v42, 3, v39")
    e("v_bfe_u32 v43, v39, 1, 1")
    e("v_lshl_add_u32 v44, v40, 2, v42")
    e("v_lshl_add_u32 v44, v44, 1, v43")
    e("v_lshlrev_b32 v44, 2, v44")
    e(f"v_add_u32 v{V_LMO}, {L_LIST}, v44")
    e(f"v_bfe_u32 v44, v{V_LANE}, 2, 2")
    e(f"v_lshlrev_b32 v49, 2, v44")
    e(f"v_add_u32 v{V_GQO}, {L_GQ}, v49")
    e(f"v_mul_u32_u24 v49, {SELS//2}, v38")
    e("v_lshl_add_u32 v49, v39, 2, v49")
    e(f"v_add_u32 v{V_SELO}, {L_SEL}, v49")
    e("v_cmp_eq_u32 vcc, 0, v38")
    e("v_mov_b32 v49, 0x03020100")
    e("v_mov_b32 v50, 0x0c080c0c")
    e(f"v_cndmask_b32 v{V_PSEL}, v49, v50, vcc")
    e(f"v_cndmask_b32 v{V_QMUL}, 0, 1, vcc")
    e(f"v_and_b32 v49, 3, v{V_LANE}")
    e("v_lshlrev_b32 v49, 3, v49")
    e("v_and_b32 v50, 1, v37")
    e("v_lshl_add_u32 v49, v50, 5, v49")
    e("v_add_u32 v50, 1, v44")
    e("v_lshrrev_b32 v50, 1, v50")
    e("v_and_b32 v51, 1, v44")
    e("v_mul_u32_u24 v50, v50, v51")
    e("v_mul_u32_u24 v50, 320, v50")
    e(f"v_add_u32 v50, {L_EXT}, v50")
    e("v_cndmask_b32 v50, v50, 0, vcc")
    e(f"v_add_u32 v{V_QC}, v49, v50")
    e(f"v_mov_b32 v50, {hex(find_cx(0x00803F80))}")
    e(f"v_mov_b32 v51, {hex(find_cx(0x3F800000))}")
    e("v_cmp_eq_u32 s[6:7], 1, v41")
    e("v_cmp_gt_u32 s[76:77], 2, v40")
    e("s_nop 0")
    e("v_cndmask_b32 v50, v50, v51, s[6:7]")
    e("v_cndmask_b32 v51, 0, v50, s[76:77]")
    e("v_cndmask_b32 v50, v50, 0, s[76:77]")
    e(f"v_cndmask_b32 v{CX}, 1.0, v51, vcc")
    e(f"v_cndmask_b32 v{CX+1}, 1.0, v50, vcc")
    for i in range(64): e(f"v_mov_b32 v{H+i}, 0")
    e(f"s_and_b32 s5, s{S_W}, 3")
    e("v_xor_b32 v50, s5, v44")
    e("v_lshl_add_u32 v50, v50, 6, v49")
    e("v_lshl_add_u32 v51, v38, 3, v44")
    e("v_lshl_add_u32 v50, v51, 8, v50")
    e(f"s_lshr_b32 s6, s{S_W}, 2")
    e("s_lshl_b32 s7, s6, 14")
    e(f"s_add_u32 s7, s7, {L_W1S}")
    e("v_add_u32 v50, s7, v50")
    e("v_lshl_add_u32 v51, v40, 1, v43")
    e("v_mul_u32_u24 v52, 1088, v42")
    e("v_lshl_add_u32 v52, v51, 7, v52")
    e("v_xor_b32 v53, v38, v40")
    e("v_lshl_add_u32 v51, v53, 4, v52")
    e("v_xor_b32 v53, 2, v53")
    e("v_lshl_add_u32 v52, v53, 4, v52")
    e("s_cmp_eq_u32 s6, 0")
    e(f"s_movk_i32 s6, {QS}")
    e(f"s_cmovk_i32 s6, {PS}")
    e(f"s_mov_b32 s7, {L_QT}")
    e(f"s_cmov_b32 s7, {L_PS}")
    e("s_lshl_b32 s5, s5, 6")
    e("s_add_u32 s7, s7, s5")
    e("v_mul_u32_u24 v53, s6, v39")
    e("v_lshl_add_u32 v53, v38, 3, v53")
    e("v_add_u32 v53, s7, v53")
    e("s_lshl_b32 s6, s6, 5")
    e("v_add_u32 v54, s6, v53")
    e(f"v_cmp_gt_u32 s[76:77], {NPB-32}, v39")
    e("s_waitcnt vmcnt(10) lgkmcnt(0)")
    e(f"s_mul_i32 s{S_TAGB}, s78, 1664525")
    e(f"s_add_u32 s{S_TAGB}, s{S_TAGB}, 1013904223")
    e(f"s_add_u32 s{S_TAGA}, s79, 0x01000000")
    e(f"s_and_b32 s{S_TAGA}, s{S_TAGA}, 0xff000000")
    e("s_barrier")
    stamp(1)
    for ks in range(4):
        e(f"ds_read_b64_tr_b16 {vr(88+4*ks,2)}, v50 offset:{4096*ks}")
        e(f"ds_read_b64_tr_b16 {vr(90+4*ks,2)}, v50 offset:{4096*ks+1024}")
        e(f"ds_read_b128 {vr(144+4*ks,4)}, v{51+(ks&1)} offset:{L_XS+64*(ks>>1)}")
    for ks in range(4):
        e(f"ds_read_b128 {vr(160+4*ks,4)}, v{51+(ks&1)} offset:{L_XS+4352+64*(ks>>1)}")
    for q in range(8):
        e(f"v_lshlrev_b32 v{128+2*q}, 16, v{104+q}")
        e(f"v_and_b32 v{129+2*q}, 0xffff0000, v{104+q}")
    e(f"s_cmp_eq_u32 s{S_W}, 4")
    e(f"s_mov_b32 s5, {hex(f2u(-LOG2E))}")
    e("s_cbranch_scc0 P0_NOEXT")
    e("v_lshlrev_b32 v56, 16, v47")
    e("v_and_b32 v57, 0xffff0000, v47")
    e("v_mul_f32 v56, s5, v56")
    e("v_mul_f32 v57, s5, v57")
    e("v_cvt_pk_bf16_f32 v58, v56, v57")
    e("v_lshlrev_b32 v59, 16, v58")
    e("v_and_b32 v60, 0xffff0000, v58")
    e("v_sub_f32 v59, v56, v59")
    e("v_sub_f32 v60, v57, v60")
    e("v_cvt_pk_bf16_f32 v59, v59, v60")
    e("v_lshlrev_b32 v48, 16, v48")
    e(f"ds_write_b32 v45, v58 offset:{L_EXT+320}")
    e(f"ds_write_b32 v45, v59 offset:{L_EXT+640}")
    e(f"ds_write_b32 v45, v48 offset:{L_B2}")
    lab("P0_NOEXT")
    e("s_waitcnt lgkmcnt(0)")
    for ks in range(4):
        e(mf16(112, 88 + 4*ks, 144 + 4*ks, vr(128 if ks == 0 else 112, 16)))
    for ks in range(4):
        e(mf16(128, 88 + 4*ks, 160 + 4*ks, vr(128, 16)))
    e("s_nop 7")
    for t in range(2):
        b = 112 + 16 * t
        for i in range(16): e(f"v_mul_f32 v{b+i}, s5, v{b+i}")
        for i in range(8): e(f"v_cvt_pk_bf16_f32 v{88+8*t+i}, v{b+2*i}, v{b+2*i+1}")
        if t == 1: e("s_mov_b64 exec, s[76:77]")
        for q in range(4): e(f"ds_write_b64 v{53+t}, {vr(88+8*t+2*q,2)} offset:{16*q}")
    e("s_mov_b64 exec, -1")
    stamp(2)
    e("v_mov_b32 v55, 1")
    e("s_movk_i32 s5, 0x7fff")
    e("s_add_u32 s5, s5, 1")
    e("s_waitcnt vmcnt(4)")
    stamp(3)
    SD = "dst_sel:DWORD dst_unused:UNUSED_PAD src0_sel:DWORD"
    def binA(j):
        e(f"v_lshlrev_b32_sdwa v{112+j}, 2, v{64+j} {SD} src1_sel:BYTE_0")
        e(f"v_lshlrev_b32_sdwa v{129+2*j}, 2, v{64+j} {SD} src1_sel:BYTE_1")
        e(f"ds_add_rtn_u32 v{120+j}, v{112+j}, v55 offset:{L_CNT1}")
    def binB(j):
        if j % 2 == 0: e(f"v_lshlrev_b32 v56, 16, v{80+j//2}")
        else: e(f"v_and_b32 v56, 0xffff0000, v{80+j//2}")
        e(f"v_or3_b32 v{128+2*j}, v56, v{72+j}, s5")
    for j in range(4): binA(j)
    e("s_mov_b64 exec, s[74:75]")
    e("s_cbranch_execz P1_A")
    for j in range(4, 8): binA(j)
    lab("P1_A")
    e("s_mov_b64 exec, -1")
    e("s_waitcnt lgkmcnt(0)")
    e("s_barrier")
    stamp(4)
    e(f"s_cmp_eq_u32 s{S_W}, 0")
    e("s_cbranch_scc1 P1_SCAN")
    e(f"v_subrev_u32 v56, 64, v{V_TID}")
    e("v_lshrrev_b32 v57, 4, v56")
    e("v_and_b32 v58, 15, v56")
    e("v_lshlrev_b32 v58, 4, v58")
    e(f"v_mul_u32_u24 v59, {PS}, v57")
    e("v_add_u32 v59, v59, v58")
    e(f"ds_read_b128 v[144:147], v59 offset:{L_PS}")
    e(f"ds_read_b128 v[148:151], v59 offset:{L_PS+28*PS}")
    e("v_lshl_add_u32 v58, v57, 16, v58")
    e(f"s_lshl_b32 s6, s{S_B}, 8")
    e(f"s_add_u32 s6, s6, {WS_PT}")
    e(f"s_add_u32 s7, s6, {28*65536}")
    e(f"v_cmp_gt_u32 vcc, {NPB-28}, v57")
    e("s_waitcnt vmcnt(0) lgkmcnt(1)")
    if not X_NOP: e(f"buffer_store_dwordx4 v[144:147], v58, {sr(S_WS)}, s6 offen {STF}")
    e("s_waitcnt lgkmcnt(0)")
    e("s_and_b64 exec, exec, vcc")
    e("s_cbranch_execz P1_P")
    if not X_NOP: e(f"buffer_store_dwordx4 v[148:151], v58, {sr(S_WS)}, s7 offen {STF}")
    lab("P1_P")
    e("s_mov_b64 exec, -1")
    for j in range(8): binB(j)
    e("s_barrier")
    e("s_branch P1_NOSCAN")
    lab("P1_SCAN")
    e(f"v_lshlrev_b32 v56, 4, v{V_LANE}")
    e(f"ds_read_b128 v[144:147], v56 offset:{L_CNT1}")
    e("s_waitcnt lgkmcnt(0)")
    e("v_add_u32 v57, v144, v145")
    e("v_add_u32 v58, v57, v146")
    e("v_add_u32 v59, v58, v147")
    e("v_mov_b32 v60, v59")
    scan64(59)
    e("v_sub_u32 v152, v59, v60")
    e("v_add_u32 v153, v152, v144")
    e("v_add_u32 v154, v152, v57")
    e("v_add_u32 v155, v152, v58")
    e(f"ds_write_b128 v56, v[152:155] offset:{L_BASE1}")
    e("s_waitcnt lgkmcnt(0)")
    e("s_barrier")
    for j in range(4):
        e(f"v_lshl_or_b32 v{160+2*j}, v{144+j}, 12, v{152+j}")
        e(f"v_or_b32 v{160+2*j}, s{S_TAGA}, v{160+2*j}")
        e(f"v_mov_b32 v{161+2*j}, s{S_TAGB}")
    e("s_waitcnt vmcnt(0)")
    for j in range(8): binB(j)
    lab("P1_NOSCAN")
    stamp(5)
    for j in range(4): e(f"ds_read_b32 v{112+j}, v{112+j} offset:{L_BASE1}")
    e("s_mov_b64 exec, s[74:75]")
    e("s_cbranch_execz P1_B0")
    for j in range(4, 8): e(f"ds_read_b32 v{112+j}, v{112+j} offset:{L_BASE1}")
    lab("P1_B0")
    e("s_mov_b64 exec, -1")
    e("s_waitcnt lgkmcnt(0)")
    for j in range(8):
        if j == 4:
            e("s_mov_b64 exec, s[74:75]")
            e("s_cbranch_execz P1_B")
        e(f"v_add_lshl_u32 v{112+j}, v{112+j}, v{120+j}, 3")
        e(f"ds_write_b64 v{112+j}, {vr(128+2*j,2)} offset:{L_STG}")
    lab("P1_B")
    e("s_mov_b64 exec, -1")
    e(f"v_lshlrev_b32 v56, 4, v{V_TID}")
    e(f"s_mul_i32 s5, s2, {CHS}")
    e(f"s_add_u32 s5, s5, {WS_ENT}")
    e("s_add_u32 s6, s5, 8192")
    e("s_add_u32 s7, s5, 16384")
    e(f"s_add_u32 s76, s5, {CHS-8192}")
    e("s_waitcnt lgkmcnt(0)")
    e("s_barrier")
    stamp(6)
    for k in range(3): e(f"ds_read_b128 {vr(112+4*k,4)}, v56 offset:{L_STG+8192*k}")
    e(f"s_cmp_eq_u32 s{S_W}, 7")
    e("s_cbranch_scc0 P1_C")
    e(f"ds_read_b128 v[124:127], v56 offset:{L_STG+CHS-8192}")
    e("s_waitcnt lgkmcnt(0)")
    e(f"buffer_store_dwordx4 v[124:127], v56, {sr(S_WS)}, s76 offen {STF}")
    lab("P1_C")
    for k in range(3):
        e(f"s_waitcnt lgkmcnt({2-k})")
        e(f"buffer_store_dwordx4 {vr(112+4*k,4)}, v56, {sr(S_WS)}, s{5+k} offen {STF}")
    if TRANS:
        e(f"v_lshlrev_b32 v57, 2, v{V_TID}")
        e(f"ds_read_b32 v160, v57 offset:{L_CNT1}")
        e(f"ds_read_b32 v161, v57 offset:{L_BASE1}")
        e(f"v_lshlrev_b32 v56, 11, v{V_TID}")
        e("s_lshl_b32 s5, s2, 3")
        e("s_waitcnt lgkmcnt(0)")
        e("v_lshl_or_b32 v160, v160, 12, v161")
        e(f"v_or_b32 v160, s{S_TAGA}, v160")
        e(f"v_mov_b32 v161, s{S_TAGB}")
    else:
        e(f"v_lshlrev_b32 v56, 5, v{V_LANE}")
        e("s_lshl_b32 s5, s2, 11")
    e(f"s_add_u32 s5, s5, {WS_DESC}")
    e("s_waitcnt vmcnt(0)")
    e("s_barrier")
    stamp(7)
    if TRANS:
        e(f"s_cmp_lt_u32 s{S_W}, 4")
        e("s_cbranch_scc0 POLL0")
        e(f"buffer_store_dwordx2 v[160:161], v56, {sr(S_WS)}, s5 offen sc1")
    else:
        e(f"s_cmp_eq_u32 s{S_W}, 0")
        e("s_cbranch_scc0 POLL0")
        e(f"buffer_store_dwordx4 v[160:163], v56, {sr(S_WS)}, s5 offen sc1")
        e(f"buffer_store_dwordx4 v[164:167], v56, {sr(S_WS)}, s5 offen offset:16 sc1")

    lab("POLL0")
    e(f"v_lshrrev_b32 v32, 4, v{V_LANE}")
    e(f"v_and_b32 v33, 7, v{V_LANE}")
    e("v_lshl_add_u32 v32, v32, 3, v33")
    e(f"s_lshl_b32 s5, s{S_W}, 5")
    e("v_add_u32 v32, s5, v32")
    e(f"v_lshlrev_b32 v33, {3 if TRANS else 11}, v32")
    e(f"s_lshl_b32 s5, s{S_B}, {11 if TRANS else 3}")
    e(f"s_add_u32 s5, s5, {WS_DESC}")
    e(f"buffer_load_dwordx2 v[34:35], v33, {sr(S_WS)}, s5 offen sc1")
    e(f"v_mul_u32_u24 v32, {CHS}, v32")
    e(f"v_and_b32 v36, 15, v{V_LANE}")
    e("v_add_u32 v37, 16, v36")
    e("v_bfrev_b32 v40, -2")
    e(f"v_cmp_gt_u32 vcc, s{S_WN}, v36")
    e(f"v_add_u32 v38, s{S_RB}, v36")
    e(f"v_add_u32 v39, s{S_RB}, v37")
    e("v_lshlrev_b32 v41, 3, v38")
    e("v_cndmask_b32 v38, v40, v38, vcc")
    e(f"v_cmp_gt_u32 vcc, s{S_WN}, v37")
    e("s_mov_b32 s6, 0x40000")
    e(f"s_mov_b32 s7, {WS_ENT}")
    e("v_cndmask_b32 v39, v40, v39, vcc")
    lab("POLL")
    e("s_waitcnt vmcnt(0)")
    e(f"v_xor_b32 v34, s{S_TAGA}, v34")
    e(f"v_cmp_ne_u32 s[76:77], s{S_TAGB}, v35")
    e("v_cmp_le_u32 vcc, 0x1000000, v34")
    e("s_or_b64 vcc, vcc, s[76:77]")
    e("s_cbranch_scc0 POLLED")
    e("s_sub_u32 s6, s6, 1")
    e("s_cbranch_scc1 K_END")
    e(f"s_sleep {SLP}")
    e(f"buffer_load_dwordx2 v[34:35], v33, {sr(S_WS)}, s5 offen sc1")
    e("s_branch POLL")
    lab("POLLED")
    stamp(8)
    e("v_and_b32 v35, 0xfff, v34")
    e("v_lshrrev_b32 v34, 12, v34")
    e("v_lshl_add_u32 v35, v35, 3, v32")
    e(f"s_add_u32 s5, s{S_RB}, s{S_WN}")
    e("v_cmp_lt_u32 s[74:75], s5, v34")
    DP = "row_mask:0xf bank_mask:0xf"
    for i in range(8):
        e(f"v_mov_b32_dpp v42, v34 row_newbcast:{i} {DP}")
        e(f"v_add_u32_dpp v{44+i}, v35, v41 row_newbcast:{i} {DP}")
        e(f"v_cmp_lt_u32 {sr(S_MASK+2*i,2)}, v38, v42")
        e(f"v_cmp_lt_u32 {sr(S_MASK+16+2*i,2)}, v39, v42")
        e(f"s_or_b64 exec, {sr(S_MASK+2*i,2)}, 1")
        e(f"buffer_load_dwordx2 {vr(112+2*i,2)}, v{44+i}, {sr(S_WS)}, s7 offen {ELF}")
        e("s_mov_b64 exec, -1")
    for i in range(8):
        e(f"s_or_b64 exec, {sr(S_MASK+16+2*i,2)}, 1")
        e(f"buffer_load_dwordx2 {vr(128+2*i,2)}, v{44+i}, {sr(S_WS)}, s7 offen offset:128 {ELF}")
    e("s_mov_b64 exec, -1")
    e("v_mov_b32 v55, 1")
    e(f"v_lshlrev_b32 v54, 2, v{V_LANE}")
    e("v_mov_b32 v53, 0")
    e("s_mov_b64 exec, s[74:75]")
    e(f"ds_write_b32 v53, v55 offset:{L_FLAG}")
    for k in range(16):
        e(f"s_mov_b64 exec, {sr(S_MASK+2*k,2)}")
        if k >= 8: e(f"s_cbranch_execz R_A{k}")
        e(f"s_waitcnt vmcnt({15-k})")
        e(f"ds_add_rtn_u32 v{144+k}, v{113+2*k}, v55 offset:{L_CNT2}")
        if k >= 8: lab(f"R_A{k}")
    e("s_mov_b64 exec, -1")
    e("s_waitcnt vmcnt(0) lgkmcnt(0)")
    e("s_barrier")
    stamp(9)
    e(f"ds_read_b32 v32, v54 offset:{L_CNT2}")
    e(f"ds_read_b32 v33, v53 offset:{L_FLAG}")
    e(f"ds_read_b32 v34, v54 offset:{L_DEG}")
    if PREF:
        e("s_lshr_b32 s6, s2, 3")
        e(f"s_mul_i32 s6, s6, {782*128}")
        e(f"s_add_u32 s6, s6, {PSH}")
        e(f"v_min_u32 v56, 390, v{V_TID}")
        e("v_lshlrev_b32 v56, 8, v56")
        e(f"buffer_load_dword v57, v56, {sr(S_P)}, s6 offen")
        e(f"buffer_load_dword v58, v56, {sr(S_P)}, s6 offen offset:128")
    e("s_waitcnt lgkmcnt(2)")
    e("v_add_u32 v35, 7, v32")
    e("v_and_b32 v35, -8, v35")
    e("v_mov_b32 v36, v35")
    scan64(36)
    e(f"v_cmp_le_u32 vcc, {SPLIT}, v{V_LANE}")
    e(f"v_readlane_b32 s6, v36, {SPLIT-1}")
    e("v_readlane_b32 s7, v36, 63")
    e("s_waitcnt lgkmcnt(0)")
    e(f"v_readfirstlane_b32 s{S_MORE}, v33")
    e("v_sub_u32 v36, v36, v35")
    e("s_add_u32 s5, s6, 31")
    e(f"s_lshr_b32 s{S_TA}, s5, 5")
    e("s_and_b32 s5, s5, -32")
    e("s_sub_u32 s5, s5, s6")
    e("s_add_u32 s7, s7, s5")
    e("s_add_u32 s7, s7, 31")
    e(f"s_lshr_b32 s{S_TT}, s7, 5")
    e(f"s_cmp_gt_u32 s{S_TT}, {MAXT}")
    e("s_cbranch_scc0 R_FITS")
    e(f"s_mov_b32 s{S_WN}, 12")
    e("s_branch NEXT_ROUND")
    lab("R_FITS")
    e("v_add_u32 v37, s5, v36")
    e("v_cndmask_b32 v36, v36, v37, vcc")
    e(f"v_add_u32 v38, {L_LIST//4}, v36")
    for k in range(8): e(f"ds_bpermute_b32 v{113+2*k}, v{113+2*k}, v38")
    for k in range(8, 16):
        e(f"s_cmp_eq_u64 {sr(S_MASK+2*k,2)}, 0")
        e(f"s_cbranch_scc1 R_B{k}")
        e(f"ds_bpermute_b32 v{113+2*k}, v{113+2*k}, v38")
        lab(f"R_B{k}")
    e("v_add_u32 v34, v34, v32")
    e("v_lshrrev_b32 v35, 3, v35")
    e("v_lshrrev_b32 v36, 3, v36")
    e(f"v_mul_u32_u24 v39, {QS}, v{V_LANE}")
    e(f"v_add_u32 v39, {L_QT}, v39")
    e(f"v_add_u32 v40, {L_SEL}, v54")
    e(f"v_add_u32 v41, {L_SEL-4*SPLIT}, v54")
    e("v_cndmask_b32 v40, v40, v41, vcc")
    e("v_mov_b32 v41, 0x3f80")
    e(f"s_cmp_eq_u32 s{S_W}, 0")
    e("s_cbranch_scc0 R_ND")
    e(f"ds_write_b32 v54, v34 offset:{L_DEG}")
    e("s_cmp_eq_u32 s2, 0")
    e("s_cbranch_scc0 R_ND")
    e(f"v_mov_b32 v42, s{S_TAGB}")
    e(f"v_mov_b32 v43, s{S_TAGA}")
    e("s_mov_b64 exec, 1")
    e(f"buffer_store_dwordx2 v[42:43], v53, {sr(S_WS)}, 0 offen offset:{WS_EPOCH}")
    e("s_mov_b64 exec, -1")
    lab("R_ND")
    e("s_waitcnt lgkmcnt(0)")
    for k in range(16):
        e(f"s_mov_b64 exec, {sr(S_MASK+2*k,2)}")
        if k >= 8: e(f"s_cbranch_execz R_C{k}")
        e(f"v_add_lshl_u32 v{113+2*k}, v{113+2*k}, v{144+k}, 2")
        e(f"ds_write_b32 v{113+2*k}, v{112+2*k}")
        if k >= 8: lab(f"R_C{k}")
    e("s_mov_b64 exec, -1")
    e(f"s_mov_b32 s6, s{S_W}")
    lab("R_GT")
    e("v_cmp_lt_u32 vcc, s6, v35")
    e("s_and_b64 exec, exec, vcc")
    e("s_cbranch_execz R_GTE")
    e("v_add_u32 v44, s6, v36")
    e("v_lshlrev_b32 v45, 2, v44")
    e(f"v_add_u32 v45, {L_GQ}, v45")
    e("ds_write_b32 v45, v39")
    e("v_lshrrev_b32 v46, 1, v44")
    e(f"v_mul_u32_u24 v46, {SELS//2}, v46")
    e("v_and_b32 v44, 1, v44")
    e("v_lshl_add_u32 v46, v44, 1, v46")
    e("v_add_u32 v46, v46, v40")
    e("ds_write_b16 v46, v41")
    e("s_add_u32 s6, s6, 8")
    e("s_branch R_GT")
    lab("R_GTE")
    e("s_mov_b64 exec, -1")
    e(f"s_cmp_ge_u32 s{S_W}, 4")
    e(f"s_cselect_b32 s6, s{S_TA}, 0")
    e(f"s_cselect_b32 s7, s{S_TT}, s{S_TA}")
    e(f"s_sub_u32 s5, s{S_W}, s6")
    e("s_and_b32 s5, s5, 3")
    e(f"s_add_u32 s{S_T0}, s6, s5")
    e(f"s_sub_u32 s7, s7, s{S_T0}")
    e("s_add_u32 s7, s7, 3")
    e(f"s_ashr_i32 s{S_NT}, s7, 2")
    e(f"s_or_b32 s6, s{S_MORE}, s{S_RB}")
    e(f"s_or_b32 s{S_SAFE}, s{S_SAFE}, s6")
    e("s_waitcnt lgkmcnt(0)")
    e("s_barrier")
    lab("WAVE_START")
    stamp(10)
    e(f"v_mov_b32 v{V_DMAX}, 0")
    e(f"s_cmp_lt_i32 s{S_NT}, 1")
    e("s_cbranch_scc1 WAVE_DONE")
    e(f"s_lshl_b32 s6, s{S_T0}, 7")
    e(f"v_add_u32 v{V_LI}, s6, v{V_LIO}")
    e(f"ds_read_b128 {vr(IDX,4)}, v{V_LI}")
    e(f"ds_read_b128 {vr(IDR,4)}, v{V_LI} offset:512")
    e(f"v_add_u32 v{V_LM}, s6, v{V_LMO}")
    e(f"s_lshl_b32 s6, s{S_T0}, 4")
    e(f"v_add_u32 v{V_GQA}, s6, v{V_GQO}")
    e(f"ds_read_b32 v{V_M}, v{V_LM}")
    e(f"ds_read_b32 v{V_GQ}, v{V_GQA}")
    e(f"s_mul_i32 s6, s{S_T0}, {SELS}")
    e(f"v_add_u32 v{V_SELA}, s6, v{V_SELO}")
    e(f"s_sub_u32 s{S_REM}, s{S_NT}, 1")
    e(f"s_mov_b32 m0, s{S_M0[0]}")
    e("s_waitcnt lgkmcnt(3)")
    for s in mads(IDX): e(s)
    for s in dma(0): e(s)
    e(f"s_mov_b32 m0, s{S_M0[1]}")
    e("s_waitcnt lgkmcnt(0)")
    for s in dma(1): e(s)
    for s in mads(): e(s)
    e(QAB); e(PERM)
    for i in range(20): e(f"v_mov_b32 v{SL+i}, 0")
    for i in range(32): e(f"v_mov_b32 v{C[0]+i}, 0")
    for i in range(2):
        e(f"v_mov_b32 v{NN+i}, 0")
        e(f"v_mov_b32 v{DD+i}, 1.0")
    e(AXB)
    for s in memphase(0, 0): e(s)
    e(mfext(0))
    e("s_nop 7")
    e("s_nop 1")
    stamp(11); stamp(28, True)
    e(f"s_cmp_lg_u32 s{S_SAFE}, 0")
    e("s_cbranch_scc1 ENTERS")
    e("s_branch ENTERF")
    mainloop(False)
    mainloop(True)
    lab("DRAIN")
    e("s_waitcnt lgkmcnt(0)")
    for ct in range(4): e(mfsel(ct))
    lab("WAVE_DONE")
    stamp(12); stamp(29, True)
    e(f"s_cmp_eq_u32 s{S_MORE}, 0")
    e("s_cbranch_scc1 EPI")
    e(f"s_add_u32 s{S_RB}, s{S_RB}, s{S_WN}")
    lab("NEXT_ROUND")
    e("s_waitcnt vmcnt(0) lgkmcnt(0)")
    e("s_barrier")
    lds_init_tables(32)
    e(f"v_cmp_gt_u32 vcc, 80, v{V_TID}")
    e("s_and_saveexec_b64 s[6:7], vcc")
    e(f"ds_write_b32 v40, v36 offset:{L_CNT2}")
    e("s_mov_b64 exec, s[6:7]")
    e("s_waitcnt lgkmcnt(0)")
    e("s_barrier")
    e("s_branch POLL0")

    lab("EPI")
    e(f"v_bfe_u32 v32, v{V_LANE}, 2, 2")
    e(f"v_lshrrev_b32 v33, 5, v{V_LANE}")
    e("v_lshl_add_u32 v34, v33, 2, v32")
    e("v_lshlrev_b32 v34, 7, v34")
    e("v_lshrrev_b32 v32, 1, v32")
    e("v_lshl_add_u32 v34, v32, 6, v34")
    e(f"v_and_b32 v35, 63, v{V_QC}")
    e("v_add_u32 v34, v34, v35")
    e(f"v_add_u32 v34, {L_W2}, v34")
    e("v_xor_b32 v35, 64, v34")
    for ks in range(8):
        for mt in range(2):
            for t in range(2):
                e(f"ds_read_b64_tr_b16 {vr(112+8*ks+4*mt+2*t,2)}, v{34+mt} offset:{2048*ks+1024*t}")
    for i in range(32): e(f"v_cvt_pk_bf16_f32 v{64+i}, v{H+2*i}, v{H+2*i+1}")
    e("s_waitcnt lgkmcnt(0)")
    for ks in range(8):
        for mt in range(2):
            e(mf16(H + 16*mt, 112 + 8*ks + 4*mt, 64 + 4*ks, "0" if ks == 0 else vr(H + 16*mt, 16)))
    e(f"v_and_b32 v32, 31, v{V_LANE}")
    e("v_mul_u32_u24 v32, 272, v32")
    e("v_lshl_add_u32 v32, v33, 4, v32")
    e(f"v_add_u32 v32, s{S_M0[0]}, v32")
    e(f"s_mov_b32 s6, {hex(f2u(2.0**120))}")
    e(f"v_cmp_nge_f32 s[76:77], s6, v{V_DMAX}")
    e(f"v_lshrrev_b32 v36, 3, v{V_TID}")
    e(f"v_and_b32 v37, 7, v{V_TID}")
    e(f"v_cmp_le_u32 vcc, {SPLIT}, v36")
    e("v_mul_u32_u24 v38, 272, v36")
    e("v_lshl_add_u32 v38, v37, 5, v38")
    e(f"v_add_u32 v39, {4*TBW - SPLIT*272}, v38")
    e("v_cndmask_b32 v38, v38, v39, vcc")
    e("v_lshlrev_b32 v39, 2, v36")
    e("v_lshlrev_b32 v40, 5, v37")
    e("v_lshlrev_b32 v41, 15, v36")
    e("v_lshl_add_u32 v41, v37, 4, v41")
    e(f"s_lshl_b32 s5, s{S_B}, 7")
    e("v_add_u32 v41, s5, v41")
    e("s_movk_i32 s7, 0x207")
    e(f"v_cmp_class_f32 vcc, v{H+16}, s7")
    e("s_or_b64 s[76:77], s[76:77], vcc")
    e("s_cbranch_scc0 EPI_OK")
    e(f"s_cmp_lg_u32 s{S_SAFE}, 0")
    e("s_cbranch_scc1 EPI_OK")
    e(f"s_mov_b32 s{S_SAFE}, 1")
    for i in range(64): e(f"v_mov_b32 v{H+i}, 0")
    e("s_waitcnt vmcnt(0)")
    e("s_branch WAVE_START")
    lab("EPI_OK")
    e("s_waitcnt vmcnt(0)")
    for mt in range(2):
        for q in range(4):
            e(f"ds_write_b128 v32, {vr(H+16*mt+4*q,4)} offset:{128*mt+32*q}")
    e(f"v_cmp_gt_u32 vcc, {NPB}, v36")
    e("s_waitcnt lgkmcnt(0)")
    e("s_barrier")
    stamp(13)
    e("s_and_b64 exec, exec, vcc")
    e("s_cbranch_execz K_FIN")
    for s in range(4):
        e(f"ds_read_b128 {vr(64+8*s,4)}, v38 offset:{L_TB+s*TBW}")
        e(f"ds_read_b128 {vr(68+8*s,4)}, v38 offset:{L_TB+s*TBW+16}")
    e(f"ds_read_b32 v42, v39 offset:{L_DEG}")
    e(f"ds_read_b128 v[96:99], v40 offset:{L_B2}")
    e(f"ds_read_b128 v[100:103], v40 offset:{L_B2+16}")
    e(f"s_mov_b32 s6, {hex(f2u(-LN2))}")
    e("s_waitcnt lgkmcnt(7)")
    for i in range(4): e(f"v_pk_add_f32 {vr(64+2*i,2)}, {vr(64+2*i,2)}, {vr(72+2*i,2)}")
    e("s_waitcnt lgkmcnt(3)")
    for i in range(4): e(f"v_pk_add_f32 {vr(80+2*i,2)}, {vr(80+2*i,2)}, {vr(88+2*i,2)}")
    for i in range(4): e(f"v_pk_add_f32 {vr(64+2*i,2)}, {vr(64+2*i,2)}, {vr(80+2*i,2)}")
    e("s_waitcnt lgkmcnt(0)")
    e("v_cvt_f32_u32 v42, v42")
    for i in range(4): e(f"v_pk_mul_f32 {vr(96+2*i,2)}, {vr(96+2*i,2)}, v[42:43] op_sel_hi:[1,0]")
    for i in range(8): e(f"v_fma_f32 v{64+i}, v{64+i}, s6, v{96+i}")
    for i in range(4): e(f"v_cvt_pk_bf16_f32 v{72+i}, v{64+2*i}, v{65+2*i}")
    e(f"buffer_store_dwordx4 v[72:75], v41, {sr(S_OUT)}, 0 offen")
    lab("K_FIN")
    if SPIN >= 0:
        lab("SPINL")
        e("s_memrealtime s[98:99]")
        e("s_waitcnt lgkmcnt(0)")
        e("s_sub_u32 s98, s98, s96")
        e("s_cmp_lt_u32 s98, 6000")
        e("s_cbranch_scc1 SPINL")
    if DIAG:
        e("s_mov_b64 exec, -1")
        e("s_waitcnt vmcnt(0)")
        stamp(14); stamp(31, True)
        e(f"v_writelane_b32 v255, s{S_NT}, 27")
        e("s_lshl_b32 s5, s2, 11")
        e(f"s_add_u32 s5, s5, {WS_STAMP}")
        e(f"v_lshlrev_b32 v1, 2, v{V_TID}")
        e(f"buffer_store_dword v255, v1, {sr(S_WS)}, s5 offen")
    lab("K_END")
    e("s_endpgm")

hdr = open("standalone__edge_featured_mpnn_mpnn__graph.s.ref").read().split("; Override")[0]
out.append(hdr.rstrip())
out.append(f"; @launch grid=(256,1,1) block=(512,1,1) lds={L_END}")
out.append('.amdgcn_target "amdgcn-amd-amdhsa--gfx950"')
out.append(".text")
out.append(f".globl {KN}")
out.append(".p2align 8")
out.append(f".type {KN},@function")
kernel()
out.append(f""".section .rodata,"a"
.p2align 6
.amdhsa_kernel {KN}
  .amdhsa_next_free_vgpr 256
  .amdhsa_next_free_sgpr 102
  .amdhsa_accum_offset 256
  .amdhsa_group_segment_fixed_size 0
  .amdhsa_kernarg_size 88
  .amdhsa_user_sgpr_count 2
  .amdhsa_user_sgpr_kernarg_segment_ptr 1
  .amdhsa_system_sgpr_workgroup_id_x 1
.end_amdhsa_kernel""")
dst = sys.argv[1] if len(sys.argv) > 1 else "standalone__edge_featured_mpnn_mpnn__graph.s"
open(dst, "w").write("\n".join(out) + "\n")
print("written", dst, "LDS", L_END)
```

```python
import struct, sys, os
import numpy as np
from align import align, isize

N, E = 12500, 800000
NPB, SPLIT = 49, 25
CH, CHS = 3128, 25088
NQ, NQL = CH // 4, (E - 255 * CH) // 4
LOG2E = 1.4426950408889634
LN2 = 0.6931471805599453
KN = "standalone__edge_featured_mpnn_mpnn__graph_kernel"
DIAG = int(os.environ.get("DIAG", "0"))
PREF = int(os.environ.get("PREF", "0"))
X_NOP = int(os.environ.get("X_NOP", "0"))
STF = os.environ.get("STF", "sc1")
LDF = os.environ.get("LDF", "")
TRANS = int(os.environ.get("TRANS", "0"))
ELF = os.environ.get("ELF", "")
SLP = int(os.environ.get("SLP", "1"))

def f2u(x): return struct.unpack("<I", struct.pack("<f", x))[0]
def u2f(u): return struct.unpack("<f", struct.pack("<I", u))[0]

WS_EPOCH = 0
WS_PT = 4096
WS_DESC = WS_PT + 12544 * 256
WS_FLAG = WS_DESC + 256 * 2048
WS_ENT = WS_FLAG + 8 * 2048
WS_SIZE = WS_ENT + 256 * CHS
WS_STAMP = 12 << 20
if DIAG: WS_SIZE = 16 << 20

L_CNT1, L_BASE1 = 0, 1024
L_CNT2, L_FLAG, L_DEG, L_B2 = 2048, 2304, 2368, 2816
L_EXT = 3072
L_TB = 4096
TBW = 8704
L_W1S, L_XS, L_PS, L_STG = L_TB, L_TB + 32768, L_TB + 41472, L_TB
PS = 272
assert L_PS + NPB * PS <= L_TB + 8 * TBW
L_LIST = L_TB + 8 * TBW
LISTCAP, MAXT = 4096, 116
L_SEL = L_LIST + LISTCAP * 4
SELS, SELSZ = 200, 23552
L_GQ = L_SEL + SELSZ
L_QT = L_GQ + 2048
QS = 328
L_W2 = (L_QT + NPB * QS + 255) // 256 * 256
L_END = L_W2 + 16384
assert L_END <= 163840, L_END
PADENT = 0x00007000
PSH = 3072

out = []
def e(s): out.append("    " + s)
def lab(s): out.append(s + ":")
def c(s): out.append("    ; " + s)
def vr(a, n): return f"v[{a}:{a+n-1}]"
def sr(a, n=4): return f"s[{a}:{a+n-1}]"

SPIN = int(os.environ.get("SPIN", "-1"))
def stamp(i, real=False):
    if SPIN == i:
        e("s_waitcnt lgkmcnt(0)")
        e("s_memrealtime s[96:97]")
        e("s_waitcnt lgkmcnt(0)")
    if not DIAG: return
    e("s_waitcnt lgkmcnt(0)")
    e(f"{'s_memrealtime' if real else 's_memtime'} s[98:99]")
    e("s_waitcnt lgkmcnt(0)")
    e(f"v_writelane_b32 v255, s98, {i}")

def scan64(v):
    for sh in (1, 2, 4, 8):
        e("s_nop 1")
        e(f"v_add_u32_dpp v{v}, v{v}, v{v} row_shr:{sh} row_mask:0xf bank_mask:0xf bound_ctrl:1")
    e("s_nop 1")
    e(f"v_add_u32_dpp v{v}, v{v}, v{v} row_bcast:15 row_mask:0xa bank_mask:0xf")
    e("s_nop 1")
    e(f"v_add_u32_dpp v{v}, v{v}, v{v} row_bcast:31 row_mask:0xc bank_mask:0xf")

H = 192 - 8 if False else 176
C = (144, 160)
D = (112, 128)
T = 96
P = 80
SL = 76
BX = (72, 74)
IDX, IDR = 64, 68
NN, DD, RR, AX, CX, V_M = 16, 18, 20, 22, 24, 26
V_CA, V_DMAC, V_LI, V_LM, V_GQA, V_SELA, V_PSEL, V_QMUL, V_QC, V_GQ, V_QA, V_DMAX, V_TID, V_LANE = range(1, 15)
V_LIO, V_LMO, V_GQO, V_SELO = 28, 29, 30, 31
S_X, S_E, S_SRC, S_DST, S_W1, S_B1, S_W2, S_B2, S_OUT, S_WS, S_P = 8, 12, 16, 20, 24, 28, 32, 36, 40, 44, 48
S_MASK = 8
S_SOFF = 52
S_256, S_REM, S_M0, S_WN, S_RB, S_MORE, S_SAFE, S_TA, S_TT, S_NT, S_T0, S_TAGA, S_TAGB = 60, 61, (62, 63), 64, 65, 66, 67, 68, 69, 70, 71, 72, 73
S_B, S_W = 3, 4

def mf16(d, a, b, cc): return f"v_mfma_f32_32x32x16_bf16 {vr(d,16)}, {vr(a,4)}, {vr(b,4)}, {cc}"
def mfext(ct): return f"v_mfma_f32_32x32x8_bf16 {vr(D[ct&1],16)}, {vr(AX,2)}, {vr(BX[ct&1],2)}, {vr(C[ct&1],16)}"
def mfsel(ct): return mf16(H + 16 * ct, P + 4 * ct, SL, vr(H + 16 * ct, 16))
def dma(half):
    return [f"buffer_load_dwordx4 v{IDX+j}, {sr(S_P)}, s{S_SOFF+4*half+j} offen offset:{1024*j} lds" for j in range(4)]
def mads(src=IDR): return [f"v_mad_i32_i16 v{IDX+j}, v{src+j}, s{S_256}, v{V_DMAC}" for j in range(4)]
def c_reads(half):
    L = []
    for ctl in range(2):
        for r in range(16):
            mm = r >> 1
            L.append(f"ds_read_u16_d16_hi v{C[ctl]+r}, v{V_CA} offset:{half*4096 + (mm&3)*1024 + (2*(r&1) + (mm>>2))*128 + ctl*64}")
    return L
def tr_read(ct): return f"ds_read_b64_tr_b16 {vr(BX[ct&1],2)}, v{V_QA} offset:{64*ct}"
AXB = f"v_pk_mul_f32 {vr(AX,2)}, {vr(CX,2)}, {vr(V_M,2)} op_sel_hi:[1,0]"
QAB = f"v_mad_u32_u24 v{V_QA}, v{V_GQ}, v{V_QMUL}, v{V_QC}"
PERM = f"v_perm_b32 v{V_M}, v{V_M}, v{V_M}, v{V_PSEL}"

def block(tau, ct, safe, gate=False, last=False):
    cur = D[ct & 1]
    pc, pt = (ct - 1) & 3, (tau if ct > 0 else (tau - 1) & 3)
    tr = [f"v_exp_f32 v{T+i}, v{cur+i}" for i in range(16)] + [f"v_rcp_f32 v{RR}, v{DD}", f"v_rcp_f32 v{RR+1}, v{DD+1}"]
    mf = [] if last else [mfext((ct + 1) & 3)]
    if tau == 0: mf.append(mfsel(ct))
    fill = []
    if ct == 1: fill += mads() + [PERM]
    if ct == 2:
        fill += [QAB]
        if tau == 3:
            fill += [f"v_add_u32 v{V_LI}, 2048, v{V_LI}", f"v_add_u32 v{V_LM}, 2048, v{V_LM}",
                     f"v_add_u32 v{V_GQA}, 256, v{V_GQA}", f"v_add_u32 v{V_SELA}, {16*SELS}, v{V_SELA}"]
    fill.append(f"v_max3_f32 v{V_DMAX}, v{DD}, v{DD+1}, v{V_DMAX}")
    L = []
    k = 0
    if gate:
        L += [tr[0], "s_setprio 3"]; k = 1
    for m in mf:
        L.append(m); L += tr[k:k+4]; k += 4
    L += tr[k:] + fill
    L.append(f"v_pk_mul_f32 {vr(RR,2)}, {vr(NN,2)}, {vr(RR,2)}")
    cvt = f"v_cvt_pk_bf16_f32 v{P+4*pc+pt}, v{RR}, v{RR+1}"
    if not safe:
        L += [f"v_pk_add_f32 {vr(DD,2)}, {vr(T,2)}, 1.0 op_sel_hi:[1,0]", cvt]
        if ct == 2: L.append(AXB)
        for j in range(1, 8):
            n_in = vr(cur, 2) if j == 1 else vr(NN, 2)
            L += [f"v_pk_fma_f32 {vr(NN,2)}, {n_in}, {vr(T+2*j,2)}, {n_in}",
                  f"v_pk_fma_f32 {vr(NN,2)}, {vr(cur+2*j,2)}, {vr(DD,2)}, {vr(NN,2)}",
                  f"v_pk_fma_f32 {vr(DD,2)}, {vr(DD,2)}, {vr(T+2*j,2)}, {vr(DD,2)}"]
    else:
        L += [f"v_pk_add_f32 {vr(T+2*j,2)}, {vr(T+2*j,2)}, 1.0 op_sel_hi:[1,0]" for j in range(8)] + [cvt]
        if ct == 2: L.append(AXB)
        L += [f"v_rcp_f32 v{T+i}, v{T+i}" for i in range(16)]
        L.append(f"v_pk_mul_f32 {vr(NN,2)}, {vr(cur,2)}, {vr(T,2)}")
        L += [f"v_pk_fma_f32 {vr(NN,2)}, {vr(cur+2*j,2)}, {vr(T+2*j,2)}, {vr(NN,2)}" for j in range(1, 8)]
    return L

def memphase(tau, half):
    L = ["s_setprio 0", "s_waitcnt vmcnt(4)"]
    L += c_reads(half) + [tr_read(2 * half), tr_read(2 * half + 1)]
    if half == 1:
        L += [f"ds_read_b128 {vr(IDR,4)}, v{V_LI} offset:{(tau+2)*512}",
              f"ds_read_b32 v{V_M}, v{V_LM} offset:{(tau+1)*512}",
              f"ds_read_b32 v{V_GQ}, v{V_GQA} offset:{(tau+1)*64}"]
        if tau == 1: L.append(f"ds_read_b32 v{SL}, v{V_SELA}")
        if tau >= 1: L.append(f"ds_read_b32 v{SL+tau}, v{V_SELA} offset:{tau*4*SELS}")
    L += [f"s_mov_b32 m0, s{S_M0[half]}", "s_waitcnt lgkmcnt(0)"]
    L += dma(half)
    return L

def emit(L):
    L = align(L)
    assert sum(isize(x) for x in L) % 8 == 0
    for s in L: e(s)

def mainloop(safe):
    x = "S" if safe else "F"
    out.append(".p2align 6")
    lab(f"LOOP{x}")
    for tau in range(4):
        c(f"==== tile slot {tau}")
        emit(memphase(tau, 0))
        emit(block((tau - 1) & 3, 3, safe, gate=True))
        if tau == 0: lab(f"ENTER{x}")
        emit(block(tau, 0, safe))
        emit(memphase(tau, 1))
        emit(block(tau, 1, safe, gate=True))
        emit(block(tau, 2, safe))
        e(f"s_sub_u32 s{S_REM}, s{S_REM}, 1")
        if tau < 3: e(f"s_cbranch_scc1 TAIL{x}{tau}")
        else: e(f"s_cbranch_scc0 LOOP{x}")
    for tau in (3, 0, 1, 2):
        lab(f"TAIL{x}{tau}")
        emit(block(tau, 3, safe, last=True))
        if tau == 0: e(f"ds_read_b32 v{SL}, v{V_SELA}")
        e(f"v_rcp_f32 v{RR}, v{DD}")
        e(f"v_rcp_f32 v{RR+1}, v{DD+1}")
        e(f"v_max3_f32 v{V_DMAX}, v{DD}, v{DD+1}, v{V_DMAX}")
        e(f"v_pk_mul_f32 {vr(RR,2)}, {vr(NN,2)}, {vr(RR,2)}")
        for t2 in range(tau + 1, 4): e(f"v_mov_b32_e64 v{SL+t2}, 0")
        e(f"v_cvt_pk_bf16_f32 v{P+12+tau}, v{RR}, v{RR+1}")
        e("s_setprio 0")
        e("s_branch DRAIN")

def find_cx(target):
    m = np.float64(u2f(0x00FF0000))
    g = f2u(float(np.float32(np.float64(u2f(target)) / m)))
    for d in range(-3, 4):
        if f2u(float(np.float32(np.float64(u2f(g + d)) * m))) == target: return g + d
    raise SystemExit("no cx")

def lds_init_tables(tmp):
    e(f"v_lshlrev_b32 v{tmp+8}, 4, v{V_TID}")
    e(f"v_add_u32 v{tmp+8}, {L_LIST}, v{tmp+8}")
    for i in range(4): e(f"v_mov_b32 v{tmp+i}, {hex(PADENT)}")
    for i in range(4): e(f"v_mov_b32 v{tmp+4+i}, 0")
    e(f"ds_write_b128 v{tmp+8}, {vr(tmp,4)}")
    e(f"ds_write_b128 v{tmp+8}, {vr(tmp,4)} offset:8192")
    for o in (0, 8192, SELSZ - 8192):
        e(f"ds_write_b128 v{tmp+8}, {vr(tmp+4,4)} offset:{L_SEL-L_LIST+o}")
    e(f"v_lshlrev_b32 v{tmp+8}, 2, v{V_TID}")
    e(f"v_add_u32 v{tmp+9}, {L_GQ}, v{tmp+8}")
    e(f"v_mov_b32 v{tmp}, {L_QT}")
    e(f"ds_write_b32 v{tmp+9}, v{tmp}")

def kernel():
    lab(KN)
    e("s_cmp_ge_u32 s2, 256")
    e("s_cbranch_scc1 K_END")
    if DIAG: e("v_mov_b32 v255, 0")
    stamp(30, True); stamp(0)
    for s, off in ((S_DST, 24), (S_SRC, 16), (S_E, 8), (S_W1, 32), (S_X, 0), (S_WS, 80), (S_B1, 40), (S_W2, 48), (S_B2, 56), (S_OUT, 64)):
        e(f"s_load_dwordx2 {sr(s,2)}, s[0:1], {off}")
    e(f"v_mov_b32 v{V_TID}, v0")
    e(f"v_readfirstlane_b32 s{S_W}, v0")
    e(f"v_and_b32 v{V_LANE}, 63, v0")
    for s, sz in ((S_DST, E*4), (S_SRC, E*4), (S_E, E*2), (S_W1, 129*256), (S_X, N*128), (S_WS, WS_SIZE), (S_B1, 256), (S_W2, 16384), (S_B2, 128), (S_OUT, N*128), (S_P, N*256 + PSH)):
        e(f"s_mov_b32 s{s+2}, {sz}")
        e(f"s_mov_b32 s{s+3}, 0x00020000")
    e(f"s_lshr_b32 s{S_W}, s{S_W}, 6")
    e(f"s_and_b32 s{S_B}, s2, 7")
    e(f"s_lshl_b32 s{S_B}, s{S_B}, 5")
    e("s_lshr_b32 s5, s2, 3")
    e(f"s_add_u32 s{S_B}, s{S_B}, s5")
    e(f"s_mul_i32 s5, s2, {CH*4}")
    e("v_lshl_add_u32 v32, v0, 4, s5")
    e("s_cmp_eq_u32 s2, 255")
    e(f"s_movk_i32 s6, {NQ-512}")
    e(f"s_cmovk_i32 s6, {NQL-512}")
    e("v_cmp_gt_u32 s[74:75], s6, v0")
    e("v_add_u32 v33, 8192, v32")
    e("v_bfrev_b32 v36, 1")
    e("v_lshrrev_b32 v34, 1, v32")
    e("v_cndmask_b32 v33, v36, v33, s[74:75]")
    e("v_lshrrev_b32 v35, 1, v33")
    e(f"v_lshrrev_b32 v37, 4, v{V_LANE}")
    e(f"v_lshrrev_b32 v38, 5, v{V_LANE}")
    e(f"v_and_b32 v42, 1, v37")
    e("v_lshlrev_b32 v49, 2, v42")
    e(f"v_xor_b32 v49, v49, v{V_LANE}")
    e("v_lshlrev_b32 v49, 4, v49")
    e(f"s_cmp_lt_u32 s{S_W}, 4")
    e("s_cbranch_scc1 P0_LO")
    e(f"v_lshlrev_b32 v39, 2, v37")
    e(f"v_xor_b32 v39, v39, v{V_LANE}")
    e("v_lshlrev_b32 v39, 4, v39")
    e(f"v_lshrrev_b32 v40, 3, v{V_LANE}")
    e("v_and_b32 v41, 4, v40")
    e("v_and_b32 v43, 1, v40")
    e("v_lshl_add_u32 v41, v43, 1, v41")
    e("v_add_u32 v41, v41, v42")
    e(f"v_and_b32 v43, 7, v{V_LANE}")
    e("v_xor_b32 v43, v43, v37")
    e("v_lshlrev_b32 v43, 4, v43")
    e("v_lshl_add_u32 v41, v41, 15, v43")
    e(f"s_and_b32 s5, s{S_W}, 3")
    e("s_lshl_b32 s6, s5, 13")
    e("s_add_u32 s7, s6, 4096")
    e("s_lshl_b32 s76, s5, 19")
    e(f"s_lshl_b32 s77, s{S_B}, 7")
    e("s_add_u32 s76, s76, s77")
    e("v_add_u32 v41, s76, v41")
    e("v_add_u32 v44, 0x40000, v41")
    e("v_lshlrev_b32 v43, 3, v38")
    e("s_lshl_b32 s77, s5, 6")
    e("s_mul_i32 s76, s5, 2176")
    e(f"v_lshlrev_b32 v45, 2, v{V_LANE}")
    e(f"v_lshlrev_b32 v46, 1, v{V_LANE}")
    e(f"s_add_u32 m0, s76, {L_XS}")
    e("s_waitcnt lgkmcnt(0)")
    e(f"buffer_load_dwordx4 v41, {sr(S_X)}, 0 offen lds")
    e(f"s_add_u32 m0, s76, {L_XS+1088}")
    e(f"s_mov_b32 s76, {128*256}")
    e(f"buffer_load_dwordx4 v44, {sr(S_X)}, 0 offen lds")
    e(f"s_add_u32 m0, s6, {L_W1S}")
    e(f"buffer_load_dword v47, v45, {sr(S_W1)}, s76 offen")
    for k in range(4): e(f"buffer_load_dwordx4 v39, {sr(S_W1)}, s6 offen offset:{1024*k} lds")
    e(f"s_add_u32 m0, s7, {L_W1S}")
    e(f"buffer_load_ushort v48, v46, {sr(S_B2)}, 0 offen")
    for k in range(4): e(f"buffer_load_dwordx4 v39, {sr(S_W1)}, s7 offen offset:{1024*k} lds")
    for q in range(4): e(f"buffer_load_dwordx2 {vr(104+2*q,2)}, v43, {sr(S_B1)}, s77 offen offset:{16*q}")
    e("s_branch P0_EDGE")
    lab("P0_LO")
    for q in range(8): e(f"v_mov_b32 v{104+q}, 0")
    e("s_waitcnt lgkmcnt(0)")
    lab("P0_EDGE")
    stamp(15)
    e(f"buffer_load_dwordx4 v[64:67], v32, {sr(S_DST)}, 0 offen {LDF}")
    e(f"buffer_load_dwordx4 v[68:71], v33, {sr(S_DST)}, 0 offen {LDF}")
    e(f"buffer_load_dwordx4 v[72:75], v32, {sr(S_SRC)}, 0 offen {LDF}")
    e(f"buffer_load_dwordx4 v[76:79], v33, {sr(S_SRC)}, 0 offen {LDF}")
    e(f"s_lshl_b32 s6, s{S_W}, 11")
    e(f"s_add_u32 m0, s6, {L_W2}")
    e(f"buffer_load_dwordx2 v[80:81], v34, {sr(S_E)}, 0 offen {LDF}")
    e(f"buffer_load_dwordx2 v[82:83], v35, {sr(S_E)}, 0 offen {LDF}")
    for k in range(2): e(f"buffer_load_dwordx4 v49, {sr(S_W2)}, s6 offen offset:{1024*k} lds")
    e(f"s_load_dwordx2 s[78:79], {sr(S_WS,2)}, {WS_EPOCH}")
    e("v_mov_b32 v56, 0")
    e("v_mov_b32 v57, 0")
    e(f"v_lshlrev_b32 v61, 3, v{V_TID}")
    e("ds_write_b64 v61, v[56:57]")
    e(f"v_and_b32 v39, 31, v{V_LANE}")
    e("v_bfe_u32 v40, v39, 2, 1")
    e("v_and_b32 v41, 1, v39")
    e("v_lshl_add_u32 v40, v40, 1, v41")
    e("v_bfe_u32 v43, v39, 1, 1")
    e(f"v_bfe_u32 v44, v{V_LANE}, 2, 2")
    e(f"v_and_b32 v49, 3, v{V_LANE}")
    e("v_lshlrev_b32 v49, 3, v49")
    e("v_lshl_add_u32 v49, v42, 5, v49")
    e("v_lshrrev_b32 v42, 3, v39")
    e(f"s_and_b32 s5, s{S_W}, 3")
    e("v_xor_b32 v50, s5, v44")
    e("v_lshl_add_u32 v50, v50, 6, v49")
    e("v_lshl_add_u32 v51, v38, 3, v44")
    e("v_lshl_add_u32 v50, v51, 8, v50")
    e(f"s_lshr_b32 s6, s{S_W}, 2")
    e("s_lshl_b32 s7, s6, 14")
    e("v_add_u32 v50, s7, v50")
    e("v_lshl_add_u32 v51, v40, 1, v43")
    e("v_mul_u32_u24 v52, 1088, v42")
    e("v_lshl_add_u32 v52, v51, 7, v52")
    e("v_xor_b32 v53, v38, v40")
    e("v_lshl_add_u32 v51, v53, 4, v52")
    e("v_xor_b32 v53, 2, v53")
    e("v_lshl_add_u32 v52, v53, 4, v52")
    e("s_cmp_eq_u32 s6, 0")
    e(f"s_movk_i32 s6, {QS}")
    e(f"s_cmovk_i32 s6, {PS}")
    e(f"s_mov_b32 s7, {L_QT}")
    e(f"s_cmov_b32 s7, {L_PS}")
    e("s_lshl_b32 s5, s5, 6")
    e("s_add_u32 s7, s7, s5")
    e("v_mul_u32_u24 v53, s6, v39")
    e("v_lshl_add_u32 v53, v38, 3, v53")
    e("v_add_u32 v53, s7, v53")
    e("s_lshl_b32 s6, s6, 5")
    e("v_add_u32 v54, s6, v53")
    e(f"v_cmp_gt_u32 s[76:77], {NPB-32}, v39")
    e(f"s_mul_i32 s5, s{S_W}, 98")
    e(f"v_add_u32 v55, s5, v{V_LANE}")
    e("v_lshrrev_b32 v56, 4, v55")
    e("v_and_b32 v55, 15, v55")
    e("v_lshlrev_b32 v55, 4, v55")
    e(f"v_mul_u32_u24 v58, {PS}, v56")
    e("v_add_u32 v58, v58, v55")
    e("v_lshl_add_u32 v60, v56, 16, v55")
    e(f"s_mov_b32 s80, {hex(f2u(-LOG2E))}")
    e(f"s_mov_b32 s81, s80")
    e("s_waitcnt vmcnt(8) lgkmcnt(0)")
    e("s_barrier")
    stamp(1)
    for ks in range(4):
        e(f"ds_read_b64_tr_b16 {vr(88+4*ks,2)}, v50 offset:{L_W1S+4096*ks}")
        e(f"ds_read_b64_tr_b16 {vr(90+4*ks,2)}, v50 offset:{L_W1S+4096*ks+1024}")
        e(f"ds_read_b128 {vr(144+4*ks,4)}, v{51+(ks&1)} offset:{L_XS+64*(ks>>1)}")
    for ks in range(4):
        e(f"ds_read_b128 {vr(160+4*ks,4)}, v{51+(ks&1)} offset:{L_XS+4352+64*(ks>>1)}")
    for q in range(8):
        e(f"v_lshlrev_b32 v{128+2*q}, 16, v{104+q}")
        e(f"v_and_b32 v{129+2*q}, 0xffff0000, v{104+q}")
    e(f"s_mul_i32 s{S_TAGB}, s78, 1664525")
    e("s_waitcnt lgkmcnt(4)")
    for ks in range(4):
        e(mf16(112, 88 + 4*ks, 144 + 4*ks, vr(128 if ks == 0 else 112, 16)))
    e("s_waitcnt lgkmcnt(0)")
    for ks in range(4):
        e(mf16(128, 88 + 4*ks, 160 + 4*ks, vr(128, 16)))
    e(f"s_add_u32 s{S_TAGB}, s{S_TAGB}, 1013904223")
    e(f"s_add_u32 s{S_TAGA}, s79, 0x01000000")
    e(f"s_and_b32 s{S_TAGA}, s{S_TAGA}, 0xff000000")
    e(f"s_lshl_b32 s6, s{S_B}, 8")
    e(f"s_add_u32 s6, s6, {WS_PT}")
    e(f"s_add_u32 s7, s6, {4*65536}")
    e("s_nop 1")
    for t in range(2):
        b = 112 + 16 * t
        if t == 0:
            for i in range(16): e(f"v_mul_f32 v{b+i}, s80, v{b+i}")
        else:
            for i in range(8): e(f"v_pk_mul_f32 {vr(b+2*i,2)}, {vr(b+2*i,2)}, s[80:81]")
        for i in range(8): e(f"v_cvt_pk_bf16_f32 v{88+8*t+i}, v{b+2*i}, v{b+2*i+1}")
        if t == 1: e("s_mov_b64 exec, s[76:77]")
        for q in range(4): e(f"ds_write_b64 v{53+t}, {vr(88+8*t+2*q,2)} offset:{16*q}")
    e("s_mov_b64 exec, -1")
    e("s_waitcnt lgkmcnt(0)")
    e("s_barrier")
    e(f"ds_read_b128 v[144:147], v58 offset:{L_PS}")
    e(f"ds_read_b128 v[148:151], v58 offset:{L_PS+4*PS}")
    e("v_mov_b32 v55, 1")
    e("s_movk_i32 s5, 0x7fff")
    e("s_add_u32 s5, s5, 1")
    e("s_waitcnt lgkmcnt(1)")
    e(f"buffer_store_dwordx4 v[144:147], v60, {sr(S_WS)}, s6 offen {STF}")
    e("s_bfm_b64 exec, 34, 0")
    e("s_waitcnt lgkmcnt(0)")
    e(f"buffer_store_dwordx4 v[148:151], v60, {sr(S_WS)}, s7 offen {STF}")
    e("s_mov_b64 exec, -1")
    stamp(2)
    e("s_waitcnt vmcnt(8)")
    stamp(3)
    SD = "dst_sel:DWORD dst_unused:UNUSED_PAD src0_sel:DWORD"
    def binA(j):
        e(f"v_lshlrev_b32_sdwa v{112+j}, 2, v{64+j} {SD} src1_sel:BYTE_0")
        e(f"ds_add_rtn_u32 v{120+j}, v{112+j}, v55 offset:{L_CNT1}")
    def binB(j):
        e(f"v_lshlrev_b32_sdwa v{129+2*j}, 2, v{64+j} {SD} src1_sel:BYTE_1")
        if j % 2 == 0: e(f"v_lshlrev_b32 v56, 16, v{80+j//2}")
        else: e(f"v_and_b32 v56, 0xffff0000, v{80+j//2}")
        e(f"v_or3_b32 v{128+2*j}, v56, v{72+j}, s5")
    for j in range(4): binA(j)
    e("s_mov_b64 exec, s[74:75]")
    e("s_cbranch_execz P1_A")
    for j in range(4, 8): binA(j)
    lab("P1_A")
    e("s_mov_b64 exec, -1")
    e("s_waitcnt lgkmcnt(0)")
    e("s_barrier")
    stamp(4)
    e(f"s_cmp_eq_u32 s{S_W}, 7")
    e("s_cbranch_scc1 P1_SCAN")
    e("s_waitcnt vmcnt(4)")
    for j in range(8): binB(j)
    e("s_barrier")
    e("s_branch P1_NOSCAN")
    lab("P1_SCAN")
    e(f"v_lshlrev_b32 v56, 4, v{V_LANE}")
    e(f"ds_read_b128 v[144:147], v56 offset:{L_CNT1}")
    e("s_lshl_b32 s6, s2, 11")
    e(f"s_add_u32 s6, s6, {WS_DESC}")
    e("s_waitcnt lgkmcnt(0)")
    e("v_add_u32 v57, v144, v145")
    e("v_add_u32 v58, v57, v146")
    e("v_add_u32 v59, v58, v147")
    e("v_mov_b32 v60, v59")
    scan64(59)
    e("v_sub_u32 v152, v59, v60")
    e("v_add_u32 v153, v152, v144")
    e("v_add_u32 v154, v152, v57")
    e("v_add_u32 v155, v152, v58")
    e(f"ds_write_b128 v56, v[152:155] offset:{L_BASE1}")
    e("s_waitcnt lgkmcnt(0)")
    e("s_barrier")
    for j in range(4):
        e(f"v_lshl_or_b32 v{160+2*j}, v{144+j}, 12, v{152+j}")
        e(f"v_or_b32 v{160+2*j}, s{S_TAGA}, v{160+2*j}")
        e(f"v_mov_b32 v{161+2*j}, s{S_TAGB}")
    e(f"v_lshlrev_b32 v57, 5, v{V_LANE}")
    e("s_waitcnt vmcnt(4)")
    e(f"buffer_store_dwordx4 v[160:163], v57, {sr(S_WS)}, s6 offen sc1")
    e(f"buffer_store_dwordx4 v[164:167], v57, {sr(S_WS)}, s6 offen offset:16 sc1")
    for j in range(4): binB(j)
    lab("P1_NOSCAN")
    stamp(5)
    for j in range(4): e(f"ds_read_b32 v{112+j}, v{112+j} offset:{L_BASE1}")
    e("s_mov_b64 exec, s[74:75]")
    e("s_cbranch_execz P1_B0")
    for j in range(4, 8): e(f"ds_read_b32 v{112+j}, v{112+j} offset:{L_BASE1}")
    lab("P1_B0")
    e("s_mov_b64 exec, -1")
    e("s_waitcnt lgkmcnt(0)")
    for j in range(8):
        if j == 4:
            e("s_mov_b64 exec, s[74:75]")
            e("s_cbranch_execz P1_B")
        e(f"v_add_lshl_u32 v{112+j}, v{112+j}, v{120+j}, 3")
        e(f"ds_write_b64 v{112+j}, {vr(128+2*j,2)} offset:{L_STG}")
    lab("P1_B")
    e("s_mov_b64 exec, -1")
    e(f"v_lshlrev_b32 v56, 4, v{V_TID}")
    e(f"s_mul_i32 s5, s2, {CHS}")
    e(f"s_add_u32 s5, s5, {WS_ENT}")
    e("s_add_u32 s6, s5, 8192")
    e("s_add_u32 s7, s5, 16384")
    e(f"s_add_u32 s76, s5, {CHS-8192}")
    e("s_waitcnt lgkmcnt(0)")
    e("s_barrier")
    stamp(6)
    for k in range(3): e(f"ds_read_b128 {vr(112+4*k,4)}, v56 offset:{L_STG+8192*k}")
    e(f"s_cmp_eq_u32 s{S_W}, 7")
    e("s_cbranch_scc0 P1_C")
    e(f"ds_read_b128 v[124:127], v56 offset:{L_STG+CHS-8192}")
    e("s_waitcnt lgkmcnt(0)")
    e(f"buffer_store_dwordx4 v[124:127], v56, {sr(S_WS)}, s76 offen {STF}")
    lab("P1_C")
    for k in range(3):
        e(f"s_waitcnt lgkmcnt({2-k})")
        e(f"buffer_store_dwordx4 {vr(112+4*k,4)}, v56, {sr(S_WS)}, s{5+k} offen {STF}")
    e(f"s_cmp_eq_u32 s{S_W}, 4")
    e("s_cbranch_scc0 P0_NOEXT")
    e("v_lshlrev_b32 v56, 16, v47")
    e("v_and_b32 v57, 0xffff0000, v47")
    e("v_mul_f32 v56, s80, v56")
    e("v_mul_f32 v57, s80, v57")
    e("v_cvt_pk_bf16_f32 v58, v56, v57")
    e("v_lshlrev_b32 v59, 16, v58")
    e("v_and_b32 v60, 0xffff0000, v58")
    e("v_sub_f32 v59, v56, v59")
    e("v_sub_f32 v60, v57, v60")
    e("v_cvt_pk_bf16_f32 v59, v59, v60")
    e("v_lshlrev_b32 v48, 16, v48")
    e(f"ds_write_b32 v45, v58 offset:{L_EXT+320}")
    e(f"ds_write_b32 v45, v59 offset:{L_EXT+640}")
    e(f"ds_write_b32 v45, v48 offset:{L_B2}")
    lab("P0_NOEXT")
    lds_init_tables(64)
    e(f"s_add_u32 s{S_P}, s{S_WS}, {WS_PT - PSH}")
    e(f"s_addc_u32 s{S_P+1}, s{S_WS+1}, 0")
    for j in range(8): e(f"s_movk_i32 s{S_SOFF+j}, {PSH - 1024*(j&3) + 128*(j>>2)}")
    e(f"s_movk_i32 s{S_256}, 256")
    e(f"s_mul_i32 s{S_M0[0]}, s{S_W}, {TBW}")
    e(f"s_add_u32 s{S_M0[0]}, s{S_M0[0]}, {L_TB}")
    e(f"s_add_u32 s{S_M0[1]}, s{S_M0[0]}, 4096")
    e(f"s_mov_b32 s{S_WN}, 32")
    e(f"s_mov_b32 s{S_RB}, 0")
    e(f"s_mov_b32 s{S_SAFE}, 0")
    e("v_lshlrev_b32 v50, 1, v39")
    e("v_lshl_add_u32 v50, v38, 9, v50")
    e(f"v_add_u32 v{V_CA}, s{S_M0[0]}, v50")
    e(f"v_and_b32 v50, 7, v{V_LANE}")
    e("v_lshlrev_b32 v50, 4, v50")
    e(f"v_add_u32 v{V_DMAC}, 0x800000, v50")
    e(f"v_lshrrev_b32 v50, 3, v{V_LANE}")
    e(f"v_lshlrev_b32 v50, 4, v50")
    e(f"v_add_u32 v{V_LIO}, {L_LIST}, v50")
    e("v_lshl_add_u32 v50, v40, 2, v42")
    e("v_lshl_add_u32 v50, v50, 1, v43")
    e("v_lshlrev_b32 v50, 2, v50")
    e(f"v_add_u32 v{V_LMO}, {L_LIST}, v50")
    e(f"v_lshlrev_b32 v50, 2, v44")
    e(f"v_add_u32 v{V_GQO}, {L_GQ}, v50")
    e(f"v_mul_u32_u24 v50, {SELS//2}, v38")
    e("v_lshl_add_u32 v50, v39, 2, v50")
    e(f"v_add_u32 v{V_SELO}, {L_SEL}, v50")
    e("v_cmp_eq_u32 vcc, 0, v38")
    e("v_mov_b32 v51, 0x03020100")
    e("v_mov_b32 v50, 0x0c080c0c")
    e(f"v_cndmask_b32 v{V_PSEL}, v51, v50, vcc")
    e(f"v_cndmask_b32 v{V_QMUL}, 0, 1, vcc")
    e("v_add_u32 v50, 1, v44")
    e("v_lshrrev_b32 v50, 1, v50")
    e("v_and_b32 v51, 1, v44")
    e("v_mul_u32_u24 v50, v50, v51")
    e("v_mul_u32_u24 v50, 320, v50")
    e(f"v_add_u32 v50, {L_EXT}, v50")
    e("v_cndmask_b32 v50, v50, 0, vcc")
    e(f"v_add_u32 v{V_QC}, v49, v50")
    e(f"v_mov_b32 v50, {hex(find_cx(0x00803F80))}")
    e(f"v_mov_b32 v51, {hex(find_cx(0x3F800000))}")
    e("v_cmp_eq_u32 s[6:7], 1, v41")
    e("v_cmp_gt_u32 s[76:77], 2, v40")
    e("s_nop 0")
    e("v_cndmask_b32 v50, v50, v51, s[6:7]")
    e("v_cndmask_b32 v51, 0, v50, s[76:77]")
    e("v_cndmask_b32 v50, v50, 0, s[76:77]")
    e(f"v_cndmask_b32 v{CX}, 1.0, v51, vcc")
    e(f"v_cndmask_b32 v{CX+1}, 1.0, v50, vcc")
    for i in range(32): e(f"v_pk_mul_f32 {vr(H+2*i,2)}, v[68:69], v[68:69]")
    e(f"v_mov_b32 v56, s{S_TAGA}")
    e(f"v_mov_b32 v57, s{S_TAGB}")
    e(f"v_lshlrev_b32 v58, 11, v{V_LANE}")
    e("s_lshl_b32 s5, s2, 3")
    e(f"s_add_u32 s5, s5, {WS_FLAG}")
    stamp(16)
    e("s_waitcnt vmcnt(0) lgkmcnt(0)")
    e("s_barrier")
    stamp(7)
    e(f"s_cmp_eq_u32 s{S_W}, 0")
    e("s_cbranch_scc0 POLL0")
    e("s_mov_b64 exec, 0xff")
    e(f"buffer_store_dwordx2 v[56:57], v58, {sr(S_WS)}, s5 offen sc1")
    e("s_mov_b64 exec, -1")

    lab("POLL0")
    e(f"v_lshrrev_b32 v32, 4, v{V_LANE}")
    e(f"v_and_b32 v33, 7, v{V_LANE}")
    e("v_lshl_add_u32 v32, v32, 3, v33")
    e(f"s_lshl_b32 s5, s{S_W}, 5")
    e("v_add_u32 v32, s5, v32")
    e(f"v_lshlrev_b32 v33, {3 if TRANS else 11}, v32")
    e(f"s_lshl_b32 s5, s{S_B}, {11 if TRANS else 3}")
    e(f"s_add_u32 s5, s5, {WS_DESC}")
    e(f"buffer_load_dwordx2 v[34:35], v33, {sr(S_WS)}, s5 offen sc1")
    e(f"v_mul_u32_u24 v32, {CHS}, v32")
    e(f"v_and_b32 v36, 15, v{V_LANE}")
    e("v_add_u32 v37, 16, v36")
    e("v_bfrev_b32 v40, -2")
    e(f"v_cmp_gt_u32 vcc, s{S_WN}, v36")
    e(f"v_add_u32 v38, s{S_RB}, v36")
    e(f"v_add_u32 v39, s{S_RB}, v37")
    e("v_lshlrev_b32 v41, 3, v38")
    e("v_cndmask_b32 v38, v40, v38, vcc")
    e(f"v_cmp_gt_u32 vcc, s{S_WN}, v37")
    e("s_mov_b32 s6, 0x40000")
    e(f"s_mov_b32 s7, {WS_ENT}")
    e("v_cndmask_b32 v39, v40, v39, vcc")
    lab("POLL")
    e("s_waitcnt vmcnt(0)")
    e(f"v_xor_b32 v34, s{S_TAGA}, v34")
    e(f"v_cmp_ne_u32 s[76:77], s{S_TAGB}, v35")
    e("v_cmp_le_u32 vcc, 0x1000000, v34")
    e("s_or_b64 vcc, vcc, s[76:77]")
    e("s_cbranch_scc0 POLLED")
    e("s_sub_u32 s6, s6, 1")
    e("s_cbranch_scc1 K_END")
    e(f"s_sleep {SLP}")
    e(f"buffer_load_dwordx2 v[34:35], v33, {sr(S_WS)}, s5 offen sc1")
    e("s_branch POLL")
    lab("POLLED")
    stamp(8)
    e("v_and_b32 v35, 0xfff, v34")
    e("v_lshrrev_b32 v34, 12, v34")
    e("v_lshl_add_u32 v35, v35, 3, v32")
    e(f"s_add_u32 s5, s{S_RB}, s{S_WN}")
    e("v_cmp_lt_u32 s[74:75], s5, v34")
    DP = "row_mask:0xf bank_mask:0xf"
    for i in range(8):
        e(f"v_mov_b32_dpp v42, v34 row_newbcast:{i} {DP}")
        e(f"v_add_u32_dpp v{44+i}, v35, v41 row_newbcast:{i} {DP}")
        e(f"v_cmp_lt_u32 {sr(S_MASK+2*i,2)}, v38, v42")
        e(f"v_cmp_lt_u32 {sr(S_MASK+16+2*i,2)}, v39, v42")
    e("v_lshrrev_b32 v33, 8, v33")
    e("s_and_b32 s5, s2, 7")
    e("s_lshl_b32 s5, s5, 11")
    e(f"s_add_u32 s5, s5, {WS_FLAG}")
    lab("FPOLL")
    e(f"buffer_load_dwordx2 v[34:35], v33, {sr(S_WS)}, s5 offen sc1")
    e("s_waitcnt vmcnt(0)")
    e(f"v_cmp_ne_u32 s[76:77], s{S_TAGB}, v35")
    e(f"v_cmp_ne_u32 vcc, s{S_TAGA}, v34")
    e("s_or_b64 vcc, vcc, s[76:77]")
    e("s_cbranch_scc0 FPOLLED")
    e("s_sub_u32 s6, s6, 1")
    e("s_cbranch_scc1 K_END")
    e(f"s_sleep {SLP}")
    e("s_branch FPOLL")
    lab("FPOLLED")
    stamp(17)
    for k in range(16):
        e(f"s_or_b64 exec, {sr(S_MASK+2*k,2)}, 1")
        e(f"buffer_load_dwordx2 {vr(112+2*k,2)}, v{44+(k&7)}, {sr(S_WS)}, s7 offen offset:{128*(k>>3)} {ELF}")
    e("s_mov_b64 exec, -1")
    e("v_mov_b32 v55, 1")
    e(f"v_lshlrev_b32 v54, 2, v{V_LANE}")
    e("v_mov_b32 v53, 0")
    e("s_mov_b64 exec, s[74:75]")
    e(f"ds_write_b32 v53, v55 offset:{L_FLAG}")
    for k in range(16):
        e(f"s_mov_b64 exec, {sr(S_MASK+2*k,2)}")
        if k >= 8: e(f"s_cbranch_execz R_A{k}")
        e(f"s_waitcnt vmcnt({15-k})")
        e(f"ds_add_rtn_u32 v{144+k}, v{113+2*k}, v55 offset:{L_CNT2}")
        if k >= 8: lab(f"R_A{k}")
    e("s_mov_b64 exec, -1")
    e("s_waitcnt vmcnt(0) lgkmcnt(0)")
    e("s_barrier")
    stamp(9)
    e(f"ds_read_b32 v32, v54 offset:{L_CNT2}")
    e(f"ds_read_b32 v33, v53 offset:{L_FLAG}")
    e(f"ds_read_b32 v34, v54 offset:{L_DEG}")
    if PREF:
        e("s_lshr_b32 s6, s2, 3")
        e(f"s_mul_i32 s6, s6, {782*128}")
        e(f"s_add_u32 s6, s6, {PSH}")
        e(f"v_min_u32 v56, 390, v{V_TID}")
        e("v_lshlrev_b32 v56, 8, v56")
        e(f"buffer_load_dword v57, v56, {sr(S_P)}, s6 offen")
        e(f"buffer_load_dword v58, v56, {sr(S_P)}, s6 offen offset:128")
    e("s_waitcnt lgkmcnt(2)")
    e("v_add_u32 v35, 7, v32")
    e("v_and_b32 v35, -8, v35")
    e("v_mov_b32 v36, v35")
    scan64(36)
    e(f"v_cmp_le_u32 vcc, {SPLIT}, v{V_LANE}")
    e(f"v_readlane_b32 s6, v36, {SPLIT-1}")
    e("v_readlane_b32 s7, v36, 63")
    e("s_waitcnt lgkmcnt(0)")
    e(f"v_readfirstlane_b32 s{S_MORE}, v33")
    e("v_sub_u32 v36, v36, v35")
    e("s_add_u32 s5, s6, 31")
    e(f"s_lshr_b32 s{S_TA}, s5, 5")
    e("s_and_b32 s5, s5, -32")
    e("s_sub_u32 s5, s5, s6")
    e("s_add_u32 s7, s7, s5")
    e("s_add_u32 s7, s7, 31")
    e(f"s_lshr_b32 s{S_TT}, s7, 5")
    e(f"s_cmp_gt_u32 s{S_TT}, {MAXT}")
    e("s_cbranch_scc0 R_FITS")
    e(f"s_mov_b32 s{S_WN}, 12")
    e("s_branch NEXT_ROUND")
    lab("R_FITS")
    e("v_add_u32 v37, s5, v36")
    e("v_cndmask_b32 v36, v36, v37, vcc")
    e(f"v_add_u32 v38, {L_LIST//4}, v36")
    for k in range(8): e(f"ds_bpermute_b32 v{113+2*k}, v{113+2*k}, v38")
    for k in range(8, 16):
        e(f"s_cmp_eq_u64 {sr(S_MASK+2*k,2)}, 0")
        e(f"s_cbranch_scc1 R_B{k}")
        e(f"ds_bpermute_b32 v{113+2*k}, v{113+2*k}, v38")
        lab(f"R_B{k}")
    e("v_add_u32 v34, v34, v32")
    e("v_lshrrev_b32 v35, 3, v35")
    e("v_lshrrev_b32 v36, 3, v36")
    e(f"v_mul_u32_u24 v39, {QS}, v{V_LANE}")
    e(f"v_add_u32 v39, {L_QT}, v39")
    e(f"v_add_u32 v40, {L_SEL}, v54")
    e(f"v_add_u32 v41, {L_SEL-4*SPLIT}, v54")
    e("v_cndmask_b32 v40, v40, v41, vcc")
    e("v_mov_b32 v41, 0x3f80")
    e(f"s_cmp_eq_u32 s{S_W}, 0")
    e("s_cbranch_scc0 R_ND")
    e(f"ds_write_b32 v54, v34 offset:{L_DEG}")
    e("s_cmp_eq_u32 s2, 0")
    e("s_cbranch_scc0 R_ND")
    e(f"v_mov_b32 v42, s{S_TAGB}")
    e(f"v_mov_b32 v43, s{S_TAGA}")
    e("s_mov_b64 exec, 1")
    e(f"buffer_store_dwordx2 v[42:43], v53, {sr(S_WS)}, 0 offen offset:{WS_EPOCH}")
    e("s_mov_b64 exec, -1")
    lab("R_ND")
    e("s_waitcnt lgkmcnt(0)")
    for k in range(16):
        e(f"s_mov_b64 exec, {sr(S_MASK+2*k,2)}")
        if k >= 8: e(f"s_cbranch_execz R_C{k}")
        e(f"v_add_lshl_u32 v{113+2*k}, v{113+2*k}, v{144+k}, 2")
        e(f"ds_write_b32 v{113+2*k}, v{112+2*k}")
        if k >= 8: lab(f"R_C{k}")
    e("s_mov_b64 exec, -1")
    e(f"s_mov_b32 s6, s{S_W}")
    lab("R_GT")
    e("v_cmp_lt_u32 vcc, s6, v35")
    e("s_and_b64 exec, exec, vcc")
    e("s_cbranch_execz R_GTE")
    e("v_add_u32 v44, s6, v36")
    e("v_lshlrev_b32 v45, 2, v44")
    e(f"v_add_u32 v45, {L_GQ}, v45")
    e("ds_write_b32 v45, v39")
    e("v_lshrrev_b32 v46, 1, v44")
    e(f"v_mul_u32_u24 v46, {SELS//2}, v46")
    e("v_and_b32 v44, 1, v44")
    e("v_lshl_add_u32 v46, v44, 1, v46")
    e("v_add_u32 v46, v46, v40")
    e("ds_write_b16 v46, v41")
    e("s_add_u32 s6, s6, 8")
    e("s_branch R_GT")
    lab("R_GTE")
    e("s_mov_b64 exec, -1")
    e(f"s_cmp_ge_u32 s{S_W}, 4")
    e(f"s_cselect_b32 s6, s{S_TA}, 0")
    e(f"s_cselect_b32 s7, s{S_TT}, s{S_TA}")
    e(f"s_sub_u32 s5, s{S_W}, s6")
    e("s_and_b32 s5, s5, 3")
    e(f"s_add_u32 s{S_T0}, s6, s5")
    e(f"s_sub_u32 s7, s7, s{S_T0}")
    e("s_add_u32 s7, s7, 3")
    e(f"s_ashr_i32 s{S_NT}, s7, 2")
    e(f"s_or_b32 s6, s{S_MORE}, s{S_RB}")
    e(f"s_or_b32 s{S_SAFE}, s{S_SAFE}, s6")
    e("s_waitcnt lgkmcnt(0)")
    e("s_barrier")
    lab("WAVE_START")
    stamp(10)
    e(f"v_mov_b32 v{V_DMAX}, 0")
    e(f"s_cmp_lt_i32 s{S_NT}, 1")
    e("s_cbranch_scc1 WAVE_DONE")
    e(f"s_lshl_b32 s6, s{S_T0}, 7")
    e(f"v_add_u32 v{V_LI}, s6, v{V_LIO}")
    e(f"ds_read_b128 {vr(IDX,4)}, v{V_LI}")
    e(f"ds_read_b128 {vr(IDR,4)}, v{V_LI} offset:512")
    e(f"v_add_u32 v{V_LM}, s6, v{V_LMO}")
    e(f"s_lshl_b32 s6, s{S_T0}, 4")
    e(f"v_add_u32 v{V_GQA}, s6, v{V_GQO}")
    e(f"ds_read_b32 v{V_M}, v{V_LM}")
    e(f"ds_read_b32 v{V_GQ}, v{V_GQA}")
    e(f"s_mul_i32 s6, s{S_T0}, {SELS}")
    e(f"v_add_u32 v{V_SELA}, s6, v{V_SELO}")
    e(f"s_sub_u32 s{S_REM}, s{S_NT}, 1")
    e(f"s_mov_b32 m0, s{S_M0[0]}")
    e("s_waitcnt lgkmcnt(3)")
    for s in mads(IDX): e(s)
    for s in dma(0): e(s)
    e(f"s_mov_b32 m0, s{S_M0[1]}")
    e("s_waitcnt lgkmcnt(0)")
    for s in dma(1): e(s)
    for s in mads(): e(s)
    e(QAB); e(PERM)
    for i in range(20): e(f"v_mov_b32 v{SL+i}, 0")
    for i in range(32): e(f"v_mov_b32 v{C[0]+i}, 0")
    for i in range(2):
        e(f"v_mov_b32 v{NN+i}, 0")
        e(f"v_mov_b32 v{DD+i}, 1.0")
    e(AXB)
    for s in memphase(0, 0): e(s)
    e(mfext(0))
    e("s_nop 7")
    e("s_nop 1")
    stamp(11); stamp(28, True)
    e(f"s_cmp_lg_u32 s{S_SAFE}, 0")
    e("s_cbranch_scc1 ENTERS")
    e("s_branch ENTERF")
    mainloop(False)
    mainloop(True)
    lab("DRAIN")
    e("s_waitcnt lgkmcnt(0)")
    for ct in range(4): e(mfsel(ct))
    lab("WAVE_DONE")
    stamp(12); stamp(29, True)
    e(f"s_cmp_eq_u32 s{S_MORE}, 0")
    e("s_cbranch_scc1 EPI")
    e(f"s_add_u32 s{S_RB}, s{S_RB}, s{S_WN}")
    lab("NEXT_ROUND")
    e("s_waitcnt vmcnt(0) lgkmcnt(0)")
    e("s_barrier")
    lds_init_tables(32)
    e(f"v_cmp_gt_u32 vcc, 80, v{V_TID}")
    e("s_and_saveexec_b64 s[6:7], vcc")
    e(f"ds_write_b32 v40, v36 offset:{L_CNT2}")
    e("s_mov_b64 exec, s[6:7]")
    e("s_waitcnt lgkmcnt(0)")
    e("s_barrier")
    e("s_branch POLL0")

    lab("EPI")
    e(f"v_bfe_u32 v32, v{V_LANE}, 2, 2")
    e(f"v_lshrrev_b32 v33, 5, v{V_LANE}")
    e("v_lshl_add_u32 v34, v33, 2, v32")
    e("v_lshlrev_b32 v34, 7, v34")
    e("v_lshrrev_b32 v32, 1, v32")
    e("v_lshl_add_u32 v34, v32, 6, v34")
    e(f"v_and_b32 v35, 63, v{V_QC}")
    e("v_add_u32 v34, v34, v35")
    e(f"v_add_u32 v34, {L_W2}, v34")
    e("v_xor_b32 v35, 64, v34")
    for ks in range(8):
        for mt in range(2):
            for t in range(2):
                e(f"ds_read_b64_tr_b16 {vr(112+8*ks+4*mt+2*t,2)}, v{34+mt} offset:{2048*ks+1024*t}")
    for i in range(32): e(f"v_cvt_pk_bf16_f32 v{64+i}, v{H+2*i}, v{H+2*i+1}")
    e("s_waitcnt lgkmcnt(0)")
    for ks in range(8):
        for mt in range(2):
            e(mf16(H + 16*mt, 112 + 8*ks + 4*mt, 64 + 4*ks, "0" if ks == 0 else vr(H + 16*mt, 16)))
    e(f"v_and_b32 v32, 31, v{V_LANE}")
    e("v_mul_u32_u24 v32, 272, v32")
    e("v_lshl_add_u32 v32, v33, 4, v32")
    e(f"v_add_u32 v32, s{S_M0[0]}, v32")
    e(f"s_mov_b32 s6, {hex(f2u(2.0**120))}")
    e(f"v_cmp_nge_f32 s[76:77], s6, v{V_DMAX}")
    e(f"v_lshrrev_b32 v36, 3, v{V_TID}")
    e(f"v_and_b32 v37, 7, v{V_TID}")
    e(f"v_cmp_le_u32 vcc, {SPLIT}, v36")
    e("v_mul_u32_u24 v38, 272, v36")
    e("v_lshl_add_u32 v38, v37, 5, v38")
    e(f"v_add_u32 v39, {4*TBW - SPLIT*272}, v38")
    e("v_cndmask_b32 v38, v38, v39, vcc")
    e("v_lshlrev_b32 v39, 2, v36")
    e("v_lshlrev_b32 v40, 5, v37")
    e("v_lshlrev_b32 v41, 15, v36")
    e("v_lshl_add_u32 v41, v37, 4, v41")
    e(f"s_lshl_b32 s5, s{S_B}, 7")
    e("v_add_u32 v41, s5, v41")
    e("s_movk_i32 s7, 0x207")
    e(f"v_cmp_class_f32 vcc, v{H+16}, s7")
    e("s_or_b64 s[76:77], s[76:77], vcc")
    e("s_cbranch_scc0 EPI_OK")
    e(f"s_cmp_lg_u32 s{S_SAFE}, 0")
    e("s_cbranch_scc1 EPI_OK")
    e(f"s_mov_b32 s{S_SAFE}, 1")
    for i in range(64): e(f"v_mov_b32 v{H+i}, 0")
    e("s_waitcnt vmcnt(0)")
    e("s_branch WAVE_START")
    lab("EPI_OK")
    e("s_waitcnt vmcnt(0)")
    for mt in range(2):
        for q in range(4):
            e(f"ds_write_b128 v32, {vr(H+16*mt+4*q,4)} offset:{128*mt+32*q}")
    e(f"v_cmp_gt_u32 vcc, {NPB}, v36")
    e("s_waitcnt lgkmcnt(0)")
    e("s_barrier")
    stamp(13)
    e("s_and_b64 exec, exec, vcc")
    e("s_cbranch_execz K_FIN")
    for s in range(4):
        e(f"ds_read_b128 {vr(64+8*s,4)}, v38 offset:{L_TB+s*TBW}")
        e(f"ds_read_b128 {vr(68+8*s,4)}, v38 offset:{L_TB+s*TBW+16}")
    e(f"ds_read_b32 v42, v39 offset:{L_DEG}")
    e(f"ds_read_b128 v[96:99], v40 offset:{L_B2}")
    e(f"ds_read_b128 v[100:103], v40 offset:{L_B2+16}")
    e(f"s_mov_b32 s6, {hex(f2u(-LN2))}")
    e("s_waitcnt lgkmcnt(7)")
    for i in range(4): e(f"v_pk_add_f32 {vr(64+2*i,2)}, {vr(64+2*i,2)}, {vr(72+2*i,2)}")
    e("s_waitcnt lgkmcnt(3)")
    for i in range(4): e(f"v_pk_add_f32 {vr(80+2*i,2)}, {vr(80+2*i,2)}, {vr(88+2*i,2)}")
    for i in range(4): e(f"v_pk_add_f32 {vr(64+2*i,2)}, {vr(64+2*i,2)}, {vr(80+2*i,2)}")
    e("s_waitcnt lgkmcnt(0)")
    e("v_cvt_f32_u32 v42, v42")
    for i in range(4): e(f"v_pk_mul_f32 {vr(96+2*i,2)}, {vr(96+2*i,2)}, v[42:43] op_sel_hi:[1,0]")
    for i in range(8): e(f"v_fma_f32 v{64+i}, v{64+i}, s6, v{96+i}")
    for i in range(4): e(f"v_cvt_pk_bf16_f32 v{72+i}, v{64+2*i}, v{65+2*i}")
    e(f"buffer_store_dwordx4 v[72:75], v41, {sr(S_OUT)}, 0 offen")
    lab("K_FIN")
    if SPIN >= 0:
        lab("SPINL")
        e("s_memrealtime s[98:99]")
        e("s_waitcnt lgkmcnt(0)")
        e("s_sub_u32 s98, s98, s96")
        e("s_cmp_lt_u32 s98, 6000")
        e("s_cbranch_scc1 SPINL")
    if DIAG:
        e("s_mov_b64 exec, -1")
        e("s_waitcnt vmcnt(0)")
        stamp(14); stamp(31, True)
        e(f"v_writelane_b32 v255, s{S_NT}, 27")
        e("s_lshl_b32 s5, s2, 11")
        e(f"s_add_u32 s5, s5, {WS_STAMP}")
        e(f"v_lshlrev_b32 v1, 2, v{V_TID}")
        e(f"buffer_store_dword v255, v1, {sr(S_WS)}, s5 offen")
    lab("K_END")
    e("s_endpgm")

hdr = open("standalone__edge_featured_mpnn_mpnn__graph.s.ref").read().split("; Override")[0]
out.append(hdr.rstrip())
out.append(f"; @launch grid=(256,1,1) block=(512,1,1) lds={L_END}")
out.append('.amdgcn_target "amdgcn-amd-amdhsa--gfx950"')
out.append(".text")
out.append(f".globl {KN}")
out.append(".p2align 8")
out.append(f".type {KN},@function")
kernel()
out.append(f""".section .rodata,"a"
.p2align 6
.amdhsa_kernel {KN}
  .amdhsa_next_free_vgpr 256
  .amdhsa_next_free_sgpr 102
  .amdhsa_accum_offset 256
  .amdhsa_group_segment_fixed_size 0
  .amdhsa_kernarg_size 88
  .amdhsa_user_sgpr_count 2
  .amdhsa_user_sgpr_kernarg_segment_ptr 1
  .amdhsa_system_sgpr_workgroup_id_x 1
.end_amdhsa_kernel""")
dst = sys.argv[1] if len(sys.argv) > 1 else "standalone__edge_featured_mpnn_mpnn__graph.s"
open(dst, "w").write("\n".join(out) + "\n")
print("written", dst, "LDS", L_END)
```

```python
import struct, sys, os
import numpy as np
from align import align, isize

N, E = 12500, 800000
NPB, SPLIT = 49, 25
CH, CHS = 3128, 25088
NQ, NQL = CH // 4, (E - 255 * CH) // 4
LOG2E = 1.4426950408889634
LN2 = 0.6931471805599453
KN = "standalone__edge_featured_mpnn_mpnn__graph_kernel"
DIAG = int(os.environ.get("DIAG", "0"))
PREF = int(os.environ.get("PREF", "0"))
X_NOP = int(os.environ.get("X_NOP", "0"))
STF = os.environ.get("STF", "sc1")
LDF = os.environ.get("LDF", "")
TRANS = int(os.environ.get("TRANS", "0"))
ELF = os.environ.get("ELF", "")
SLP = int(os.environ.get("SLP", "1"))
CPF = int(os.environ.get("CPF", "0"))

def f2u(x): return struct.unpack("<I", struct.pack("<f", x))[0]
def u2f(u): return struct.unpack("<f", struct.pack("<I", u))[0]

WS_EPOCH = 0
WS_PT = 4096
WS_DESC = WS_PT + 12544 * 256
WS_FLAG = WS_DESC + 256 * 2048
WS_ENT = WS_FLAG + 8 * 2048
WS_SIZE = WS_ENT + 256 * CHS
WS_STAMP = 12 << 20
if DIAG: WS_SIZE = 16 << 20

L_CNT1, L_BASE1 = 0, 1024
L_CNT2, L_FLAG, L_DEG, L_B2 = 2048, 2304, 2368, 2816
L_EXT = 3072
L_TB = 4096
TBW = 8704
L_W1S, L_XS, L_PS, L_STG = L_TB, L_TB + 32768, L_TB + 41472, L_TB
PS = 272
assert L_PS + NPB * PS <= L_TB + 8 * TBW
L_LIST = L_TB + 8 * TBW
LISTCAP, MAXT = 4096, 116
L_SEL = L_LIST + LISTCAP * 4
SELS, SELSZ = 200, 23552
L_GQ = L_SEL + SELSZ
L_QT = L_GQ + 2048
QS = 328
L_W2 = (L_QT + NPB * QS + 255) // 256 * 256
L_END = L_W2 + 16384
assert L_END <= 163840, L_END
PADENT = 0x00007000
PSH = 3072

out = []
def e(s): out.append("    " + s)
def lab(s): out.append(s + ":")
def c(s): out.append("    ; " + s)
def vr(a, n): return f"v[{a}:{a+n-1}]"
def sr(a, n=4): return f"s[{a}:{a+n-1}]"

SPIN = int(os.environ.get("SPIN", "-1"))
def stamp(i, real=False):
    if SPIN == i:
        e("s_waitcnt lgkmcnt(0)")
        e("s_memrealtime s[96:97]")
        e("s_waitcnt lgkmcnt(0)")
    if not DIAG: return
    e("s_waitcnt lgkmcnt(0)")
    e(f"{'s_memrealtime' if real else 's_memtime'} s[98:99]")
    e("s_waitcnt lgkmcnt(0)")
    e(f"v_writelane_b32 v255, s98, {i}")

def scan64(v):
    for sh in (1, 2, 4, 8):
        e("s_nop 1")
        e(f"v_add_u32_dpp v{v}, v{v}, v{v} row_shr:{sh} row_mask:0xf bank_mask:0xf bound_ctrl:1")
    e("s_nop 1")
    e(f"v_add_u32_dpp v{v}, v{v}, v{v} row_bcast:15 row_mask:0xa bank_mask:0xf")
    e("s_nop 1")
    e(f"v_add_u32_dpp v{v}, v{v}, v{v} row_bcast:31 row_mask:0xc bank_mask:0xf")

H = 192 - 8 if False else 176
C = (144, 160)
D = (112, 128)
T = 96
P = 80
SL = 76
BX = (72, 74)
IDX, IDR = 64, 68
NN, DD, RR, AX, CX, V_M = 16, 18, 20, 22, 24, 26
V_CA, V_DMAC, V_LI, V_LM, V_GQA, V_SELA, V_PSEL, V_QMUL, V_QC, V_GQ, V_QA, V_DMAX, V_TID, V_LANE = range(1, 15)
V_LIO, V_LMO, V_GQO, V_SELO = 28, 29, 30, 31
S_X, S_E, S_SRC, S_DST, S_W1, S_B1, S_W2, S_B2, S_OUT, S_WS, S_P = 8, 12, 16, 20, 24, 28, 32, 36, 40, 44, 48
S_MASK = 8
S_SOFF = 52
S_256, S_REM, S_M0, S_WN, S_RB, S_MORE, S_SAFE, S_TA, S_TT, S_NT, S_T0, S_TAGA, S_TAGB = 60, 61, (62, 63), 64, 65, 66, 67, 68, 69, 70, 71, 72, 73
S_B, S_W = 3, 4

def mf16(d, a, b, cc): return f"v_mfma_f32_32x32x16_bf16 {vr(d,16)}, {vr(a,4)}, {vr(b,4)}, {cc}"
def mfext(ct): return f"v_mfma_f32_32x32x8_bf16 {vr(D[ct&1],16)}, {vr(AX,2)}, {vr(BX[ct&1],2)}, {vr(C[ct&1],16)}"
def mfsel(ct): return mf16(H + 16 * ct, P + 4 * ct, SL, vr(H + 16 * ct, 16))
def dma(half):
    return [f"buffer_load_dwordx4 v{IDX+j}, {sr(S_P)}, s{S_SOFF+4*half+j} offen offset:{1024*j} lds" for j in range(4)]
def mads(src=IDR): return [f"v_mad_i32_i16 v{IDX+j}, v{src+j}, s{S_256}, v{V_DMAC}" for j in range(4)]
def c_reads(half):
    L = []
    for ctl in range(2):
        for r in range(16):
            mm = r >> 1
            L.append(f"ds_read_u16_d16_hi v{C[ctl]+r}, v{V_CA} offset:{half*4096 + (mm&3)*1024 + (2*(r&1) + (mm>>2))*128 + ctl*64}")
    return L
def tr_read(ct): return f"ds_read_b64_tr_b16 {vr(BX[ct&1],2)}, v{V_QA} offset:{64*ct}"
AXB = f"v_pk_mul_f32 {vr(AX,2)}, {vr(CX,2)}, {vr(V_M,2)} op_sel_hi:[1,0]"
QAB = f"v_mad_u32_u24 v{V_QA}, v{V_GQ}, v{V_QMUL}, v{V_QC}"
PERM = f"v_perm_b32 v{V_M}, v{V_M}, v{V_M}, v{V_PSEL}"

def block(tau, ct, safe, gate=False, last=False):
    cur = D[ct & 1]
    pc, pt = (ct - 1) & 3, (tau if ct > 0 else (tau - 1) & 3)
    tr = [f"v_exp_f32 v{T+i}, v{cur+i}" for i in range(16)] + [f"v_rcp_f32 v{RR}, v{DD}", f"v_rcp_f32 v{RR+1}, v{DD+1}"]
    mf = [] if last else [mfext((ct + 1) & 3)]
    if tau == 0: mf.append(mfsel(ct))
    fill = []
    if ct == 1: fill += mads() + [PERM]
    if ct == 2:
        fill += [QAB]
        if tau == 3:
            fill += [f"v_add_u32 v{V_LI}, 2048, v{V_LI}", f"v_add_u32 v{V_LM}, 2048, v{V_LM}",
                     f"v_add_u32 v{V_GQA}, 256, v{V_GQA}", f"v_add_u32 v{V_SELA}, {16*SELS}, v{V_SELA}"]
    fill.append(f"v_max3_f32 v{V_DMAX}, v{DD}, v{DD+1}, v{V_DMAX}")
    L = []
    k = 0
    if gate:
        L += [tr[0], "s_setprio 3"]; k = 1
    for m in mf:
        L.append(m); L += tr[k:k+4]; k += 4
    L += tr[k:] + fill
    L.append(f"v_pk_mul_f32 {vr(RR,2)}, {vr(NN,2)}, {vr(RR,2)}")
    cvt = f"v_cvt_pk_bf16_f32 v{P+4*pc+pt}, v{RR}, v{RR+1}"
    if not safe:
        L += [f"v_pk_add_f32 {vr(DD,2)}, {vr(T,2)}, 1.0 op_sel_hi:[1,0]", cvt]
        if ct == 2: L.append(AXB)
        for j in range(1, 8):
            n_in = vr(cur, 2) if j == 1 else vr(NN, 2)
            L += [f"v_pk_fma_f32 {vr(NN,2)}, {n_in}, {vr(T+2*j,2)}, {n_in}",
                  f"v_pk_fma_f32 {vr(NN,2)}, {vr(cur+2*j,2)}, {vr(DD,2)}, {vr(NN,2)}",
                  f"v_pk_fma_f32 {vr(DD,2)}, {vr(DD,2)}, {vr(T+2*j,2)}, {vr(DD,2)}"]
    else:
        L += [f"v_pk_add_f32 {vr(T+2*j,2)}, {vr(T+2*j,2)}, 1.0 op_sel_hi:[1,0]" for j in range(8)] + [cvt]
        if ct == 2: L.append(AXB)
        L += [f"v_rcp_f32 v{T+i}, v{T+i}" for i in range(16)]
        L.append(f"v_pk_mul_f32 {vr(NN,2)}, {vr(cur,2)}, {vr(T,2)}")
        L += [f"v_pk_fma_f32 {vr(NN,2)}, {vr(cur+2*j,2)}, {vr(T+2*j,2)}, {vr(NN,2)}" for j in range(1, 8)]
    return L

def memphase(tau, half):
    L = ["s_setprio 0", "s_waitcnt vmcnt(4)"]
    L += c_reads(half) + [tr_read(2 * half), tr_read(2 * half + 1)]
    if half == 1:
        L += [f"ds_read_b128 {vr(IDR,4)}, v{V_LI} offset:{(tau+2)*512}",
              f"ds_read_b32 v{V_M}, v{V_LM} offset:{(tau+1)*512}",
              f"ds_read_b32 v{V_GQ}, v{V_GQA} offset:{(tau+1)*64}"]
        if tau == 1: L.append(f"ds_read_b32 v{SL}, v{V_SELA}")
        if tau >= 1: L.append(f"ds_read_b32 v{SL+tau}, v{V_SELA} offset:{tau*4*SELS}")
    L += [f"s_mov_b32 m0, s{S_M0[half]}", "s_waitcnt lgkmcnt(0)"]
    L += dma(half)
    return L

def emit(L):
    L = align(L)
    assert sum(isize(x) for x in L) % 8 == 0
    for s in L: e(s)

def mainloop(safe):
    x = "S" if safe else "F"
    out.append(".p2align 6")
    lab(f"LOOP{x}")
    for tau in range(4):
        c(f"==== tile slot {tau}")
        emit(memphase(tau, 0))
        emit(block((tau - 1) & 3, 3, safe, gate=True))
        if tau == 0: lab(f"ENTER{x}")
        emit(block(tau, 0, safe))
        emit(memphase(tau, 1))
        emit(block(tau, 1, safe, gate=True))
        emit(block(tau, 2, safe))
        e(f"s_sub_u32 s{S_REM}, s{S_REM}, 1")
        if tau < 3: e(f"s_cbranch_scc1 TAIL{x}{tau}")
        else: e(f"s_cbranch_scc0 LOOP{x}")
    for tau in (3, 0, 1, 2):
        lab(f"TAIL{x}{tau}")
        emit(block(tau, 3, safe, last=True))
        if tau == 0: e(f"ds_read_b32 v{SL}, v{V_SELA}")
        e(f"v_rcp_f32 v{RR}, v{DD}")
        e(f"v_rcp_f32 v{RR+1}, v{DD+1}")
        e(f"v_max3_f32 v{V_DMAX}, v{DD}, v{DD+1}, v{V_DMAX}")
        e(f"v_pk_mul_f32 {vr(RR,2)}, {vr(NN,2)}, {vr(RR,2)}")
        for t2 in range(tau + 1, 4): e(f"v_mov_b32_e64 v{SL+t2}, 0")
        e(f"v_cvt_pk_bf16_f32 v{P+12+tau}, v{RR}, v{RR+1}")
        e("s_setprio 0")
        e("s_branch DRAIN")

def find_cx(target):
    m = np.float64(u2f(0x00FF0000))
    g = f2u(float(np.float32(np.float64(u2f(target)) / m)))
    for d in range(-3, 4):
        if f2u(float(np.float32(np.float64(u2f(g + d)) * m))) == target: return g + d
    raise SystemExit("no cx")

def lds_init_tables(tmp):
    e(f"v_lshlrev_b32 v{tmp+8}, 4, v{V_TID}")
    e(f"v_add_u32 v{tmp+8}, {L_LIST}, v{tmp+8}")
    for i in range(4): e(f"v_mov_b32 v{tmp+i}, {hex(PADENT)}")
    for i in range(4): e(f"v_mov_b32 v{tmp+4+i}, 0")
    e(f"ds_write_b128 v{tmp+8}, {vr(tmp,4)}")
    e(f"ds_write_b128 v{tmp+8}, {vr(tmp,4)} offset:8192")
    for o in (0, 8192, SELSZ - 8192):
        e(f"ds_write_b128 v{tmp+8}, {vr(tmp+4,4)} offset:{L_SEL-L_LIST+o}")
    e(f"v_lshlrev_b32 v{tmp+8}, 2, v{V_TID}")
    e(f"v_add_u32 v{tmp+9}, {L_GQ}, v{tmp+8}")
    e(f"v_mov_b32 v{tmp}, {L_QT}")
    e(f"ds_write_b32 v{tmp+9}, v{tmp}")

def kernel():
    lab(KN)
    e("s_cmp_ge_u32 s2, 256")
    e("s_cbranch_scc1 K_END")
    if DIAG: e("v_mov_b32 v255, 0")
    stamp(30, True); stamp(0)
    for s, off in ((S_DST, 24), (S_SRC, 16), (S_E, 8), (S_W1, 32), (S_X, 0), (S_WS, 80), (S_B1, 40), (S_W2, 48), (S_B2, 56), (S_OUT, 64)):
        e(f"s_load_dwordx2 {sr(s,2)}, s[0:1], {off}")
    if CPF:
        e(f"s_cmp_ge_u32 s2, {8*CPF}")
        e("s_cbranch_scc1 NOCPF")
        e("s_getpc_b64 s[82:83]")
        e("v_min_u32 v60, 205, v0")
        e("v_lshlrev_b32 v60, 7, v60")
        e("v_mov_b32 v63, s83")
        e("v_add_co_u32 v62, vcc, s82, v60")
        e("s_nop 1")
        e("v_addc_co_u32 v63, vcc, 0, v63, vcc")
        e("global_load_dword v84, v[62:63], off")
        lab("NOCPF")
    e(f"v_mov_b32 v{V_TID}, v0")
    e(f"v_readfirstlane_b32 s{S_W}, v0")
    e(f"v_and_b32 v{V_LANE}, 63, v0")
    for s, sz in ((S_DST, E*4), (S_SRC, E*4), (S_E, E*2), (S_W1, 129*256), (S_X, N*128), (S_WS, WS_SIZE), (S_B1, 256), (S_W2, 16384), (S_B2, 128), (S_OUT, N*128), (S_P, N*256 + PSH)):
        e(f"s_mov_b32 s{s+2}, {sz}")
        e(f"s_mov_b32 s{s+3}, 0x00020000")
    e(f"s_lshr_b32 s{S_W}, s{S_W}, 6")
    e(f"s_and_b32 s{S_B}, s2, 7")
    e(f"s_lshl_b32 s{S_B}, s{S_B}, 5")
    e("s_lshr_b32 s5, s2, 3")
    e(f"s_add_u32 s{S_B}, s{S_B}, s5")
    e(f"s_mul_i32 s5, s2, {CH*4}")
    e("v_lshl_add_u32 v32, v0, 4, s5")
    e("s_cmp_eq_u32 s2, 255")
    e(f"s_movk_i32 s6, {NQ-512}")
    e(f"s_cmovk_i32 s6, {NQL-512}")
    e("v_cmp_gt_u32 s[74:75], s6, v0")
    e("v_add_u32 v33, 8192, v32")
    e("v_bfrev_b32 v36, 1")
    e("v_lshrrev_b32 v34, 1, v32")
    e("v_cndmask_b32 v33, v36, v33, s[74:75]")
    e("v_lshrrev_b32 v35, 1, v33")
    e(f"v_lshrrev_b32 v37, 4, v{V_LANE}")
    e(f"v_lshrrev_b32 v38, 5, v{V_LANE}")
    e(f"v_and_b32 v42, 1, v37")
    e("v_lshlrev_b32 v49, 2, v42")
    e(f"v_xor_b32 v49, v49, v{V_LANE}")
    e("v_lshlrev_b32 v49, 4, v49")
    e(f"s_cmp_lt_u32 s{S_W}, 4")
    e("s_cbranch_scc1 P0_LO")
    e(f"v_lshlrev_b32 v39, 2, v37")
    e(f"v_xor_b32 v39, v39, v{V_LANE}")
    e("v_lshlrev_b32 v39, 4, v39")
    e(f"v_lshrrev_b32 v40, 3, v{V_LANE}")
    e("v_and_b32 v41, 4, v40")
    e("v_and_b32 v43, 1, v40")
    e("v_lshl_add_u32 v41, v43, 1, v41")
    e("v_add_u32 v41, v41, v42")
    e(f"v_and_b32 v43, 7, v{V_LANE}")
    e("v_xor_b32 v43, v43, v37")
    e("v_lshlrev_b32 v43, 4, v43")
    e("v_lshl_add_u32 v41, v41, 15, v43")
    e(f"s_and_b32 s5, s{S_W}, 3")
    e("s_lshl_b32 s6, s5, 13")
    e("s_add_u32 s7, s6, 4096")
    e("s_lshl_b32 s76, s5, 19")
    e(f"s_lshl_b32 s77, s{S_B}, 7")
    e("s_add_u32 s76, s76, s77")
    e("v_add_u32 v41, s76, v41")
    e("v_add_u32 v44, 0x40000, v41")
    e("v_lshlrev_b32 v43, 3, v38")
    e("s_lshl_b32 s77, s5, 6")
    e("s_mul_i32 s76, s5, 2176")
    e(f"v_lshlrev_b32 v45, 2, v{V_LANE}")
    e(f"v_lshlrev_b32 v46, 1, v{V_LANE}")
    e(f"s_add_u32 m0, s76, {L_XS}")
    e("s_waitcnt lgkmcnt(0)")
    e(f"buffer_load_dwordx4 v41, {sr(S_X)}, 0 offen lds")
    e(f"s_add_u32 m0, s76, {L_XS+1088}")
    e(f"s_mov_b32 s76, {128*256}")
    e(f"buffer_load_dwordx4 v44, {sr(S_X)}, 0 offen lds")
    e(f"s_add_u32 m0, s6, {L_W1S}")
    e(f"buffer_load_dword v47, v45, {sr(S_W1)}, s76 offen")
    for k in range(4): e(f"buffer_load_dwordx4 v39, {sr(S_W1)}, s6 offen offset:{1024*k} lds")
    e(f"s_add_u32 m0, s7, {L_W1S}")
    e(f"buffer_load_ushort v48, v46, {sr(S_B2)}, 0 offen")
    for k in range(4): e(f"buffer_load_dwordx4 v39, {sr(S_W1)}, s7 offen offset:{1024*k} lds")
    for q in range(4): e(f"buffer_load_dwordx2 {vr(104+2*q,2)}, v43, {sr(S_B1)}, s77 offen offset:{16*q}")
    e("s_branch P0_EDGE")
    lab("P0_LO")
    for q in range(8): e(f"v_mov_b32 v{104+q}, 0")
    e("s_waitcnt lgkmcnt(0)")
    lab("P0_EDGE")
    stamp(15)
    e(f"buffer_load_dwordx4 v[64:67], v32, {sr(S_DST)}, 0 offen {LDF}")
    e(f"buffer_load_dwordx4 v[68:71], v33, {sr(S_DST)}, 0 offen {LDF}")
    e(f"buffer_load_dwordx4 v[72:75], v32, {sr(S_SRC)}, 0 offen {LDF}")
    e(f"buffer_load_dwordx4 v[76:79], v33, {sr(S_SRC)}, 0 offen {LDF}")
    e(f"s_lshl_b32 s6, s{S_W}, 11")
    e(f"s_add_u32 m0, s6, {L_W2}")
    e(f"buffer_load_dwordx2 v[80:81], v34, {sr(S_E)}, 0 offen {LDF}")
    e(f"buffer_load_dwordx2 v[82:83], v35, {sr(S_E)}, 0 offen {LDF}")
    for k in range(2): e(f"buffer_load_dwordx4 v49, {sr(S_W2)}, s6 offen offset:{1024*k} lds")
    e(f"s_load_dwordx2 s[78:79], {sr(S_WS,2)}, {WS_EPOCH}")
    e("v_mov_b32 v56, 0")
    e("v_mov_b32 v57, 0")
    e(f"v_lshlrev_b32 v61, 3, v{V_TID}")
    e("ds_write_b64 v61, v[56:57]")
    e(f"v_and_b32 v39, 31, v{V_LANE}")
    e("v_bfe_u32 v40, v39, 2, 1")
    e("v_and_b32 v41, 1, v39")
    e("v_lshl_add_u32 v40, v40, 1, v41")
    e("v_bfe_u32 v43, v39, 1, 1")
    e(f"v_bfe_u32 v44, v{V_LANE}, 2, 2")
    e(f"v_and_b32 v49, 3, v{V_LANE}")
    e("v_lshlrev_b32 v49, 3, v49")
    e("v_lshl_add_u32 v49, v42, 5, v49")
    e("v_lshrrev_b32 v42, 3, v39")
    e(f"s_and_b32 s5, s{S_W}, 3")
    e("v_xor_b32 v50, s5, v44")
    e("v_lshl_add_u32 v50, v50, 6, v49")
    e("v_lshl_add_u32 v51, v38, 3, v44")
    e("v_lshl_add_u32 v50, v51, 8, v50")
    e(f"s_lshr_b32 s6, s{S_W}, 2")
    e("s_lshl_b32 s7, s6, 14")
    e("v_add_u32 v50, s7, v50")
    e("v_lshl_add_u32 v51, v40, 1, v43")
    e("v_mul_u32_u24 v52, 1088, v42")
    e("v_lshl_add_u32 v52, v51, 7, v52")
    e("v_xor_b32 v53, v38, v40")
    e("v_lshl_add_u32 v51, v53, 4, v52")
    e("v_xor_b32 v53, 2, v53")
    e("v_lshl_add_u32 v52, v53, 4, v52")
    e("s_cmp_eq_u32 s6, 0")
    e(f"s_movk_i32 s6, {QS}")
    e(f"s_cmovk_i32 s6, {PS}")
    e(f"s_mov_b32 s7, {L_QT}")
    e(f"s_cmov_b32 s7, {L_PS}")
    e("s_lshl_b32 s5, s5, 6")
    e("s_add_u32 s7, s7, s5")
    e("v_mul_u32_u24 v53, s6, v39")
    e("v_lshl_add_u32 v53, v38, 3, v53")
    e("v_add_u32 v53, s7, v53")
    e("s_lshl_b32 s6, s6, 5")
    e("v_add_u32 v54, s6, v53")
    e(f"v_cmp_gt_u32 s[76:77], {NPB-32}, v39")
    e(f"s_mul_i32 s5, s{S_W}, 98")
    e(f"v_add_u32 v55, s5, v{V_LANE}")
    e("v_lshrrev_b32 v56, 4, v55")
    e("v_and_b32 v55, 15, v55")
    e("v_lshlrev_b32 v55, 4, v55")
    e(f"v_mul_u32_u24 v58, {PS}, v56")
    e("v_add_u32 v58, v58, v55")
    e("v_lshl_add_u32 v60, v56, 16, v55")
    e(f"s_mov_b32 s80, {hex(f2u(-LOG2E))}")
    e(f"s_mov_b32 s81, s80")
    e("s_waitcnt vmcnt(8) lgkmcnt(0)")
    e("s_barrier")
    stamp(1)
    for ks in range(4):
        e(f"ds_read_b64_tr_b16 {vr(88+4*ks,2)}, v50 offset:{L_W1S+4096*ks}")
        e(f"ds_read_b64_tr_b16 {vr(90+4*ks,2)}, v50 offset:{L_W1S+4096*ks+1024}")
        e(f"ds_read_b128 {vr(144+4*ks,4)}, v{51+(ks&1)} offset:{L_XS+64*(ks>>1)}")
    for ks in range(4):
        e(f"ds_read_b128 {vr(160+4*ks,4)}, v{51+(ks&1)} offset:{L_XS+4352+64*(ks>>1)}")
    for q in range(8):
        e(f"v_lshlrev_b32 v{128+2*q}, 16, v{104+q}")
        e(f"v_and_b32 v{129+2*q}, 0xffff0000, v{104+q}")
    e(f"s_mul_i32 s{S_TAGB}, s78, 1664525")
    e("s_waitcnt lgkmcnt(4)")
    for ks in range(4):
        e(mf16(112, 88 + 4*ks, 144 + 4*ks, vr(128 if ks == 0 else 112, 16)))
    e("s_waitcnt lgkmcnt(0)")
    for ks in range(4):
        e(mf16(128, 88 + 4*ks, 160 + 4*ks, vr(128, 16)))
    e(f"s_add_u32 s{S_TAGB}, s{S_TAGB}, 1013904223")
    e(f"s_add_u32 s{S_TAGA}, s79, 0x01000000")
    e(f"s_and_b32 s{S_TAGA}, s{S_TAGA}, 0xff000000")
    e(f"s_lshl_b32 s6, s{S_B}, 8")
    e(f"s_add_u32 s6, s6, {WS_PT}")
    e(f"s_add_u32 s7, s6, {4*65536}")
    e("s_nop 1")
    for t in range(2):
        b = 112 + 16 * t
        if t == 0:
            for i in range(16): e(f"v_mul_f32 v{b+i}, s80, v{b+i}")
        else:
            for i in range(8): e(f"v_pk_mul_f32 {vr(b+2*i,2)}, {vr(b+2*i,2)}, s[80:81]")
        for i in range(8): e(f"v_cvt_pk_bf16_f32 v{88+8*t+i}, v{b+2*i}, v{b+2*i+1}")
        if t == 1: e("s_mov_b64 exec, s[76:77]")
        for q in range(4): e(f"ds_write_b64 v{53+t}, {vr(88+8*t+2*q,2)} offset:{16*q}")
    e("s_mov_b64 exec, -1")
    e("s_waitcnt lgkmcnt(0)")
    e("s_barrier")
    e(f"ds_read_b128 v[144:147], v58 offset:{L_PS}")
    e(f"ds_read_b128 v[148:151], v58 offset:{L_PS+4*PS}")
    e("v_mov_b32 v55, 1")
    e("s_movk_i32 s5, 0x7fff")
    e("s_add_u32 s5, s5, 1")
    e("s_waitcnt lgkmcnt(1)")
    e(f"buffer_store_dwordx4 v[144:147], v60, {sr(S_WS)}, s6 offen {STF}")
    e("s_bfm_b64 exec, 34, 0")
    e("s_waitcnt lgkmcnt(0)")
    e(f"buffer_store_dwordx4 v[148:151], v60, {sr(S_WS)}, s7 offen {STF}")
    e("s_mov_b64 exec, -1")
    stamp(2)
    e("s_waitcnt vmcnt(8)")
    stamp(3)
    SD = "dst_sel:DWORD dst_unused:UNUSED_PAD src0_sel:DWORD"
    def binA(j):
        e(f"v_lshlrev_b32_sdwa v{112+j}, 2, v{64+j} {SD} src1_sel:BYTE_0")
        e(f"ds_add_rtn_u32 v{120+j}, v{112+j}, v55 offset:{L_CNT1}")
    def binB(j):
        e(f"v_lshlrev_b32_sdwa v{129+2*j}, 2, v{64+j} {SD} src1_sel:BYTE_1")
        if j % 2 == 0: e(f"v_lshlrev_b32 v56, 16, v{80+j//2}")
        else: e(f"v_and_b32 v56, 0xffff0000, v{80+j//2}")
        e(f"v_or3_b32 v{128+2*j}, v56, v{72+j}, s5")
    for j in range(4): binA(j)
    e("s_mov_b64 exec, s[74:75]")
    e("s_cbranch_execz P1_A")
    for j in range(4, 8): binA(j)
    lab("P1_A")
    e("s_mov_b64 exec, -1")
    e("s_waitcnt lgkmcnt(0)")
    e("s_barrier")
    stamp(4)
    e(f"s_cmp_eq_u32 s{S_W}, 7")
    e("s_cbranch_scc1 P1_SCAN")
    e("s_waitcnt vmcnt(4)")
    for j in range(8): binB(j)
    e("s_barrier")
    e("s_branch P1_NOSCAN")
    lab("P1_SCAN")
    e(f"v_lshlrev_b32 v56, 4, v{V_LANE}")
    e(f"ds_read_b128 v[144:147], v56 offset:{L_CNT1}")
    e("s_lshl_b32 s6, s2, 11")
    e(f"s_add_u32 s6, s6, {WS_DESC}")
    e("s_waitcnt lgkmcnt(0)")
    e("v_add_u32 v57, v144, v145")
    e("v_add_u32 v58, v57, v146")
    e("v_add_u32 v59, v58, v147")
    e("v_mov_b32 v60, v59")
    scan64(59)
    e("v_sub_u32 v152, v59, v60")
    e("v_add_u32 v153, v152, v144")
    e("v_add_u32 v154, v152, v57")
    e("v_add_u32 v155, v152, v58")
    e(f"ds_write_b128 v56, v[152:155] offset:{L_BASE1}")
    e("s_waitcnt lgkmcnt(0)")
    e("s_barrier")
    for j in range(4):
        e(f"v_lshl_or_b32 v{160+2*j}, v{144+j}, 12, v{152+j}")
        e(f"v_or_b32 v{160+2*j}, s{S_TAGA}, v{160+2*j}")
        e(f"v_mov_b32 v{161+2*j}, s{S_TAGB}")
    e(f"v_lshlrev_b32 v57, 5, v{V_LANE}")
    e("s_waitcnt vmcnt(4)")
    e(f"buffer_store_dwordx4 v[160:163], v57, {sr(S_WS)}, s6 offen sc1")
    e(f"buffer_store_dwordx4 v[164:167], v57, {sr(S_WS)}, s6 offen offset:16 sc1")
    for j in range(4): binB(j)
    lab("P1_NOSCAN")
    stamp(5)
    for j in range(4): e(f"ds_read_b32 v{112+j}, v{112+j} offset:{L_BASE1}")
    e("s_mov_b64 exec, s[74:75]")
    e("s_cbranch_execz P1_B0")
    for j in range(4, 8): e(f"ds_read_b32 v{112+j}, v{112+j} offset:{L_BASE1}")
    lab("P1_B0")
    e("s_mov_b64 exec, -1")
    e("s_waitcnt lgkmcnt(0)")
    for j in range(8):
        if j == 4:
            e("s_mov_b64 exec, s[74:75]")
            e("s_cbranch_execz P1_B")
        e(f"v_add_lshl_u32 v{112+j}, v{112+j}, v{120+j}, 3")
        e(f"ds_write_b64 v{112+j}, {vr(128+2*j,2)} offset:{L_STG}")
    lab("P1_B")
    e("s_mov_b64 exec, -1")
    e(f"v_lshlrev_b32 v56, 4, v{V_TID}")
    e(f"s_mul_i32 s5, s2, {CHS}")
    e(f"s_add_u32 s5, s5, {WS_ENT}")
    e("s_add_u32 s6, s5, 8192")
    e("s_add_u32 s7, s5, 16384")
    e(f"s_add_u32 s76, s5, {CHS-8192}")
    e("s_waitcnt lgkmcnt(0)")
    e("s_barrier")
    stamp(6)
    for k in range(3): e(f"ds_read_b128 {vr(112+4*k,4)}, v56 offset:{L_STG+8192*k}")
    e(f"s_cmp_eq_u32 s{S_W}, 7")
    e("s_cbranch_scc0 P1_C")
    e(f"ds_read_b128 v[124:127], v56 offset:{L_STG+CHS-8192}")
    e("s_waitcnt lgkmcnt(0)")
    e(f"buffer_store_dwordx4 v[124:127], v56, {sr(S_WS)}, s76 offen {STF}")
    lab("P1_C")
    for k in range(3):
        e(f"s_waitcnt lgkmcnt({2-k})")
        e(f"buffer_store_dwordx4 {vr(112+4*k,4)}, v56, {sr(S_WS)}, s{5+k} offen {STF}")
    e(f"s_cmp_eq_u32 s{S_W}, 4")
    e("s_cbranch_scc0 P0_NOEXT")
    e("v_lshlrev_b32 v56, 16, v47")
    e("v_and_b32 v57, 0xffff0000, v47")
    e("v_mul_f32 v56, s80, v56")
    e("v_mul_f32 v57, s80, v57")
    e("v_cvt_pk_bf16_f32 v58, v56, v57")
    e("v_lshlrev_b32 v59, 16, v58")
    e("v_and_b32 v60, 0xffff0000, v58")
    e("v_sub_f32 v59, v56, v59")
    e("v_sub_f32 v60, v57, v60")
    e("v_cvt_pk_bf16_f32 v59, v59, v60")
    e("v_lshlrev_b32 v48, 16, v48")
    e(f"ds_write_b32 v45, v58 offset:{L_EXT+320}")
    e(f"ds_write_b32 v45, v59 offset:{L_EXT+640}")
    e(f"ds_write_b32 v45, v48 offset:{L_B2}")
    lab("P0_NOEXT")
    lds_init_tables(64)
    e(f"s_add_u32 s{S_P}, s{S_WS}, {WS_PT - PSH}")
    e(f"s_addc_u32 s{S_P+1}, s{S_WS+1}, 0")
    for j in range(8): e(f"s_movk_i32 s{S_SOFF+j}, {PSH - 1024*(j&3) + 128*(j>>2)}")
    e(f"s_movk_i32 s{S_256}, 256")
    e(f"s_mul_i32 s{S_M0[0]}, s{S_W}, {TBW}")
    e(f"s_add_u32 s{S_M0[0]}, s{S_M0[0]}, {L_TB}")
    e(f"s_add_u32 s{S_M0[1]}, s{S_M0[0]}, 4096")
    e(f"s_mov_b32 s{S_WN}, 32")
    e(f"s_mov_b32 s{S_RB}, 0")
    e(f"s_mov_b32 s{S_SAFE}, 0")
    e("v_lshlrev_b32 v50, 1, v39")
    e("v_lshl_add_u32 v50, v38, 9, v50")
    e(f"v_add_u32 v{V_CA}, s{S_M0[0]}, v50")
    e(f"v_and_b32 v50, 7, v{V_LANE}")
    e("v_lshlrev_b32 v50, 4, v50")
    e(f"v_add_u32 v{V_DMAC}, 0x800000, v50")
    e(f"v_lshrrev_b32 v50, 3, v{V_LANE}")
    e(f"v_lshlrev_b32 v50, 4, v50")
    e(f"v_add_u32 v{V_LIO}, {L_LIST}, v50")
    e("v_lshl_add_u32 v50, v40, 2, v42")
    e("v_lshl_add_u32 v50, v50, 1, v43")
    e("v_lshlrev_b32 v50, 2, v50")
    e(f"v_add_u32 v{V_LMO}, {L_LIST}, v50")
    e(f"v_lshlrev_b32 v50, 2, v44")
    e(f"v_add_u32 v{V_GQO}, {L_GQ}, v50")
    e(f"v_mul_u32_u24 v50, {SELS//2}, v38")
    e("v_lshl_add_u32 v50, v39, 2, v50")
    e(f"v_add_u32 v{V_SELO}, {L_SEL}, v50")
    e("v_cmp_eq_u32 vcc, 0, v38")
    e("v_mov_b32 v51, 0x03020100")
    e("v_mov_b32 v50, 0x0c080c0c")
    e(f"v_cndmask_b32 v{V_PSEL}, v51, v50, vcc")
    e(f"v_cndmask_b32 v{V_QMUL}, 0, 1, vcc")
    e("v_add_u32 v50, 1, v44")
    e("v_lshrrev_b32 v50, 1, v50")
    e("v_and_b32 v51, 1, v44")
    e("v_mul_u32_u24 v50, v50, v51")
    e("v_mul_u32_u24 v50, 320, v50")
    e(f"v_add_u32 v50, {L_EXT}, v50")
    e("v_cndmask_b32 v50, v50, 0, vcc")
    e(f"v_add_u32 v{V_QC}, v49, v50")
    e(f"v_mov_b32 v50, {hex(find_cx(0x00803F80))}")
    e(f"v_mov_b32 v51, {hex(find_cx(0x3F800000))}")
    e("v_cmp_eq_u32 s[6:7], 1, v41")
    e("v_cmp_gt_u32 s[76:77], 2, v40")
    e("s_nop 0")
    e("v_cndmask_b32 v50, v50, v51, s[6:7]")
    e("v_cndmask_b32 v51, 0, v50, s[76:77]")
    e("v_cndmask_b32 v50, v50, 0, s[76:77]")
    e(f"v_cndmask_b32 v{CX}, 1.0, v51, vcc")
    e(f"v_cndmask_b32 v{CX+1}, 1.0, v50, vcc")
    for i in range(32): e(f"v_pk_mul_f32 {vr(H+2*i,2)}, v[68:69], v[68:69]")
    e(f"v_mov_b32 v56, s{S_TAGA}")
    e(f"v_mov_b32 v57, s{S_TAGB}")
    e(f"v_lshlrev_b32 v58, 11, v{V_LANE}")
    e("s_lshl_b32 s5, s2, 3")
    e(f"s_add_u32 s5, s5, {WS_FLAG}")
    stamp(16)
    e("s_waitcnt vmcnt(0) lgkmcnt(0)")
    e("s_barrier")
    stamp(7)
    e(f"s_cmp_eq_u32 s{S_W}, 0")
    e("s_cbranch_scc0 POLL0")
    e("s_mov_b64 exec, 0xff")
    e(f"buffer_store_dwordx2 v[56:57], v58, {sr(S_WS)}, s5 offen sc1")
    e("s_mov_b64 exec, -1")

    lab("POLL0")
    e(f"v_lshrrev_b32 v32, 4, v{V_LANE}")
    e(f"v_and_b32 v33, 7, v{V_LANE}")
    e("v_lshl_add_u32 v32, v32, 3, v33")
    e(f"s_lshl_b32 s5, s{S_W}, 5")
    e("v_add_u32 v32, s5, v32")
    e(f"v_lshlrev_b32 v33, {3 if TRANS else 11}, v32")
    e(f"s_lshl_b32 s5, s{S_B}, {11 if TRANS else 3}")
    e(f"s_add_u32 s5, s5, {WS_DESC}")
    e(f"buffer_load_dwordx2 v[34:35], v33, {sr(S_WS)}, s5 offen sc1")
    e(f"v_mul_u32_u24 v32, {CHS}, v32")
    e(f"v_and_b32 v36, 15, v{V_LANE}")
    e("v_add_u32 v37, 16, v36")
    e("v_bfrev_b32 v40, -2")
    e(f"v_cmp_gt_u32 vcc, s{S_WN}, v36")
    e(f"v_add_u32 v38, s{S_RB}, v36")
    e(f"v_add_u32 v39, s{S_RB}, v37")
    e("v_lshlrev_b32 v41, 3, v38")
    e("v_cndmask_b32 v38, v40, v38, vcc")
    e(f"v_cmp_gt_u32 vcc, s{S_WN}, v37")
    e("s_mov_b32 s6, 0x40000")
    e(f"s_mov_b32 s7, {WS_ENT}")
    e("v_cndmask_b32 v39, v40, v39, vcc")
    lab("POLL")
    e("s_waitcnt vmcnt(0)")
    e(f"v_xor_b32 v34, s{S_TAGA}, v34")
    e(f"v_cmp_ne_u32 s[76:77], s{S_TAGB}, v35")
    e("v_cmp_le_u32 vcc, 0x1000000, v34")
    e("s_or_b64 vcc, vcc, s[76:77]")
    e("s_cbranch_scc0 POLLED")
    e("s_sub_u32 s6, s6, 1")
    e("s_cbranch_scc1 K_END")
    e(f"s_sleep {SLP}")
    e(f"buffer_load_dwordx2 v[34:35], v33, {sr(S_WS)}, s5 offen sc1")
    e("s_branch POLL")
    lab("POLLED")
    stamp(8)
    e("v_and_b32 v35, 0xfff, v34")
    e("v_lshrrev_b32 v34, 12, v34")
    e("v_lshl_add_u32 v35, v35, 3, v32")
    e(f"s_add_u32 s5, s{S_RB}, s{S_WN}")
    e("v_cmp_lt_u32 s[74:75], s5, v34")
    DP = "row_mask:0xf bank_mask:0xf"
    for i in range(8):
        e(f"v_mov_b32_dpp v42, v34 row_newbcast:{i} {DP}")
        e(f"v_add_u32_dpp v{44+i}, v35, v41 row_newbcast:{i} {DP}")
        e(f"v_cmp_lt_u32 {sr(S_MASK+2*i,2)}, v38, v42")
        e(f"v_cmp_lt_u32 {sr(S_MASK+16+2*i,2)}, v39, v42")
    e("v_lshrrev_b32 v33, 8, v33")
    e("s_and_b32 s5, s2, 7")
    e("s_lshl_b32 s5, s5, 11")
    e(f"s_add_u32 s5, s5, {WS_FLAG}")
    lab("FPOLL")
    e(f"buffer_load_dwordx2 v[34:35], v33, {sr(S_WS)}, s5 offen sc1")
    e("s_waitcnt vmcnt(0)")
    e(f"v_cmp_ne_u32 s[76:77], s{S_TAGB}, v35")
    e(f"v_cmp_ne_u32 vcc, s{S_TAGA}, v34")
    e("s_or_b64 vcc, vcc, s[76:77]")
    e("s_cbranch_scc0 FPOLLED")
    e("s_sub_u32 s6, s6, 1")
    e("s_cbranch_scc1 K_END")
    e(f"s_sleep {SLP}")
    e("s_branch FPOLL")
    lab("FPOLLED")
    stamp(17)
    for k in range(16):
        e(f"s_or_b64 exec, {sr(S_MASK+2*k,2)}, 1")
        e(f"buffer_load_dwordx2 {vr(112+2*k,2)}, v{44+(k&7)}, {sr(S_WS)}, s7 offen offset:{128*(k>>3)} {ELF}")
    e("s_mov_b64 exec, -1")
    e("v_mov_b32 v55, 1")
    e(f"v_lshlrev_b32 v54, 2, v{V_LANE}")
    e("v_mov_b32 v53, 0")
    e("s_mov_b64 exec, s[74:75]")
    e(f"ds_write_b32 v53, v55 offset:{L_FLAG}")
    for k in range(16):
        e(f"s_mov_b64 exec, {sr(S_MASK+2*k,2)}")
        if k >= 8: e(f"s_cbranch_execz R_A{k}")
        e(f"s_waitcnt vmcnt({15-k})")
        e(f"ds_add_rtn_u32 v{144+k}, v{113+2*k}, v55 offset:{L_CNT2}")
        if k >= 8: lab(f"R_A{k}")
    e("s_mov_b64 exec, -1")
    e("s_waitcnt vmcnt(0) lgkmcnt(0)")
    e("s_barrier")
    stamp(9)
    e(f"ds_read_b32 v32, v54 offset:{L_CNT2}")
    e(f"ds_read_b32 v33, v53 offset:{L_FLAG}")
    e(f"ds_read_b32 v34, v54 offset:{L_DEG}")
    if PREF:
        e("s_lshr_b32 s6, s2, 3")
        e(f"s_mul_i32 s6, s6, {782*128}")
        e(f"s_add_u32 s6, s6, {PSH}")
        e(f"v_min_u32 v56, 390, v{V_TID}")
        e("v_lshlrev_b32 v56, 8, v56")
        e(f"buffer_load_dword v57, v56, {sr(S_P)}, s6 offen")
        e(f"buffer_load_dword v58, v56, {sr(S_P)}, s6 offen offset:128")
    e("s_waitcnt lgkmcnt(2)")
    e("v_add_u32 v35, 7, v32")
    e("v_and_b32 v35, -8, v35")
    e("v_mov_b32 v36, v35")
    scan64(36)
    e(f"v_cmp_le_u32 vcc, {SPLIT}, v{V_LANE}")
    e(f"v_readlane_b32 s6, v36, {SPLIT-1}")
    e("v_readlane_b32 s7, v36, 63")
    e("s_waitcnt lgkmcnt(0)")
    e(f"v_readfirstlane_b32 s{S_MORE}, v33")
    e("v_sub_u32 v36, v36, v35")
    e("s_add_u32 s5, s6, 31")
    e(f"s_lshr_b32 s{S_TA}, s5, 5")
    e("s_and_b32 s5, s5, -32")
    e("s_sub_u32 s5, s5, s6")
    e("s_add_u32 s7, s7, s5")
    e("s_add_u32 s7, s7, 31")
    e(f"s_lshr_b32 s{S_TT}, s7, 5")
    e(f"s_cmp_gt_u32 s{S_TT}, {MAXT}")
    e("s_cbranch_scc0 R_FITS")
    e(f"s_mov_b32 s{S_WN}, 12")
    e("s_branch NEXT_ROUND")
    lab("R_FITS")
    e("v_add_u32 v37, s5, v36")
    e("v_cndmask_b32 v36, v36, v37, vcc")
    e(f"v_add_u32 v38, {L_LIST//4}, v36")
    for k in range(8): e(f"ds_bpermute_b32 v{113+2*k}, v{113+2*k}, v38")
    for k in range(8, 16):
        e(f"s_cmp_eq_u64 {sr(S_MASK+2*k,2)}, 0")
        e(f"s_cbranch_scc1 R_B{k}")
        e(f"ds_bpermute_b32 v{113+2*k}, v{113+2*k}, v38")
        lab(f"R_B{k}")
    e("v_add_u32 v34, v34, v32")
    e("v_lshrrev_b32 v35, 3, v35")
    e("v_lshrrev_b32 v36, 3, v36")
    e(f"v_mul_u32_u24 v39, {QS}, v{V_LANE}")
    e(f"v_add_u32 v39, {L_QT}, v39")
    e(f"v_add_u32 v40, {L_SEL}, v54")
    e(f"v_add_u32 v41, {L_SEL-4*SPLIT}, v54")
    e("v_cndmask_b32 v40, v40, v41, vcc")
    e("v_mov_b32 v41, 0x3f80")
    e(f"s_cmp_eq_u32 s{S_W}, 0")
    e("s_cbranch_scc0 R_ND")
    e(f"ds_write_b32 v54, v34 offset:{L_DEG}")
    e("s_cmp_eq_u32 s2, 0")
    e("s_cbranch_scc0 R_ND")
    e(f"v_mov_b32 v42, s{S_TAGB}")
    e(f"v_mov_b32 v43, s{S_TAGA}")
    e("s_mov_b64 exec, 1")
    e(f"buffer_store_dwordx2 v[42:43], v53, {sr(S_WS)}, 0 offen offset:{WS_EPOCH}")
    e("s_mov_b64 exec, -1")
    lab("R_ND")
    e("s_waitcnt lgkmcnt(0)")
    for k in range(16):
        e(f"s_mov_b64 exec, {sr(S_MASK+2*k,2)}")
        if k >= 8: e(f"s_cbranch_execz R_C{k}")
        e(f"v_add_lshl_u32 v{113+2*k}, v{113+2*k}, v{144+k}, 2")
        e(f"ds_write_b32 v{113+2*k}, v{112+2*k}")
        if k >= 8: lab(f"R_C{k}")
    e("s_mov_b64 exec, -1")
    e(f"s_mov_b32 s6, s{S_W}")
    lab("R_GT")
    e("v_cmp_lt_u32 vcc, s6, v35")
    e("s_and_b64 exec, exec, vcc")
    e("s_cbranch_execz R_GTE")
    e("v_add_u32 v44, s6, v36")
    e("v_lshlrev_b32 v45, 2, v44")
    e(f"v_add_u32 v45, {L_GQ}, v45")
    e("ds_write_b32 v45, v39")
    e("v_lshrrev_b32 v46, 1, v44")
    e(f"v_mul_u32_u24 v46, {SELS//2}, v46")
    e("v_and_b32 v44, 1, v44")
    e("v_lshl_add_u32 v46, v44, 1, v46")
    e("v_add_u32 v46, v46, v40")
    e("ds_write_b16 v46, v41")
    e("s_add_u32 s6, s6, 8")
    e("s_branch R_GT")
    lab("R_GTE")
    e("s_mov_b64 exec, -1")
    e(f"s_cmp_ge_u32 s{S_W}, 4")
    e(f"s_cselect_b32 s6, s{S_TA}, 0")
    e(f"s_cselect_b32 s7, s{S_TT}, s{S_TA}")
    e(f"s_sub_u32 s5, s{S_W}, s6")
    e("s_and_b32 s5, s5, 3")
    e(f"s_add_u32 s{S_T0}, s6, s5")
    e(f"s_sub_u32 s7, s7, s{S_T0}")
    e("s_add_u32 s7, s7, 3")
    e(f"s_ashr_i32 s{S_NT}, s7, 2")
    e(f"s_or_b32 s6, s{S_MORE}, s{S_RB}")
    e(f"s_or_b32 s{S_SAFE}, s{S_SAFE}, s6")
    e("s_waitcnt lgkmcnt(0)")
    e("s_barrier")
    lab("WAVE_START")
    stamp(10)
    e(f"v_mov_b32 v{V_DMAX}, 0")
    e(f"s_cmp_lt_i32 s{S_NT}, 1")
    e("s_cbranch_scc1 WAVE_DONE")
    e(f"s_lshl_b32 s6, s{S_T0}, 7")
    e(f"v_add_u32 v{V_LI}, s6, v{V_LIO}")
    e(f"ds_read_b128 {vr(IDX,4)}, v{V_LI}")
    e(f"ds_read_b128 {vr(IDR,4)}, v{V_LI} offset:512")
    e(f"v_add_u32 v{V_LM}, s6, v{V_LMO}")
    e(f"s_lshl_b32 s6, s{S_T0}, 4")
    e(f"v_add_u32 v{V_GQA}, s6, v{V_GQO}")
    e(f"ds_read_b32 v{V_M}, v{V_LM}")
    e(f"ds_read_b32 v{V_GQ}, v{V_GQA}")
    e(f"s_mul_i32 s6, s{S_T0}, {SELS}")
    e(f"v_add_u32 v{V_SELA}, s6, v{V_SELO}")
    e(f"s_sub_u32 s{S_REM}, s{S_NT}, 1")
    e(f"s_mov_b32 m0, s{S_M0[0]}")
    e("s_waitcnt lgkmcnt(3)")
    for s in mads(IDX): e(s)
    for s in dma(0): e(s)
    e(f"s_mov_b32 m0, s{S_M0[1]}")
    e("s_waitcnt lgkmcnt(0)")
    for s in dma(1): e(s)
    for s in mads(): e(s)
    e(QAB); e(PERM)
    for i in range(20): e(f"v_mov_b32 v{SL+i}, 0")
    for i in range(32): e(f"v_mov_b32 v{C[0]+i}, 0")
    for i in range(2):
        e(f"v_mov_b32 v{NN+i}, 0")
        e(f"v_mov_b32 v{DD+i}, 1.0")
    e(AXB)
    for s in memphase(0, 0): e(s)
    e(mfext(0))
    e("s_nop 7")
    e("s_nop 1")
    stamp(11); stamp(28, True)
    e(f"s_cmp_lg_u32 s{S_SAFE}, 0")
    e("s_cbranch_scc1 ENTERS")
    e("s_branch ENTERF")
    mainloop(False)
    mainloop(True)
    lab("DRAIN")
    e("s_waitcnt lgkmcnt(0)")
    for ct in range(4): e(mfsel(ct))
    lab("WAVE_DONE")
    stamp(12); stamp(29, True)
    e(f"s_cmp_eq_u32 s{S_MORE}, 0")
    e("s_cbranch_scc1 EPI")
    e(f"s_add_u32 s{S_RB}, s{S_RB}, s{S_WN}")
    lab("NEXT_ROUND")
    e("s_waitcnt vmcnt(0) lgkmcnt(0)")
    e("s_barrier")
    lds_init_tables(32)
    e(f"v_cmp_gt_u32 vcc, 80, v{V_TID}")
    e("s_and_saveexec_b64 s[6:7], vcc")
    e(f"ds_write_b32 v40, v36 offset:{L_CNT2}")
    e("s_mov_b64 exec, s[6:7]")
    e("s_waitcnt lgkmcnt(0)")
    e("s_barrier")
    e("s_branch POLL0")

    lab("EPI")
    e(f"v_bfe_u32 v32, v{V_LANE}, 2, 2")
    e(f"v_lshrrev_b32 v33, 5, v{V_LANE}")
    e("v_lshl_add_u32 v34, v33, 2, v32")
    e("v_lshlrev_b32 v34, 7, v34")
    e("v_lshrrev_b32 v32, 1, v32")
    e("v_lshl_add_u32 v34, v32, 6, v34")
    e(f"v_and_b32 v35, 63, v{V_QC}")
    e("v_add_u32 v34, v34, v35")
    e(f"v_add_u32 v34, {L_W2}, v34")
    e("v_xor_b32 v35, 64, v34")
    for ks in range(8):
        for mt in range(2):
            for t in range(2):
                e(f"ds_read_b64_tr_b16 {vr(112+8*ks+4*mt+2*t,2)}, v{34+mt} offset:{2048*ks+1024*t}")
    for i in range(32): e(f"v_cvt_pk_bf16_f32 v{64+i}, v{H+2*i}, v{H+2*i+1}")
    e("s_waitcnt lgkmcnt(0)")
    for ks in range(8):
        for mt in range(2):
            e(mf16(H + 16*mt, 112 + 8*ks + 4*mt, 64 + 4*ks, "0" if ks == 0 else vr(H + 16*mt, 16)))
    e(f"v_and_b32 v32, 31, v{V_LANE}")
    e("v_mul_u32_u24 v32, 272, v32")
    e("v_lshl_add_u32 v32, v33, 4, v32")
    e(f"v_add_u32 v32, s{S_M0[0]}, v32")
    e(f"s_mov_b32 s6, {hex(f2u(2.0**120))}")
    e(f"v_cmp_nge_f32 s[76:77], s6, v{V_DMAX}")
    e(f"v_lshrrev_b32 v36, 3, v{V_TID}")
    e(f"v_and_b32 v37, 7, v{V_TID}")
    e(f"v_cmp_le_u32 vcc, {SPLIT}, v36")
    e("v_mul_u32_u24 v38, 272, v36")
    e("v_lshl_add_u32 v38, v37, 5, v38")
    e(f"v_add_u32 v39, {4*TBW - SPLIT*272}, v38")
    e("v_cndmask_b32 v38, v38, v39, vcc")
    e("v_lshlrev_b32 v39, 2, v36")
    e("v_lshlrev_b32 v40, 5, v37")
    e("v_lshlrev_b32 v41, 15, v36")
    e("v_lshl_add_u32 v41, v37, 4, v41")
    e(f"s_lshl_b32 s5, s{S_B}, 7")
    e("v_add_u32 v41, s5, v41")
    e("s_movk_i32 s7, 0x207")
    e(f"v_cmp_class_f32 vcc, v{H+16}, s7")
    e("s_or_b64 s[76:77], s[76:77], vcc")
    e("s_cbranch_scc0 EPI_OK")
    e(f"s_cmp_lg_u32 s{S_SAFE}, 0")
    e("s_cbranch_scc1 EPI_OK")
    e(f"s_mov_b32 s{S_SAFE}, 1")
    for i in range(64): e(f"v_mov_b32 v{H+i}, 0")
    e("s_waitcnt vmcnt(0)")
    e("s_branch WAVE_START")
    lab("EPI_OK")
    e("s_waitcnt vmcnt(0)")
    for mt in range(2):
        for q in range(4):
            e(f"ds_write_b128 v32, {vr(H+16*mt+4*q,4)} offset:{128*mt+32*q}")
    e(f"v_cmp_gt_u32 vcc, {NPB}, v36")
    e("s_waitcnt lgkmcnt(0)")
    e("s_barrier")
    stamp(13)
    e("s_and_b64 exec, exec, vcc")
    e("s_cbranch_execz K_FIN")
    for s in range(4):
        e(f"ds_read_b128 {vr(64+8*s,4)}, v38 offset:{L_TB+s*TBW}")
        e(f"ds_read_b128 {vr(68+8*s,4)}, v38 offset:{L_TB+s*TBW+16}")
    e(f"ds_read_b32 v42, v39 offset:{L_DEG}")
    e(f"ds_read_b128 v[96:99], v40 offset:{L_B2}")
    e(f"ds_read_b128 v[100:103], v40 offset:{L_B2+16}")
    e(f"s_mov_b32 s6, {hex(f2u(-LN2))}")
    e("s_waitcnt lgkmcnt(7)")
    for i in range(4): e(f"v_pk_add_f32 {vr(64+2*i,2)}, {vr(64+2*i,2)}, {vr(72+2*i,2)}")
    e("s_waitcnt lgkmcnt(3)")
    for i in range(4): e(f"v_pk_add_f32 {vr(80+2*i,2)}, {vr(80+2*i,2)}, {vr(88+2*i,2)}")
    for i in range(4): e(f"v_pk_add_f32 {vr(64+2*i,2)}, {vr(64+2*i,2)}, {vr(80+2*i,2)}")
    e("s_waitcnt lgkmcnt(0)")
    e("v_cvt_f32_u32 v42, v42")
    for i in range(4): e(f"v_pk_mul_f32 {vr(96+2*i,2)}, {vr(96+2*i,2)}, v[42:43] op_sel_hi:[1,0]")
    for i in range(8): e(f"v_fma_f32 v{64+i}, v{64+i}, s6, v{96+i}")
    for i in range(4): e(f"v_cvt_pk_bf16_f32 v{72+i}, v{64+2*i}, v{65+2*i}")
    e(f"buffer_store_dwordx4 v[72:75], v41, {sr(S_OUT)}, 0 offen")
    lab("K_FIN")
    if SPIN >= 0:
        lab("SPINL")
        e("s_memrealtime s[98:99]")
        e("s_waitcnt lgkmcnt(0)")
        e("s_sub_u32 s98, s98, s96")
        e("s_cmp_lt_u32 s98, 6000")
        e("s_cbranch_scc1 SPINL")
    if DIAG:
        e("s_mov_b64 exec, -1")
        e("s_waitcnt vmcnt(0)")
        stamp(14); stamp(31, True)
        e(f"v_writelane_b32 v255, s{S_NT}, 27")
        e("s_lshl_b32 s5, s2, 11")
        e(f"s_add_u32 s5, s5, {WS_STAMP}")
        e(f"v_lshlrev_b32 v1, 2, v{V_TID}")
        e(f"buffer_store_dword v255, v1, {sr(S_WS)}, s5 offen")
    lab("K_END")
    e("s_endpgm")

hdr = open("standalone__edge_featured_mpnn_mpnn__graph.s.ref").read().split("; Override")[0]
out.append(hdr.rstrip())
out.append(f"; @launch grid=(256,1,1) block=(512,1,1) lds={L_END}")
out.append('.amdgcn_target "amdgcn-amd-amdhsa--gfx950"')
out.append(".text")
out.append(f".globl {KN}")
out.append(".p2align 8")
out.append(f".type {KN},@function")
kernel()
out.append(f""".section .rodata,"a"
.p2align 6
.amdhsa_kernel {KN}
  .amdhsa_next_free_vgpr 256
  .amdhsa_next_free_sgpr 102
  .amdhsa_accum_offset 256
  .amdhsa_group_segment_fixed_size 0
  .amdhsa_kernarg_size 88
  .amdhsa_user_sgpr_count 2
  .amdhsa_user_sgpr_kernarg_segment_ptr 1
  .amdhsa_system_sgpr_workgroup_id_x 1
.end_amdhsa_kernel""")
dst = sys.argv[1] if len(sys.argv) > 1 else "standalone__edge_featured_mpnn_mpnn__graph.s"
open(dst, "w").write("\n".join(out) + "\n")
print("written", dst, "LDS", L_END)
```

```python
import struct, sys, os
import numpy as np
from align import align, isize

N, E = 12500, 800000
NPB, SPLIT = 49, 25
CH, CHS, GCS, DS = 3128, 25088, 25216, 2176
NQ, NQL = CH // 4, (E - 255 * CH) // 4
LOG2E = 1.4426950408889634
LN2 = 0.6931471805599453
KN = "standalone__edge_featured_mpnn_mpnn__graph_kernel"
DIAG = int(os.environ.get("DIAG", "0"))
PREF = int(os.environ.get("PREF", "0"))
X_NOP = int(os.environ.get("X_NOP", "0"))
STF = os.environ.get("STF", "sc1")
LDF = os.environ.get("LDF", "")
TRANS = int(os.environ.get("TRANS", "0"))
ELF = os.environ.get("ELF", "")
SLP = int(os.environ.get("SLP", "1"))
ORD = int(os.environ.get("ORD", "0"))
PFL = 0
TOUCH = int(os.environ.get("TOUCH", "0"))

def f2u(x): return struct.unpack("<I", struct.pack("<f", x))[0]
def u2f(u): return struct.unpack("<f", struct.pack("<I", u))[0]

WS_EPOCH = 0
WS_PT = 4096
WS_DESC = WS_PT + 12544 * 256
WS_FLAG = WS_DESC + 256 * DS
WS_PFLAG = WS_FLAG + 8 * DS
WS_ENT = WS_PFLAG + 8 * DS
WS_SIZE = WS_ENT + 256 * GCS
WS_STAMP = 12 << 20
if DIAG: WS_SIZE = 16 << 20

L_CNT1, L_BASE1 = 0, 1024
L_CNT2, L_FLAG, L_DEG, L_B2 = 2048, 2304, 2368, 2816
L_EXT = 3072
L_TB = 4096
TBW = 8704
L_STG, L_PS, L_W1S, L_XS = L_TB, L_TB, L_TB + CHS, L_TB + CHS + 32768
PS = 272
assert L_XS + 8704 <= L_TB + 8 * TBW and L_W1S % 256 == 0
HT, GTH = 60, 72
L_SEL = L_TB + 8 * TBW
SELS, SELSZ = 200, 24576
assert 2 * HT * SELS + 56 <= SELSZ
L_GT = L_SEL + SELSZ
L_QT = L_GT + 2 * GTH * 16
QS = 328
L_W2 = (L_QT + NPB * QS + 255) // 256 * 256
L_LIST = L_W2 + 16384
LS, LCAP = 528, 128
LISTSZ = (NPB + 1) * LS
L_END = L_LIST + LISTSZ
assert L_END <= 163840, L_END
PADENT = 0x00007000
PSH = 3072
WSLOW = 6

out = []
def e(s): out.append("    " + s)
def lab(s): out.append(s + ":")
def c(s): out.append("    ; " + s)
def vr(a, n): return f"v[{a}:{a+n-1}]"
def sr(a, n=4): return f"s[{a}:{a+n-1}]"

SPIN = int(os.environ.get("SPIN", "-1"))
def stamp(i, real=False):
    if SPIN == i:
        e("s_waitcnt lgkmcnt(0)")
        e("s_memrealtime s[96:97]")
        e("s_waitcnt lgkmcnt(0)")
    if not DIAG: return
    if DIAG == 2 and i not in (0, 30, 28, 29, 31, 11, 12, 14): return
    e("s_waitcnt lgkmcnt(0)")
    e(f"{'s_memrealtime' if real else 's_memtime'} s[98:99]")
    e("s_waitcnt lgkmcnt(0)")
    e(f"v_writelane_b32 v255, s98, {i}")

def scan64(v):
    for sh in (1, 2, 4, 8):
        e("s_nop 1")
        e(f"v_add_u32_dpp v{v}, v{v}, v{v} row_shr:{sh} row_mask:0xf bank_mask:0xf bound_ctrl:1")
    e("s_nop 1")
    e(f"v_add_u32_dpp v{v}, v{v}, v{v} row_bcast:15 row_mask:0xa bank_mask:0xf")
    e("s_nop 1")
    e(f"v_add_u32_dpp v{v}, v{v}, v{v} row_bcast:31 row_mask:0xc bank_mask:0xf")

H = 176
C = (144, 160)
D = (112, 128)
T = 96
P = 80
SL = 76
BX = (72, 74)
IDX, IDR = 64, 68
NN, DD, RR, AX, CX, V_M = 16, 18, 20, 22, 24, 26
V_CA, V_DMAC, V_LI, V_LM, V_GQA, V_SELA, V_PSEL, V_QMUL, V_QC, V_GQ, V_QA, V_DMAX, V_TID, V_LANE, V_GIA = range(1, 16)
V_GMA, V_LIO, V_LMO = 28, 29, 30
V_SAVE = 240
V_CHK, V_J0, V_W2A = 244, 245, 246
S_X, S_E, S_SRC, S_DST, S_W1, S_B1, S_W2, S_B2, S_OUT, S_WS, S_P = 8, 12, 16, 20, 24, 28, 32, 36, 40, 44, 48
S_MASK = 8
S_SOFF = 52
S_256, S_REM, S_M0, S_WN, S_RB, S_MORE, S_SAFE, S_NT, S_EARLY, S_TAGA, S_TAGB, S_SPIN = 60, 61, (62, 63), 64, 65, 66, 67, 68, 69, 72, 73, 70
S_B, S_W = 3, 4

def mf16(d, a, b, cc): return f"v_mfma_f32_32x32x16_bf16 {vr(d,16)}, {vr(a,4)}, {vr(b,4)}, {cc}"
def mfext(ct): return f"v_mfma_f32_32x32x8_bf16 {vr(D[ct&1],16)}, {vr(AX,2)}, {vr(BX[ct&1],2)}, {vr(C[ct&1],16)}"
def mfsel(ct): return mf16(H + 16 * ct, P + 4 * ct, SL, vr(H + 16 * ct, 16))
def dma(half):
    return [f"buffer_load_dwordx4 v{IDX+j}, {sr(S_P)}, s{S_SOFF+4*half+j} offen offset:{1024*j} lds" for j in range(4)]
def mads(src=IDR): return [f"v_mad_i32_i16 v{IDX+j}, v{src+j}, s{S_256}, v{V_DMAC}" for j in range(4)]
def c_reads(half):
    L = []
    for ctl in range(2):
        for r in range(16):
            mm = r >> 1
            L.append(f"ds_read_u16_d16_hi v{C[ctl]+r}, v{V_CA} offset:{half*4096 + (mm&3)*1024 + (2*(r&1) + (mm>>2))*128 + ctl*64}")
    return L
def tr_read(ct): return f"ds_read_b64_tr_b16 {vr(BX[ct&1],2)}, v{V_QA} offset:{64*ct}"
AXB = f"v_pk_mul_f32 {vr(AX,2)}, {vr(CX,2)}, {vr(V_M,2)} op_sel_hi:[1,0]"
QAB = f"v_mad_u32_u24 v{V_QA}, v{V_GQ}, v{V_QMUL}, v{V_QC}"
PERM = f"v_perm_b32 v{V_M}, v{V_M}, v{V_M}, v{V_PSEL}"

def block(tau, ct, safe, gate=False, last=False):
    cur = D[ct & 1]
    pc, pt = (ct - 1) & 3, (tau if ct > 0 else (tau - 1) & 3)
    tr = [f"v_exp_f32 v{T+i}, v{cur+i}" for i in range(16)] + [f"v_rcp_f32 v{RR}, v{DD}", f"v_rcp_f32 v{RR+1}, v{DD+1}"]
    mf = [] if last else [mfext((ct + 1) & 3)]
    if tau == 0: mf.append(mfsel(ct))
    fill = []
    if ct == 0: fill += [f"v_add_u32 v{V_LI}, v{V_LI}, v{V_LIO}", f"v_add_u32 v{V_LM}, v{V_LM}, v{V_LMO}"]
    if ct == 1: fill += mads() + [PERM]
    if ct == 2:
        fill += [QAB]
        if tau == 3:
            fill += [f"v_add_u32 v{V_GIA}, 256, v{V_GIA}", f"v_add_u32 v{V_GMA}, 256, v{V_GMA}",
                     f"v_add_u32 v{V_GQA}, 256, v{V_GQA}", f"v_add_u32 v{V_SELA}, {16*SELS}, v{V_SELA}"]
    fill.append(f"v_max3_f32 v{V_DMAX}, v{DD}, v{DD+1}, v{V_DMAX}")
    L = []
    k = 0
    if gate:
        L += [tr[0], "s_setprio 3"]; k = 1
    for m in mf:
        L.append(m); L += tr[k:k+4]; k += 4
    L += tr[k:] + fill
    L.append(f"v_pk_mul_f32 {vr(RR,2)}, {vr(NN,2)}, {vr(RR,2)}")
    cvt = f"v_cvt_pk_bf16_f32 v{P+4*pc+pt}, v{RR}, v{RR+1}"
    if not safe:
        L += [f"v_pk_add_f32 {vr(DD,2)}, {vr(T,2)}, 1.0 op_sel_hi:[1,0]", cvt]
        if ct == 2: L.append(AXB)
        for j in range(1, 8):
            n_in = vr(cur, 2) if j == 1 else vr(NN, 2)
            L += [f"v_pk_fma_f32 {vr(NN,2)}, {n_in}, {vr(T+2*j,2)}, {n_in}",
                  f"v_pk_fma_f32 {vr(NN,2)}, {vr(cur+2*j,2)}, {vr(DD,2)}, {vr(NN,2)}",
                  f"v_pk_fma_f32 {vr(DD,2)}, {vr(DD,2)}, {vr(T+2*j,2)}, {vr(DD,2)}"]
    else:
        L += [f"v_pk_add_f32 {vr(T+2*j,2)}, {vr(T+2*j,2)}, 1.0 op_sel_hi:[1,0]" for j in range(8)] + [cvt]
        if ct == 2: L.append(AXB)
        L += [f"v_rcp_f32 v{T+i}, v{T+i}" for i in range(16)]
        L.append(f"v_pk_mul_f32 {vr(NN,2)}, {vr(cur,2)}, {vr(T,2)}")
        L += [f"v_pk_fma_f32 {vr(NN,2)}, {vr(cur+2*j,2)}, {vr(T+2*j,2)}, {vr(NN,2)}" for j in range(1, 8)]
    return L

def memphase(tau, half):
    L = ["s_setprio 0", "s_waitcnt vmcnt(4)"]
    L += c_reads(half) + [tr_read(2 * half), tr_read(2 * half + 1)]
    if half == 0:
        L += [f"ds_read_u16 v{V_LI}, v{V_GIA} offset:{(tau+2)*64}",
              f"ds_read_u16 v{V_LM}, v{V_GMA} offset:{(tau+1)*64}"]
    if half == 1:
        L += [f"ds_read_b128 {vr(IDR,4)}, v{V_LI}",
              f"ds_read_b32 v{V_M}, v{V_LM}",
              f"ds_read_u16 v{V_GQ}, v{V_GQA} offset:{(tau+1)*64+2}"]
        if tau == 1: L.append(f"ds_read_b32 v{SL}, v{V_SELA}")
        if tau >= 1: L.append(f"ds_read_b32 v{SL+tau}, v{V_SELA} offset:{tau*4*SELS}")
    L += [f"s_mov_b32 m0, s{S_M0[half]}", "s_waitcnt lgkmcnt(0)"]
    L += dma(half)
    return L

def w2f(ks, mt): return (32 if ks < 4 else 144) + 8 * (ks & 3) + 4 * mt
def w2_reads():
    return [f"ds_read_b64_tr_b16 {vr(w2f(ks,mt)+2*t,2)}, v{27 if mt else V_W2A} offset:{2048*ks+1024*t}"
            for ks in range(8) for mt in range(2) for t in range(2)]

def emit(L):
    L = align(L)
    assert sum(isize(x) for x in L) % 8 == 0
    for s in L: e(s)

def mainloop(safe):
    x = "S" if safe else "F"
    out.append(".p2align 6")
    lab(f"LOOP{x}")
    for tau in range(4):
        c(f"==== tile slot {tau}")
        emit(memphase(tau, 0))
        emit(block((tau - 1) & 3, 3, safe, gate=True))
        if tau == 0: lab(f"ENTER{x}")
        emit(block(tau, 0, safe))
        emit(memphase(tau, 1))
        emit(block(tau, 1, safe, gate=True))
        emit(block(tau, 2, safe))
        e(f"s_sub_u32 s{S_REM}, s{S_REM}, 1")
        if tau < 3: e(f"s_cbranch_scc1 TAIL{x}{tau}")
        else: e(f"s_cbranch_scc0 LOOP{x}")
    for tau in (3, 0, 1, 2):
        lab(f"TAIL{x}{tau}")
        emit(["s_setprio 0", f"v_xor_b32 v27, 64, v{V_W2A}"] + w2_reads())
        emit(block(tau, 3, safe, gate=True, last=True))
        if tau == 0: e(f"ds_read_b32 v{SL}, v{V_SELA}")
        e(f"v_rcp_f32 v{RR}, v{DD}")
        e(f"v_rcp_f32 v{RR+1}, v{DD+1}")
        e(f"v_max3_f32 v{V_DMAX}, v{DD}, v{DD+1}, v{V_DMAX}")
        e(f"v_pk_mul_f32 {vr(RR,2)}, {vr(NN,2)}, {vr(RR,2)}")
        for t2 in range(tau + 1, 4): e(f"v_mov_b32_e64 v{SL+t2}, 0")
        e(f"v_cvt_pk_bf16_f32 v{P+12+tau}, v{RR}, v{RR+1}")
        e("s_nop 0")
        e("s_branch DRAIN")

def find_cx(target):
    m = np.float64(u2f(0x00FF0000))
    g = f2u(float(np.float32(np.float64(u2f(target)) / m)))
    for d in range(-3, 4):
        if f2u(float(np.float32(np.float64(u2f(g + d)) * m))) == target: return g + d
    raise SystemExit("no cx")

V_GV, V_GB, V_SB, V_L0, V_COL = 247, 248, 249, 250, 251

def fill_list(t):
    e(f"v_lshlrev_b32 v{t+8}, 4, v{V_TID}")
    e(f"v_add_u32 v{t+9}, {L_LIST}, v{t+8}")
    for i in range(4): e(f"v_mov_b32 v{t+i}, {hex(PADENT)}")
    for o in (0, 8192, 16384, LISTSZ - 8192): e(f"ds_write_b128 v{t+9}, {vr(t,4)} offset:{o}")

def init_tables(t):
    fill_list(t)
    for i in range(4): e(f"v_mov_b32 v{t+4+i}, 0")
    e(f"v_add_u32 v{t+8}, {L_SEL}, v{t+8}")
    for o in (0, 8192, 16384): e(f"ds_write_b128 v{t+8}, {vr(t+4,4)} offset:{o}")
    e(f"v_min_u32 v{t+8}, {GTH*4-1}, v{V_TID}")
    e(f"v_lshlrev_b32 v{t+8}, 3, v{t+8}")
    e(f"v_add_u32 v{t+8}, {L_GT}, v{t+8}")
    e(f"v_mov_b32 v{t+10}, {NPB*LS}")
    e(f"v_mov_b32 v{t+11}, {NPB*LS}")
    e(f"ds_write_b64 v{t+8}, {vr(t+10,2)}")

def static_writes(t, tag):
    e(f"s_cmp_eq_u32 s{S_W}, 1")
    e(f"s_cbranch_scc0 STW{tag}")
    e(f"v_lshlrev_b32 v{t}, 2, v{V_LANE}")
    e(f"v_mov_b32 v{t+1}, 0")
    e(f"ds_write_b32 v{t}, v{V_L0} offset:{L_CNT2}")
    e(f"ds_write_b32 v{t+1}, v{t+1} offset:{L_FLAG}")
    e(f"v_lshl_add_u32 v{t}, v{V_COL}, 2, v{V_GB}")
    e(f"v_lshrrev_b32 v{t+1}, 1, v{V_COL}")
    e(f"v_mul_u32_u24 v{t+1}, {SELS//2}, v{t+1}")
    e(f"v_and_b32 v{t+2}, 1, v{V_COL}")
    e(f"v_lshl_add_u32 v{t+1}, v{t+2}, 1, v{t+1}")
    e(f"v_add_u32 v{t+1}, v{t+1}, v{V_SB}")
    e(f"v_mov_b32 v{t+2}, 0x3f80")
    e(f"s_bfm_b64 exec, {NPB}, 0")
    e(f"ds_write_b32 v{t}, v{V_GV}")
    e(f"ds_write_b16 v{t+1}, v{t+2}")
    e("s_mov_b64 exec, -1")
    lab(f"STW{tag}")

def wave_reset():
    e(f"v_mov_b32 v{V_GIA}, v{V_SAVE}")
    e(f"v_mov_b32 v{V_GMA}, v{V_SAVE+1}")
    e(f"v_mov_b32 v{V_GQA}, v{V_SAVE+2}")
    e(f"v_mov_b32 v{V_SELA}, v{V_SAVE+3}")
    e(f"ds_read_u16 v{V_LI}, v{V_GIA}")
    e(f"ds_read_u16 v{V_LM}, v{V_GMA}")
    e(f"ds_read_u16 v{V_GQ}, v{V_GQA} offset:2")
    for i in range(2):
        e(f"v_mov_b32 v{NN+i}, 0")
        e(f"v_mov_b32 v{DD+i}, 1.0")
    e(f"v_mov_b32 v{V_DMAX}, 0")
    for r in list(range(SL, SL + 20, 2)) + list(range(C[0], C[0] + 32, 2)):
        e(f"v_pk_mul_f32 {vr(r,2)}, {vr(NN,2)}, {vr(NN,2)}")
    e("s_waitcnt lgkmcnt(0)")
    e(f"v_add_u32 v{V_LI}, v{V_LI}, v{V_LIO}")
    e(f"v_add_u32 v{V_LM}, v{V_LM}, v{V_LMO}")
    e(QAB)

def first_tile(mid=None):
    e(f"ds_read_b128 {vr(IDX,4)}, v{V_LI}")
    e(f"ds_read_b32 v{V_M}, v{V_LM}")
    n = 1
    if mid: n += mid()
    e(f"s_mov_b32 m0, s{S_M0[0]}")
    e(f"s_waitcnt lgkmcnt({n})")
    for s in mads(IDX): e(s)
    for s in dma(0): e(s)

def kernel():
    lab(KN)
    e("s_cmp_ge_u32 s2, 256")
    e("s_cbranch_scc1 K_END")
    if DIAG: e("v_mov_b32 v255, 0")
    stamp(30, True); stamp(0)
    for s, off in ((S_X, 0), (S_W1, 32), (S_DST, 24), (S_SRC, 16), (S_E, 8), (S_WS, 80), (S_B1, 40), (S_W2, 48), (S_B2, 56), (S_OUT, 64)):
        e(f"s_load_dwordx2 {sr(s,2)}, s[0:1], {off}")
    e(f"v_mov_b32 v{V_TID}, v0")
    e(f"v_readfirstlane_b32 s{S_W}, v0")
    e(f"v_and_b32 v{V_LANE}, 63, v0")
    for s, sz in ((S_DST, E*4), (S_SRC, E*4), (S_E, E*2), (S_W1, 129*256), (S_X, N*128), (S_B1, 256), (S_W2, 16384), (S_B2, 128)):
        e(f"s_mov_b32 s{s+2}, {sz}")
        e(f"s_mov_b32 s{s+3}, 0x00020000")
    e(f"s_lshr_b32 s{S_W}, s{S_W}, 6")
    e(f"s_and_b32 s{S_B}, s2, 7")
    e(f"s_lshl_b32 s{S_B}, s{S_B}, 5")
    e("s_lshr_b32 s5, s2, 3")
    e(f"s_add_u32 s{S_B}, s{S_B}, s5")
    e(f"v_lshrrev_b32 v37, 4, v{V_LANE}")
    e(f"v_lshrrev_b32 v47, 3, v{V_LANE}")
    e(f"v_and_b32 v48, 7, v{V_LANE}")
    e("v_and_b32 v45, 1, v37")
    e("v_and_b32 v58, 4, v47")
    e("v_and_b32 v59, 1, v47")
    e("v_lshl_add_u32 v58, v59, 1, v58")
    e("v_add_u32 v58, v58, v45")
    e("v_xor_b32 v59, v48, v37")
    e("v_lshlrev_b32 v59, 4, v59")
    e("v_lshl_add_u32 v58, v58, 15, v59")
    e(f"s_lshl_b32 s5, s{S_W}, 18")
    e(f"s_lshl_b32 s6, s{S_B}, 7")
    e("s_add_u32 s5, s5, s6")
    e("v_add_u32 v58, s5, v58")
    e("v_lshlrev_b32 v31, 2, v37")
    e(f"v_xor_b32 v31, v31, v{V_LANE}")
    e("v_lshlrev_b32 v31, 4, v31")
    e(f"s_mul_i32 s84, s{S_W}, 1088")
    e(f"s_add_u32 m0, s84, {L_XS}")
    e(f"s_lshl_b32 s85, s{S_W}, 11")
    e(f"s_mul_i32 s5, s2, {CH*4}")
    e("v_lshl_add_u32 v32, v0, 4, s5")
    e("s_cmp_eq_u32 s2, 255")
    e(f"s_movk_i32 s6, {NQ-512}")
    e(f"s_cmovk_i32 s6, {NQL-512}")
    e("v_cmp_gt_u32 s[74:75], s6, v0")
    e("v_add_u32 v33, 8192, v32")
    e("v_bfrev_b32 v36, 1")
    e("v_lshrrev_b32 v34, 1, v32")
    e("v_cndmask_b32 v33, v36, v33, s[74:75]")
    e("v_lshrrev_b32 v35, 1, v33")
    e("s_waitcnt lgkmcnt(0)")
    if TOUCH:
        e(f"s_cmp_eq_u32 s{S_W}, 6")
        e("s_cbranch_scc0 NOTOUCH")
        e("s_lshr_b32 s5, s2, 3")
        e("s_lshl_b32 s5, s5, 9")
        e("s_add_u32 s6, s5, 16384")
        e(f"v_lshlrev_b32 v60, 7, v{V_LANE}")
        e("s_mov_b64 exec, 63")
        e(f"buffer_load_dword v16, v60, {sr(S_W1)}, s6 offen")
        e(f"buffer_load_dword v17, v60, {sr(S_W2)}, s5 offen")
        e(f"buffer_load_dword v18, v60, {sr(S_B1)}, 0 offen")
        e(f"buffer_load_dword v19, v60, {sr(S_B2)}, 0 offen")
        e("s_mov_b64 exec, -1")
        lab("NOTOUCH")
    e(f"buffer_load_dwordx4 v58, {sr(S_X)}, 0 offen lds")
    e(f"s_add_u32 m0, s85, {L_W1S}")
    e(f"s_load_dwordx2 s[78:79], {sr(S_WS,2)}, {WS_EPOCH}")
    for k in range(2): e(f"buffer_load_dwordx4 v31, {sr(S_W1)}, s85 offen offset:{1024*k} lds")
    if ORD == 1: e("s_barrier")
    e(f"buffer_load_dwordx4 v[64:67], v32, {sr(S_DST)}, 0 offen {LDF}")
    e(f"buffer_load_dwordx4 v[68:71], v33, {sr(S_DST)}, 0 offen {LDF}")
    def src_e():
        e(f"buffer_load_dwordx4 v[72:75], v32, {sr(S_SRC)}, 0 offen {LDF}")
        e(f"buffer_load_dwordx4 v[76:79], v33, {sr(S_SRC)}, 0 offen {LDF}")
        e(f"buffer_load_dwordx2 v[80:81], v34, {sr(S_E)}, 0 offen {LDF}")
        e(f"buffer_load_dwordx2 v[82:83], v35, {sr(S_E)}, 0 offen {LDF}")
    stamp(15)
    for s, sz in ((S_WS, WS_SIZE), (S_OUT, N*128), (S_P, 256*NPB*256 + PSH)):
        e(f"s_mov_b32 s{s+2}, {sz}")
        e(f"s_mov_b32 s{s+3}, 0x00020000")
    e(f"s_mov_b32 s80, {hex(f2u(-LOG2E))}")
    e("s_mov_b32 s81, s80")
    e(f"v_lshrrev_b32 v38, 5, v{V_LANE}")
    e(f"v_and_b32 v39, 31, v{V_LANE}")
    e("v_bfe_u32 v40, v39, 2, 1")
    e("v_and_b32 v41, 1, v39")
    e("v_lshl_add_u32 v40, v40, 1, v41")
    e("v_lshrrev_b32 v42, 3, v39")
    e("v_bfe_u32 v43, v39, 1, 1")
    e(f"v_bfe_u32 v44, v{V_LANE}, 2, 2")
    e(f"v_and_b32 v46, 3, v{V_LANE}")
    e("v_lshlrev_b32 v46, 3, v46")
    e("v_lshl_add_u32 v46, v45, 5, v46")
    e(f"s_and_b32 s82, s{S_W}, 3")
    e(f"s_lshr_b32 s83, s{S_W}, 2")
    e("v_xor_b32 v50, s82, v44")
    e("v_lshl_add_u32 v50, v50, 6, v46")
    e("v_lshl_add_u32 v51, v38, 3, v44")
    e("v_lshl_add_u32 v50, v51, 8, v50")
    e("v_lshl_add_u32 v51, v40, 1, v43")
    e("v_mul_u32_u24 v52, 1088, v42")
    e("v_lshl_add_u32 v52, v51, 7, v52")
    e("s_mul_i32 s5, s83, 4352")
    e(f"s_add_u32 s5, s5, {L_XS}")
    e("v_add_u32 v52, s5, v52")
    e("v_xor_b32 v53, v38, v40")
    e("v_lshl_add_u32 v51, v53, 4, v52")
    e("v_xor_b32 v53, 2, v53")
    e("v_lshl_add_u32 v52, v53, 4, v52")
    e("s_lshl_b32 s5, s83, 5")
    e("v_add_u32 v55, s5, v39")
    e(f"v_cmp_gt_u32 s[88:89], {NPB}, v55")
    e("s_lshl_b32 s82, s82, 6")
    e("v_lshl_add_u32 v49, v38, 3, s82")
    e(f"v_mul_u32_u24 v53, {PS}, v55")
    e("v_add_u32 v53, v53, v49")
    e(f"v_mul_u32_u24 v54, {QS}, v55")
    e("v_add_u32 v54, v54, v49")
    e(f"v_add_u32 v54, {L_QT}, v54")
    e(f"s_mul_i32 s5, s{S_W}, 98")
    e(f"v_add_u32 v55, s5, v{V_LANE}")
    e("v_lshrrev_b32 v56, 4, v55")
    e("v_lshlrev_b32 v63, 4, v55")
    e("v_lshl_add_u32 v62, v56, 4, v63")
    assert PS == 272
    e("v_add_lshl_u32 v61, v55, s5, 4")
    init_tables(84)
    e(f"v_lshlrev_b32 v92, 3, v{V_TID}")
    e("ds_write_b64 v92, v[88:89]")
    for i in range(32): e(f"v_pk_mul_f32 {vr(H+2*i,2)}, v[88:89], v[88:89]")
    e(f"s_mul_i32 s6, s{S_B}, {NPB*256}")
    e(f"s_add_u32 s6, s6, {WS_PT}")
    e(f"s_mov_b32 s87, {128*256}")
    e("v_mov_b32 v55, 1")
    stamp(16)
    e("s_waitcnt vmcnt(2) lgkmcnt(0)")
    if ORD != 2: src_e()
    e("s_barrier")
    stamp(1)
    for ks in range(4):
        e(f"ds_read_b64_tr_b16 {vr(88+4*ks,2)}, v50 offset:{L_W1S+4096*ks}")
        e(f"ds_read_b64_tr_b16 {vr(90+4*ks,2)}, v50 offset:{L_W1S+4096*ks+1024}")
        e(f"ds_read_b128 {vr(160+4*ks,4)}, v{51+(ks&1)} offset:{64*(ks>>1)}")
    if ORD == 2: src_e()
    for ks in range(4):
        e(f"s_waitcnt lgkmcnt({9-3*ks})")
        e(mf16(112, 88 + 4*ks, 160 + 4*ks, "0" if ks == 0 else vr(112, 16)))
    e(f"s_mul_i32 s{S_TAGB}, s78, 1664525")
    e(f"s_add_u32 s{S_TAGB}, s{S_TAGB}, 1013904223")
    e(f"s_add_u32 s{S_TAGA}, s79, 0x01000000")
    e(f"s_and_b32 s{S_TAGA}, s{S_TAGA}, 0xff000000")
    e(f"s_add_u32 s{S_P}, s{S_WS}, {WS_PT - PSH}")
    e(f"s_addc_u32 s{S_P+1}, s{S_WS+1}, 0")
    e(f"v_mov_b32 v252, s{S_TAGA}")
    e(f"v_mov_b32 v253, s{S_TAGB}")
    e(f"v_mul_u32_u24 v254, {DS}, v{V_LANE}")
    e(f"v_lshlrev_b32 v36, 2, v{V_LANE}")
    e("s_nop 1")
    for i in range(8): e(f"v_pk_mul_f32 {vr(112+2*i,2)}, {vr(112+2*i,2)}, s[80:81]")
    for i in range(8): e(f"v_cvt_pk_bf16_f32 v{88+i}, v{112+2*i}, v{113+2*i}")
    e("s_mov_b64 exec, s[88:89]")
    for q in range(4): e(f"ds_write_b64 v53, {vr(88+2*q,2)} offset:{L_PS+16*q}")
    e("s_mov_b64 exec, -1")
    e("s_waitcnt lgkmcnt(0)")
    e("s_barrier")
    e(f"ds_read_b128 v[144:147], v62 offset:{L_PS}")
    e(f"ds_read_b128 v[148:151], v62 offset:{L_PS+4*PS}")
    e("s_waitcnt lgkmcnt(1)")
    e(f"buffer_store_dwordx4 v[144:147], v63, {sr(S_WS)}, s6 offen {STF}")
    e("s_bfm_b64 exec, 34, 0")
    e("s_waitcnt lgkmcnt(0)")
    e(f"buffer_store_dwordx4 v[148:151], v63, {sr(S_WS)}, s6 offen offset:1024 {STF}")
    e("s_mov_b64 exec, -1")
    stamp(2)
    e("s_waitcnt vmcnt(6)")
    stamp(3)
    SD = "dst_sel:DWORD dst_unused:UNUSED_PAD src0_sel:DWORD"
    def binA(j):
        e(f"v_lshlrev_b32_sdwa v{112+j}, 2, v{64+j} {SD} src1_sel:BYTE_0")
        e(f"ds_add_rtn_u32 v{120+j}, v{112+j}, v55 offset:{L_CNT1}")
    def binB(j):
        e(f"v_lshlrev_b32_sdwa v{129+2*j}, 2, v{64+j} {SD} src1_sel:BYTE_1")
        if j % 2 == 0: e(f"v_lshlrev_b32 v56, 16, v{80+j//2}")
        else: e(f"v_and_b32 v56, 0xffff0000, v{80+j//2}")
        e(f"v_mul_u32_u24_sdwa v57, {NPB}, v{72+j} {SD} src1_sel:BYTE_0")
        e(f"v_add_u32_sdwa v57, v57, v{72+j} {SD} src1_sel:BYTE_1")
        e(f"v_or3_b32 v{128+2*j}, v56, v57, s87")
    assert 128 * 256 == 0x8000
    for j in range(4): binA(j)
    e("s_mov_b64 exec, s[74:75]")
    e("s_cbranch_execz P1_A")
    for j in range(4, 8): binA(j)
    lab("P1_A")
    e("s_mov_b64 exec, -1")
    e("s_waitcnt lgkmcnt(0)")
    e("s_barrier")
    stamp(4)
    e(f"s_cmp_eq_u32 s{S_W}, 7")
    e("s_cbranch_scc1 P1_SCAN")
    e("s_waitcnt vmcnt(2)")
    for j in range(4): binB(j)
    e(f"s_cmp_gt_u32 s{S_W}, 4")
    e("s_cbranch_scc1 P1_NB")
    for j in range(4, 8): binB(j)
    lab("P1_NB")
    if PFL == 1: e("s_waitcnt vmcnt(0)")
    e("s_barrier")
    e("s_branch P1_NOSCAN")
    lab("P1_SCAN")
    e(f"v_lshlrev_b32 v56, 4, v{V_LANE}")
    e(f"ds_read_b128 v[136:139], v56 offset:{L_CNT1}")
    e(f"s_mul_i32 s6, s2, {DS}")
    e(f"s_add_u32 s6, s6, {WS_DESC}")
    e("s_waitcnt lgkmcnt(0)")
    e("v_add_u32 v57, v136, v137")
    e("v_add_u32 v58, v57, v138")
    e("v_add_u32 v59, v58, v139")
    e("v_mov_b32 v60, v59")
    scan64(59)
    e("v_sub_u32 v140, v59, v60")
    e("v_add_u32 v141, v140, v136")
    e("v_add_u32 v142, v140, v57")
    e("v_add_u32 v143, v140, v58")
    e(f"ds_write_b128 v56, v[140:143] offset:{L_BASE1}")
    e("s_waitcnt vmcnt(0) lgkmcnt(0)" if PFL == 1 else "s_waitcnt lgkmcnt(0)")
    e("s_barrier")
    for j in range(4):
        e(f"v_lshl_or_b32 v{152+2*j}, v{136+j}, 12, v{140+j}")
        e(f"v_or_b32 v{152+2*j}, s{S_TAGA}, v{152+2*j}")
        e(f"v_mov_b32 v{153+2*j}, s{S_TAGB}")
    e(f"v_lshlrev_b32 v58, 5, v{V_LANE}")
    e("s_waitcnt vmcnt(2)")
    e(f"buffer_store_dwordx4 v[152:155], v58, {sr(S_WS)}, s6 offen sc1")
    e(f"buffer_store_dwordx4 v[156:159], v58, {sr(S_WS)}, s6 offen offset:16 sc1")
    for j in range(4): binB(j)
    lab("P1_NOSCAN")
    stamp(5)
    for j in range(4): e(f"ds_read_b32 v{112+j}, v{112+j} offset:{L_BASE1}")
    e("s_mov_b64 exec, s[74:75]")
    e("s_cbranch_execz P1_B0")
    for j in range(4, 8): e(f"ds_read_b32 v{112+j}, v{112+j} offset:{L_BASE1}")
    lab("P1_B0")
    e("s_mov_b64 exec, -1")
    if PFL == 1:
        e(f"s_cmp_eq_u32 s{S_W}, 6")
        e("s_cbranch_scc0 P1_NPF")
        e("s_lshl_b32 s6, s2, 3")
        e(f"s_add_u32 s6, s6, {WS_PFLAG}")
        e("s_mov_b64 exec, 0xff")
        e(f"buffer_store_dwordx2 v[252:253], v254, {sr(S_WS)}, s6 offen sc1")
        e("s_mov_b64 exec, -1")
        lab("P1_NPF")
    e("s_add_u32 s86, s85, 16384")
    e(f"s_add_u32 m0, s86, {L_W1S}")
    e(f"v_lshlrev_b32 v35, 1, v{V_LANE}")
    for k in range(2): e(f"buffer_load_dwordx4 v31, {sr(S_W1)}, s86 offen offset:{1024*k} lds")
    e(f"s_mul_i32 s5, s2, {GCS}")
    e(f"s_add_u32 s5, s5, {WS_ENT}")
    e("s_waitcnt lgkmcnt(0)")
    for j in range(8):
        if j == 4:
            e("s_mov_b64 exec, s[74:75]")
            e("s_cbranch_execz P1_B")
        e(f"v_add_lshl_u32 v{112+j}, v{112+j}, v{120+j}, 3")
        e(f"ds_write_b64 v{112+j}, {vr(128+2*j,2)} offset:{L_STG}")
    lab("P1_B")
    e("s_mov_b64 exec, -1")
    for q in range(4): e(f"buffer_load_dwordx2 {vr(104+2*q,2)}, v49, {sr(S_B1)}, 0 offen offset:{16*q}")
    e(f"s_cmp_eq_u32 s{S_W}, 5")
    e("s_cbranch_scc0 P1_NX")
    e(f"buffer_load_dword v62, v36, {sr(S_W1)}, s87 offen")
    e(f"buffer_load_ushort v63, v35, {sr(S_B2)}, 0 offen")
    lab("P1_NX")
    e("s_waitcnt lgkmcnt(0)")
    e("s_barrier")
    stamp(6)
    for k in range(4): e(f"ds_read_b128 {vr(64+4*k,4)}, v61 offset:{L_STG+1024*k}")
    for k in range(4):
        if k == 3: e("s_mov_b64 exec, 15")
        e(f"s_waitcnt lgkmcnt({3-k})")
        e(f"buffer_store_dwordx4 {vr(64+4*k,4)}, v61, {sr(S_WS)}, s5 offen offset:{1024*k} {STF}")
    e("s_mov_b64 exec, -1")
    if PFL == 1:
        e(f"s_lshl_b32 s5, s{S_W}, 5")
        e("s_lshr_b32 s6, s2, 3")
        e("s_add_u32 s90, s5, s6")
        e("s_and_b32 s6, s2, 7")
        e(f"s_mul_i32 s6, s6, {DS}")
        e("s_lshl_b32 s5, s90, 3")
        e("s_add_u32 s5, s5, s6")
        e(f"s_add_u32 s91, s5, {WS_PFLAG}")
    e("v_lshlrev_b32 v31, 2, v45")
    e(f"v_xor_b32 v31, v31, v{V_LANE}")
    e("v_lshlrev_b32 v31, 4, v31")
    e(f"s_add_u32 m0, s85, {L_W2}")
    e("v_mov_b32 v59, v50")
    e("v_mov_b32 v60, v54")
    e(f"s_mov_b32 s{S_EARLY}, 2")
    for j in range(8): e(f"s_movk_i32 s{S_SOFF+j}, {PSH - 1024*(j&3) + 128*(j>>2)}")
    e(f"s_movk_i32 s{S_256}, 256")
    e(f"s_mul_i32 s{S_M0[0]}, s{S_W}, {TBW}")
    e(f"s_add_u32 s{S_M0[0]}, s{S_M0[0]}, {L_TB}")
    e(f"s_add_u32 s{S_M0[1]}, s{S_M0[0]}, 4096")
    e(f"s_mov_b32 s{S_WN}, 32")
    e(f"s_mov_b32 s{S_RB}, 0")
    e(f"s_mov_b32 s{S_SAFE}, 0")
    e(f"s_mov_b32 s{S_SPIN}, 0x40000")
    e(f"v_cmp_le_u32 vcc, {SPLIT}, v{V_LANE}")
    e(f"v_mul_u32_u24 v56, {LS}, v{V_LANE}")
    e(f"v_mul_u32_u24 v57, {QS}, v{V_LANE}")
    e(f"v_add_u32 v{V_L0}, {L_LIST}, v56")
    e(f"v_lshl_or_b32 v{V_GV}, v57, 16, v56")
    e("v_cndmask_b32 v56, 0, 1, vcc")
    e(f"v_mul_u32_u24 v57, {SPLIT}, v56")
    e(f"v_sub_u32 v{V_COL}, v{V_LANE}, v57")
    e(f"v_mul_u32_u24 v57, {GTH*16}, v56")
    e(f"v_add_u32 v{V_GB}, {L_GT}, v57")
    e(f"v_mul_u32_u24 v57, {HT*SELS}, v56")
    e(f"v_lshl_add_u32 v57, v{V_COL}, 2, v57")
    e(f"v_add_u32 v{V_SB}, {L_SEL}, v57")
    static_writes(56, "A")
    if PFL == 1:
        e(f"s_load_dwordx2 s[92:93], {sr(S_WS,2)}, s91 glc")
    e("v_lshlrev_b32 v56, 1, v39")
    e("v_lshl_add_u32 v56, v38, 9, v56")
    e(f"v_add_u32 v{V_CA}, s{S_M0[0]}, v56")
    e("v_lshlrev_b32 v56, 4, v48")
    e(f"v_add_u32 v{V_DMAC}, 0x800000, v56")
    e("v_and_b32 v56, 1, v47")
    e("v_lshlrev_b32 v56, 4, v56")
    e(f"v_add_u32 v{V_LIO}, {L_LIST}, v56")
    e("v_lshl_add_u32 v56, v42, 1, v43")
    e("v_lshlrev_b32 v56, 2, v56")
    e(f"v_add_u32 v{V_LMO}, {L_LIST}, v56")
    e(f"s_sub_u32 s5, {GTH+7}, s{S_W}")
    e(f"s_sub_u32 s6, {HT+7}, s{S_W}")
    e(f"s_cmp_lt_u32 s{S_W}, 4")
    e(f"s_cselect_b32 s5, s{S_W}, s5")
    e(f"s_cselect_b32 s6, s{S_W}, s6")
    e("s_lshl_b32 s5, s5, 4")
    e(f"s_add_u32 s5, s5, {L_GT}")
    e(f"s_mul_i32 s6, s6, {SELS}")
    e(f"s_add_u32 s6, s6, {L_SEL}")
    e(f"v_lshl_add_u32 v{V_SAVE}, v37, 2, s5")
    e(f"v_lshl_add_u32 v{V_SAVE+1}, v40, 2, s5")
    e(f"v_lshl_add_u32 v{V_SAVE+2}, v44, 2, s5")
    e(f"v_mul_u32_u24 v56, {SELS//2}, v38")
    e("v_lshl_add_u32 v56, v39, 2, v56")
    e(f"v_add_u32 v{V_SAVE+3}, s6, v56")
    e("v_cmp_eq_u32 vcc, 0, v38")
    e("v_mov_b32 v57, 0x03020100")
    e("v_mov_b32 v56, 0x0c080c0c")
    e(f"v_cndmask_b32 v{V_PSEL}, v57, v56, vcc")
    e(f"v_cndmask_b32 v{V_QMUL}, 0, 1, vcc")
    e("v_add_u32 v56, 1, v44")
    e("v_lshrrev_b32 v56, 1, v56")
    e("v_and_b32 v57, 1, v44")
    e("v_mul_u32_u24 v56, v56, v57")
    e("v_mul_u32_u24 v56, 320, v56")
    e(f"v_add_u32 v56, {L_EXT}, v56")
    e(f"v_mov_b32 v57, {L_QT}")
    e("v_cndmask_b32 v56, v56, v57, vcc")
    e(f"v_add_u32 v{V_QC}, v46, v56")
    e(f"v_mov_b32 v56, {hex(find_cx(0x00803F80))}")
    e(f"v_mov_b32 v57, {hex(find_cx(0x3F800000))}")
    e("v_cmp_eq_u32 s[6:7], 1, v41")
    e("v_cmp_gt_u32 s[76:77], 2, v40")
    e("s_nop 0")
    e("v_cndmask_b32 v56, v56, v57, s[6:7]")
    e("v_cndmask_b32 v57, 0, v56, s[76:77]")
    e("v_cndmask_b32 v56, v56, 0, s[76:77]")
    e(f"v_cndmask_b32 v{CX}, 1.0, v57, vcc")
    e(f"v_cndmask_b32 v{CX+1}, 1.0, v56, vcc")
    e("v_lshl_add_u32 v56, v38, 2, v44")
    e("v_lshl_add_u32 v56, v56, 7, v46")
    e("v_lshrrev_b32 v57, 1, v44")
    e("v_lshl_add_u32 v56, v57, 6, v56")
    e(f"v_add_u32 v{V_W2A}, {L_W2}, v56")
    e("v_lshl_add_u32 v56, v37, 3, v48")
    e(f"s_lshl_b32 s5, s{S_W}, 5")
    e(f"v_add_u32 v{V_CHK}, s5, v56")
    e(f"v_and_b32 v{V_J0}, 15, v{V_LANE}")
    e(f"v_mul_u32_u24 v33, {DS}, v{V_CHK}")
    e(f"s_lshl_b32 s5, s{S_B}, 3")
    e(f"s_add_u32 s5, s5, {WS_DESC}")
    e(f"buffer_load_dwordx2 v[34:35], v33, {sr(S_WS)}, s5 offen sc1")
    nyoung = 1
    if PFL == 1:
        e("s_and_b32 s6, s90, 7")
        e("s_lshl_b32 s6, s6, 5")
        e("s_lshr_b32 s7, s90, 3")
        e("s_add_u32 s6, s6, s7")
        e(f"s_mul_i32 s6, s6, {NPB*256}")
        e(f"s_add_u32 s6, s6, {PSH}")
        e(f"v_min_u32 v56, {NPB-1}, v{V_LANE}")
        e("v_lshlrev_b32 v56, 8, v56")
        e("s_waitcnt lgkmcnt(0)")
        e(f"s_cmp_eq_u64 s[92:93], s[{S_TAGA}:{S_TAGB}]")
        e("s_cselect_b32 s6, s6, 0x7f000000")
        e("v_add_u32 v56, s6, v56")
        e(f"buffer_load_dword v57, v56, {sr(S_P)}, 0 offen")
        e(f"buffer_load_dword v58, v56, {sr(S_P)}, 0 offen offset:128")
        nyoung = 3
    e("s_lshl_b32 s6, s2, 3")
    e(f"s_add_u32 s6, s6, {WS_FLAG}")
    stamp(18)
    e(f"s_waitcnt vmcnt({nyoung}) lgkmcnt(0)")
    e("s_barrier")
    stamp(7)
    e(f"s_cmp_eq_u32 s{S_W}, 0")
    e("s_cbranch_scc0 P1_NF")
    e("s_mov_b64 exec, 0xff")
    e(f"buffer_store_dwordx2 v[252:253], v254, {sr(S_WS)}, s6 offen sc1")
    e("s_mov_b64 exec, -1")
    lab("P1_NF")
    for k in range(2): e(f"buffer_load_dwordx4 v31, {sr(S_W2)}, s85 offen offset:{1024*k} lds")
    e(f"s_cmp_eq_u32 s{S_W}, 5")
    e("s_cbranch_scc0 POLL1")
    e("v_lshlrev_b32 v40, 16, v62")
    e("v_and_b32 v41, 0xffff0000, v62")
    e("v_mul_f32 v40, s80, v40")
    e("v_mul_f32 v41, s80, v41")
    e("v_cvt_pk_bf16_f32 v42, v40, v41")
    e("v_lshlrev_b32 v43, 16, v42")
    e("v_and_b32 v44, 0xffff0000, v42")
    e("v_sub_f32 v43, v40, v43")
    e("v_sub_f32 v44, v41, v44")
    e("v_cvt_pk_bf16_f32 v43, v43, v44")
    e("v_lshlrev_b32 v63, 16, v63")
    e(f"ds_write_b32 v36, v42 offset:{L_EXT+320}")
    e(f"ds_write_b32 v36, v43 offset:{L_EXT+640}")
    e(f"ds_write_b32 v36, v63 offset:{L_B2}")

    lab("POLL1")
    e(f"v_mul_u32_u24 v32, {GCS}, v{V_CHK}")
    e(f"v_add_u32 v37, 16, v{V_J0}")
    e("v_bfrev_b32 v43, -2")
    e(f"v_cmp_gt_u32 vcc, s{S_WN}, v{V_J0}")
    e(f"v_add_u32 v38, s{S_RB}, v{V_J0}")
    e(f"v_add_u32 v39, s{S_RB}, v37")
    e("v_lshlrev_b32 v36, 3, v38")
    e("v_cndmask_b32 v38, v43, v38, vcc")
    e(f"v_cmp_gt_u32 vcc, s{S_WN}, v37")
    e(f"s_mov_b32 s7, {WS_ENT}")
    e("v_mov_b32 v55, 4")
    e("v_cndmask_b32 v39, v43, v39, vcc")
    lab("POLL")
    e("s_waitcnt vmcnt(0)")
    e(f"v_xor_b32 v34, s{S_TAGA}, v34")
    e(f"v_cmp_ne_u32 s[76:77], s{S_TAGB}, v35")
    e("v_cmp_le_u32 vcc, 0x1000000, v34")
    e("s_or_b64 vcc, vcc, s[76:77]")
    e("s_cbranch_scc0 POLLED")
    e(f"s_sub_u32 s{S_SPIN}, s{S_SPIN}, 1")
    e("s_cbranch_scc1 K_END")
    e(f"s_sleep {SLP}")
    e(f"buffer_load_dwordx2 v[34:35], v33, {sr(S_WS)}, s5 offen sc1")
    e("s_branch POLL")
    lab("POLLED")
    stamp(8)
    e("v_and_b32 v35, 0xfff, v34")
    e("v_lshrrev_b32 v34, 12, v34")
    e("v_lshl_add_u32 v35, v35, 3, v32")
    e(f"s_add_u32 s5, s{S_RB}, s{S_WN}")
    e("v_cmp_lt_u32 s[74:75], s5, v34")
    DP = "row_mask:0xf bank_mask:0xf"
    for i in range(8):
        e(f"v_mov_b32_dpp v43, v34 row_newbcast:{i} {DP}")
        e(f"v_add_u32_dpp v{44+i}, v35, v36 row_newbcast:{i} {DP}")
        e(f"v_cmp_lt_u32 {sr(S_MASK+2*i,2)}, v38, v43")
        e(f"v_cmp_lt_u32 {sr(S_MASK+16+2*i,2)}, v39, v43")
    e(f"v_lshlrev_b32 v33, 3, v{V_CHK}")
    e(f"v_lshlrev_b32 v54, 2, v{V_LANE}")
    e("v_mov_b32 v53, 0")
    e("s_mov_b64 exec, s[74:75]")
    e(f"ds_write_b32 v53, v55 offset:{L_FLAG}")
    e("s_mov_b64 exec, -1")
    e("s_and_b32 s5, s2, 7")
    e(f"s_mul_i32 s5, s5, {DS}")
    e(f"s_add_u32 s5, s5, {WS_FLAG}")
    lab("FPOLL")
    e(f"buffer_load_dwordx2 v[34:35], v33, {sr(S_WS)}, s5 offen sc1")
    e("s_waitcnt vmcnt(0)")
    e(f"v_cmp_ne_u32 s[76:77], s{S_TAGB}, v35")
    e(f"v_cmp_ne_u32 vcc, s{S_TAGA}, v34")
    e("s_or_b64 vcc, vcc, s[76:77]")
    e("s_cbranch_scc0 FPOLLED")
    e(f"s_sub_u32 s{S_SPIN}, s{S_SPIN}, 1")
    e("s_cbranch_scc1 K_END")
    e(f"s_sleep {SLP}")
    e("s_branch FPOLL")
    lab("FPOLLED")
    stamp(17)
    for k in range(8, 16):
        e(f"s_mov_b64 exec, {sr(S_MASK+2*k,2)}")
        e(f"s_cbranch_execz R_L{k}")
        e(f"buffer_load_dwordx2 {vr(112+2*k,2)}, v{44+(k&7)}, {sr(S_WS)}, s7 offen offset:128 {ELF}")
        lab(f"R_L{k}")
    for k in range(8):
        e(f"s_or_b64 exec, {sr(S_MASK+2*k,2)}, 1")
        e(f"buffer_load_dwordx2 {vr(112+2*k,2)}, v{44+k}, {sr(S_WS)}, s7 offen {ELF}")
    e("s_mov_b64 exec, -1")
    e(f"s_cmp_eq_u32 s{S_EARLY}, 2")
    e("s_cbranch_scc0 R_NOQ")
    for ks in range(4):
        e(f"ds_read_b64_tr_b16 {vr(80+4*ks,2)}, v59 offset:{L_W1S+16384+4096*ks}")
        e(f"ds_read_b64_tr_b16 {vr(82+4*ks,2)}, v59 offset:{L_W1S+16384+4096*ks+1024}")
    for q in range(8):
        e(f"v_lshlrev_b32 v{144+2*q}, 16, v{104+q}")
        e(f"v_and_b32 v{145+2*q}, 0xffff0000, v{104+q}")
    e("s_nop 0")
    e("s_waitcnt lgkmcnt(0)")
    for ks in range(4): e(mf16(144, 80 + 4*ks, 160 + 4*ks, vr(144, 16)))
    e("s_nop 7")
    e("s_nop 3")
    for i in range(8): e(f"v_pk_mul_f32 {vr(144+2*i,2)}, {vr(144+2*i,2)}, s[80:81]")
    for i in range(8): e(f"v_cvt_pk_bf16_f32 v{64+i}, v{144+2*i}, v{145+2*i}")
    e("s_mov_b64 exec, s[88:89]")
    for q in range(4): e(f"ds_write_b64 v60, {vr(64+2*q,2)} offset:{16*q}")
    e("s_mov_b64 exec, -1")
    e(f"s_mov_b32 s{S_EARLY}, 0")
    lab("R_NOQ")
    wave_reset()
    stamp(19)
    e("s_waitcnt vmcnt(8)")
    for k in list(range(8, 16)) + list(range(8)):
        e(f"s_mov_b64 exec, {sr(S_MASK+2*k,2)}")
        if k >= 8: e(f"s_cbranch_execz R_A{k}")
        else: e(f"s_waitcnt vmcnt({7-k})")
        e(f"ds_add_rtn_u32 v{T+k}, v{113+2*k}, v55 offset:{L_CNT2}")
        if k >= 8: lab(f"R_A{k}")
    def list_writes(tag):
        for k in list(range(8, 16)) + list(range(8)):
            e(f"s_mov_b64 exec, {sr(S_MASK+2*k,2)}")
            if k >= 8: e(f"s_cbranch_execz {tag}{k}")
            e(f"ds_write_b32 v{T+k}, v{112+2*k}")
            if k >= 8: lab(f"{tag}{k}")
        e("s_mov_b64 exec, -1")
    e("s_waitcnt lgkmcnt(0)")
    list_writes("R_C")
    e("s_waitcnt lgkmcnt(0)")
    e("s_barrier")
    stamp(9)
    def mid():
        e(f"ds_read_b32 v32, v54 offset:{L_CNT2}")
        e(f"ds_read_b32 v33, v53 offset:{L_FLAG}")
        e(f"ds_read_b32 v34, v54 offset:{L_DEG}")
        return 3
    first_tile(mid)
    e("s_waitcnt lgkmcnt(0)")
    e(f"v_sub_u32 v32, v32, v{V_L0}")
    e("v_max_u32 v35, 4, v32")
    e("v_subrev_u32 v35, 4, v35")
    e("v_lshrrev_b32 v35, 5, v35")
    e("v_mov_b32 v36, v35")
    e(f"v_cmp_lt_u32 s[76:77], {LCAP//8-1}, v35")
    scan64(36)
    e(f"v_readfirstlane_b32 s{S_MORE}, v33")
    e(f"v_readlane_b32 s6, v36, {SPLIT-1}")
    e("v_readlane_b32 s7, v36, 63")
    e(f"v_cmp_le_u32 vcc, {SPLIT}, v{V_LANE}")
    e("v_sub_u32 v36, v36, v35")
    e("v_lshrrev_b32 v32, 2, v32")
    e("s_sub_u32 s7, s7, s6")
    e(f"s_add_u32 s82, s6, {SPLIT+3}")
    e(f"s_add_u32 s83, s7, {NPB-SPLIT+3}")
    e("s_max_u32 s5, s82, s83")
    e(f"s_cmp_ge_u32 s5, {4*HT+4}")
    e("s_cbranch_scc0 R_FITS")
    e(f"s_mov_b32 s{S_WN}, {WSLOW}")
    e("s_branch NEXT_ROUND")
    lab("R_FITS")
    e(f"s_sub_u32 s6, {NPB-SPLIT-1}, s6")
    e(f"v_add_u32 v37, {SPLIT-1}, v36")
    e("v_add_u32 v38, s6, v36")
    e("v_cndmask_b32 v37, v37, v38, vcc")
    e(f"v_mov_b32 v39, v{V_GV}")
    e(f"s_mov_b32 s{S_EARLY}, 1")
    e("s_cmp_eq_u64 s[76:77], 0")
    e("s_cbranch_scc0 R_COMPACT")
    lab("R_TABLE")
    e("v_mov_b32 v41, 0x3f80")
    e(f"s_add_u32 s6, s{S_W}, 1")
    lab("R_GT")
    e("v_cmp_le_u32 vcc, s6, v35")
    e("s_and_b64 exec, exec, vcc")
    e("s_cbranch_execz R_GTE")
    e("v_add_u32 v44, s6, v37")
    e("s_lshl_b32 s7, s6, 5")
    e(f"v_lshl_add_u32 v45, v44, 2, v{V_GB}")
    e("v_add_u32 v47, s7, v39")
    e("ds_write_b32 v45, v47")
    e("v_lshrrev_b32 v46, 1, v44")
    e(f"v_mul_u32_u24 v46, {SELS//2}, v46")
    e("v_and_b32 v44, 1, v44")
    e("v_lshl_add_u32 v46, v44, 1, v46")
    e(f"v_add_u32 v46, v46, v{V_SB}")
    e("ds_write_b16 v46, v41")
    e("s_add_u32 s6, s6, 8")
    e("s_branch R_GT")
    lab("R_GTE")
    e("s_mov_b64 exec, -1")
    e("s_waitcnt lgkmcnt(0)")
    e("s_barrier")
    stamp(10)
    e(f"s_cmp_eq_u32 s{S_W}, 0")
    e("s_cbranch_scc0 R_ND")
    e("v_add_u32 v34, v34, v32")
    e(f"ds_write_b32 v54, v34 offset:{L_DEG}")
    lab("R_ND")
    e(f"s_sub_u32 s5, 7, s{S_W}")
    e(f"s_cmp_lt_u32 s{S_W}, 4")
    e(f"s_cselect_b32 s5, s{S_W}, s5")
    e("s_cselect_b32 s6, s82, s83")
    e("s_lshr_b32 s6, s6, 2")
    e("s_sub_u32 s6, s6, s5")
    e("s_add_u32 s6, s6, 3")
    e(f"s_lshr_b32 s{S_NT}, s6, 2")
    e(f"s_or_b32 s6, s{S_MORE}, s{S_RB}")
    e(f"s_or_b32 s{S_SAFE}, s{S_SAFE}, s6")
    e(f"s_cmp_eq_u32 s{S_EARLY}, 0")
    e("s_cbranch_scc1 WAVE_REDO")
    lab("WAVE_GO")
    e(f"ds_read_u16 v{V_LI}, v{V_GIA} offset:64")
    e(f"s_mov_b32 m0, s{S_M0[1]}")
    e(f"s_sub_u32 s{S_REM}, s{S_NT}, 1")
    e("s_waitcnt lgkmcnt(0)")
    e(f"v_add_u32 v{V_LI}, v{V_LI}, v{V_LIO}")
    e(f"ds_read_b128 {vr(IDR,4)}, v{V_LI}")
    e(PERM)
    e(AXB)
    for s in dma(1): e(s)
    e("s_waitcnt lgkmcnt(0)")
    for s in mads(): e(s)
    for s in memphase(0, 0): e(s)
    e(mfext(0))
    e("s_nop 7")
    e("s_nop 1")
    stamp(11); stamp(28, True)
    e(f"s_cmp_lg_u32 s{S_SAFE}, 0")
    e("s_cbranch_scc1 ENTERS")
    e("s_branch ENTERF")

    lab("R_COMPACT")
    e("s_barrier")
    fill_list(40)
    e(f"v_add_lshl_u32 v38, v36, v{V_LANE}, 5")
    e(f"v_add_u32 v38, {L_LIST}, v38")
    e(f"v_sub_u32 v38, v38, v{V_L0}")
    e("v_add_u32 v39, v39, v38")
    for k in range(16): e(f"ds_bpermute_b32 v{113+2*k}, v{113+2*k}, v38")
    e(f"v_lshl_add_u32 v45, v{V_COL}, 2, v{V_GB}")
    e(f"s_bfm_b64 exec, {NPB}, 0")
    e("ds_write_b32 v45, v39")
    e("s_mov_b64 exec, -1")
    e("s_waitcnt lgkmcnt(0)")
    e("s_barrier")
    for k in range(16): e(f"v_add_u32 v{T+k}, v{T+k}, v{113+2*k}")
    list_writes("R_D")
    e(f"s_mov_b32 s{S_EARLY}, 0")
    e("s_branch R_TABLE")
    lab("WAVE_REDO")
    e("s_waitcnt vmcnt(0)")
    wave_reset()
    first_tile()
    e("s_branch WAVE_GO")

    mainloop(False)
    mainloop(True)

    lab("NEXTR")
    e(f"s_add_u32 s{S_RB}, s{S_RB}, s{S_WN}")
    lab("NEXT_ROUND")
    e("s_setprio 0")
    e("s_waitcnt vmcnt(0) lgkmcnt(0)")
    e("s_barrier")
    init_tables(32)
    e("s_waitcnt lgkmcnt(0)")
    e("s_barrier")
    static_writes(32, "B")
    e(f"v_mul_u32_u24 v33, {DS}, v{V_CHK}")
    e(f"s_lshl_b32 s5, s{S_B}, 3")
    e(f"s_add_u32 s5, s5, {WS_DESC}")
    e(f"buffer_load_dwordx2 v[34:35], v33, {sr(S_WS)}, s5 offen sc1")
    e("s_waitcnt lgkmcnt(0)")
    e("s_barrier")
    e("s_branch POLL1")

    out.append(".p2align 3")
    lab("DRAIN")
    e("s_waitcnt lgkmcnt(0)")
    e(f"s_cmp_lg_u32 s{S_MORE}, 0")
    for ct in range(4): e(mfsel(ct))
    stamp(12); stamp(29, True)
    e("s_cbranch_scc1 NEXTR")
    e(f"v_lshrrev_b32 v96, 5, v{V_LANE}")
    e(f"v_and_b32 v97, 31, v{V_LANE}")
    e("v_mul_u32_u24 v97, 272, v97")
    e("v_lshl_add_u32 v97, v96, 4, v97")
    e(f"v_add_u32 v97, s{S_M0[0]}, v97")
    e(f"s_mov_b32 s6, {hex(f2u(2.0**120))}")
    e(f"v_cmp_nge_f32 s[76:77], s6, v{V_DMAX}")
    e(f"v_lshrrev_b32 v98, 3, v{V_TID}")
    e(f"v_and_b32 v99, 7, v{V_TID}")
    O = D
    cv = lambda ct: [f"v_cvt_pk_bf16_f32 v{64+8*ct+i}, v{H+16*ct+2*i}, v{H+16*ct+2*i+1}" for i in range(8)]
    for s in cv(0): e(s)
    rest = [f"v_cmp_le_u32 vcc, {SPLIT}, v98", "v_mul_u32_u24 v100, 272, v98", "v_lshl_add_u32 v100, v99, 5, v100",
            f"v_add_u32 v101, {4*TBW - SPLIT*272}, v100", "v_cndmask_b32 v100, v100, v101, vcc",
            "v_lshlrev_b32 v101, 2, v98", "v_lshlrev_b32 v102, 5, v99", "v_lshlrev_b32 v103, 15, v98"]
    for ct in range(4):
        nxt = cv(ct + 1) if ct < 3 else rest
        for s in range(2):
            for mt in range(2):
                ks = 2 * ct + s
                for x in nxt[4*s + 2*mt: 4*s + 2*mt + 2]: e(x)
                e(mf16(O[mt], w2f(ks, mt), 64 + 4*ks, "0" if ks == 0 else vr(O[mt], 16)))
    e("v_lshl_add_u32 v103, v99, 4, v103")
    e(f"s_lshl_b32 s5, s{S_B}, 7")
    e("v_add_u32 v103, s5, v103")
    e("s_movk_i32 s7, 0x207")
    e("s_waitcnt vmcnt(0)")
    e("s_nop 5")
    e(f"v_cmp_class_f32 vcc, v{O[0]}, s7")
    e("s_or_b64 s[76:77], s[76:77], vcc")
    e("s_cbranch_scc0 EPI_OK")
    e(f"s_cmp_lg_u32 s{S_SAFE}, 0")
    e("s_cbranch_scc1 EPI_OK")
    e(f"s_mov_b32 s{S_SAFE}, 1")
    for i in range(64): e(f"v_mov_b32 v{H+i}, 0")
    e("s_branch WAVE_REDO")
    lab("EPI_OK")
    for mt in range(2):
        for q in range(4):
            e(f"ds_write_b128 v97, {vr(O[mt]+4*q,4)} offset:{128*mt+32*q}")
    e(f"ds_read_b128 v[32:35], v102 offset:{L_B2}")
    e(f"ds_read_b128 v[36:39], v102 offset:{L_B2+16}")
    e(f"v_cmp_gt_u32 vcc, {NPB}, v98")
    e(f"s_or_b32 s6, s2, s{S_W}")
    e("s_cbranch_scc1 EPI_NE")
    e(f"v_mov_b32 v42, s{S_TAGB}")
    e(f"v_mov_b32 v43, s{S_TAGA}")
    e("v_mov_b32 v44, 0")
    e("s_mov_b64 exec, 1")
    e(f"buffer_store_dwordx2 v[42:43], v44, {sr(S_WS)}, 0 offen offset:{WS_EPOCH}")
    e("s_mov_b64 exec, -1")
    lab("EPI_NE")
    e("s_waitcnt lgkmcnt(0)")
    e("s_barrier")
    stamp(13)
    e("s_and_b64 exec, exec, vcc")
    e("s_cbranch_execz K_FIN")
    e(f"ds_read_b32 v40, v101 offset:{L_DEG}")
    for s in range(4):
        e(f"ds_read_b128 {vr(64+8*s,4)}, v100 offset:{L_TB+s*TBW}")
        e(f"ds_read_b128 {vr(68+8*s,4)}, v100 offset:{L_TB+s*TBW+16}")
    e(f"s_mov_b32 s6, {hex(f2u(-LN2))}")
    e("s_mov_b32 s7, s6")
    e("s_waitcnt lgkmcnt(8)")
    e("v_cvt_f32_u32 v40, v40")
    for i in range(4): e(f"v_pk_mul_f32 {vr(32+2*i,2)}, {vr(32+2*i,2)}, v[40:41] op_sel_hi:[1,0]")
    for s in range(4):
        e(f"s_waitcnt lgkmcnt({6-2*s})")
        for i in range(4): e(f"v_pk_fma_f32 {vr(32+2*i,2)}, {vr(64+8*s+2*i,2)}, s[6:7], {vr(32+2*i,2)}")
    for i in range(4): e(f"v_cvt_pk_bf16_f32 v{44+i}, v{32+2*i}, v{33+2*i}")
    e(f"buffer_store_dwordx4 v[44:47], v103, {sr(S_OUT)}, 0 offen")
    lab("K_FIN")
    if SPIN >= 0:
        lab("SPINL")
        e("s_memrealtime s[98:99]")
        e("s_waitcnt lgkmcnt(0)")
        e("s_sub_u32 s98, s98, s96")
        e("s_cmp_lt_u32 s98, 6000")
        e("s_cbranch_scc1 SPINL")
    if DIAG:
        e("s_mov_b64 exec, -1")
        e("s_waitcnt vmcnt(0)")
        stamp(14); stamp(31, True)
        e(f"v_writelane_b32 v255, s{S_NT}, 27")
        e("s_lshl_b32 s5, s2, 11")
        e(f"s_add_u32 s5, s5, {WS_STAMP}")
        e(f"v_lshlrev_b32 v1, 2, v{V_TID}")
        e(f"buffer_store_dword v255, v1, {sr(S_WS)}, s5 offen")
    lab("K_END")
    e("s_endpgm")

hdr = open("standalone__edge_featured_mpnn_mpnn__graph.s.ref").read().split("; Override")[0]
out.append(hdr.rstrip())
out.append(f"; @launch grid=(256,1,1) block=(512,1,1) lds={L_END}")
out.append('.amdgcn_target "amdgcn-amd-amdhsa--gfx950"')
out.append(".text")
out.append(f".globl {KN}")
out.append(".p2align 8")
out.append(f".type {KN},@function")
kernel()
out.append(f""".section .rodata,"a"
.p2align 6
.amdhsa_kernel {KN}
  .amdhsa_next_free_vgpr 256
  .amdhsa_next_free_sgpr 102
  .amdhsa_accum_offset 256
  .amdhsa_group_segment_fixed_size 0
  .amdhsa_kernarg_size 88
  .amdhsa_user_sgpr_count 2
  .amdhsa_user_sgpr_kernarg_segment_ptr 1
  .amdhsa_system_sgpr_workgroup_id_x 1
.end_amdhsa_kernel""")
dst = sys.argv[1] if len(sys.argv) > 1 else "standalone__edge_featured_mpnn_mpnn__graph.s"
open(dst, "w").write("\n".join(out) + "\n")
print("written", dst, "LDS", L_END)
```

```python
import struct, sys, os
import numpy as np
from align import align, isize

N, E = 12500, 800000
NPB, SPLIT = 49, 25
CH, CHS, GCS, DS = 3128, 25088, 25216, 2176
NQ, NQL = CH // 4, (E - 255 * CH) // 4
LOG2E = 1.4426950408889634
LN2 = 0.6931471805599453
KN = "standalone__edge_featured_mpnn_mpnn__graph_kernel"
DIAG = int(os.environ.get("DIAG", "0"))
PREF = int(os.environ.get("PREF", "0"))
X_NOP = int(os.environ.get("X_NOP", "0"))
STF = os.environ.get("STF", "sc1")
LDF = os.environ.get("LDF", "")
TRANS = int(os.environ.get("TRANS", "0"))
ELF = os.environ.get("ELF", "")
SLP = int(os.environ.get("SLP", "1"))
ORD = int(os.environ.get("ORD", "1"))
PFL = 0
CPF = int(os.environ.get("CPF", "0"))
CPF0 = int(os.environ.get("CPF0", "0"))
PEEL = int(os.environ.get("PEEL", "1"))
STOUCH = int(os.environ.get("STOUCH", "0"))
TOUCH = int(os.environ.get("TOUCH", "0"))

def f2u(x): return struct.unpack("<I", struct.pack("<f", x))[0]
def u2f(u): return struct.unpack("<f", struct.pack("<I", u))[0]

WS_EPOCH = 0
WS_PT = 4096
WS_DESC = WS_PT + 12544 * 256
WS_FLAG = WS_DESC + 256 * DS
WS_PFLAG = WS_FLAG + 8 * DS
WS_ENT = WS_PFLAG + 8 * DS
WS_SIZE = WS_ENT + 256 * GCS
WS_STAMP = 12 << 20
if DIAG: WS_SIZE = 16 << 20

L_CNT1, L_BASE1 = 0, 1024
L_CNT2, L_FLAG, L_DEG, L_B2 = 2048, 2304, 2368, 2816
L_B1 = 0
L_EXT = 3072
L_TB = 4096
TBW = 8704
L_STG, L_PS, L_W1S, L_XS = L_TB, L_TB + CHS, L_TB + CHS, L_TB + CHS + 32768
PS = 272
assert L_XS + 8704 <= L_TB + 8 * TBW and L_W1S % 256 == 0
HT, GTH = 60, 72
L_SEL = L_TB + 8 * TBW
SELS, SELSZ = 200, 24576
assert 2 * HT * SELS + 56 <= SELSZ
L_GT = L_SEL + SELSZ
L_QT = L_GT + 2 * GTH * 16
QS = 328
L_W2 = (L_QT + NPB * QS + 255) // 256 * 256
L_LIST = L_W2 + 16384
LS, LCAP = 528, 128
LISTSZ = (NPB + 1) * LS
L_END = L_LIST + LISTSZ
assert L_END <= 163840, L_END
PADENT = 0x00007000
PSH = 3072
WSLOW = 6

out = []
def e(s): out.append("    " + s)
def lab(s): out.append(s + ":")
def c(s): out.append("    ; " + s)
def vr(a, n): return f"v[{a}:{a+n-1}]"
def sr(a, n=4): return f"s[{a}:{a+n-1}]"

SPIN = int(os.environ.get("SPIN", "-1"))
def stamp(i, real=False):
    if SPIN == i:
        e("s_waitcnt lgkmcnt(0)")
        e("s_memrealtime s[96:97]")
        e("s_waitcnt lgkmcnt(0)")
    if not DIAG: return
    if DIAG == 2 and i not in (0, 30, 28, 29, 31, 11, 12, 14): return
    e("s_waitcnt lgkmcnt(0)")
    e(f"{'s_memrealtime' if real else 's_memtime'} s[98:99]")
    e("s_waitcnt lgkmcnt(0)")
    e(f"v_writelane_b32 v255, s98, {i}")

def scan64(v):
    for sh in (1, 2, 4, 8):
        e("s_nop 1")
        e(f"v_add_u32_dpp v{v}, v{v}, v{v} row_shr:{sh} row_mask:0xf bank_mask:0xf bound_ctrl:1")
    e("s_nop 1")
    e(f"v_add_u32_dpp v{v}, v{v}, v{v} row_bcast:15 row_mask:0xa bank_mask:0xf")
    e("s_nop 1")
    e(f"v_add_u32_dpp v{v}, v{v}, v{v} row_bcast:31 row_mask:0xc bank_mask:0xf")

H = 176
C = (144, 160)
D = (112, 128)
T = 96
P = 80
SL = 76
BX = (72, 74)
IDX, IDR = 64, 68
NN, DD, RR, AX, CX, V_M = 16, 18, 20, 22, 24, 26
V_CA, V_DMAC, V_LI, V_LM, V_GQA, V_SELA, V_PSEL, V_QMUL, V_QC, V_GQ, V_QA, V_DMAX, V_TID, V_LANE, V_GIA = range(1, 16)
V_GMA, V_LIO, V_LMO = 28, 29, 30
V_SAVE = 240
V_CHK, V_J0, V_W2A = 244, 245, 246
S_X, S_E, S_SRC, S_DST, S_W1, S_B1, S_W2, S_B2, S_OUT, S_WS, S_P = 8, 12, 16, 20, 24, 28, 32, 36, 40, 44, 48
S_MASK = 8
S_SOFF = 52
S_256, S_REM, S_M0, S_WN, S_RB, S_MORE, S_SAFE, S_NT, S_EARLY, S_TAGA, S_TAGB, S_SPIN = 60, 61, (62, 63), 64, 65, 66, 67, 68, 69, 72, 73, 70
S_B, S_W = 3, 4

def mf16(d, a, b, cc): return f"v_mfma_f32_32x32x16_bf16 {vr(d,16)}, {vr(a,4)}, {vr(b,4)}, {cc}"
def mfext(ct): return f"v_mfma_f32_32x32x8_bf16 {vr(D[ct&1],16)}, {vr(AX,2)}, {vr(BX[ct&1],2)}, {vr(C[ct&1],16)}"
def mfsel(ct): return mf16(H + 16 * ct, P + 4 * ct, SL, vr(H + 16 * ct, 16))
def dma(half):
    return [f"buffer_load_dwordx4 v{IDX+j}, {sr(S_P)}, s{S_SOFF+4*half+j} offen offset:{1024*j} lds" for j in range(4)]
def mads(src=IDR): return [f"v_mad_i32_i16 v{IDX+j}, v{src+j}, s{S_256}, v{V_DMAC}" for j in range(4)]
def c_reads(half):
    L = []
    for ctl in range(2):
        for r in range(16):
            mm = r >> 1
            L.append(f"ds_read_u16_d16_hi v{C[ctl]+r}, v{V_CA} offset:{half*4096 + (mm&3)*1024 + (2*(r&1) + (mm>>2))*128 + ctl*64}")
    return L
def tr_read(ct): return f"ds_read_b64_tr_b16 {vr(BX[ct&1],2)}, v{V_QA} offset:{64*ct}"
AXB = f"v_pk_mul_f32 {vr(AX,2)}, {vr(CX,2)}, {vr(V_M,2)} op_sel_hi:[1,0]"
QAB = f"v_mad_u32_u24 v{V_QA}, v{V_GQ}, v{V_QMUL}, v{V_QC}"
PERM = f"v_perm_b32 v{V_M}, v{V_M}, v{V_M}, v{V_PSEL}"

def block(tau, ct, safe, gate=False, last=False):
    cur = D[ct & 1]
    pc, pt = (ct - 1) & 3, (tau if ct > 0 else (tau - 1) & 3)
    tr = [f"v_exp_f32 v{T+i}, v{cur+i}" for i in range(16)] + [f"v_rcp_f32 v{RR}, v{DD}", f"v_rcp_f32 v{RR+1}, v{DD+1}"]
    mf = [] if last else [mfext((ct + 1) & 3)]
    if tau == 0: mf.append(mfsel(ct))
    fill = []
    if ct == 0: fill += [f"v_add_u32 v{V_LI}, v{V_LI}, v{V_LIO}", f"v_add_u32 v{V_LM}, v{V_LM}, v{V_LMO}"]
    if ct == 1: fill += mads() + [PERM]
    if ct == 2:
        fill += [QAB]
        if tau == 3:
            fill += [f"v_add_u32 v{V_GIA}, 256, v{V_GIA}", f"v_add_u32 v{V_GMA}, 256, v{V_GMA}",
                     f"v_add_u32 v{V_GQA}, 256, v{V_GQA}", f"v_add_u32 v{V_SELA}, {16*SELS}, v{V_SELA}"]
    fill.append(f"v_max3_f32 v{V_DMAX}, v{DD}, v{DD+1}, v{V_DMAX}")
    L = []
    k = 0
    if gate:
        L += [tr[0], "s_setprio 3"]; k = 1
    for m in mf:
        L.append(m); L += tr[k:k+4]; k += 4
    L += tr[k:] + fill
    L.append(f"v_pk_mul_f32 {vr(RR,2)}, {vr(NN,2)}, {vr(RR,2)}")
    cvt = f"v_cvt_pk_bf16_f32 v{P+4*pc+pt}, v{RR}, v{RR+1}"
    if not safe:
        L += [f"v_pk_add_f32 {vr(DD,2)}, {vr(T,2)}, 1.0 op_sel_hi:[1,0]", cvt]
        if ct == 2: L.append(AXB)
        for j in range(1, 8):
            n_in = vr(cur, 2) if j == 1 else vr(NN, 2)
            L += [f"v_pk_fma_f32 {vr(NN,2)}, {n_in}, {vr(T+2*j,2)}, {n_in}",
                  f"v_pk_fma_f32 {vr(NN,2)}, {vr(cur+2*j,2)}, {vr(DD,2)}, {vr(NN,2)}",
                  f"v_pk_fma_f32 {vr(DD,2)}, {vr(DD,2)}, {vr(T+2*j,2)}, {vr(DD,2)}"]
    else:
        L += [f"v_pk_add_f32 {vr(T+2*j,2)}, {vr(T+2*j,2)}, 1.0 op_sel_hi:[1,0]" for j in range(8)] + [cvt]
        if ct == 2: L.append(AXB)
        L += [f"v_rcp_f32 v{T+i}, v{T+i}" for i in range(16)]
        L.append(f"v_pk_mul_f32 {vr(NN,2)}, {vr(cur,2)}, {vr(T,2)}")
        L += [f"v_pk_fma_f32 {vr(NN,2)}, {vr(cur+2*j,2)}, {vr(T+2*j,2)}, {vr(NN,2)}" for j in range(1, 8)]
    return L

def memphase(tau, half):
    L = ["s_setprio 0", "s_waitcnt vmcnt(4)"]
    L += c_reads(half) + [tr_read(2 * half), tr_read(2 * half + 1)]
    if half == 0:
        L += [f"ds_read_u16 v{V_LI}, v{V_GIA} offset:{(tau+2)*64}",
              f"ds_read_u16 v{V_LM}, v{V_GMA} offset:{(tau+1)*64}"]
    if half == 1:
        L += [f"ds_read_b128 {vr(IDR,4)}, v{V_LI}",
              f"ds_read_b32 v{V_M}, v{V_LM}",
              f"ds_read_u16 v{V_GQ}, v{V_GQA} offset:{(tau+1)*64+2}"]
        if tau == 1: L.append(f"ds_read_b32 v{SL}, v{V_SELA}")
        if tau >= 1: L.append(f"ds_read_b32 v{SL+tau}, v{V_SELA} offset:{tau*4*SELS}")
    L += [f"s_mov_b32 m0, s{S_M0[half]}", "s_waitcnt lgkmcnt(0)"]
    L += dma(half)
    return L

def w2f(ks, mt): return (32 if ks < 4 else 144) + 8 * (ks & 3) + 4 * mt
def w2_reads():
    return [f"ds_read_b64_tr_b16 {vr(w2f(ks,mt)+2*t,2)}, v{27 if mt else V_W2A} offset:{2048*ks+1024*t}"
            for ks in range(8) for mt in range(2) for t in range(2)]

def emit(L):
    L = align(L)
    assert sum(isize(x) for x in L) % 8 == 0
    for s in L: e(s)

def mainloop(safe):
    x = "S" if safe else "F"
    out.append(".p2align 6")
    lab(f"LOOP{x}")
    for tau in range(4):
        c(f"==== tile slot {tau}")
        emit(memphase(tau, 0))
        emit(block((tau - 1) & 3, 3, safe, gate=True))
        if tau == 0 and not PEEL: lab(f"ENTER{x}")
        emit(block(tau, 0, safe))
        if tau == 0 and PEEL: lab(f"ENTER{x}")
        emit(memphase(tau, 1))
        emit(block(tau, 1, safe, gate=True))
        emit(block(tau, 2, safe))
        e(f"s_sub_u32 s{S_REM}, s{S_REM}, 1")
        if tau < 3: e(f"s_cbranch_scc1 TAIL{x}{tau}")
        else: e(f"s_cbranch_scc0 LOOP{x}")
    for tau in (3, 0, 1, 2):
        lab(f"TAIL{x}{tau}")
        emit(["s_setprio 0", f"v_xor_b32 v27, 64, v{V_W2A}"] + w2_reads())
        emit(block(tau, 3, safe, gate=True, last=True))
        if tau == 0: e(f"ds_read_b32 v{SL}, v{V_SELA}")
        e(f"v_rcp_f32 v{RR}, v{DD}")
        e(f"v_rcp_f32 v{RR+1}, v{DD+1}")
        e(f"v_max3_f32 v{V_DMAX}, v{DD}, v{DD+1}, v{V_DMAX}")
        e(f"v_pk_mul_f32 {vr(RR,2)}, {vr(NN,2)}, {vr(RR,2)}")
        for t2 in range(tau + 1, 4): e(f"v_mov_b32_e64 v{SL+t2}, 0")
        e(f"v_cvt_pk_bf16_f32 v{P+12+tau}, v{RR}, v{RR+1}")
        e("s_nop 0")
        e("s_branch DRAIN")

def find_cx(target):
    m = np.float64(u2f(0x00FF0000))
    g = f2u(float(np.float32(np.float64(u2f(target)) / m)))
    for d in range(-3, 4):
        if f2u(float(np.float32(np.float64(u2f(g + d)) * m))) == target: return g + d
    raise SystemExit("no cx")

V_GV, V_GB, V_SB, V_L0, V_COL = 247, 248, 249, 250, 251

def fill_list(t):
    e(f"v_lshlrev_b32 v{t+8}, 4, v{V_TID}")
    e(f"v_add_u32 v{t+9}, {L_LIST}, v{t+8}")
    for i in range(4): e(f"v_mov_b32 v{t+i}, {hex(PADENT)}")
    for o in (0, 8192, 16384, LISTSZ - 8192): e(f"ds_write_b128 v{t+9}, {vr(t,4)} offset:{o}")

def init_tables(t):
    fill_list(t)
    for i in range(4): e(f"v_mov_b32 v{t+4+i}, 0")
    e(f"v_add_u32 v{t+8}, {L_SEL}, v{t+8}")
    for o in (0, 8192, 16384): e(f"ds_write_b128 v{t+8}, {vr(t+4,4)} offset:{o}")
    e(f"v_min_u32 v{t+8}, {GTH*4-1}, v{V_TID}")
    e(f"v_lshlrev_b32 v{t+8}, 3, v{t+8}")
    e(f"v_add_u32 v{t+8}, {L_GT}, v{t+8}")
    e(f"v_mov_b32 v{t+10}, {NPB*LS}")
    e(f"v_mov_b32 v{t+11}, {NPB*LS}")
    e(f"ds_write_b64 v{t+8}, {vr(t+10,2)}")

def static_writes(t, tag):
    e(f"s_cmp_eq_u32 s{S_W}, 1")
    e(f"s_cbranch_scc0 STW{tag}")
    e(f"v_lshlrev_b32 v{t}, 2, v{V_LANE}")
    e(f"v_mov_b32 v{t+1}, 0")
    e(f"ds_write_b32 v{t}, v{V_L0} offset:{L_CNT2}")
    e(f"ds_write_b32 v{t+1}, v{t+1} offset:{L_FLAG}")
    e(f"v_lshl_add_u32 v{t}, v{V_COL}, 2, v{V_GB}")
    e(f"v_lshrrev_b32 v{t+1}, 1, v{V_COL}")
    e(f"v_mul_u32_u24 v{t+1}, {SELS//2}, v{t+1}")
    e(f"v_and_b32 v{t+2}, 1, v{V_COL}")
    e(f"v_lshl_add_u32 v{t+1}, v{t+2}, 1, v{t+1}")
    e(f"v_add_u32 v{t+1}, v{t+1}, v{V_SB}")
    e(f"v_mov_b32 v{t+2}, 0x3f80")
    e(f"s_bfm_b64 exec, {NPB}, 0")
    e(f"ds_write_b32 v{t}, v{V_GV}")
    e(f"ds_write_b16 v{t+1}, v{t+2}")
    e("s_mov_b64 exec, -1")
    lab(f"STW{tag}")

def desc_soff():
    e(f"s_lshr_b32 s5, s{S_B}, 2")
    e(f"s_and_b32 s7, s{S_B}, 1")
    e("s_lshl1_add_u32 s5, s5, s7")
    e(f"s_and_b32 s7, s{S_B}, 2")
    e("s_lshl_b32 s7, s7, 6")
    e("s_add_u32 s5, s5, s7")
    e(f"s_lshl3_add_u32 s5, s5, {WS_DESC}")

def wave_reset():
    e(f"v_mov_b32 v{V_GIA}, v{V_SAVE}")
    e(f"v_mov_b32 v{V_GMA}, v{V_SAVE+1}")
    e(f"v_mov_b32 v{V_GQA}, v{V_SAVE+2}")
    e(f"v_mov_b32 v{V_SELA}, v{V_SAVE+3}")
    e(f"ds_read_u16 v{V_LI}, v{V_GIA}")
    e(f"ds_read_u16 v{V_LM}, v{V_GMA}")
    e(f"ds_read_u16 v{V_GQ}, v{V_GQA} offset:2")
    for i in range(2):
        e(f"v_mov_b32 v{NN+i}, 0")
        e(f"v_mov_b32 v{DD+i}, 1.0")
    e(f"v_mov_b32 v{V_DMAX}, 0")
    for r in list(range(SL, SL + 20, 2)) + list(range(C[0], C[0] + 32, 2)):
        e(f"v_pk_mul_f32 {vr(r,2)}, {vr(NN,2)}, {vr(NN,2)}")
    e("s_waitcnt lgkmcnt(0)")
    e(f"v_add_u32 v{V_LI}, v{V_LI}, v{V_LIO}")
    e(f"v_add_u32 v{V_LM}, v{V_LM}, v{V_LMO}")
    e(QAB)

def first_tile(mid=None):
    e(f"ds_read_b128 {vr(IDX,4)}, v{V_LI}")
    e(f"ds_read_b32 v{V_M}, v{V_LM}")
    n = 1
    if mid: n += mid()
    e(f"s_mov_b32 m0, s{S_M0[0]}")
    e(f"s_waitcnt lgkmcnt({n})")
    for s in mads(IDX): e(s)
    for s in dma(0): e(s)

def kernel():
    lab(KN)
    e("s_cmp_ge_u32 s2, 256")
    e("s_cbranch_scc1 K_END")
    if DIAG: e("v_mov_b32 v255, 0")
    stamp(30, True); stamp(0)
    for s, off in ((S_X, 0), (S_W1, 32), (S_DST, 24), (S_SRC, 16), (S_E, 8), (S_WS, 80), (S_B1, 40), (S_W2, 48), (S_B2, 56), (S_OUT, 64)):
        e(f"s_load_dwordx2 {sr(s,2)}, s[0:1], {off}")
    if CPF0:
        e("s_getpc_b64 s[90:91]")
        lab("CPF_PC")
        e("s_and_b32 s5, s2, -8")
        e(f"v_subrev_u32 v18, {64*(CPF0-1)}, v0")
        e("v_add_lshl_u32 v16, v18, s5, 7")
        e("v_min_u32 v16, CODE_ALL, v16")
        e("v_mov_b32 v17, s91")
        e("v_add_co_u32 v16, vcc, s90, v16")
        e("v_cmp_gt_u32 s[92:93], 8, v18")
        e("s_nop 0")
        e("v_addc_co_u32 v17, vcc, 0, v17, vcc")
        e("s_mov_b64 exec, s[92:93]")
        e("s_cbranch_execz CPF_E")
        e("global_load_dword v18, v[16:17], off")
        lab("CPF_E")
        e("s_mov_b64 exec, -1")
    e(f"v_mov_b32 v{V_TID}, v0")
    e(f"v_readfirstlane_b32 s{S_W}, v0")
    e(f"v_and_b32 v{V_LANE}, 63, v0")
    for s, sz in ((S_DST, E*4), (S_SRC, E*4), (S_E, E*2), (S_W1, 129*256), (S_X, N*128), (S_B1, 256), (S_W2, 16384), (S_B2, 128)):
        e(f"s_mov_b32 s{s+2}, {sz}")
        e(f"s_mov_b32 s{s+3}, 0x00020000")
    e(f"s_lshr_b32 s{S_W}, s{S_W}, 6")
    e(f"s_and_b32 s{S_B}, s2, 7")
    e(f"s_lshl_b32 s{S_B}, s{S_B}, 5")
    e("s_lshr_b32 s5, s2, 3")
    e(f"s_add_u32 s{S_B}, s{S_B}, s5")
    e(f"v_lshrrev_b32 v37, 4, v{V_LANE}")
    e(f"v_lshrrev_b32 v47, 3, v{V_LANE}")
    e(f"v_and_b32 v48, 7, v{V_LANE}")
    e("v_and_b32 v45, 1, v37")
    e("v_and_b32 v58, 4, v47")
    e("v_and_b32 v59, 1, v47")
    e("v_lshl_add_u32 v58, v59, 1, v58")
    e("v_add_u32 v58, v58, v45")
    e("v_xor_b32 v59, v48, v37")
    e("v_lshlrev_b32 v59, 4, v59")
    e("v_lshl_add_u32 v58, v58, 15, v59")
    e(f"s_lshl_b32 s5, s{S_W}, 18")
    e(f"s_lshl_b32 s6, s{S_B}, 7")
    e("s_add_u32 s5, s5, s6")
    e("v_add_u32 v58, s5, v58")
    e("v_lshlrev_b32 v31, 2, v37")
    e(f"v_xor_b32 v31, v31, v{V_LANE}")
    e("v_lshlrev_b32 v31, 4, v31")
    e(f"s_mul_i32 s84, s{S_W}, 1088")
    e(f"s_add_u32 m0, s84, {L_XS}")
    e(f"s_lshl_b32 s85, s{S_W}, 11")
    e(f"s_mul_i32 s5, s2, {CH*4}")
    e("v_lshl_add_u32 v32, v0, 4, s5")
    e("s_cmp_eq_u32 s2, 255")
    e(f"s_movk_i32 s6, {NQ-512}")
    e(f"s_cmovk_i32 s6, {NQL-512}")
    e("v_cmp_gt_u32 s[74:75], s6, v0")
    e("v_add_u32 v33, 8192, v32")
    e("v_bfrev_b32 v36, 1")
    e("v_lshrrev_b32 v34, 1, v32")
    e("v_cndmask_b32 v33, v36, v33, s[74:75]")
    e("v_lshrrev_b32 v35, 1, v33")
    e("s_waitcnt lgkmcnt(0)")
    if TOUCH:
        e(f"s_cmp_eq_u32 s{S_W}, 6")
        e("s_cbranch_scc0 NOTOUCH")
        e("s_lshr_b32 s5, s2, 3")
        e("s_lshl_b32 s5, s5, 9")
        e("s_add_u32 s6, s5, 16384")
        e(f"v_lshlrev_b32 v60, 7, v{V_LANE}")
        e("s_mov_b64 exec, 63")
        e(f"buffer_load_dword v16, v60, {sr(S_W1)}, s6 offen")
        e(f"buffer_load_dword v17, v60, {sr(S_W2)}, s5 offen")
        e(f"buffer_load_dword v18, v60, {sr(S_B1)}, 0 offen")
        e(f"buffer_load_dword v19, v60, {sr(S_B2)}, 0 offen")
        e("s_mov_b64 exec, -1")
        lab("NOTOUCH")
    e(f"buffer_load_dwordx4 v58, {sr(S_X)}, 0 offen lds")
    e(f"s_add_u32 m0, s85, {L_W1S}")
    e(f"s_load_dwordx2 s[78:79], {sr(S_WS,2)}, {WS_EPOCH}")
    for k in range(2): e(f"buffer_load_dwordx4 v31, {sr(S_W1)}, s85 offen offset:{1024*k} lds")
    e(f"buffer_load_dwordx4 v[64:67], v32, {sr(S_DST)}, 0 offen {LDF}")
    e(f"s_cmp_gt_u32 s{S_W}, 4")
    e("s_cbranch_scc1 P0_ND")
    e(f"buffer_load_dwordx4 v[68:71], v33, {sr(S_DST)}, 0 offen {LDF}")
    lab("P0_ND")
    def src_e():
        e(f"buffer_load_dwordx4 v[72:75], v32, {sr(S_SRC)}, 0 offen {LDF}")
        e(f"buffer_load_dwordx4 v[76:79], v33, {sr(S_SRC)}, 0 offen {LDF}")
        e(f"buffer_load_dwordx2 v[80:81], v34, {sr(S_E)}, 0 offen {LDF}")
        e(f"buffer_load_dwordx2 v[82:83], v35, {sr(S_E)}, 0 offen {LDF}")
    if STOUCH:
        e(f"s_cmp_eq_u32 s{S_W}, 6")
        e("s_cbranch_scc0 NOST")
        offs = [WS_DESC + 2048]
        for pg in range(2, (WS_ENT + 256 * GCS >> 21) + 1):
            cidx = -(-((pg << 21) - WS_ENT) // GCS)
            if cidx < 256: offs.append(WS_ENT + cidx * GCS + CHS)
        for k, o in enumerate(offs):
            e(f"s_mov_b32 s90, {o}")
            e(f"s_load_dword s{91+k}, {sr(S_WS,2)}, s90")
        if STOUCH >= 2:
            for k, b in enumerate((S_B1, S_B2, S_W2, S_OUT)):
                e(f"s_load_dword s{96+k if k < 2 else 98+k}, {sr(b,2)}, 0")
        lab("NOST")
    stamp(15)
    for s, sz in ((S_WS, WS_SIZE), (S_OUT, N*128), (S_P, 256*NPB*256 + PSH)):
        e(f"s_mov_b32 s{s+2}, {sz}")
        e(f"s_mov_b32 s{s+3}, 0x00020000")
    e(f"s_mov_b32 s80, {hex(f2u(-LOG2E))}")
    e("s_mov_b32 s81, s80")
    e(f"v_lshrrev_b32 v38, 5, v{V_LANE}")
    e(f"v_and_b32 v39, 31, v{V_LANE}")
    e("v_bfe_u32 v40, v39, 2, 1")
    e("v_and_b32 v41, 1, v39")
    e("v_lshl_add_u32 v40, v40, 1, v41")
    e("v_lshrrev_b32 v42, 3, v39")
    e("v_bfe_u32 v43, v39, 1, 1")
    e(f"v_bfe_u32 v44, v{V_LANE}, 2, 2")
    e(f"v_and_b32 v46, 3, v{V_LANE}")
    e("v_lshlrev_b32 v46, 3, v46")
    e("v_lshl_add_u32 v46, v45, 5, v46")
    e(f"s_and_b32 s82, s{S_W}, 3")
    e(f"s_lshr_b32 s83, s{S_W}, 2")
    e("v_xor_b32 v50, s82, v44")
    e("v_lshl_add_u32 v50, v50, 6, v46")
    e("v_lshl_add_u32 v51, v38, 3, v44")
    e("v_lshl_add_u32 v50, v51, 8, v50")
    e("v_lshl_add_u32 v51, v40, 1, v43")
    e("v_mul_u32_u24 v52, 1088, v42")
    e("v_lshl_add_u32 v52, v51, 7, v52")
    e("s_mul_i32 s5, s83, 4352")
    e(f"s_add_u32 s5, s5, {L_XS}")
    e("v_add_u32 v52, s5, v52")
    e("v_xor_b32 v53, v38, v40")
    e("v_lshl_add_u32 v51, v53, 4, v52")
    e("v_xor_b32 v53, 2, v53")
    e("v_lshl_add_u32 v52, v53, 4, v52")
    e("s_lshl_b32 s5, s83, 5")
    e("v_add_u32 v55, s5, v39")
    e(f"v_cmp_gt_u32 s[88:89], {NPB}, v55")
    e("s_lshl_b32 s82, s82, 6")
    e("v_lshl_add_u32 v49, v38, 3, s82")
    e(f"v_mul_u32_u24 v53, {PS}, v55")
    e("v_add_u32 v53, v53, v49")
    e(f"v_mul_u32_u24 v54, {QS}, v55")
    e("v_add_u32 v54, v54, v49")
    e(f"v_add_u32 v54, {L_QT}, v54")
    assert PS == 272
    e(f"v_lshlrev_b32 v61, 4, v{V_TID}")
    e(f"v_and_b32 v56, -16, v{V_TID}")
    e("v_add_u32 v62, v61, v56")
    e(f"s_min_u32 s5, s{S_W}, 2")
    e(f"s_lshl2_add_u32 s5, s{S_W}, s5")
    e("s_add_u32 s5, s5, 64")
    e("s_lshl_b32 s5, s5, 3")
    e(f"v_add_u32 v55, s5, v{V_LANE}")
    e("v_lshlrev_b32 v63, 4, v55")
    e("v_and_b32 v56, -16, v55")
    e("v_add_u32 v22, v63, v56")
    e(f"s_cmp_lt_u32 s{S_W}, 2")
    e("s_cselect_b32 s71, 40, 32")
    init_tables(84)
    e(f"v_lshlrev_b32 v92, 3, v{V_TID}")
    e("ds_write_b64 v92, v[88:89]")
    for i in range(32): e(f"v_pk_mul_f32 {vr(H+2*i,2)}, v[88:89], v[88:89]")
    e(f"s_mul_i32 s6, s{S_B}, {NPB*256}")
    e(f"s_add_u32 s6, s6, {WS_PT}")
    e(f"s_mov_b32 s87, {128*256}")
    e("v_mov_b32 v55, 1")
    e(f"v_lshlrev_b32 v36, 2, v{V_LANE}")
    e(f"v_lshlrev_b32 v23, 1, v{V_LANE}")
    e("v_lshlrev_b32 v19, 2, v45")
    e(f"v_xor_b32 v19, v19, v{V_LANE}")
    e("v_lshlrev_b32 v19, 4, v19")
    e("s_add_u32 s86, s85, 16384")
    e(f"s_add_u32 m0, s86, {L_W1S}")
    stamp(16)
    e(f"s_cmp_gt_u32 s{S_W}, 4")
    e("s_cbranch_scc1 P0_S1")
    if ORD == 0: e("s_waitcnt vmcnt(0)")
    src_e()
    e("s_waitcnt vmcnt(4) lgkmcnt(0)")
    e("s_branch P0_S2")
    lab("P0_S1")
    if ORD == 0: e("s_waitcnt vmcnt(0)")
    e(f"buffer_load_dwordx4 v[72:75], v32, {sr(S_SRC)}, 0 offen {LDF}")
    e(f"buffer_load_dwordx2 v[80:81], v34, {sr(S_E)}, 0 offen {LDF}")
    if CPF:
        e("s_getpc_b64 s[90:91]")
        e("s_lshr_b32 s5, s2, 3")
        e("s_mul_i32 s5, s5, 3")
        e(f"s_add_u32 s5, s5, s{S_W}")
        e("s_sub_u32 s5, s5, 5")
        e(f"s_mul_i32 s5, s5, {128*CPF}")
        e(f"v_lshl_add_u32 v16, v{V_LANE}, 7, s5")
        e("v_min_u32 v16, CODE_REST, v16")
        e("v_mov_b32 v17, s91")
        e("v_add_co_u32 v16, vcc, s90, v16")
        e(f"s_bfm_b64 s[92:93], {CPF}, 0")
        e("s_nop 0")
        e("v_addc_co_u32 v17, vcc, 0, v17, vcc")
        e("s_mov_b64 exec, s[92:93]")
        e("global_load_dword v18, v[16:17], off")
        e("s_mov_b64 exec, -1")
    e(f"s_waitcnt vmcnt({3 if CPF else 2}) lgkmcnt(0)")
    lab("P0_S2")
    e("s_barrier")
    stamp(1)
    SD = "dst_sel:DWORD dst_unused:UNUSED_PAD src0_sel:DWORD"
    def binA(j):
        e(f"v_lshlrev_b32_sdwa v{112+j}, 2, v{64+j} {SD} src1_sel:BYTE_0")
        e(f"ds_add_rtn_u32 v{120+j}, v{112+j}, v55 offset:{L_CNT1}")
    def binB(j):
        e(f"v_lshlrev_b32_sdwa v{129+2*j}, 2, v{64+j} {SD} src1_sel:BYTE_1")
        if j % 2 == 0: e(f"v_lshlrev_b32 v56, 16, v{80+j//2}")
        else: e(f"v_and_b32 v56, 0xffff0000, v{80+j//2}")
        e(f"v_mul_u32_u24_sdwa v57, {NPB}, v{72+j} {SD} src1_sel:BYTE_0")
        e(f"v_add_u32_sdwa v57, v57, v{72+j} {SD} src1_sel:BYTE_1")
        e(f"v_or3_b32 v{128+2*j}, v56, v57, s87")
    assert 128 * 256 == 0x8000
    for j in range(4): binA(j)
    e("s_mov_b64 exec, s[74:75]")
    e("s_cbranch_execz P1_A")
    for j in range(4, 8): binA(j)
    lab("P1_A")
    e("s_mov_b64 exec, -1")
    for ks in range(4):
        e(f"ds_read_b64_tr_b16 {vr(88+4*ks,2)}, v50 offset:{L_W1S+4096*ks}")
        e(f"ds_read_b64_tr_b16 {vr(90+4*ks,2)}, v50 offset:{L_W1S+4096*ks+1024}")
        e(f"ds_read_b128 {vr(160+4*ks,4)}, v{51+(ks&1)} offset:{64*(ks>>1)}")
    e(f"s_mul_i32 s{S_TAGB}, s78, 1664525")
    e(f"s_add_u32 s{S_TAGB}, s{S_TAGB}, 1013904223")
    e(f"s_add_u32 s{S_TAGA}, s79, 0x01000000")
    e(f"s_and_b32 s{S_TAGA}, s{S_TAGA}, 0xff000000")
    e(f"v_lshlrev_b32 v58, 4, v{V_LANE}")
    e(f"s_cmp_eq_u32 s{S_W}, 7")
    e("s_waitcnt lgkmcnt(0)")
    e("s_barrier")
    stamp(4)
    def p_mfma():
        for ks in range(4): e(mf16(144, 88 + 4*ks, 160 + 4*ks, "0" if ks == 0 else vr(144, 16)))
    def p_fin():
        for i in range(8): e(f"v_pk_mul_f32 {vr(144+2*i,2)}, {vr(144+2*i,2)}, s[80:81]")
        for i in range(8): e(f"v_cvt_pk_bf16_f32 v{88+i}, v{144+2*i}, v{145+2*i}")
        e("s_mov_b64 exec, s[88:89]")
        for q in range(4): e(f"ds_write_b64 v53, {vr(88+2*q,2)} offset:{L_PS+16*q}")
        e("s_mov_b64 exec, -1")
    def late():
        for k in range(2): e(f"buffer_load_dwordx4 v31, {sr(S_W1)}, s86 offen offset:{1024*k} lds")
        e(f"s_add_u32 m0, s85, {L_W2}")
        e("s_nop 0")
        for k in range(2): e(f"buffer_load_dwordx4 v19, {sr(S_W2)}, s85 offen offset:{1024*k} lds")
    e("s_cbranch_scc1 P1_SCAN")
    p_mfma()
    e(f"s_cmp_eq_u32 s{S_W}, 5")
    e("s_cbranch_scc0 P1_NX")
    e(f"buffer_load_dword v20, v36, {sr(S_W1)}, s87 offen")
    e(f"buffer_load_ushort v21, v23, {sr(S_B2)}, 0 offen")
    lab("P1_NX")
    e(f"s_cmp_eq_u32 s{S_W}, 6")
    e("s_cbranch_scc0 P1_NY")
    e(f"buffer_load_ushort v20, v23, {sr(S_B1)}, 0 offen")
    e(f"buffer_load_ushort v21, v23, {sr(S_B1)}, 0 offen offset:128")
    lab("P1_NY")
    late()
    e("s_nop 1")
    p_fin()
    e("s_waitcnt lgkmcnt(0)")
    e("s_barrier")
    e("s_branch P1_NOSCAN")
    lab("P1_SCAN")
    e("s_setprio 3")
    e(f"ds_read_b128 v[136:139], v58 offset:{L_CNT1}")
    p_mfma()
    e("s_waitcnt lgkmcnt(0)")
    e("v_add_u32 v57, v136, v137")
    e("v_add_u32 v56, v57, v138")
    e("v_add_u32 v59, v56, v139")
    e("v_mov_b32 v60, v59")
    scan64(59)
    e("v_sub_u32 v140, v59, v60")
    e("v_add_u32 v141, v140, v136")
    e("v_add_u32 v142, v140, v57")
    e("v_add_u32 v143, v140, v56")
    e(f"ds_write_b128 v58, v[140:143] offset:{L_BASE1}")
    p_fin()
    e("s_waitcnt lgkmcnt(0)")
    e("s_barrier")
    e("s_setprio 0")
    e(f"s_mul_i32 s7, s2, {DS}")
    e(f"s_add_u32 s7, s7, {WS_DESC}")
    for j in range(4):
        e(f"v_lshl_or_b32 v{96+2*j}, v{136+j}, 12, v{140+j}")
        e(f"v_or_b32 v{96+2*j}, s{S_TAGA}, v{96+2*j}")
        e(f"v_mov_b32 v{97+2*j}, s{S_TAGB}")
    e(f"v_lshlrev_b32 v58, 4, v{V_LANE}")
    late()
    e(f"buffer_store_dwordx4 v[96:99], v58, {sr(S_WS)}, s7 offen sc1")
    e(f"buffer_store_dwordx4 v[100:103], v58, {sr(S_WS)}, s7 offen offset:1024 sc1")
    lab("P1_NOSCAN")
    stamp(5)
    e(f"ds_read_b128 v[144:147], v62 offset:{L_PS}")
    e(f"ds_read_b128 v[148:151], v22 offset:{L_PS}")
    for j in range(4): e(f"ds_read_b32 v{112+j}, v{112+j} offset:{L_BASE1}")
    e("s_mov_b64 exec, s[74:75]")
    e("s_cbranch_execz P1_B0")
    for j in range(4, 8): e(f"ds_read_b32 v{112+j}, v{112+j} offset:{L_BASE1}")
    e("s_waitcnt vmcnt(4)")
    for j in range(4, 8): binB(j)
    lab("P1_B0")
    e("s_mov_b64 exec, -1")
    e(f"s_cmp_gt_u32 s{S_W}, 4")
    e(f"s_waitcnt vmcnt({7 if CPF else 6})")
    e("s_cbranch_scc1 P1_B1")
    e("s_waitcnt vmcnt(4)")
    lab("P1_B1")
    for j in range(4): binB(j)
    e(f"s_mul_i32 s5, s2, {GCS}")
    e(f"s_add_u32 s5, s5, {WS_ENT}")
    e("s_waitcnt lgkmcnt(0)")
    e(f"buffer_store_dwordx4 v[144:147], v61, {sr(S_WS)}, s6 offen {STF}")
    e("s_bfm_b64 exec, s71, 0")
    e(f"buffer_store_dwordx4 v[148:151], v63, {sr(S_WS)}, s6 offen {STF}")
    e("s_mov_b64 exec, -1")
    for j in range(8):
        if j == 4:
            e("s_mov_b64 exec, s[74:75]")
            e("s_cbranch_execz P1_B")
        e(f"v_add_lshl_u32 v{112+j}, v{112+j}, v{120+j}, 3")
        e(f"ds_write_b64 v{112+j}, {vr(128+2*j,2)} offset:{L_STG}")
    lab("P1_B")
    e("s_mov_b64 exec, -1")
    e("s_waitcnt lgkmcnt(0)")
    e("s_barrier")
    stamp(6)
    for k in range(3): e(f"ds_read_b128 {vr(64+4*k,4)}, v61 offset:{L_STG+8192*k}")
    e(f"s_cmp_eq_u32 s{S_W}, 0")
    e("s_cbranch_scc0 P1_C")
    e(f"ds_read_b128 v[76:79], v61 offset:{L_STG+24576}")
    e("s_add_u32 s7, s5, 24576")
    e("s_bfm_b64 exec, 32, 0")
    e("s_waitcnt lgkmcnt(0)")
    e(f"buffer_store_dwordx4 v[76:79], v61, {sr(S_WS)}, s7 offen {STF}")
    e("s_mov_b64 exec, -1")
    lab("P1_C")
    for k in range(3):
        e(f"s_waitcnt lgkmcnt({2-k})")
        e(f"buffer_store_dwordx4 {vr(64+4*k,4)}, v61, {sr(S_WS)}, s5 offen {STF}")
        if k < 2: e("s_add_u32 s5, s5, 8192")
    if PFL == 1:
        e(f"s_lshl_b32 s5, s{S_W}, 5")
        e("s_lshr_b32 s6, s2, 3")
        e("s_add_u32 s90, s5, s6")
        e("s_and_b32 s6, s2, 7")
        e(f"s_mul_i32 s6, s6, {DS}")
        e("s_lshl_b32 s5, s90, 3")
        e("s_add_u32 s5, s5, s6")
        e(f"s_add_u32 s91, s5, {WS_PFLAG}")
    e(f"s_cmp_eq_u32 s{S_W}, 6")
    e("s_cbranch_scc0 P0_NOB1")
    e("s_waitcnt vmcnt(5)")
    e("v_lshlrev_b32 v20, 16, v20")
    e("v_lshlrev_b32 v21, 16, v21")
    e(f"ds_write_b32 v36, v20 offset:{L_B1}")
    e(f"ds_write_b32 v36, v21 offset:{L_B1+256}")
    lab("P0_NOB1")
    e(f"s_cmp_eq_u32 s{S_W}, 5")
    e("s_cbranch_scc0 P0_NOEXT")
    e("s_waitcnt vmcnt(5)")
    e("v_lshlrev_b32 v112, 16, v20")
    e("v_and_b32 v113, 0xffff0000, v20")
    e("v_mul_f32 v112, s80, v112")
    e("v_mul_f32 v113, s80, v113")
    e("v_cvt_pk_bf16_f32 v114, v112, v113")
    e("v_lshlrev_b32 v115, 16, v114")
    e("v_and_b32 v116, 0xffff0000, v114")
    e("v_sub_f32 v115, v112, v115")
    e("v_sub_f32 v116, v113, v116")
    e("v_cvt_pk_bf16_f32 v115, v115, v116")
    e("v_lshlrev_b32 v116, 16, v21")
    e(f"ds_write_b32 v36, v114 offset:{L_EXT+320}")
    e(f"ds_write_b32 v36, v115 offset:{L_EXT+640}")
    e(f"ds_write_b32 v36, v116 offset:{L_B2}")
    lab("P0_NOEXT")
    e(f"s_add_u32 s{S_P}, s{S_WS}, {WS_PT - PSH}")
    e(f"s_addc_u32 s{S_P+1}, s{S_WS+1}, 0")
    e(f"v_mov_b32 v252, s{S_TAGA}")
    e(f"v_mov_b32 v253, s{S_TAGB}")
    e(f"v_mul_u32_u24 v254, {DS}, v{V_LANE}")
    e("v_lshlrev_b32 v49, 1, v49")
    for j in range(8): e(f"s_movk_i32 s{S_SOFF+j}, {PSH - 1024*(j&3) + 128*(j>>2)}")
    e(f"s_movk_i32 s{S_256}, 256")
    e(f"s_mul_i32 s{S_M0[0]}, s{S_W}, {TBW}")
    e(f"s_add_u32 s{S_M0[0]}, s{S_M0[0]}, {L_TB}")
    e(f"s_add_u32 s{S_M0[1]}, s{S_M0[0]}, 4096")
    e(f"s_mov_b32 s{S_WN}, 32")
    e(f"s_mov_b32 s{S_RB}, 0")
    e(f"s_mov_b32 s{S_SAFE}, 0")
    e(f"s_mov_b32 s{S_SPIN}, 0x40000")
    e(f"v_cmp_le_u32 vcc, {SPLIT}, v{V_LANE}")
    e(f"v_mul_u32_u24 v56, {LS}, v{V_LANE}")
    e(f"v_mul_u32_u24 v57, {QS}, v{V_LANE}")
    e(f"v_add_u32 v{V_L0}, {L_LIST}, v56")
    e(f"v_lshl_or_b32 v{V_GV}, v57, 16, v56")
    e("v_cndmask_b32 v56, 0, 1, vcc")
    e(f"v_mul_u32_u24 v57, {SPLIT}, v56")
    e(f"v_sub_u32 v{V_COL}, v{V_LANE}, v57")
    e(f"v_mul_u32_u24 v57, {GTH*16}, v56")
    e(f"v_add_u32 v{V_GB}, {L_GT}, v57")
    e(f"v_mul_u32_u24 v57, {HT*SELS}, v56")
    e(f"v_lshl_add_u32 v57, v{V_COL}, 2, v57")
    e(f"v_add_u32 v{V_SB}, {L_SEL}, v57")
    static_writes(56, "A")
    if PFL == 1:
        e(f"s_load_dwordx2 s[92:93], {sr(S_WS,2)}, s91 glc")
    e("v_lshlrev_b32 v56, 1, v39")
    e("v_lshl_add_u32 v56, v38, 9, v56")
    e(f"v_add_u32 v{V_CA}, s{S_M0[0]}, v56")
    e("v_lshlrev_b32 v56, 4, v48")
    e(f"v_add_u32 v{V_DMAC}, 0x800000, v56")
    e("v_and_b32 v56, 1, v47")
    e("v_lshlrev_b32 v56, 4, v56")
    e(f"v_add_u32 v{V_LIO}, {L_LIST}, v56")
    e("v_lshl_add_u32 v56, v42, 1, v43")
    e("v_lshlrev_b32 v56, 2, v56")
    e(f"v_add_u32 v{V_LMO}, {L_LIST}, v56")
    e(f"s_sub_u32 s5, {GTH+7}, s{S_W}")
    e(f"s_sub_u32 s6, {HT+7}, s{S_W}")
    e(f"s_cmp_lt_u32 s{S_W}, 4")
    e(f"s_cselect_b32 s5, s{S_W}, s5")
    e(f"s_cselect_b32 s6, s{S_W}, s6")
    e("s_lshl_b32 s5, s5, 4")
    e(f"s_add_u32 s5, s5, {L_GT}")
    e(f"s_mul_i32 s6, s6, {SELS}")
    e(f"s_add_u32 s6, s6, {L_SEL}")
    e(f"v_lshl_add_u32 v{V_SAVE}, v37, 2, s5")
    e(f"v_lshl_add_u32 v{V_SAVE+1}, v40, 2, s5")
    e(f"v_lshl_add_u32 v{V_SAVE+2}, v44, 2, s5")
    e(f"v_mul_u32_u24 v56, {SELS//2}, v38")
    e("v_lshl_add_u32 v56, v39, 2, v56")
    e(f"v_add_u32 v{V_SAVE+3}, s6, v56")
    e("v_cmp_eq_u32 vcc, 0, v38")
    e("v_mov_b32 v57, 0x03020100")
    e("v_mov_b32 v56, 0x0c080c0c")
    e(f"v_cndmask_b32 v{V_PSEL}, v57, v56, vcc")
    e(f"v_cndmask_b32 v{V_QMUL}, 0, 1, vcc")
    e("v_add_u32 v56, 1, v44")
    e("v_lshrrev_b32 v56, 1, v56")
    e("v_and_b32 v57, 1, v44")
    e("v_mul_u32_u24 v56, v56, v57")
    e("v_mul_u32_u24 v56, 320, v56")
    e(f"v_add_u32 v56, {L_EXT}, v56")
    e(f"v_mov_b32 v57, {L_QT}")
    e("v_cndmask_b32 v56, v56, v57, vcc")
    e(f"v_add_u32 v{V_QC}, v46, v56")
    e(f"v_mov_b32 v56, {hex(find_cx(0x00803F80))}")
    e(f"v_mov_b32 v57, {hex(find_cx(0x3F800000))}")
    e("v_cmp_eq_u32 s[6:7], 1, v41")
    e("v_cmp_gt_u32 s[76:77], 2, v40")
    e("s_nop 0")
    e("v_cndmask_b32 v56, v56, v57, s[6:7]")
    e("v_cndmask_b32 v57, 0, v56, s[76:77]")
    e("v_cndmask_b32 v56, v56, 0, s[76:77]")
    e(f"v_cndmask_b32 v{CX}, 1.0, v57, vcc")
    e(f"v_cndmask_b32 v{CX+1}, 1.0, v56, vcc")
    e("v_lshl_add_u32 v56, v38, 2, v44")
    e("v_lshl_add_u32 v56, v56, 7, v46")
    e("v_lshrrev_b32 v57, 1, v44")
    e("v_lshl_add_u32 v56, v57, 6, v56")
    e(f"v_add_u32 v{V_W2A}, {L_W2}, v56")
    e("v_lshl_add_u32 v56, v37, 3, v48")
    e(f"s_lshl_b32 s5, s{S_W}, 5")
    e(f"v_add_u32 v{V_CHK}, s5, v56")
    e(f"v_and_b32 v{V_J0}, 15, v{V_LANE}")
    e(f"v_mul_u32_u24 v33, {DS}, v{V_CHK}")
    desc_soff()
    e(f"buffer_load_dwordx2 v[34:35], v33, {sr(S_WS)}, s5 offen sc1")
    nyoung = 1
    if PFL == 1:
        e("s_and_b32 s6, s90, 7")
        e("s_lshl_b32 s6, s6, 5")
        e("s_lshr_b32 s7, s90, 3")
        e("s_add_u32 s6, s6, s7")
        e(f"s_mul_i32 s6, s6, {NPB*256}")
        e(f"s_add_u32 s6, s6, {PSH}")
        e(f"v_min_u32 v56, {NPB-1}, v{V_LANE}")
        e("v_lshlrev_b32 v56, 8, v56")
        e("s_waitcnt lgkmcnt(0)")
        e(f"s_cmp_eq_u64 s[92:93], s[{S_TAGA}:{S_TAGB}]")
        e("s_cselect_b32 s6, s6, 0x7f000000")
        e("v_add_u32 v56, s6, v56")
        e(f"buffer_load_dword v57, v56, {sr(S_P)}, 0 offen")
        e(f"buffer_load_dword v58, v56, {sr(S_P)}, 0 offen offset:128")
        nyoung = 3
    e("s_lshl_b32 s6, s2, 3")
    e(f"s_add_u32 s6, s6, {WS_FLAG}")
    stamp(18)
    e(f"s_waitcnt vmcnt({nyoung}) lgkmcnt(0)")
    e("s_barrier")
    stamp(7)
    e(f"s_cmp_eq_u32 s{S_W}, 0")
    e("s_cbranch_scc0 P1_NF")
    e("s_mov_b64 exec, 0xff")
    e(f"buffer_store_dwordx2 v[252:253], v254, {sr(S_WS)}, s6 offen sc1")
    e("s_mov_b64 exec, -1")
    lab("P1_NF")
    for q in range(4): e(f"ds_read_b128 {vr(144+4*q,4)}, v49 offset:{L_B1+32*q}")
    for ks in range(4):
        e(f"ds_read_b64_tr_b16 {vr(80+4*ks,2)}, v50 offset:{L_W1S+16384+4096*ks}")
        e(f"ds_read_b64_tr_b16 {vr(82+4*ks,2)}, v50 offset:{L_W1S+16384+4096*ks+1024}")
    for ks in range(4):
        e(f"s_waitcnt lgkmcnt({6-2*ks})")
        e(mf16(144, 80 + 4*ks, 160 + 4*ks, vr(144, 16)))
    e("s_nop 7")
    e("s_nop 3")
    for i in range(8): e(f"v_pk_mul_f32 {vr(144+2*i,2)}, {vr(144+2*i,2)}, s[80:81]")
    for i in range(8): e(f"v_cvt_pk_bf16_f32 v{64+i}, v{144+2*i}, v{145+2*i}")
    e("s_mov_b64 exec, s[88:89]")
    for q in range(4): e(f"ds_write_b64 v54, {vr(64+2*q,2)} offset:{16*q}")
    e("s_mov_b64 exec, -1")
    stamp(19)

    lab("POLL1")
    e(f"v_mul_u32_u24 v32, {GCS}, v{V_CHK}")
    e(f"v_add_u32 v37, 16, v{V_J0}")
    e("v_bfrev_b32 v43, -2")
    e(f"v_cmp_gt_u32 vcc, s{S_WN}, v{V_J0}")
    e(f"v_add_u32 v38, s{S_RB}, v{V_J0}")
    e(f"v_add_u32 v39, s{S_RB}, v37")
    e("v_lshlrev_b32 v36, 3, v38")
    e("v_cndmask_b32 v38, v43, v38, vcc")
    e(f"v_cmp_gt_u32 vcc, s{S_WN}, v37")
    e(f"s_mov_b32 s7, {WS_ENT}")
    e("v_mov_b32 v55, 4")
    e("v_cndmask_b32 v39, v43, v39, vcc")
    lab("POLL")
    e("s_waitcnt vmcnt(0)")
    e(f"v_xor_b32 v34, s{S_TAGA}, v34")
    e(f"v_cmp_ne_u32 s[76:77], s{S_TAGB}, v35")
    e("v_cmp_le_u32 vcc, 0x1000000, v34")
    e("s_or_b64 vcc, vcc, s[76:77]")
    e("s_cbranch_scc0 POLLED")
    e(f"s_sub_u32 s{S_SPIN}, s{S_SPIN}, 1")
    e("s_cbranch_scc1 K_END")
    e(f"s_sleep {SLP}")
    e(f"buffer_load_dwordx2 v[34:35], v33, {sr(S_WS)}, s5 offen sc1")
    e("s_branch POLL")
    lab("POLLED")
    stamp(8)
    e("v_and_b32 v35, 0xfff, v34")
    e("v_lshrrev_b32 v34, 12, v34")
    e("v_lshl_add_u32 v35, v35, 3, v32")
    e(f"s_add_u32 s5, s{S_RB}, s{S_WN}")
    e("v_cmp_lt_u32 s[74:75], s5, v34")
    DP = "row_mask:0xf bank_mask:0xf"
    for i in range(8):
        e(f"v_mov_b32_dpp v43, v34 row_newbcast:{i} {DP}")
        e(f"v_add_u32_dpp v{44+i}, v35, v36 row_newbcast:{i} {DP}")
        e(f"v_cmp_lt_u32 {sr(S_MASK+2*i,2)}, v38, v43")
        e(f"v_cmp_lt_u32 {sr(S_MASK+16+2*i,2)}, v39, v43")
    e(f"v_lshlrev_b32 v33, 3, v{V_CHK}")
    e(f"v_lshlrev_b32 v54, 2, v{V_LANE}")
    e("v_mov_b32 v53, 0")
    e("s_mov_b64 exec, s[74:75]")
    e(f"ds_write_b32 v53, v55 offset:{L_FLAG}")
    e("s_mov_b64 exec, -1")
    e("s_and_b32 s5, s2, 7")
    e(f"s_mul_i32 s5, s5, {DS}")
    e(f"s_add_u32 s5, s5, {WS_FLAG}")
    e(f"buffer_load_dwordx2 v[34:35], v33, {sr(S_WS)}, s5 offen sc1")
    wave_reset()
    lab("FPOLL")
    e("s_waitcnt vmcnt(0)")
    e(f"v_cmp_ne_u32 s[76:77], s{S_TAGB}, v35")
    e(f"v_cmp_ne_u32 vcc, s{S_TAGA}, v34")
    e("s_or_b64 vcc, vcc, s[76:77]")
    e("s_cbranch_scc0 FPOLLED")
    e(f"s_sub_u32 s{S_SPIN}, s{S_SPIN}, 1")
    e("s_cbranch_scc1 K_END")
    e(f"s_sleep {SLP}")
    e(f"buffer_load_dwordx2 v[34:35], v33, {sr(S_WS)}, s5 offen sc1")
    e("s_branch FPOLL")
    lab("FPOLLED")
    stamp(17)
    for k in range(8, 16):
        e(f"s_mov_b64 exec, {sr(S_MASK+2*k,2)}")
        e(f"s_cbranch_execz R_L{k}")
        e(f"buffer_load_dwordx2 {vr(112+2*k,2)}, v{44+(k&7)}, {sr(S_WS)}, s7 offen offset:128 {ELF}")
        lab(f"R_L{k}")
    for k in range(8):
        e(f"s_or_b64 exec, {sr(S_MASK+2*k,2)}, 1")
        e(f"buffer_load_dwordx2 {vr(112+2*k,2)}, v{44+k}, {sr(S_WS)}, s7 offen {ELF}")
    e("s_mov_b64 exec, -1")
    e("s_waitcnt vmcnt(8)")
    for k in list(range(8, 16)) + list(range(8)):
        e(f"s_mov_b64 exec, {sr(S_MASK+2*k,2)}")
        if k >= 8: e(f"s_cbranch_execz R_A{k}")
        else: e(f"s_waitcnt vmcnt({7-k})")
        e(f"ds_add_rtn_u32 v{T+k}, v{113+2*k}, v55 offset:{L_CNT2}")
        if k >= 8: lab(f"R_A{k}")
    def list_writes(tag):
        for k in list(range(8, 16)) + list(range(8)):
            e(f"s_mov_b64 exec, {sr(S_MASK+2*k,2)}")
            if k >= 8: e(f"s_cbranch_execz {tag}{k}")
            e(f"ds_write_b32 v{T+k}, v{112+2*k}")
            if k >= 8: lab(f"{tag}{k}")
        e("s_mov_b64 exec, -1")
    e("s_waitcnt lgkmcnt(0)")
    stamp(20)
    list_writes("R_C")
    e("s_waitcnt lgkmcnt(0)")
    e("s_barrier")
    stamp(9)
    def mid():
        e(f"ds_read_b32 v32, v54 offset:{L_CNT2}")
        e(f"ds_read_b32 v33, v53 offset:{L_FLAG}")
        e(f"ds_read_b32 v34, v54 offset:{L_DEG}")
        return 3
    first_tile(mid)
    e("s_waitcnt lgkmcnt(0)")
    e(f"v_sub_u32 v32, v32, v{V_L0}")
    e("v_max_u32 v35, 4, v32")
    e("v_subrev_u32 v35, 4, v35")
    e("v_lshrrev_b32 v35, 5, v35")
    e("v_mov_b32 v36, v35")
    e(f"v_cmp_lt_u32 s[76:77], {LCAP//8-1}, v35")
    scan64(36)
    e(f"v_readfirstlane_b32 s{S_MORE}, v33")
    e(f"v_readlane_b32 s6, v36, {SPLIT-1}")
    e("v_readlane_b32 s7, v36, 63")
    e(f"v_cmp_le_u32 vcc, {SPLIT}, v{V_LANE}")
    e("v_sub_u32 v36, v36, v35")
    e("v_lshrrev_b32 v32, 2, v32")
    e("s_sub_u32 s7, s7, s6")
    e(f"s_add_u32 s82, s6, {SPLIT+3}")
    e(f"s_add_u32 s83, s7, {NPB-SPLIT+3}")
    e("s_max_u32 s5, s82, s83")
    e(f"s_cmp_ge_u32 s5, {4*HT+4}")
    e("s_cbranch_scc0 R_FITS")
    e(f"s_mov_b32 s{S_WN}, {WSLOW}")
    e("s_branch NEXT_ROUND")
    lab("R_FITS")
    e(f"s_sub_u32 s6, {NPB-SPLIT-1}, s6")
    e(f"v_add_u32 v37, {SPLIT-1}, v36")
    e("v_add_u32 v38, s6, v36")
    e("v_cndmask_b32 v37, v37, v38, vcc")
    e(f"v_mov_b32 v39, v{V_GV}")
    e(f"s_mov_b32 s{S_EARLY}, 1")
    e("s_cmp_eq_u64 s[76:77], 0")
    e("s_cbranch_scc0 R_COMPACT")
    lab("R_TABLE")
    e("v_mov_b32 v41, 0x3f80")
    e(f"s_add_u32 s6, s{S_W}, 1")
    lab("R_GT")
    e("v_cmp_le_u32 vcc, s6, v35")
    e("s_and_b64 exec, exec, vcc")
    e("s_cbranch_execz R_GTE")
    e("v_add_u32 v44, s6, v37")
    e("s_lshl_b32 s7, s6, 5")
    e(f"v_lshl_add_u32 v45, v44, 2, v{V_GB}")
    e("v_add_u32 v47, s7, v39")
    e("ds_write_b32 v45, v47")
    e("v_lshrrev_b32 v46, 1, v44")
    e(f"v_mul_u32_u24 v46, {SELS//2}, v46")
    e("v_and_b32 v44, 1, v44")
    e("v_lshl_add_u32 v46, v44, 1, v46")
    e(f"v_add_u32 v46, v46, v{V_SB}")
    e("ds_write_b16 v46, v41")
    e("s_add_u32 s6, s6, 8")
    e("s_branch R_GT")
    lab("R_GTE")
    e("s_mov_b64 exec, -1")
    e("s_waitcnt lgkmcnt(0)")
    e("s_barrier")
    stamp(10)
    e(f"s_cmp_eq_u32 s{S_W}, 0")
    e("s_cbranch_scc0 R_ND")
    e("v_add_u32 v34, v34, v32")
    e(f"ds_write_b32 v54, v34 offset:{L_DEG}")
    lab("R_ND")
    e(f"s_sub_u32 s5, 7, s{S_W}")
    e(f"s_cmp_lt_u32 s{S_W}, 4")
    e(f"s_cselect_b32 s5, s{S_W}, s5")
    e("s_cselect_b32 s6, s82, s83")
    e("s_lshr_b32 s6, s6, 2")
    e("s_sub_u32 s6, s6, s5")
    e("s_add_u32 s6, s6, 3")
    e(f"s_lshr_b32 s{S_NT}, s6, 2")
    e(f"s_or_b32 s6, s{S_MORE}, s{S_RB}")
    e(f"s_or_b32 s{S_SAFE}, s{S_SAFE}, s6")
    e(f"s_cmp_eq_u32 s{S_EARLY}, 0")
    e("s_cbranch_scc1 WAVE_REDO")
    lab("WAVE_GO")
    e(f"ds_read_u16 v{V_LI}, v{V_GIA} offset:64")
    e(f"s_mov_b32 m0, s{S_M0[1]}")
    e(f"s_sub_u32 s{S_REM}, s{S_NT}, 1")
    e("s_waitcnt lgkmcnt(0)")
    e(f"v_add_u32 v{V_LI}, v{V_LI}, v{V_LIO}")
    e(f"ds_read_b128 {vr(IDR,4)}, v{V_LI}")
    e(PERM)
    e(AXB)
    if PEEL:
        e("s_waitcnt vmcnt(0)")
        for s in c_reads(0)[:16] + [tr_read(0)]: e(s)
        for s in dma(1): e(s)
        for s in memphase(0, 0)[2+16:-4]:
            if s != tr_read(0): e(s)
        e(mfext(0))
        for s in mads(): e(s)
        e("s_nop 5")
        stamp(11); stamp(28, True)
        e(f"s_cmp_lg_u32 s{S_SAFE}, 0")
        e("s_cbranch_scc1 PEELS")
        for safe in (False, True):
            out.append(".p2align 3")
            if safe: lab("PEELS")
            emit(block(0, 0, safe))
            for s in dma(0): e(s)
            e(f"s_branch ENTER{'S' if safe else 'F'}")
    else:
        for s in dma(1): e(s)
        e("s_waitcnt lgkmcnt(0)")
        for s in mads(): e(s)
        for s in memphase(0, 0): e(s)
        e(mfext(0))
        e("s_nop 7")
        e("s_nop 1")
        stamp(11); stamp(28, True)
        e(f"s_cmp_lg_u32 s{S_SAFE}, 0")
        e("s_cbranch_scc1 ENTERS")
        e("s_branch ENTERF")

    lab("R_COMPACT")
    e("s_barrier")
    fill_list(40)
    e(f"v_add_lshl_u32 v38, v36, v{V_LANE}, 5")
    e(f"v_add_u32 v38, {L_LIST}, v38")
    e(f"v_sub_u32 v38, v38, v{V_L0}")
    e("v_add_u32 v39, v39, v38")
    for k in range(16): e(f"ds_bpermute_b32 v{113+2*k}, v{113+2*k}, v38")
    e(f"v_lshl_add_u32 v45, v{V_COL}, 2, v{V_GB}")
    e(f"s_bfm_b64 exec, {NPB}, 0")
    e("ds_write_b32 v45, v39")
    e("s_mov_b64 exec, -1")
    e("s_waitcnt lgkmcnt(0)")
    e("s_barrier")
    for k in range(16): e(f"v_add_u32 v{T+k}, v{T+k}, v{113+2*k}")
    list_writes("R_D")
    e(f"s_mov_b32 s{S_EARLY}, 0")
    e("s_branch R_TABLE")
    lab("WAVE_REDO")
    e("s_waitcnt vmcnt(0)")
    wave_reset()
    first_tile()
    e("s_branch WAVE_GO")

    mainloop(False)
    mainloop(True)

    lab("NEXTR")
    e(f"s_add_u32 s{S_RB}, s{S_RB}, s{S_WN}")
    lab("NEXT_ROUND")
    e("s_setprio 0")
    e("s_waitcnt vmcnt(0) lgkmcnt(0)")
    e("s_barrier")
    init_tables(32)
    e("s_waitcnt lgkmcnt(0)")
    e("s_barrier")
    static_writes(32, "B")
    e(f"v_mul_u32_u24 v33, {DS}, v{V_CHK}")
    desc_soff()
    e(f"buffer_load_dwordx2 v[34:35], v33, {sr(S_WS)}, s5 offen sc1")
    e("s_waitcnt lgkmcnt(0)")
    e("s_barrier")
    e("s_branch POLL1")

    out.append(".p2align 3")
    lab("DRAIN")
    e("s_waitcnt lgkmcnt(0)")
    e(f"s_cmp_lg_u32 s{S_MORE}, 0")
    for ct in range(4): e(mfsel(ct))
    stamp(12); stamp(29, True)
    e("s_cbranch_scc1 NEXTR")
    e(f"v_lshrrev_b32 v96, 5, v{V_LANE}")
    e(f"v_and_b32 v97, 31, v{V_LANE}")
    e("v_mul_u32_u24 v97, 272, v97")
    e("v_lshl_add_u32 v97, v96, 4, v97")
    e(f"v_add_u32 v97, s{S_M0[0]}, v97")
    e(f"s_mov_b32 s6, {hex(f2u(2.0**120))}")
    e(f"v_cmp_nge_f32 s[76:77], s6, v{V_DMAX}")
    e(f"v_lshrrev_b32 v98, 3, v{V_TID}")
    e(f"v_and_b32 v99, 7, v{V_TID}")
    O = D
    cv = lambda ct: [f"v_cvt_pk_bf16_f32 v{64+8*ct+i}, v{H+16*ct+2*i}, v{H+16*ct+2*i+1}" for i in range(8)]
    for s in cv(0): e(s)
    rest = [f"v_cmp_le_u32 vcc, {SPLIT}, v98", "v_mul_u32_u24 v100, 272, v98", "v_lshl_add_u32 v100, v99, 5, v100",
            f"v_add_u32 v101, {4*TBW - SPLIT*272}, v100", "v_cndmask_b32 v100, v100, v101, vcc",
            "v_lshlrev_b32 v101, 2, v98", "v_lshlrev_b32 v102, 5, v99", "v_lshlrev_b32 v103, 15, v98"]
    for ct in range(4):
        nxt = cv(ct + 1) if ct < 3 else rest
        for s in range(2):
            for mt in range(2):
                ks = 2 * ct + s
                for x in nxt[4*s + 2*mt: 4*s + 2*mt + 2]: e(x)
                e(mf16(O[mt], w2f(ks, mt), 64 + 4*ks, "0" if ks == 0 else vr(O[mt], 16)))
    e("v_lshl_add_u32 v103, v99, 4, v103")
    e(f"s_lshl_b32 s5, s{S_B}, 7")
    e("v_add_u32 v103, s5, v103")
    e("s_movk_i32 s7, 0x207")
    e("s_waitcnt vmcnt(0)")
    e("s_nop 5")
    e(f"v_cmp_class_f32 vcc, v{O[0]}, s7")
    e("s_or_b64 s[76:77], s[76:77], vcc")
    e("s_cbranch_scc0 EPI_OK")
    e(f"s_cmp_lg_u32 s{S_SAFE}, 0")
    e("s_cbranch_scc1 EPI_OK")
    e(f"s_mov_b32 s{S_SAFE}, 1")
    for i in range(64): e(f"v_mov_b32 v{H+i}, 0")
    e("s_branch WAVE_REDO")
    lab("EPI_OK")
    for mt in range(2):
        for q in range(4):
            e(f"ds_write_b128 v97, {vr(O[mt]+4*q,4)} offset:{128*mt+32*q}")
    e(f"ds_read_b128 v[32:35], v102 offset:{L_B2}")
    e(f"ds_read_b128 v[36:39], v102 offset:{L_B2+16}")
    e(f"v_cmp_gt_u32 vcc, {NPB}, v98")
    e(f"s_or_b32 s6, s2, s{S_W}")
    e("s_cbranch_scc1 EPI_NE")
    e(f"v_mov_b32 v42, s{S_TAGB}")
    e(f"v_mov_b32 v43, s{S_TAGA}")
    e("v_mov_b32 v44, 0")
    e("s_mov_b64 exec, 1")
    e(f"buffer_store_dwordx2 v[42:43], v44, {sr(S_WS)}, 0 offen offset:{WS_EPOCH}")
    e("s_mov_b64 exec, -1")
    lab("EPI_NE")
    e("s_waitcnt lgkmcnt(0)")
    e("s_barrier")
    stamp(13)
    e("s_and_b64 exec, exec, vcc")
    e("s_cbranch_execz K_FIN")
    e(f"ds_read_b32 v40, v101 offset:{L_DEG}")
    for s in range(4):
        e(f"ds_read_b128 {vr(64+8*s,4)}, v100 offset:{L_TB+s*TBW}")
        e(f"ds_read_b128 {vr(68+8*s,4)}, v100 offset:{L_TB+s*TBW+16}")
    e(f"s_mov_b32 s6, {hex(f2u(-LN2))}")
    e("s_mov_b32 s7, s6")
    e("s_waitcnt lgkmcnt(8)")
    e("v_cvt_f32_u32 v40, v40")
    for i in range(4): e(f"v_pk_mul_f32 {vr(32+2*i,2)}, {vr(32+2*i,2)}, v[40:41] op_sel_hi:[1,0]")
    for s in range(4):
        e(f"s_waitcnt lgkmcnt({6-2*s})")
        for i in range(4): e(f"v_pk_fma_f32 {vr(32+2*i,2)}, {vr(64+8*s+2*i,2)}, s[6:7], {vr(32+2*i,2)}")
    for i in range(4): e(f"v_cvt_pk_bf16_f32 v{44+i}, v{32+2*i}, v{33+2*i}")
    e(f"buffer_store_dwordx4 v[44:47], v103, {sr(S_OUT)}, 0 offen")
    lab("K_FIN")
    if SPIN >= 0:
        lab("SPINL")
        e("s_memrealtime s[98:99]")
        e("s_waitcnt lgkmcnt(0)")
        e("s_sub_u32 s98, s98, s96")
        e("s_cmp_lt_u32 s98, 6000")
        e("s_cbranch_scc1 SPINL")
    if DIAG:
        e("s_mov_b64 exec, -1")
        e("s_waitcnt vmcnt(0)")
        stamp(14); stamp(31, True)
        e(f"v_writelane_b32 v255, s{S_NT}, 27")
        e("s_lshl_b32 s5, s2, 11")
        e(f"s_add_u32 s5, s5, {WS_STAMP}")
        e(f"v_lshlrev_b32 v1, 2, v{V_TID}")
        e(f"buffer_store_dword v255, v1, {sr(S_WS)}, s5 offen")
    lab("K_END")
    e("s_endpgm")
    if CPF: out.append(".set CODE_REST, K_END - P0_S2")
    if CPF0: out.append(".set CODE_ALL, K_END - CPF_PC")

hdr = open("standalone__edge_featured_mpnn_mpnn__graph.s.ref").read().split("; Override")[0]
out.append(hdr.rstrip())
out.append(f"; @launch grid=(256,1,1) block=(512,1,1) lds={L_END}")
out.append('.amdgcn_target "amdgcn-amd-amdhsa--gfx950"')
out.append(".text")
out.append(f".globl {KN}")
out.append(".p2align 8")
out.append(f".type {KN},@function")
kernel()
out.append(f""".section .rodata,"a"
.p2align 6
.amdhsa_kernel {KN}
  .amdhsa_next_free_vgpr 256
  .amdhsa_next_free_sgpr 102
  .amdhsa_accum_offset 256
  .amdhsa_group_segment_fixed_size 0
  .amdhsa_kernarg_size 88
  .amdhsa_user_sgpr_count 2
  .amdhsa_user_sgpr_kernarg_segment_ptr 1
  .amdhsa_system_sgpr_workgroup_id_x 1
.end_amdhsa_kernel""")
dst = sys.argv[1] if len(sys.argv) > 1 else "standalone__edge_featured_mpnn_mpnn__graph.s"
open(dst, "w").write("\n".join(out) + "\n")
print("written", dst, "LDS", L_END)
```

```python
import struct, sys, os
import numpy as np
from align import align, isize

N, E = 12500, 800000
NPB, SPLIT = 49, 25
CH, CHS, GCS, DS = 3128, 25088, 25216, 2176
NQ, NQL = CH // 4, (E - 255 * CH) // 4
LOG2E = 1.4426950408889634
LN2 = 0.6931471805599453
KN = "standalone__edge_featured_mpnn_mpnn__graph_kernel"
DIAG = int(os.environ.get("DIAG", "0"))
PREF = int(os.environ.get("PREF", "0"))
X_NOP = int(os.environ.get("X_NOP", "0"))
STF = os.environ.get("STF", "sc1")
LDF = os.environ.get("LDF", "")
TRANS = int(os.environ.get("TRANS", "0"))
ELF = os.environ.get("ELF", "")
SLP = int(os.environ.get("SLP", "1"))
ORD = int(os.environ.get("ORD", "2"))
PFL = 0
CL = int(os.environ.get("CL", "1"))
W5 = int(os.environ.get("W5", "1"))
OWN = int(os.environ.get("OWN", "1"))
POST = int(os.environ.get("POST", "16"))
LATEI = int(os.environ.get("LATEI", "1"))
AL = int(os.environ.get("AL", "12"))
CPF = int(os.environ.get("CPF", "1"))
CPF0 = int(os.environ.get("CPF0", "0"))
PEEL = int(os.environ.get("PEEL", "1"))
STOUCH = int(os.environ.get("STOUCH", "0"))
TOUCH = int(os.environ.get("TOUCH", "0"))

def f2u(x): return struct.unpack("<I", struct.pack("<f", x))[0]
def u2f(u): return struct.unpack("<f", struct.pack("<I", u))[0]

WS_EPOCH = 0
WS_PT = 4096
WS_DESC = WS_PT + 12544 * 256
WS_FLAG = WS_DESC + 256 * DS
WS_PFLAG = WS_FLAG + 8 * DS
WS_ENT = WS_PFLAG + 8 * DS
WS_SIZE = WS_ENT + 256 * GCS
WS_STAMP = 12 << 20
if DIAG: WS_SIZE = 16 << 20

L_CNT1, L_BASE1 = 0, 1024
L_CNT2, L_FLAG, L_DEG, L_B2 = 2048, 2304, 2368, 2816
L_B1 = 0
L_EXT = 3072
L_TB = 4096
TBW = 8704
L_STG, L_W1S, L_XS = L_TB, L_TB + CHS, L_TB + CHS + 32768
PS = 272
assert L_XS + 8704 <= L_TB + 8 * TBW and L_W1S % 256 == 0
HT, GTH = 60, 72
L_SEL = L_TB + 8 * TBW
SELS, SELSZ = 200, 24576
assert 2 * HT * SELS + 56 <= SELSZ
L_GT = L_SEL + SELSZ
L_QT = L_GT + 2 * GTH * 16
QS = 328
L_PS = L_QT
assert L_PS % 16 == 0
L_W2 = (L_QT + NPB * QS + 255) // 256 * 256
L_LIST = L_W2 + 16384
LS, LCAP = 528, 128
LISTSZ = (NPB + 1) * LS
L_END = L_LIST + LISTSZ
assert L_END <= 163840, L_END
PADENT = 0x00007000
PSH = 3072
WSLOW = 6

out = []
def e(s): out.append("    " + s)
def lab(s): out.append(s + ":")
def c(s): out.append("    ; " + s)
def vr(a, n): return f"v[{a}:{a+n-1}]"
def sr(a, n=4): return f"s[{a}:{a+n-1}]"

SPIN = int(os.environ.get("SPIN", "-1"))
def stamp(i, real=False):
    if SPIN == i:
        e("s_waitcnt lgkmcnt(0)")
        e("s_memrealtime s[96:97]")
        e("s_waitcnt lgkmcnt(0)")
    if not DIAG: return
    if DIAG in (2, 4) and i not in (0, 30, 28, 29, 31, 11, 12, 14, 9): return
    if DIAG == 3 and i in (0, 30, 15, 16): return
    e("s_waitcnt lgkmcnt(0)")
    e(f"{'s_memrealtime' if real else 's_memtime'} s[98:99]")
    e("s_waitcnt lgkmcnt(0)")
    e(f"v_writelane_b32 v255, s98, {i}")

lazy = []
def lstamp(i):
    if DIAG != 3: return
    r = 52 + 2 * len(lazy)
    e(f"s_memtime s[{r}:{r+1}]")
    lazy.append((i, r))
def lflush():
    for i, r in lazy: e(f"v_writelane_b32 v255, s{r}, {i}")

def scan64(v):
    for sh in (1, 2, 4, 8):
        e("s_nop 1")
        e(f"v_add_u32_dpp v{v}, v{v}, v{v} row_shr:{sh} row_mask:0xf bank_mask:0xf bound_ctrl:1")
    e("s_nop 1")
    e(f"v_add_u32_dpp v{v}, v{v}, v{v} row_bcast:15 row_mask:0xa bank_mask:0xf")
    e("s_nop 1")
    e(f"v_add_u32_dpp v{v}, v{v}, v{v} row_bcast:31 row_mask:0xc bank_mask:0xf")

H = 176
C = (144, 160)
D = (112, 128)
T = 96
P = 80
SL = 76
BX = (72, 74)
IDX, IDR = 64, 68
NN, DD, RR, AX, CX, V_M = 16, 18, 20, 22, 24, 26
V_CA, V_DMAC, V_LI, V_LM, V_GQA, V_SELA, V_PSEL, V_QMUL, V_QC, V_GQ, V_QA, V_DMAX, V_TID, V_LANE, V_GIA = range(1, 16)
V_GMA, V_LIO, V_LMO = 28, 29, 30
V_SAVE = 240
V_CHK, V_J0, V_W2A = 244, 245, 246
S_X, S_E, S_SRC, S_DST, S_W1, S_B1, S_W2, S_B2, S_OUT, S_WS, S_P = 8, 12, 16, 20, 24, 28, 92, 36, 40, 44, 48
S_MASK = 8
S_SOFF = 52
S_256, S_REM, S_M0, S_WN, S_RB, S_MORE, S_SAFE, S_NT, S_EARLY, S_TAGA, S_TAGB, S_SPIN = 60, 61, (62, 63), 64, 65, 66, 67, 68, 69, 72, 73, 70
S_B, S_W = 3, 4

def mf16(d, a, b, cc): return f"v_mfma_f32_32x32x16_bf16 {vr(d,16)}, {vr(a,4)}, {vr(b,4)}, {cc}"
def mfext(ct): return f"v_mfma_f32_32x32x8_bf16 {vr(D[ct&1],16)}, {vr(AX,2)}, {vr(BX[ct&1],2)}, {vr(C[ct&1],16)}"
def mfsel(ct): return mf16(H + 16 * ct, P + 4 * ct, SL, vr(H + 16 * ct, 16))
def dma(half):
    return [f"buffer_load_dwordx4 v{IDX+j}, {sr(S_P)}, s{S_SOFF+4*half+j} offen offset:{1024*j} lds" for j in range(4)]
def mads(src=IDR): return [f"v_mad_i32_i16 v{IDX+j}, v{src+j}, s{S_256}, v{V_DMAC}" for j in range(4)]
def c_reads(half):
    L = []
    for ctl in range(2):
        for r in range(16):
            mm = r >> 1
            L.append(f"ds_read_u16_d16_hi v{C[ctl]+r}, v{V_CA} offset:{half*4096 + (mm&3)*1024 + (2*(r&1) + (mm>>2))*128 + ctl*64}")
    return L
def tr_read(ct): return f"ds_read_b64_tr_b16 {vr(BX[ct&1],2)}, v{V_QA} offset:{64*ct}"
AXB = f"v_pk_mul_f32 {vr(AX,2)}, {vr(CX,2)}, {vr(V_M,2)} op_sel_hi:[1,0]"
QAB = f"v_mad_u32_u24 v{V_QA}, v{V_GQ}, v{V_QMUL}, v{V_QC}"
PERM = f"v_perm_b32 v{V_M}, v{V_M}, v{V_M}, v{V_PSEL}"

def block(tau, ct, safe, gate=False, last=False):
    cur = D[ct & 1]
    pc, pt = (ct - 1) & 3, (tau if ct > 0 else (tau - 1) & 3)
    tr = [f"v_exp_f32 v{T+i}, v{cur+i}" for i in range(16)] + [f"v_rcp_f32 v{RR}, v{DD}", f"v_rcp_f32 v{RR+1}, v{DD+1}"]
    mf = [] if last else [mfext((ct + 1) & 3)]
    if tau == 0: mf.append(mfsel(ct))
    fill = []
    if ct == 0: fill += [f"v_add_u32 v{V_LI}, v{V_LI}, v{V_LIO}", f"v_add_u32 v{V_LM}, v{V_LM}, v{V_LMO}"]
    if ct == 1: fill += mads() + [PERM]
    if ct == 2:
        fill += [QAB]
        if tau == 3:
            fill += [f"v_add_u32 v{V_GIA}, 256, v{V_GIA}", f"v_add_u32 v{V_GMA}, 256, v{V_GMA}",
                     f"v_add_u32 v{V_GQA}, 256, v{V_GQA}", f"v_add_u32 v{V_SELA}, {16*SELS}, v{V_SELA}"]
    fill.append(f"v_max3_f32 v{V_DMAX}, v{DD}, v{DD+1}, v{V_DMAX}")
    L = []
    k = 0
    if gate:
        L += [tr[0], "s_setprio 3"]; k = 1
    for m in mf:
        L.append(m); L += tr[k:k+4]; k += 4
    L += tr[k:] + fill
    L.append(f"v_pk_mul_f32 {vr(RR,2)}, {vr(NN,2)}, {vr(RR,2)}")
    cvt = f"v_cvt_pk_bf16_f32 v{P+4*pc+pt}, v{RR}, v{RR+1}"
    if not safe:
        L += [f"v_pk_add_f32 {vr(DD,2)}, {vr(T,2)}, 1.0 op_sel_hi:[1,0]", cvt]
        if ct == 2: L.append(AXB)
        for j in range(1, 8):
            n_in = vr(cur, 2) if j == 1 else vr(NN, 2)
            L += [f"v_pk_fma_f32 {vr(NN,2)}, {n_in}, {vr(T+2*j,2)}, {n_in}",
                  f"v_pk_fma_f32 {vr(NN,2)}, {vr(cur+2*j,2)}, {vr(DD,2)}, {vr(NN,2)}",
                  f"v_pk_fma_f32 {vr(DD,2)}, {vr(DD,2)}, {vr(T+2*j,2)}, {vr(DD,2)}"]
    else:
        L += [f"v_pk_add_f32 {vr(T+2*j,2)}, {vr(T+2*j,2)}, 1.0 op_sel_hi:[1,0]" for j in range(8)] + [cvt]
        if ct == 2: L.append(AXB)
        L += [f"v_rcp_f32 v{T+i}, v{T+i}" for i in range(16)]
        L.append(f"v_pk_mul_f32 {vr(NN,2)}, {vr(cur,2)}, {vr(T,2)}")
        L += [f"v_pk_fma_f32 {vr(NN,2)}, {vr(cur+2*j,2)}, {vr(T+2*j,2)}, {vr(NN,2)}" for j in range(1, 8)]
    return L

def memphase(tau, half):
    L = ["s_setprio 0", "s_waitcnt vmcnt(4)"]
    L += c_reads(half) + [tr_read(2 * half), tr_read(2 * half + 1)]
    if half == 0:
        L += [f"ds_read_u16 v{V_LI}, v{V_GIA} offset:{(tau+2)*64}",
              f"ds_read_u16 v{V_LM}, v{V_GMA} offset:{(tau+1)*64}"]
    if half == 1:
        L += [f"ds_read_b128 {vr(IDR,4)}, v{V_LI}",
              f"ds_read_b32 v{V_M}, v{V_LM}",
              f"ds_read_u16 v{V_GQ}, v{V_GQA} offset:{(tau+1)*64+2}"]
        if tau == 1: L.append(f"ds_read_b32 v{SL}, v{V_SELA}")
        if tau >= 1: L.append(f"ds_read_b32 v{SL+tau}, v{V_SELA} offset:{tau*4*SELS}")
    if DIAG == 4 and half == 1: L = ["s_memtime s[98:99]"] + L
    L += [f"s_mov_b32 m0, s{S_M0[half]}", "s_waitcnt lgkmcnt(0)"]
    L += dma(half)
    if DIAG == 4 and half == 1: L += [f"s_add_u32 m0, s{S_REM}, 32", "s_nop 0", "v_writelane_b32 v255, s98, m0"]
    return L

def w2f(ks, mt): return (32 if ks < 4 else 144) + 8 * (ks & 3) + 4 * mt
def w2_reads():
    return [f"ds_read_b64_tr_b16 {vr(w2f(ks,mt)+2*t,2)}, v{27 if mt else V_W2A} offset:{2048*ks+1024*t}"
            for ks in range(8) for mt in range(2) for t in range(2)]

def emit(L):
    L = align(L)
    assert sum(isize(x) for x in L) % 8 == 0
    for s in L: e(s)

def mainloop(safe):
    x = "S" if safe else "F"
    out.append(".p2align 6")
    lab(f"LOOP{x}")
    for tau in range(4):
        c(f"==== tile slot {tau}")
        emit(memphase(tau, 0))
        emit(block((tau - 1) & 3, 3, safe, gate=True))
        if tau == 0 and not PEEL: lab(f"ENTER{x}")
        emit(block(tau, 0, safe))
        if tau == 0 and PEEL: lab(f"ENTER{x}")
        emit(memphase(tau, 1))
        emit(block(tau, 1, safe, gate=True))
        emit(block(tau, 2, safe))
        e(f"s_sub_u32 s{S_REM}, s{S_REM}, 1")
        if tau < 3: e(f"s_cbranch_scc1 TAIL{x}{tau}")
        else: e(f"s_cbranch_scc0 LOOP{x}")
    for tau in (3, 0, 1, 2):
        lab(f"TAIL{x}{tau}")
        emit(["s_setprio 0", f"v_xor_b32 v27, 64, v{V_W2A}"] + w2_reads())
        emit(block(tau, 3, safe, gate=True, last=True))
        if tau == 0: e(f"ds_read_b32 v{SL}, v{V_SELA}")
        e(f"v_rcp_f32 v{RR}, v{DD}")
        e(f"v_rcp_f32 v{RR+1}, v{DD+1}")
        e(f"v_max3_f32 v{V_DMAX}, v{DD}, v{DD+1}, v{V_DMAX}")
        e(f"v_pk_mul_f32 {vr(RR,2)}, {vr(NN,2)}, {vr(RR,2)}")
        for t2 in range(tau + 1, 4): e(f"v_mov_b32_e64 v{SL+t2}, 0")
        e(f"v_cvt_pk_bf16_f32 v{P+12+tau}, v{RR}, v{RR+1}")
        e("s_nop 0")
        e("s_branch DRAIN")

def find_cx(target):
    m = np.float64(u2f(0x00FF0000))
    g = f2u(float(np.float32(np.float64(u2f(target)) / m)))
    for d in range(-3, 4):
        if f2u(float(np.float32(np.float64(u2f(g + d)) * m))) == target: return g + d
    raise SystemExit("no cx")

V_GV, V_GB, V_SB, V_L0, V_COL = 247, 248, 249, 250, 251

def fill_list(t):
    e(f"v_lshlrev_b32 v{t+8}, 4, v{V_TID}")
    e(f"v_add_u32 v{t+9}, {L_LIST}, v{t+8}")
    for i in range(4): e(f"v_mov_b32 v{t+i}, {hex(PADENT)}")
    for o in (0, 8192, 16384, LISTSZ - 8192): e(f"ds_write_b128 v{t+9}, {vr(t,4)} offset:{o}")

def init_tables(t):
    fill_list(t)
    for i in range(4): e(f"v_mov_b32 v{t+4+i}, 0")
    e(f"v_add_u32 v{t+8}, {L_SEL}, v{t+8}")
    for o in (0, 8192, 16384): e(f"ds_write_b128 v{t+8}, {vr(t+4,4)} offset:{o}")
    e(f"v_min_u32 v{t+8}, {GTH*4-1}, v{V_TID}")
    e(f"v_lshlrev_b32 v{t+8}, 3, v{t+8}")
    e(f"v_add_u32 v{t+8}, {L_GT}, v{t+8}")
    e(f"v_mov_b32 v{t+10}, {NPB*LS}")
    e(f"v_mov_b32 v{t+11}, {NPB*LS}")
    e(f"ds_write_b64 v{t+8}, {vr(t+10,2)}")

def static_writes(t, tag):
    e(f"s_cmp_eq_u32 s{S_W}, 1")
    e(f"s_cbranch_scc0 STW{tag}")
    e(f"v_lshlrev_b32 v{t}, 2, v{V_LANE}")
    e(f"v_mov_b32 v{t+1}, 0")
    e(f"ds_write_b32 v{t}, v{V_L0} offset:{L_CNT2}")
    e(f"ds_write_b32 v{t+1}, v{t+1} offset:{L_FLAG}")
    e(f"v_lshl_add_u32 v{t}, v{V_COL}, 2, v{V_GB}")
    e(f"v_lshrrev_b32 v{t+1}, 1, v{V_COL}")
    e(f"v_mul_u32_u24 v{t+1}, {SELS//2}, v{t+1}")
    e(f"v_and_b32 v{t+2}, 1, v{V_COL}")
    e(f"v_lshl_add_u32 v{t+1}, v{t+2}, 1, v{t+1}")
    e(f"v_add_u32 v{t+1}, v{t+1}, v{V_SB}")
    e(f"v_mov_b32 v{t+2}, 0x3f80")
    e(f"s_bfm_b64 exec, {NPB}, 0")
    e(f"ds_write_b32 v{t}, v{V_GV}")
    e(f"ds_write_b16 v{t+1}, v{t+2}")
    e("s_mov_b64 exec, -1")
    lab(f"STW{tag}")

def desc_soff():
    e(f"s_lshr_b32 s5, s{S_B}, 2")
    e(f"s_and_b32 s7, s{S_B}, 1")
    e("s_lshl1_add_u32 s5, s5, s7")
    e(f"s_and_b32 s7, s{S_B}, 2")
    e("s_lshl_b32 s7, s7, 6")
    e("s_add_u32 s5, s5, s7")
    e(f"s_lshl3_add_u32 s5, s5, {WS_DESC}")

def flag_load(first=False):
    if first:
        e(f"v_lshlrev_b32 v62, 3, v{V_CHK}")
        e("s_and_b32 s84, s2, 7")
        e(f"s_mul_i32 s84, s84, {DS}")
        e(f"s_add_u32 s84, s84, {WS_FLAG}")
    e(f"buffer_load_dwordx2 v[60:61], v62, {sr(S_WS)}, s84 offen sc1")

def wave_reset():
    e(f"v_mov_b32 v{V_GIA}, v{V_SAVE}")
    e(f"v_mov_b32 v{V_GMA}, v{V_SAVE+1}")
    e(f"v_mov_b32 v{V_GQA}, v{V_SAVE+2}")
    e(f"v_mov_b32 v{V_SELA}, v{V_SAVE+3}")
    e(f"ds_read_u16 v{V_LI}, v{V_GIA}")
    e(f"ds_read_u16 v{V_LM}, v{V_GMA}")
    e(f"ds_read_u16 v{V_GQ}, v{V_GQA} offset:2")
    for i in range(2):
        e(f"v_mov_b32 v{NN+i}, 0")
        e(f"v_mov_b32 v{DD+i}, 1.0")
    e(f"v_mov_b32 v{V_DMAX}, 0")
    for r in list(range(SL, SL + 20, 2)) + list(range(C[0], C[0] + 32, 2)):
        e(f"v_pk_mul_f32 {vr(r,2)}, {vr(NN,2)}, {vr(NN,2)}")
    e("s_waitcnt lgkmcnt(0)")
    e(f"v_add_u32 v{V_LI}, v{V_LI}, v{V_LIO}")
    e(f"v_add_u32 v{V_LM}, v{V_LM}, v{V_LMO}")
    e(QAB)

def first_tile(mid=None):
    e(f"ds_read_b128 {vr(IDX,4)}, v{V_LI}")
    e(f"ds_read_b32 v{V_M}, v{V_LM}")
    n = 1
    if mid: n += mid()
    e(f"s_mov_b32 m0, s{S_M0[0]}")
    e(f"s_waitcnt lgkmcnt({n})")
    for s in mads(IDX): e(s)
    for s in dma(0): e(s)

def kernel():
    lab(KN)
    e("s_cmpk_ge_u32 s2, 256")
    e("s_cbranch_scc1 K_END")
    if DIAG: e("v_mov_b32 v255, 0")
    stamp(30, True); stamp(0); lstamp(0)
    for s, off in ((S_DST, 24), (S_X, 0), (S_W1, 32), (S_WS, 80), (S_SRC, 16), (S_E, 8)):
        e(f"s_load_dwordx2 {sr(s,2)}, s[0:1], {off}")
    if CPF == 1:
        e("s_getpc_b64 s[90:91]")
        lab("CPF_PC")
        e("s_and_b32 s5, s2, -8")
        e("v_subrev_u32 v18, 504, v0")
        e("v_add_lshl_u32 v16, v18, s5, 7")
        e("v_add_u32 v16, 2048, v16")
        e("v_min_u32 v16, CODE_REST, v16")
        e("v_mov_b32 v17, s91")
        e("v_add_co_u32 v16, vcc, s90, v16")
        e("v_cmp_gt_u32 s[76:77], 8, v18")
        e("s_nop 0")
        e("v_addc_co_u32 v17, vcc, 0, v17, vcc")
        e("s_mov_b64 exec, s[76:77]")
        e("s_cbranch_execz CPF_E")
        e("global_load_dword v18, v[16:17], off")
        lab("CPF_E")
        e("s_mov_b64 exec, -1")
    e(f"v_readfirstlane_b32 s{S_W}, v0")
    e(f"v_and_b32 v{V_LANE}, 63, v0")
    e("v_mov_b32 v88, 0")
    e("v_mov_b32 v89, 0")
    e("v_lshlrev_b32 v92, 3, v0")
    e("ds_write_b64 v92, v[88:89]")
    e(f"s_mov_b32 s{S_DST+3}, 0x00020000")
    e(f"s_mov_b32 s{S_DST+2}, {E*4}")
    e(f"s_mov_b32 s{S_X+2}, {N*128}")
    e(f"s_mov_b32 s{S_X+3}, s{S_DST+3}")
    e(f"s_mov_b32 s{S_W1+2}, {129*256}")
    e(f"s_mov_b32 s{S_W1+3}, s{S_DST+3}")
    e(f"s_lshr_b32 s{S_W}, s{S_W}, 6")
    e(f"s_and_b32 s{S_B}, s2, 7")
    e(f"s_lshl_b32 s{S_B}, s{S_B}, 5")
    e("s_lshr_b32 s5, s2, 3")
    e(f"s_add_u32 s{S_B}, s{S_B}, s5")
    e(f"s_mul_i32 s5, s2, {CH*4}")
    e("v_lshl_add_u32 v32, v0, 4, s5")
    e("s_cmpk_eq_u32 s2, 255")
    e(f"s_movk_i32 s6, {NQ-512}")
    e(f"s_cmovk_i32 s6, {NQL-512}")
    e("v_cmp_gt_u32 s[74:75], s6, v0")
    e(f"v_lshrrev_b32 v37, 4, v{V_LANE}")
    e(f"v_lshrrev_b32 v47, 3, v{V_LANE}")
    e(f"v_and_b32 v48, 7, v{V_LANE}")
    e("v_and_b32 v45, 1, v37")
    e("v_and_b32 v58, 4, v47")
    e("v_and_b32 v59, 1, v47")
    e("v_lshl_add_u32 v58, v59, 1, v58")
    e("v_add_u32 v58, v58, v45")
    e("v_xor_b32 v59, v48, v37")
    e("v_lshlrev_b32 v59, 4, v59")
    e("v_lshl_add_u32 v58, v58, 15, v59")
    e(f"s_lshl_b32 s85, s{S_W}, 11")
    e(f"s_add_u32 s5, s85, s{S_B}")
    e("s_lshl_b32 s5, s5, 7")
    e("v_add_u32 v58, s5, v58")
    e("v_lshlrev_b32 v31, 2, v37")
    e(f"v_xor_b32 v31, v31, v{V_LANE}")
    e("v_lshlrev_b32 v31, 4, v31")
    e(f"s_mul_i32 s84, s{S_W}, 1088")
    e(f"s_add_u32 m0, s84, {L_XS}")
    e("s_movk_i32 s86, 8192")
    lstamp(21)
    e("s_waitcnt lgkmcnt(0)")
    lstamp(22)
    e(f"buffer_load_dwordx4 v[64:67], v32, {sr(S_DST)}, 0 offen {LDF}")
    e("s_mov_b64 exec, s[74:75]")
    e("s_cbranch_execz P0_ND")
    e(f"buffer_load_dwordx4 v[68:71], v32, {sr(S_DST)}, s86 offen {LDF}")
    lab("P0_ND")
    e("s_mov_b64 exec, -1")
    e("s_barrier")
    e(f"buffer_load_dwordx4 v58, {sr(S_X)}, 0 offen lds")
    e(f"s_add_u32 m0, s85, {L_W1S}")
    e(f"s_load_dwordx2 s[78:79], {sr(S_WS,2)}, {WS_EPOCH}")
    for k in range(2): e(f"buffer_load_dwordx4 v31, {sr(S_W1)}, s85 offen offset:{1024*k} lds")
    lab("P0_ISS")
    stamp(15); lstamp(15)
    for s, off in ((S_B1, 40), (S_W2, 48), (S_B2, 56), (S_OUT, 64)):
        e(f"s_load_dwordx2 {sr(s,2)}, s[0:1], {off}")
    e(f"v_mov_b32 v{V_TID}, v0")
    for s, sz in ((S_SRC, E*4), (S_E, E*2), (S_B1, 256), (S_W2, 16384), (S_B2, 128), (S_WS, WS_SIZE), (S_OUT, N*128), (S_P, 256*NPB*256 + PSH)):
        e(f"s_mov_b32 s{s+2}, {sz}")
        e(f"s_mov_b32 s{s+3}, s{S_DST+3}")
    e(f"s_mov_b32 s80, {hex(f2u(-LOG2E))}")
    e("s_mov_b32 s81, s80")
    e(f"v_lshrrev_b32 v38, 5, v{V_LANE}")
    e(f"v_and_b32 v39, 31, v{V_LANE}")
    e("v_bfe_u32 v40, v39, 2, 1")
    e("v_and_b32 v41, 1, v39")
    e("v_lshl_add_u32 v40, v40, 1, v41")
    e("v_lshrrev_b32 v42, 3, v39")
    e("v_bfe_u32 v43, v39, 1, 1")
    e(f"v_bfe_u32 v44, v{V_LANE}, 2, 2")
    e(f"v_and_b32 v46, 3, v{V_LANE}")
    e("v_lshlrev_b32 v46, 3, v46")
    e("v_lshl_add_u32 v46, v45, 5, v46")
    e(f"s_and_b32 s82, s{S_W}, 3")
    e(f"s_lshr_b32 s83, s{S_W}, 2")
    e("v_xor_b32 v50, s82, v44")
    e("v_lshl_add_u32 v50, v50, 6, v46")
    e("v_lshl_add_u32 v51, v38, 3, v44")
    e("v_lshl_add_u32 v50, v51, 8, v50")
    e("v_lshl_add_u32 v51, v40, 1, v43")
    e("v_mul_u32_u24 v52, 1088, v42")
    e("v_lshl_add_u32 v52, v51, 7, v52")
    e("s_mul_i32 s5, s83, 4352")
    e(f"s_add_u32 s5, s5, {L_XS}")
    e("v_add_u32 v52, s5, v52")
    e("v_xor_b32 v53, v38, v40")
    e("v_lshl_add_u32 v51, v53, 4, v52")
    e("v_xor_b32 v53, 2, v53")
    e("v_lshl_add_u32 v52, v53, 4, v52")
    e("s_lshl_b32 s5, s83, 5")
    e("v_add_u32 v55, s5, v39")
    e(f"v_cmp_gt_u32 s[88:89], {NPB}, v55")
    e("s_lshl_b32 s82, s82, 6")
    e("v_lshl_add_u32 v49, v38, 3, s82")
    e(f"v_add_u32 v56, {L_QT}, v49")
    e(f"v_mul_u32_u24 v53, {PS}, v55")
    e("v_add_u32 v53, v53, v56")
    e(f"v_mul_u32_u24 v54, {QS}, v55")
    e("v_add_u32 v54, v54, v56")
    assert PS == 272
    e(f"s_mov_b32 s7, {L_PS}")
    e("v_lshlrev_b32 v61, 4, v0")
    e("v_and_b32 v56, -16, v0")
    e("v_add3_u32 v62, v61, v56, s7")
    e(f"s_min_u32 s5, s{S_W}, 2")
    e(f"s_lshl2_add_u32 s5, s{S_W}, s5")
    e("s_add_u32 s5, s5, 64")
    e("s_lshl_b32 s5, s5, 3")
    e(f"v_add_u32 v55, s5, v{V_LANE}")
    e("v_lshlrev_b32 v63, 4, v55")
    e("v_and_b32 v56, -16, v55")
    e("v_add3_u32 v22, v63, v56, s7")
    e(f"s_cmp_lt_u32 s{S_W}, 2")
    e("s_cselect_b32 s71, 40, 32")
    lstamp(23)
    if not LATEI: init_tables(84)
    e(f"s_mul_i32 s6, s{S_B}, {NPB*256}")
    e(f"s_add_u32 s6, s6, {WS_PT}")
    e(f"s_mov_b32 s87, {128*256}")
    e("v_mov_b32 v55, 1")
    e(f"v_lshlrev_b32 v36, 2, v{V_LANE}")
    e("v_lshrrev_b32 v34, 1, v32")
    e("s_movk_i32 s84, 4096")
    stamp(16); lstamp(16)
    SD = "dst_sel:DWORD dst_unused:UNUSED_PAD src0_sel:DWORD"
    def binA(j):
        e(f"v_lshlrev_b32_sdwa v{112+j}, 2, v{64+j} {SD} src1_sel:BYTE_0")
        e(f"ds_add_rtn_u32 v{120+j}, v{112+j}, v55 offset:{L_CNT1}")
    def binB(j):
        e(f"v_lshlrev_b32_sdwa v{129+2*j}, 2, v{64+j} {SD} src1_sel:BYTE_1")
        if j % 2 == 0: e(f"v_lshlrev_b32 v56, 16, v{80+j//2}")
        else: e(f"v_and_b32 v56, 0xffff0000, v{80+j//2}")
        e(f"v_mul_u32_u24_sdwa v57, {NPB}, v{72+j} {SD} src1_sel:BYTE_0")
        e(f"v_add_u32_sdwa v57, v57, v{72+j} {SD} src1_sel:BYTE_1")
        e(f"v_or3_b32 v{128+2*j}, v56, v57, s87")
    def masked(tag, f):
        e("s_mov_b64 exec, s[74:75]")
        e(f"s_cbranch_execz {tag}")
        f()
        lab(tag)
        e("s_mov_b64 exec, -1")
    assert 128 * 256 == 0x8000
    e(f"v_lshlrev_b32 v58, 4, v{V_LANE}")
    e(f"v_lshlrev_b32 v23, 1, v{V_LANE}")
    e("s_waitcnt vmcnt(3)")
    stamp(3)
    def ldA():
        e(f"buffer_load_dwordx4 v[72:75], v32, {sr(S_SRC)}, 0 offen {LDF}")
        e(f"buffer_load_dwordx2 v[80:81], v34, {sr(S_E)}, 0 offen {LDF}")
    def ldB():
        e(f"buffer_load_dwordx4 v[76:79], v32, {sr(S_SRC)}, s86 offen {LDF}")
        e(f"buffer_load_dwordx2 v[82:83], v34, {sr(S_E)}, s84 offen {LDF}")
    if ORD == 1: ldA()
    for j in range(4): binA(j)
    if ORD == 2: ldA()
    e("s_mov_b64 exec, s[74:75]")
    e("s_cbranch_execz P1_A")
    if ORD == 1: ldB()
    for j in range(4, 8): binA(j)
    if ORD == 2: ldB()
    e("s_mov_b64 exec, -1")
    e("s_waitcnt vmcnt(4)")
    e("s_branch P1_A2")
    lab("P1_A")
    e("s_mov_b64 exec, -1")
    e("s_waitcnt vmcnt(2)")
    lab("P1_A2")
    e("s_add_u32 s86, s85, 16384")
    e(f"s_add_u32 m0, s86, {L_W1S}")
    e(f"s_cmp_eq_u32 s{S_W}, 7")
    e("s_waitcnt lgkmcnt(0)")
    e("s_barrier")
    stamp(4); lflush()
    def tags():
        e(f"s_mul_i32 s{S_TAGB}, s78, 1664525")
        e(f"s_add_u32 s{S_TAGB}, s{S_TAGB}, 1013904223")
        e(f"s_add_u32 s{S_TAGA}, s79, 0x01000000")
        e(f"s_and_b32 s{S_TAGA}, s{S_TAGA}, 0xff000000")
    def p_reads():
        for ks in range(4):
            e(f"ds_read_b64_tr_b16 {vr(88+4*ks,2)}, v50 offset:{L_W1S+4096*ks}")
            e(f"ds_read_b64_tr_b16 {vr(90+4*ks,2)}, v50 offset:{L_W1S+4096*ks+1024}")
            e(f"ds_read_b128 {vr(160+4*ks,4)}, v{51+(ks&1)} offset:{64*(ks>>1)}")
    def p_mfma(counted=False):
        for ks in range(4):
            if counted: e(f"s_waitcnt lgkmcnt({9-3*ks})")
            e(mf16(144, 88 + 4*ks, 160 + 4*ks, "0" if ks == 0 else vr(144, 16)))
    def p_fin():
        for i in range(8): e(f"v_pk_mul_f32 {vr(144+2*i,2)}, {vr(144+2*i,2)}, s[80:81]")
        for i in range(8): e(f"v_cvt_pk_bf16_f32 v{88+i}, v{144+2*i}, v{145+2*i}")
        e("s_mov_b64 exec, s[88:89]")
        for q in range(4): e(f"ds_write_b64 v53, {vr(88+2*q,2)} offset:{16*q}")
        e("s_mov_b64 exec, -1")
    def late():
        for k in range(2): e(f"buffer_load_dwordx4 v31, {sr(S_W1)}, s86 offen offset:{1024*k} lds")
    e("s_cbranch_scc1 P1_SCAN")
    p_reads()
    p_mfma(True)
    tags()
    e(f"s_cmp_eq_u32 s{S_W}, 6")
    e("s_cbranch_scc0 P1_H6")
    e(f"buffer_load_dword v20, v36, {sr(S_W1)}, s87 offen")
    e(f"buffer_load_ushort v21, v23, {sr(S_B2)}, 0 offen")
    e(f"buffer_load_dword v19, v36, {sr(S_B1)}, 0 offen")
    lab("P1_H6")
    e("s_nop 3")
    e("s_branch P1_HJ")
    lab("P1_SCAN")
    e("s_setprio 3")
    e(f"ds_read_b128 v[136:139], v58 offset:{L_CNT1}")
    p_reads()
    tags()
    e(f"s_mul_i32 s7, s2, {DS}")
    e(f"s_add_u32 s7, s7, {WS_DESC}")
    e("s_waitcnt lgkmcnt(0)")
    p_mfma()
    e("v_add_u32 v57, v136, v137")
    e("v_add_u32 v56, v57, v138")
    e("v_add_u32 v59, v56, v139")
    e("v_mov_b32 v60, v59")
    scan64(59)
    e("v_sub_u32 v140, v59, v60")
    e("v_add_u32 v141, v140, v136")
    e("v_add_u32 v142, v140, v57")
    e("v_add_u32 v143, v140, v56")
    e(f"ds_write_b128 v58, v[140:143] offset:{L_BASE1}")
    lab("P1_HJ")
    late()
    p_fin()
    e("s_waitcnt lgkmcnt(0)")
    e("s_barrier")
    e("s_setprio 0")
    stamp(5)
    e("ds_read_b128 v[104:107], v62")
    e("ds_read_b128 v[108:111], v22")
    for j in range(4): e(f"ds_read_b32 v{112+j}, v{112+j} offset:{L_BASE1}")
    e("s_waitcnt lgkmcnt(4)")
    e(f"buffer_store_dwordx4 v[104:107], v61, {sr(S_WS)}, s6 offen {STF}")
    e("s_bfm_b64 exec, s71, 0")
    e(f"buffer_store_dwordx4 v[108:111], v63, {sr(S_WS)}, s6 offen {STF}")
    def w(j):
        e(f"v_add_lshl_u32 v{112+j}, v{112+j}, v{120+j}, 3")
        e(f"ds_write_b64 v{112+j}, {vr(128+2*j,2)} offset:{L_STG}")
    def partA():
        for j in range(4): binB(j)
        e("s_waitcnt lgkmcnt(0)")
        for j in range(4): w(j)
    e("s_mov_b64 exec, s[74:75]")
    e("s_cbranch_execz P1_S1")
    for j in range(4, 8): e(f"ds_read_b32 v{112+j}, v{112+j} offset:{L_BASE1}")
    e("s_mov_b64 exec, -1")
    e("s_waitcnt vmcnt(6)")
    partA()
    e("s_mov_b64 exec, s[74:75]")
    e("s_waitcnt vmcnt(4)")
    for j in range(4, 8): binB(j)
    for j in range(4, 8): w(j)
    e("s_mov_b64 exec, -1")
    e("s_branch P1_JOIN")
    lab("P1_S1")
    e("s_mov_b64 exec, -1")
    e(f"s_cmp_eq_u32 s{S_W}, 7")
    e("s_cbranch_scc0 P1_S2")
    for j in range(4):
        e(f"v_lshl_or_b32 v{96+2*j}, v{136+j}, 12, v{140+j}")
        e(f"v_or_b32 v{96+2*j}, s{S_TAGA}, v{96+2*j}")
        e(f"v_mov_b32 v{97+2*j}, s{S_TAGB}")
    e(f"buffer_store_dwordx4 v[96:99], v58, {sr(S_WS)}, s7 offen sc1")
    e(f"buffer_store_dwordx4 v[100:103], v58, {sr(S_WS)}, s7 offen offset:1024 sc1")
    lab("P1_S2")
    e(f"s_cmp_ge_u32 s{S_W}, 6")
    e("s_waitcnt vmcnt(6)")
    e("s_cbranch_scc1 P1_S3")
    e("s_waitcnt vmcnt(4)")
    lab("P1_S3")
    partA()
    lab("P1_JOIN")
    e(f"s_mul_i32 s5, s2, {GCS}")
    e(f"s_add_u32 s5, s5, {WS_ENT}")
    e("s_waitcnt lgkmcnt(0)")
    e("s_barrier")
    stamp(6)
    for k in range(3): e(f"ds_read_b128 {vr(64+4*k,4)}, v61 offset:{L_STG+8192*k}")
    e(f"s_cmp_eq_u32 s{S_W}, 7")
    e("s_cbranch_scc0 P1_C")
    e(f"ds_read_b128 v[76:79], v58 offset:{L_STG+24576}")
    e("s_add_u32 s7, s5, 24576")
    e("s_bfm_b64 exec, 32, 0")
    e("s_waitcnt lgkmcnt(0)")
    e(f"buffer_store_dwordx4 v[76:79], v58, {sr(S_WS)}, s7 offen {STF}")
    e("s_mov_b64 exec, -1")
    lab("P1_C")
    for k in range(3):
        e(f"s_waitcnt lgkmcnt({2-k})")
        e(f"buffer_store_dwordx4 {vr(64+4*k,4)}, v61, {sr(S_WS)}, s5 offen {STF}")
        if k < 2: e("s_add_u32 s5, s5, 8192")
    def loop_consts():
        e("v_lshlrev_b32 v58, 1, v39")
        e("v_lshl_add_u32 v58, v38, 9, v58")
        e(f"v_add_u32 v{V_CA}, s{S_M0[0]}, v58")
        e("v_lshlrev_b32 v58, 4, v48")
        e(f"v_add_u32 v{V_DMAC}, 0x800000, v58")
        e("v_and_b32 v58, 1, v47")
        e("v_lshlrev_b32 v58, 4, v58")
        e(f"v_add_u32 v{V_LIO}, {L_LIST}, v58")
        e("v_lshl_add_u32 v58, v42, 1, v43")
        e("v_lshlrev_b32 v58, 2, v58")
        e(f"v_add_u32 v{V_LMO}, {L_LIST}, v58")
        e(f"s_sub_u32 s76, {GTH+7}, s{S_W}")
        e(f"s_sub_u32 s77, {HT+7}, s{S_W}")
        e(f"s_cmp_lt_u32 s{S_W}, 4")
        e(f"s_cselect_b32 s76, s{S_W}, s76")
        e(f"s_cselect_b32 s77, s{S_W}, s77")
        e("s_lshl_b32 s76, s76, 4")
        e(f"s_add_u32 s76, s76, {L_GT}")
        e(f"s_mul_i32 s77, s77, {SELS}")
        e(f"s_add_u32 s77, s77, {L_SEL}")
        e(f"v_lshl_add_u32 v{V_SAVE}, v37, 2, s76")
        e(f"v_lshl_add_u32 v{V_SAVE+1}, v40, 2, s76")
        e(f"v_lshl_add_u32 v{V_SAVE+2}, v44, 2, s76")
        e(f"v_mul_u32_u24 v58, {SELS//2}, v38")
        e("v_lshl_add_u32 v58, v39, 2, v58")
        e(f"v_add_u32 v{V_SAVE+3}, s77, v58")
        e("v_cmp_eq_u32 vcc, 0, v38")
        e("v_mov_b32 v59, 0x03020100")
        e("v_mov_b32 v58, 0x0c080c0c")
        e(f"v_cndmask_b32 v{V_PSEL}, v59, v58, vcc")
        e(f"v_cndmask_b32 v{V_QMUL}, 0, 1, vcc")
        e("v_add_u32 v58, 1, v44")
        e("v_lshrrev_b32 v58, 1, v58")
        e("v_and_b32 v59, 1, v44")
        e("v_mul_u32_u24 v58, v58, v59")
        e("v_mul_u32_u24 v58, 320, v58")
        e(f"v_add_u32 v58, {L_EXT}, v58")
        e(f"v_mov_b32 v59, {L_QT}")
        e("v_cndmask_b32 v58, v58, v59, vcc")
        e(f"v_add_u32 v{V_QC}, v46, v58")
        e(f"v_mov_b32 v58, {hex(find_cx(0x00803F80))}")
        e(f"v_mov_b32 v59, {hex(find_cx(0x3F800000))}")
        e("v_cmp_eq_u32 s[6:7], 1, v41")
        e("v_cmp_gt_u32 s[76:77], 2, v40")
        e("s_nop 0")
        e("v_cndmask_b32 v58, v58, v59, s[6:7]")
        e("v_cndmask_b32 v59, 0, v58, s[76:77]")
        e("v_cndmask_b32 v58, v58, 0, s[76:77]")
        e(f"v_cndmask_b32 v{CX}, 1.0, v59, vcc")
        e(f"v_cndmask_b32 v{CX+1}, 1.0, v58, vcc")
        e("v_lshl_add_u32 v58, v38, 2, v44")
        e("v_lshl_add_u32 v58, v58, 7, v46")
        e("v_lshrrev_b32 v59, 1, v44")
        e("v_lshl_add_u32 v58, v59, 6, v58")
        e(f"v_add_u32 v{V_W2A}, {L_W2}, v58")
    if PFL == 1:
        e(f"s_lshl_b32 s5, s{S_W}, 5")
        e("s_lshr_b32 s6, s2, 3")
        e("s_add_u32 s90, s5, s6")
        e("s_and_b32 s6, s2, 7")
        e(f"s_mul_i32 s6, s6, {DS}")
        e("s_lshl_b32 s5, s90, 3")
        e("s_add_u32 s5, s5, s6")
        e(f"s_add_u32 s91, s5, {WS_PFLAG}")
    if LATEI: init_tables(120)
    e("v_lshlrev_b32 v31, 2, v45")
    e(f"v_xor_b32 v31, v31, v{V_LANE}")
    e("v_lshlrev_b32 v31, 4, v31")
    e(f"s_mov_b32 s{S_EARLY}, 2")
    e(f"s_cmp_eq_u32 s{S_W}, 6")
    e("s_cbranch_scc0 P0_NOEXT")
    e("s_waitcnt vmcnt(5)")
    e("v_lshlrev_b32 v118, 16, v19")
    e("v_and_b32 v119, 0xffff0000, v19")
    e("v_lshlrev_b32 v117, 1, v36")
    e(f"ds_write_b64 v117, v[118:119] offset:{L_B1}")
    e("v_lshlrev_b32 v112, 16, v20")
    e("v_and_b32 v113, 0xffff0000, v20")
    e("v_mul_f32 v112, s80, v112")
    e("v_mul_f32 v113, s80, v113")
    e("v_cvt_pk_bf16_f32 v114, v112, v113")
    e("v_lshlrev_b32 v115, 16, v114")
    e("v_and_b32 v116, 0xffff0000, v114")
    e("v_sub_f32 v115, v112, v115")
    e("v_sub_f32 v116, v113, v116")
    e("v_cvt_pk_bf16_f32 v115, v115, v116")
    e("v_lshlrev_b32 v116, 16, v21")
    e(f"ds_write_b32 v36, v114 offset:{L_EXT+320}")
    e(f"ds_write_b32 v36, v115 offset:{L_EXT+640}")
    e(f"ds_write_b32 v36, v116 offset:{L_B2}")
    lab("P0_NOEXT")
    e(f"s_add_u32 s{S_P}, s{S_WS}, {WS_PT - PSH}")
    e(f"s_addc_u32 s{S_P+1}, s{S_WS+1}, 0")
    e(f"v_mov_b32 v252, s{S_TAGA}")
    e(f"v_mov_b32 v253, s{S_TAGB}")
    e(f"v_mul_u32_u24 v254, {DS}, v{V_LANE}")
    e("v_lshlrev_b32 v49, 1, v49")
    for j in range(8): e(f"s_movk_i32 s{S_SOFF+j}, {PSH - 1024*(j&3) + 128*(j>>2)}")
    e(f"s_movk_i32 s{S_256}, 256")
    e(f"s_mul_i32 s{S_M0[0]}, s{S_W}, {TBW}")
    e(f"s_add_u32 s{S_M0[0]}, s{S_M0[0]}, {L_TB}")
    e(f"s_add_u32 s{S_M0[1]}, s{S_M0[0]}, 4096")
    e(f"s_mov_b32 s{S_WN}, 32")
    e(f"s_mov_b32 s{S_RB}, 0")
    e(f"s_mov_b32 s{S_SAFE}, 0")
    e(f"s_mov_b32 s{S_SPIN}, 0x40000")
    e(f"v_cmp_le_u32 vcc, {SPLIT}, v{V_LANE}")
    e(f"v_mul_u32_u24 v56, {LS}, v{V_LANE}")
    e(f"v_mul_u32_u24 v57, {QS}, v{V_LANE}")
    e(f"v_add_u32 v{V_L0}, {L_LIST}, v56")
    e(f"v_lshl_or_b32 v{V_GV}, v57, 16, v56")
    e("v_cndmask_b32 v56, 0, 1, vcc")
    e(f"v_mul_u32_u24 v57, {SPLIT}, v56")
    e(f"v_sub_u32 v{V_COL}, v{V_LANE}, v57")
    e(f"v_mul_u32_u24 v57, {GTH*16}, v56")
    e(f"v_add_u32 v{V_GB}, {L_GT}, v57")
    e(f"v_mul_u32_u24 v57, {HT*SELS}, v56")
    e(f"v_lshl_add_u32 v57, v{V_COL}, 2, v57")
    e(f"v_add_u32 v{V_SB}, {L_SEL}, v57")
    if PFL == 1:
        e(f"s_load_dwordx2 s[92:93], {sr(S_WS,2)}, s91 glc")
    if not CL: loop_consts()
    if LATEI:
        e("s_waitcnt lgkmcnt(0)")
        e("s_barrier")
    static_writes(56, "A")
    e("v_lshl_add_u32 v56, v37, 3, v48")
    e(f"s_lshl_b32 s5, s{S_W}, 5")
    e(f"v_add_u32 v{V_CHK}, s5, v56")
    e(f"v_and_b32 v{V_J0}, 15, v{V_LANE}")
    e(f"v_mul_u32_u24 v33, {DS}, v{V_CHK}")
    desc_soff()
    e(f"buffer_load_dwordx2 v[34:35], v33, {sr(S_WS)}, s5 offen sc1")
    nyoung = 1
    if PFL == 1:
        e("s_and_b32 s6, s90, 7")
        e("s_lshl_b32 s6, s6, 5")
        e("s_lshr_b32 s7, s90, 3")
        e("s_add_u32 s6, s6, s7")
        e(f"s_mul_i32 s6, s6, {NPB*256}")
        e(f"s_add_u32 s6, s6, {PSH}")
        e(f"v_min_u32 v56, {NPB-1}, v{V_LANE}")
        e("v_lshlrev_b32 v56, 8, v56")
        e("s_waitcnt lgkmcnt(0)")
        e(f"s_cmp_eq_u64 s[92:93], s[{S_TAGA}:{S_TAGB}]")
        e("s_cselect_b32 s6, s6, 0x7f000000")
        e("v_add_u32 v56, s6, v56")
        e(f"buffer_load_dword v57, v56, {sr(S_P)}, 0 offen")
        e(f"buffer_load_dword v58, v56, {sr(S_P)}, 0 offen offset:128")
        nyoung = 3
    e("s_lshl_b32 s6, s2, 3")
    e(f"s_add_u32 s6, s6, {WS_FLAG}")
    stamp(18)
    e(f"s_waitcnt vmcnt({nyoung}) lgkmcnt(0)")
    e("s_barrier")
    stamp(7)
    e(f"s_cmp_eq_u32 s{S_W}, 0")
    e("s_cbranch_scc0 P1_NF")
    e("s_mov_b64 exec, 0xff")
    e(f"buffer_store_dwordx2 v[252:253], v254, {sr(S_WS)}, s6 offen sc1")
    e("s_mov_b64 exec, -1")
    lab("P1_NF")
    if OWN:
        e(f"s_mul_i32 s6, s{S_B}, {NPB*256}")
        e(f"s_mul_i32 s7, s{S_W}, 13")
        e(f"v_add_u32 v56, s7, v{V_LANE}")
        e(f"v_min_u32 v56, {2*NPB-1}, v56")
        e("v_lshl_add_u32 v56, v56, 7, s6")
        e("s_bfm_b64 exec, 13, 0")
        e(f"buffer_load_dword v57, v56, {sr(S_P)}, s{S_SOFF} offen")
        e("s_mov_b64 exec, -1")
    for q in range(4): e(f"ds_read_b128 {vr(144+4*q,4)}, v49 offset:{L_B1+32*q}")
    for ks in range(4):
        e(f"ds_read_b64_tr_b16 {vr(80+4*ks,2)}, v50 offset:{L_W1S+16384+4096*ks}")
        e(f"ds_read_b64_tr_b16 {vr(82+4*ks,2)}, v50 offset:{L_W1S+16384+4096*ks+1024}")
    for ks in range(4):
        e(f"s_waitcnt lgkmcnt({6-2*ks})")
        e(mf16(144, 80 + 4*ks, 160 + 4*ks, vr(144, 16)))
    e("s_nop 7")
    e("s_nop 3")
    for i in range(8): e(f"v_pk_mul_f32 {vr(144+2*i,2)}, {vr(144+2*i,2)}, s[80:81]")
    for i in range(8): e(f"v_cvt_pk_bf16_f32 v{64+i}, v{144+2*i}, v{145+2*i}")
    e("s_mov_b64 exec, s[88:89]")
    for q in range(4): e(f"ds_write_b64 v54, {vr(64+2*q,2)} offset:{16*q}")
    e("s_mov_b64 exec, -1")
    stamp(19)
    if CL: loop_consts()

    lab("POLL1")
    e(f"v_mul_u32_u24 v32, {GCS}, v{V_CHK}")
    e(f"v_add_u32 v37, 16, v{V_J0}")
    e("v_bfrev_b32 v43, -2")
    e(f"v_cmp_gt_u32 vcc, s{S_WN}, v{V_J0}")
    e(f"v_add_u32 v38, s{S_RB}, v{V_J0}")
    e(f"v_add_u32 v39, s{S_RB}, v37")
    e("v_lshlrev_b32 v36, 3, v38")
    e("v_cndmask_b32 v38, v43, v38, vcc")
    e(f"v_cmp_gt_u32 vcc, s{S_WN}, v37")
    e(f"s_mov_b32 s7, {WS_ENT}")
    e("v_mov_b32 v55, 4")
    e("v_cndmask_b32 v39, v43, v39, vcc")
    e(f"s_waitcnt vmcnt({OWN})")
    lab("POLL")
    e(f"v_xor_b32 v34, s{S_TAGA}, v34")
    e(f"v_cmp_ne_u32 s[76:77], s{S_TAGB}, v35")
    e("v_cmp_le_u32 vcc, 0x1000000, v34")
    e("s_or_b64 vcc, vcc, s[76:77]")
    e("s_cbranch_scc0 POLLED")
    e(f"s_sub_u32 s{S_SPIN}, s{S_SPIN}, 1")
    e("s_cbranch_scc1 K_END")
    e(f"s_sleep {SLP}")
    e(f"buffer_load_dwordx2 v[34:35], v33, {sr(S_WS)}, s5 offen sc1")
    e("s_waitcnt vmcnt(0)")
    e("s_branch POLL")
    lab("POLLED")
    stamp(8)
    e("v_and_b32 v35, 0xfff, v34")
    e("v_lshrrev_b32 v34, 12, v34")
    e("v_lshl_add_u32 v35, v35, 3, v32")
    e(f"s_add_u32 s5, s{S_RB}, s{S_WN}")
    e("v_cmp_lt_u32 s[74:75], s5, v34")
    DP = "row_mask:0xf bank_mask:0xf"
    for i in range(8):
        e(f"v_mov_b32_dpp v43, v34 row_newbcast:{i} {DP}")
        e(f"v_add_u32_dpp v{44+i}, v35, v36 row_newbcast:{i} {DP}")
        e(f"v_cmp_lt_u32 {sr(S_MASK+2*i,2)}, v38, v43")
        e(f"v_cmp_lt_u32 {sr(S_MASK+16+2*i,2)}, v39, v43")
    e(f"v_lshlrev_b32 v54, 2, v{V_LANE}")
    e("v_mov_b32 v53, 0")
    e("s_mov_b64 exec, s[74:75]")
    e(f"ds_write_b32 v53, v55 offset:{L_FLAG}")
    e("s_mov_b64 exec, -1")
    if not W5: wave_reset()
    flag_load(True)
    lab("FPOLL")
    e("s_waitcnt vmcnt(0)")
    e(f"v_cmp_ne_u32 s[76:77], s{S_TAGB}, v61")
    e(f"v_cmp_ne_u32 vcc, s{S_TAGA}, v60")
    e("s_or_b64 vcc, vcc, s[76:77]")
    e("s_cbranch_scc0 FPOLLED")
    e(f"s_sub_u32 s{S_SPIN}, s{S_SPIN}, 1")
    e("s_cbranch_scc1 K_END")
    e(f"s_sleep {SLP}")
    flag_load()
    e("s_branch FPOLL")
    lab("FPOLLED")
    stamp(17)
    for k in range(8, 16):
        e(f"s_mov_b64 exec, {sr(S_MASK+2*k,2)}")
        e(f"s_cbranch_execz R_L{k}")
        e(f"buffer_load_dwordx2 {vr(112+2*k,2)}, v{44+(k&7)}, {sr(S_WS)}, s7 offen offset:128 {ELF}")
        lab(f"R_L{k}")
    for k in range(8):
        e(f"s_or_b64 exec, {sr(S_MASK+2*k,2)}, 1")
        e(f"buffer_load_dwordx2 {vr(112+2*k,2)}, v{44+k}, {sr(S_WS)}, s7 offen {ELF}")
    e("s_mov_b64 exec, -1")
    if W5: wave_reset()
    e(f"s_cmp_eq_u32 s{S_EARLY}, 2")
    e("s_cbranch_scc0 R_NH")
    for i in range(32): e(f"v_pk_mul_f32 {vr(H+2*i,2)}, {vr(NN,2)}, {vr(NN,2)}")
    lab("R_NH")
    e("s_waitcnt vmcnt(8)")
    for k in list(range(8, 16)) + list(range(8)):
        e(f"s_mov_b64 exec, {sr(S_MASK+2*k,2)}")
        if k >= 8: e(f"s_cbranch_execz R_A{k}")
        else: e(f"s_waitcnt vmcnt({7-k})")
        e(f"ds_add_rtn_u32 v{T+k}, v{113+2*k}, v55 offset:{L_CNT2}")
        if k >= 8: lab(f"R_A{k}")
    def list_writes(tag):
        for k in list(range(8, 16)) + list(range(8)):
            e(f"s_mov_b64 exec, {sr(S_MASK+2*k,2)}")
            if k >= 8: e(f"s_cbranch_execz {tag}{k}")
            e(f"ds_write_b32 v{T+k}, v{112+2*k}")
            if k >= 8: lab(f"{tag}{k}")
        e("s_mov_b64 exec, -1")
    e("s_mov_b64 exec, -1")
    e(f"s_cmp_eq_u32 s{S_EARLY}, 2")
    e("s_cbranch_scc0 R_NW2")
    e(f"s_add_u32 m0, s85, {L_W2}")
    e(f"s_mov_b32 s{S_EARLY}, 0")
    for k in range(2): e(f"buffer_load_dwordx4 v31, {sr(S_W2)}, s85 offen offset:{1024*k} lds")
    if POST:
        e("s_lshr_b32 s6, s2, 3")
        e("s_and_b32 s7, s6, 7")
        e("s_lshl_b32 s7, s7, 5")
        e("s_lshr_b32 s6, s6, 3")
        e(f"s_lshl2_add_u32 s6, s{S_W}, s6")
        e("s_add_u32 s6, s6, s7")
        e(f"s_mul_i32 s6, s6, {NPB*256}")
        e(f"v_lshl_add_u32 v56, v{V_LANE}, 7, s6")
        e(f"s_bfm_b64 exec, {POST}, 0")
        e(f"buffer_load_dword v57, v56, {sr(S_P)}, s{S_SOFF} offen")
        e("s_mov_b64 exec, -1")
    lab("R_NW2")
    e("s_waitcnt lgkmcnt(0)")
    stamp(20)
    list_writes("R_C")
    e("s_waitcnt lgkmcnt(0)")
    e("s_barrier")
    stamp(9)
    def mid():
        e(f"ds_read_b32 v32, v54 offset:{L_CNT2}")
        e(f"ds_read_b32 v33, v53 offset:{L_FLAG}")
        e(f"ds_read_b32 v34, v54 offset:{L_DEG}")
        return 3
    first_tile(mid)
    e("s_waitcnt lgkmcnt(0)")
    e(f"v_sub_u32 v32, v32, v{V_L0}")
    e("v_max_u32 v35, 4, v32")
    e("v_subrev_u32 v35, 4, v35")
    e("v_lshrrev_b32 v35, 5, v35")
    e("v_mov_b32 v36, v35")
    e(f"v_cmp_lt_u32 s[76:77], {LCAP//8-1}, v35")
    scan64(36)
    e(f"v_readfirstlane_b32 s{S_MORE}, v33")
    e(f"v_readlane_b32 s6, v36, {SPLIT-1}")
    e("v_readlane_b32 s7, v36, 63")
    e(f"v_cmp_le_u32 vcc, {SPLIT}, v{V_LANE}")
    e("v_sub_u32 v36, v36, v35")
    e("v_lshrrev_b32 v32, 2, v32")
    e("s_sub_u32 s7, s7, s6")
    e(f"s_add_u32 s82, s6, {SPLIT+3}")
    e(f"s_add_u32 s83, s7, {NPB-SPLIT+3}")
    e("s_max_u32 s5, s82, s83")
    e(f"s_cmp_ge_u32 s5, {4*HT+4}")
    e("s_cbranch_scc0 R_FITS")
    e(f"s_mov_b32 s{S_WN}, {WSLOW}")
    e("s_branch NEXT_ROUND")
    lab("R_FITS")
    e(f"s_sub_u32 s6, {NPB-SPLIT-1}, s6")
    e(f"v_add_u32 v37, {SPLIT-1}, v36")
    e("v_add_u32 v38, s6, v36")
    e("v_cndmask_b32 v37, v37, v38, vcc")
    e(f"v_mov_b32 v39, v{V_GV}")
    e(f"s_mov_b32 s{S_EARLY}, 1")
    e("s_cmp_eq_u64 s[76:77], 0")
    e("s_cbranch_scc0 R_COMPACT")
    lab("R_TABLE")
    e("v_mov_b32 v41, 0x3f80")
    e(f"s_add_u32 s6, s{S_W}, 1")
    lab("R_GT")
    e("v_cmp_le_u32 vcc, s6, v35")
    e("s_and_b64 exec, exec, vcc")
    e("s_cbranch_execz R_GTE")
    e("v_add_u32 v44, s6, v37")
    e("s_lshl_b32 s7, s6, 5")
    e(f"v_lshl_add_u32 v45, v44, 2, v{V_GB}")
    e("v_add_u32 v47, s7, v39")
    e("ds_write_b32 v45, v47")
    e("v_lshrrev_b32 v46, 1, v44")
    e(f"v_mul_u32_u24 v46, {SELS//2}, v46")
    e("v_and_b32 v44, 1, v44")
    e("v_lshl_add_u32 v46, v44, 1, v46")
    e(f"v_add_u32 v46, v46, v{V_SB}")
    e("ds_write_b16 v46, v41")
    e("s_add_u32 s6, s6, 8")
    e("s_branch R_GT")
    lab("R_GTE")
    e("s_mov_b64 exec, -1")
    e("s_waitcnt vmcnt(4) lgkmcnt(0)")
    e("s_barrier")
    stamp(10)
    e(f"s_cmp_eq_u32 s{S_W}, 0")
    e("s_cbranch_scc0 R_ND")
    e("v_add_u32 v34, v34, v32")
    e(f"ds_write_b32 v54, v34 offset:{L_DEG}")
    lab("R_ND")
    e(f"s_sub_u32 s5, 7, s{S_W}")
    e(f"s_cmp_lt_u32 s{S_W}, 4")
    e(f"s_cselect_b32 s5, s{S_W}, s5")
    e("s_cselect_b32 s6, s82, s83")
    e("s_lshr_b32 s6, s6, 2")
    e("s_sub_u32 s6, s6, s5")
    e("s_add_u32 s6, s6, 3")
    e(f"s_lshr_b32 s{S_NT}, s6, 2")
    e(f"s_or_b32 s6, s{S_MORE}, s{S_RB}")
    e(f"s_or_b32 s{S_SAFE}, s{S_SAFE}, s6")
    e(f"s_cmp_eq_u32 s{S_EARLY}, 0")
    e("s_cbranch_scc1 WAVE_REDO")
    lab("WAVE_GO")
    e(f"ds_read_u16 v{V_LI}, v{V_GIA} offset:64")
    e(f"s_mov_b32 m0, s{S_M0[1]}")
    e(f"s_sub_u32 s{S_REM}, s{S_NT}, 1")
    e("s_waitcnt lgkmcnt(0)")
    e(f"v_add_u32 v{V_LI}, v{V_LI}, v{V_LIO}")
    e(f"ds_read_b128 {vr(IDR,4)}, v{V_LI}")
    e(PERM)
    e(AXB)
    if PEEL:
        e("s_waitcnt vmcnt(0)")
        for s in c_reads(0)[:16] + [tr_read(0)]: e(s)
        for s in dma(1): e(s)
        for s in memphase(0, 0)[2+16:-4]:
            if s != tr_read(0): e(s)
        e(mfext(0))
        for s in mads(): e(s)
        e("s_nop 5")
        stamp(11); stamp(28, True)
        e(f"s_cmp_lg_u32 s{S_SAFE}, 0")
        e("s_cbranch_scc1 PEELS")
        for safe in (False, True):
            out.append(".p2align 3")
            if safe: lab("PEELS")
            emit(block(0, 0, safe))
            for s in dma(0): e(s)
            e(f"s_branch ENTER{'S' if safe else 'F'}")
    else:
        for s in dma(1): e(s)
        e("s_waitcnt lgkmcnt(0)")
        for s in mads(): e(s)
        for s in memphase(0, 0): e(s)
        e(mfext(0))
        e("s_nop 7")
        e("s_nop 1")
        stamp(11); stamp(28, True)
        e(f"s_cmp_lg_u32 s{S_SAFE}, 0")
        e("s_cbranch_scc1 ENTERS")
        e("s_branch ENTERF")

    lab("R_COMPACT")
    e("s_barrier")
    fill_list(40)
    e(f"v_add_lshl_u32 v38, v36, v{V_LANE}, 5")
    e(f"v_add_u32 v38, {L_LIST}, v38")
    e(f"v_sub_u32 v38, v38, v{V_L0}")
    e("v_add_u32 v39, v39, v38")
    for k in range(16): e(f"ds_bpermute_b32 v{113+2*k}, v{113+2*k}, v38")
    e(f"v_lshl_add_u32 v45, v{V_COL}, 2, v{V_GB}")
    e(f"s_bfm_b64 exec, {NPB}, 0")
    e("ds_write_b32 v45, v39")
    e("s_mov_b64 exec, -1")
    e("s_waitcnt lgkmcnt(0)")
    e("s_barrier")
    for k in range(16): e(f"v_add_u32 v{T+k}, v{T+k}, v{113+2*k}")
    list_writes("R_D")
    e(f"s_mov_b32 s{S_EARLY}, 0")
    e("s_branch R_TABLE")
    lab("WAVE_REDO")
    e("s_waitcnt vmcnt(0)")
    wave_reset()
    first_tile()
    e("s_branch WAVE_GO")

    mainloop(False)
    mainloop(True)

    lab("NEXTR")
    e(f"s_add_u32 s{S_RB}, s{S_RB}, s{S_WN}")
    lab("NEXT_ROUND")
    e("s_setprio 0")
    e("s_waitcnt vmcnt(0) lgkmcnt(0)")
    e("s_barrier")
    init_tables(32)
    e("s_waitcnt lgkmcnt(0)")
    e("s_barrier")
    static_writes(32, "B")
    e(f"v_mul_u32_u24 v33, {DS}, v{V_CHK}")
    desc_soff()
    e(f"buffer_load_dwordx2 v[34:35], v33, {sr(S_WS)}, s5 offen sc1")
    e("s_waitcnt vmcnt(0) lgkmcnt(0)")
    e("s_barrier")
    e("s_branch POLL1")

    out.append(".p2align 3")
    lab("DRAIN")
    e("s_waitcnt lgkmcnt(0)")
    e(f"s_cmp_lg_u32 s{S_MORE}, 0")
    for ct in range(4): e(mfsel(ct))
    stamp(12); stamp(29, True)
    e("s_cbranch_scc1 NEXTR")
    e(f"v_lshrrev_b32 v96, 5, v{V_LANE}")
    e(f"v_and_b32 v97, 31, v{V_LANE}")
    e("v_mul_u32_u24 v97, 272, v97")
    e("v_lshl_add_u32 v97, v96, 4, v97")
    e(f"v_add_u32 v97, s{S_M0[0]}, v97")
    e(f"s_mov_b32 s6, {hex(f2u(2.0**120))}")
    e(f"v_cmp_nge_f32 s[76:77], s6, v{V_DMAX}")
    e(f"v_lshrrev_b32 v98, 3, v{V_TID}")
    e(f"v_and_b32 v99, 7, v{V_TID}")
    O = D
    cv = lambda ct: [f"v_cvt_pk_bf16_f32 v{64+8*ct+i}, v{H+16*ct+2*i}, v{H+16*ct+2*i+1}" for i in range(8)]
    for s in cv(0): e(s)
    rest = [f"v_cmp_le_u32 vcc, {SPLIT}, v98", "v_mul_u32_u24 v100, 272, v98", "v_lshl_add_u32 v100, v99, 5, v100",
            f"v_add_u32 v101, {4*TBW - SPLIT*272}, v100", "v_cndmask_b32 v100, v100, v101, vcc",
            "v_lshlrev_b32 v101, 2, v98", "v_lshlrev_b32 v102, 5, v99", "v_lshlrev_b32 v103, 15, v98"]
    for ct in range(4):
        nxt = cv(ct + 1) if ct < 3 else rest
        for s in range(2):
            for mt in range(2):
                ks = 2 * ct + s
                for x in nxt[4*s + 2*mt: 4*s + 2*mt + 2]: e(x)
                e(mf16(O[mt], w2f(ks, mt), 64 + 4*ks, "0" if ks == 0 else vr(O[mt], 16)))
    e("v_lshl_add_u32 v103, v99, 4, v103")
    e(f"s_lshl_b32 s5, s{S_B}, 7")
    e("v_add_u32 v103, s5, v103")
    e("s_movk_i32 s7, 0x207")
    e("s_waitcnt vmcnt(0)")
    e("s_nop 5")
    e(f"v_cmp_class_f32 vcc, v{O[0]}, s7")
    e("s_or_b64 s[76:77], s[76:77], vcc")
    e("s_cbranch_scc0 EPI_OK")
    e(f"s_cmp_lg_u32 s{S_SAFE}, 0")
    e("s_cbranch_scc1 EPI_OK")
    e(f"s_mov_b32 s{S_SAFE}, 1")
    for i in range(64): e(f"v_mov_b32 v{H+i}, 0")
    e("s_branch WAVE_REDO")
    lab("EPI_OK")
    for mt in range(2):
        for q in range(4):
            e(f"ds_write_b128 v97, {vr(O[mt]+4*q,4)} offset:{128*mt+32*q}")
    e(f"ds_read_b128 v[32:35], v102 offset:{L_B2}")
    e(f"ds_read_b128 v[36:39], v102 offset:{L_B2+16}")
    e(f"v_cmp_gt_u32 vcc, {NPB}, v98")
    e(f"s_or_b32 s6, s2, s{S_W}")
    e("s_cbranch_scc1 EPI_NE")
    e(f"v_mov_b32 v42, s{S_TAGB}")
    e(f"v_mov_b32 v43, s{S_TAGA}")
    e("v_mov_b32 v44, 0")
    e("s_mov_b64 exec, 1")
    e(f"buffer_store_dwordx2 v[42:43], v44, {sr(S_WS)}, 0 offen offset:{WS_EPOCH}")
    e("s_mov_b64 exec, -1")
    lab("EPI_NE")
    e("s_waitcnt lgkmcnt(0)")
    e("s_barrier")
    stamp(13)
    e("s_and_b64 exec, exec, vcc")
    e("s_cbranch_execz K_FIN")
    e(f"ds_read_b32 v40, v101 offset:{L_DEG}")
    for s in range(4):
        e(f"ds_read_b128 {vr(64+8*s,4)}, v100 offset:{L_TB+s*TBW}")
        e(f"ds_read_b128 {vr(68+8*s,4)}, v100 offset:{L_TB+s*TBW+16}")
    e(f"s_mov_b32 s6, {hex(f2u(-LN2))}")
    e("s_mov_b32 s7, s6")
    e("s_waitcnt lgkmcnt(8)")
    e("v_cvt_f32_u32 v40, v40")
    for i in range(4): e(f"v_pk_mul_f32 {vr(32+2*i,2)}, {vr(32+2*i,2)}, v[40:41] op_sel_hi:[1,0]")
    for s in range(4):
        e(f"s_waitcnt lgkmcnt({6-2*s})")
        for i in range(4): e(f"v_pk_fma_f32 {vr(32+2*i,2)}, {vr(64+8*s+2*i,2)}, s[6:7], {vr(32+2*i,2)}")
    for i in range(4): e(f"v_cvt_pk_bf16_f32 v{44+i}, v{32+2*i}, v{33+2*i}")
    e(f"buffer_store_dwordx4 v[44:47], v103, {sr(S_OUT)}, 0 offen")
    lab("K_FIN")
    if SPIN >= 0:
        lab("SPINL")
        e("s_memrealtime s[98:99]")
        e("s_waitcnt lgkmcnt(0)")
        e("s_sub_u32 s98, s98, s96")
        e("s_cmp_lt_u32 s98, 6000")
        e("s_cbranch_scc1 SPINL")
    if DIAG:
        e("s_mov_b64 exec, -1")
        e("s_waitcnt vmcnt(0)")
        stamp(14); stamp(31, True)
        e(f"v_writelane_b32 v255, s{S_NT}, 27")
        e("s_lshl_b32 s5, s2, 11")
        e(f"s_add_u32 s5, s5, {WS_STAMP}")
        e(f"v_lshlrev_b32 v1, 2, v{V_TID}")
        e(f"buffer_store_dword v255, v1, {sr(S_WS)}, s5 offen")
    lab("K_END")
    e("s_endpgm")
    if CPF: out.append(".set CODE_REST, K_END - CPF_PC")

hdr = open("standalone__edge_featured_mpnn_mpnn__graph.s.ref").read().split("; Override")[0]
out.append(hdr.rstrip())
out.append(f"; @launch grid=(256,1,1) block=(512,1,1) lds={L_END}")
out.append('.amdgcn_target "amdgcn-amd-amdhsa--gfx950"')
out.append(".text")
out.append(f".globl {KN}")
out.append(f".p2align {AL}")
out.append(f".type {KN},@function")
kernel()
out.append(f""".section .rodata,"a"
.p2align 6
.amdhsa_kernel {KN}
  .amdhsa_next_free_vgpr 256
  .amdhsa_next_free_sgpr 102
  .amdhsa_accum_offset 256
  .amdhsa_group_segment_fixed_size 0
  .amdhsa_kernarg_size 88
  .amdhsa_user_sgpr_count 2
  .amdhsa_user_sgpr_kernarg_segment_ptr 1
  .amdhsa_system_sgpr_workgroup_id_x 1
.end_amdhsa_kernel""")
dst = sys.argv[1] if len(sys.argv) > 1 else "standalone__edge_featured_mpnn_mpnn__graph.s"
open(dst, "w").write("\n".join(out) + "\n")
print("written", dst, "LDS", L_END)
```

```python
import struct, sys, os
import numpy as np
from align import align, isize

N, E = 12500, 800000
NPB, SPLIT = 49, 25
CH, CHS, GCS, DS = 3128, 25088, 25216, 2176
NQ, NQL = CH // 4, (E - 255 * CH) // 4
LOG2E = 1.4426950408889634
LN2 = 0.6931471805599453
KN = "standalone__edge_featured_mpnn_mpnn__graph_kernel"
DIAG = int(os.environ.get("DIAG", "0"))
PREF = int(os.environ.get("PREF", "0"))
X_NOP = int(os.environ.get("X_NOP", "0"))
STF = os.environ.get("STF", "sc1")
LDF = os.environ.get("LDF", "")
TRANS = int(os.environ.get("TRANS", "0"))
ELF = os.environ.get("ELF", "")
SLP = int(os.environ.get("SLP", "1"))
ORD = int(os.environ.get("ORD", "2"))
PFL = 0
CL = int(os.environ.get("CL", "1"))
W5 = int(os.environ.get("W5", "0"))
OWN = int(os.environ.get("OWN", "1"))
POST = int(os.environ.get("POST", "16"))
LATEI = int(os.environ.get("LATEI", "1"))
AL = int(os.environ.get("AL", "12"))
CPF = int(os.environ.get("CPF", "1"))
CPF0 = int(os.environ.get("CPF0", "0"))
PEEL = int(os.environ.get("PEEL", "1"))
STOUCH = int(os.environ.get("STOUCH", "0"))
TOUCH = int(os.environ.get("TOUCH", "0"))

def f2u(x): return struct.unpack("<I", struct.pack("<f", x))[0]
def u2f(u): return struct.unpack("<f", struct.pack("<I", u))[0]

WS_EPOCH = 0
WS_PT = 4096
WS_DESC = WS_PT + 12544 * 256
WS_FLAG = WS_DESC + 256 * DS
WS_PFLAG = WS_FLAG + 8 * DS
WS_ENT = WS_PFLAG + 8 * DS
WS_SIZE = WS_ENT + 256 * GCS
WS_STAMP = 12 << 20
if DIAG: WS_SIZE = 16 << 20

L_CNT1, L_BASE1 = 0, 1024
L_CNT2, L_FLAG, L_DEG, L_B2 = 2048, 2304, 2368, 2816
L_B1 = 0
L_EXT = 3072
L_TB = 4096
TBW = 8704
L_STG, L_W1S, L_XS = L_TB, L_TB + CHS, L_TB + CHS + 32768
PS = 272
assert L_XS + 8704 <= L_TB + 8 * TBW and L_W1S % 256 == 0
HT, GTH = 60, 72
L_SEL = L_TB + 8 * TBW
SELS, SELSZ = 200, 24576
assert 2 * HT * SELS + 56 <= SELSZ
L_GT = L_SEL + SELSZ
L_QT = L_GT + 2 * GTH * 16
QS = 328
L_PS = L_QT
assert L_PS % 16 == 0
L_W2 = (L_QT + NPB * QS + 255) // 256 * 256
L_LIST = L_W2 + 16384
LS, LCAP = 528, 128
LISTSZ = (NPB + 1) * LS
L_END = L_LIST + LISTSZ
assert L_END <= 163840, L_END
PADENT = 0x00007000
PSH = 3072
WSLOW = 6

out = []
def e(s): out.append("    " + s)
def lab(s): out.append(s + ":")
def c(s): out.append("    ; " + s)
def vr(a, n): return f"v[{a}:{a+n-1}]"
def sr(a, n=4): return f"s[{a}:{a+n-1}]"

SPIN = int(os.environ.get("SPIN", "-1"))
AMP = [int(x) for x in os.environ.get("AMP", "-1,-1,-1").split(",")]
def stamp(i, real=False):
    if AMP[0] >= 0:
        if i == 0: e("s_memrealtime s[96:97]")
        if i == AMP[0]:
            if i: e("s_waitcnt lgkmcnt(0)")
            e("s_memtime s[98:99]")
            if i: e("s_waitcnt lgkmcnt(0)")
        if i == AMP[1]:
            e("s_waitcnt lgkmcnt(0)")
            e("s_memtime s[100:101]")
            e("s_waitcnt lgkmcnt(0)")
    if SPIN == i:
        e("s_waitcnt lgkmcnt(0)")
        e("s_memrealtime s[96:97]")
        e("s_waitcnt lgkmcnt(0)")
    if not DIAG: return
    if DIAG in (2, 4) and i not in (0, 30, 28, 29, 31, 11, 12, 14, 9): return
    if DIAG == 3 and i in (0, 30, 15, 16): return
    e("s_waitcnt lgkmcnt(0)")
    e(f"{'s_memrealtime' if real else 's_memtime'} s[98:99]")
    e("s_waitcnt lgkmcnt(0)")
    e(f"v_writelane_b32 v255, s98, {i}")

lazy = []
def lstamp(i):
    if DIAG != 3: return
    r = 52 + 2 * len(lazy)
    e(f"s_memtime s[{r}:{r+1}]")
    lazy.append((i, r))
def lflush():
    for i, r in lazy: e(f"v_writelane_b32 v255, s{r}, {i}")

def scan64(v):
    for sh in (1, 2, 4, 8):
        e("s_nop 1")
        e(f"v_add_u32_dpp v{v}, v{v}, v{v} row_shr:{sh} row_mask:0xf bank_mask:0xf bound_ctrl:1")
    e("s_nop 1")
    e(f"v_add_u32_dpp v{v}, v{v}, v{v} row_bcast:15 row_mask:0xa bank_mask:0xf")
    e("s_nop 1")
    e(f"v_add_u32_dpp v{v}, v{v}, v{v} row_bcast:31 row_mask:0xc bank_mask:0xf")

H = 176
C = (144, 160)
D = (112, 128)
T = 96
P = 80
SL = 76
BX = (72, 74)
IDX, IDR = 64, 68
NN, DD, RR, AX, CX, V_M = 16, 18, 20, 22, 24, 26
V_CA, V_DMAC, V_LI, V_LM, V_GQA, V_SELA, V_PSEL, V_QMUL, V_QC, V_GQ, V_QA, V_DMAX, V_TID, V_LANE, V_GIA = range(1, 16)
V_GMA, V_LIO, V_LMO = 28, 29, 30
V_SAVE = 240
V_CHK, V_J0, V_W2A = 244, 245, 246
S_X, S_E, S_SRC, S_DST, S_W1, S_B1, S_W2, S_B2, S_OUT, S_WS, S_P = 8, 12, 16, 20, 24, 28, 92, 36, 40, 44, 48
S_MASK = 8
S_SOFF = 52
S_256, S_REM, S_M0, S_WN, S_RB, S_MORE, S_SAFE, S_NT, S_EARLY, S_TAGA, S_TAGB, S_SPIN = 60, 61, (62, 63), 64, 65, 66, 67, 68, 69, 72, 73, 70
S_B, S_W = 3, 4

def mf16(d, a, b, cc): return f"v_mfma_f32_32x32x16_bf16 {vr(d,16)}, {vr(a,4)}, {vr(b,4)}, {cc}"
def mfext(ct): return f"v_mfma_f32_32x32x8_bf16 {vr(D[ct&1],16)}, {vr(AX,2)}, {vr(BX[ct&1],2)}, {vr(C[ct&1],16)}"
def mfsel(ct): return mf16(H + 16 * ct, P + 4 * ct, SL, vr(H + 16 * ct, 16))
def dma(half):
    return [f"buffer_load_dwordx4 v{IDX+j}, {sr(S_P)}, s{S_SOFF+4*half+j} offen offset:{1024*j} lds" for j in range(4)]
def mads(src=IDR): return [f"v_mad_i32_i16 v{IDX+j}, v{src+j}, s{S_256}, v{V_DMAC}" for j in range(4)]
def c_reads(half):
    L = []
    for ctl in range(2):
        for r in range(16):
            mm = r >> 1
            L.append(f"ds_read_u16_d16_hi v{C[ctl]+r}, v{V_CA} offset:{half*4096 + (mm&3)*1024 + (2*(r&1) + (mm>>2))*128 + ctl*64}")
    return L
def tr_read(ct): return f"ds_read_b64_tr_b16 {vr(BX[ct&1],2)}, v{V_QA} offset:{64*ct}"
AXB = f"v_pk_mul_f32 {vr(AX,2)}, {vr(CX,2)}, {vr(V_M,2)} op_sel_hi:[1,0]"
QAB = f"v_mad_u32_u24 v{V_QA}, v{V_GQ}, v{V_QMUL}, v{V_QC}"
PERM = f"v_perm_b32 v{V_M}, v{V_M}, v{V_M}, v{V_PSEL}"

def block(tau, ct, safe, gate=False, last=False):
    cur = D[ct & 1]
    pc, pt = (ct - 1) & 3, (tau if ct > 0 else (tau - 1) & 3)
    tr = [f"v_exp_f32 v{T+i}, v{cur+i}" for i in range(16)] + [f"v_rcp_f32 v{RR}, v{DD}", f"v_rcp_f32 v{RR+1}, v{DD+1}"]
    mf = [] if last else [mfext((ct + 1) & 3)]
    if tau == 0: mf.append(mfsel(ct))
    fill = []
    if ct == 0: fill += [f"v_add_u32 v{V_LI}, v{V_LI}, v{V_LIO}", f"v_add_u32 v{V_LM}, v{V_LM}, v{V_LMO}"]
    if ct == 1: fill += mads() + [PERM]
    if ct == 2:
        fill += [QAB]
        if tau == 3:
            fill += [f"v_add_u32 v{V_GIA}, 256, v{V_GIA}", f"v_add_u32 v{V_GMA}, 256, v{V_GMA}",
                     f"v_add_u32 v{V_GQA}, 256, v{V_GQA}", f"v_add_u32 v{V_SELA}, {16*SELS}, v{V_SELA}"]
    fill.append(f"v_max3_f32 v{V_DMAX}, v{DD}, v{DD+1}, v{V_DMAX}")
    L = []
    k = 0
    if gate:
        L += [tr[0], "s_setprio 3"]; k = 1
    for m in mf:
        L.append(m); L += tr[k:k+4]; k += 4
    L += tr[k:] + fill
    L.append(f"v_pk_mul_f32 {vr(RR,2)}, {vr(NN,2)}, {vr(RR,2)}")
    cvt = f"v_cvt_pk_bf16_f32 v{P+4*pc+pt}, v{RR}, v{RR+1}"
    if not safe:
        L += [f"v_pk_add_f32 {vr(DD,2)}, {vr(T,2)}, 1.0 op_sel_hi:[1,0]", cvt]
        if ct == 2: L.append(AXB)
        for j in range(1, 8):
            n_in = vr(cur, 2) if j == 1 else vr(NN, 2)
            L += [f"v_pk_fma_f32 {vr(NN,2)}, {n_in}, {vr(T+2*j,2)}, {n_in}",
                  f"v_pk_fma_f32 {vr(NN,2)}, {vr(cur+2*j,2)}, {vr(DD,2)}, {vr(NN,2)}",
                  f"v_pk_fma_f32 {vr(DD,2)}, {vr(DD,2)}, {vr(T+2*j,2)}, {vr(DD,2)}"]
    else:
        L += [f"v_pk_add_f32 {vr(T+2*j,2)}, {vr(T+2*j,2)}, 1.0 op_sel_hi:[1,0]" for j in range(8)] + [cvt]
        if ct == 2: L.append(AXB)
        L += [f"v_rcp_f32 v{T+i}, v{T+i}" for i in range(16)]
        L.append(f"v_pk_mul_f32 {vr(NN,2)}, {vr(cur,2)}, {vr(T,2)}")
        L += [f"v_pk_fma_f32 {vr(NN,2)}, {vr(cur+2*j,2)}, {vr(T+2*j,2)}, {vr(NN,2)}" for j in range(1, 8)]
    return L

def memphase(tau, half):
    L = ["s_setprio 0", "s_waitcnt vmcnt(4)"]
    L += c_reads(half) + [tr_read(2 * half), tr_read(2 * half + 1)]
    if half == 0:
        L += [f"ds_read_u16 v{V_LI}, v{V_GIA} offset:{(tau+2)*64}",
              f"ds_read_u16 v{V_LM}, v{V_GMA} offset:{(tau+1)*64}"]
    if half == 1:
        L += [f"ds_read_b128 {vr(IDR,4)}, v{V_LI}",
              f"ds_read_b32 v{V_M}, v{V_LM}",
              f"ds_read_u16 v{V_GQ}, v{V_GQA} offset:{(tau+1)*64+2}"]
        if tau == 1: L.append(f"ds_read_b32 v{SL}, v{V_SELA}")
        if tau >= 1: L.append(f"ds_read_b32 v{SL+tau}, v{V_SELA} offset:{tau*4*SELS}")
    if DIAG == 4 and half == 1: L = ["s_memtime s[98:99]"] + L
    L += [f"s_mov_b32 m0, s{S_M0[half]}", "s_waitcnt lgkmcnt(0)"]
    L += dma(half)
    if DIAG == 4 and half == 1: L += [f"s_add_u32 m0, s{S_REM}, 32", "s_nop 0", "v_writelane_b32 v255, s98, m0"]
    return L

def w2f(ks, mt): return (32 if ks < 4 else 144) + 8 * (ks & 3) + 4 * mt
def w2_reads():
    return [f"ds_read_b64_tr_b16 {vr(w2f(ks,mt)+2*t,2)}, v{27 if mt else V_W2A} offset:{2048*ks+1024*t}"
            for ks in range(8) for mt in range(2) for t in range(2)]

def emit(L):
    L = align(L)
    assert sum(isize(x) for x in L) % 8 == 0
    for s in L: e(s)

def mainloop(safe):
    x = "S" if safe else "F"
    out.append(".p2align 6")
    lab(f"LOOP{x}")
    for tau in range(4):
        c(f"==== tile slot {tau}")
        emit(memphase(tau, 0))
        emit(block((tau - 1) & 3, 3, safe, gate=True))
        if tau == 0 and not PEEL: lab(f"ENTER{x}")
        emit(block(tau, 0, safe))
        if tau == 0 and PEEL: lab(f"ENTER{x}")
        emit(memphase(tau, 1))
        emit(block(tau, 1, safe, gate=True))
        emit(block(tau, 2, safe))
        e(f"s_sub_u32 s{S_REM}, s{S_REM}, 1")
        if tau < 3: e(f"s_cbranch_scc1 TAIL{x}{tau}")
        else: e(f"s_cbranch_scc0 LOOP{x}")
    for tau in (3, 0, 1, 2):
        lab(f"TAIL{x}{tau}")
        emit(["s_setprio 0", f"v_xor_b32 v27, 64, v{V_W2A}"] + w2_reads())
        emit(block(tau, 3, safe, gate=True, last=True))
        if tau == 0: e(f"ds_read_b32 v{SL}, v{V_SELA}")
        e(f"v_rcp_f32 v{RR}, v{DD}")
        e(f"v_rcp_f32 v{RR+1}, v{DD+1}")
        e(f"v_max3_f32 v{V_DMAX}, v{DD}, v{DD+1}, v{V_DMAX}")
        e(f"v_pk_mul_f32 {vr(RR,2)}, {vr(NN,2)}, {vr(RR,2)}")
        for t2 in range(tau + 1, 4): e(f"v_mov_b32_e64 v{SL+t2}, 0")
        e(f"v_cvt_pk_bf16_f32 v{P+12+tau}, v{RR}, v{RR+1}")
        e("s_nop 0")
        e("s_branch DRAIN")

def find_cx(target):
    m = np.float64(u2f(0x00FF0000))
    g = f2u(float(np.float32(np.float64(u2f(target)) / m)))
    for d in range(-3, 4):
        if f2u(float(np.float32(np.float64(u2f(g + d)) * m))) == target: return g + d
    raise SystemExit("no cx")

V_GV, V_GB, V_SB, V_L0, V_COL = 247, 248, 249, 250, 251

def fill_list(t):
    e(f"v_lshlrev_b32 v{t+8}, 4, v{V_TID}")
    e(f"v_add_u32 v{t+9}, {L_LIST}, v{t+8}")
    for i in range(4): e(f"v_mov_b32 v{t+i}, {hex(PADENT)}")
    for o in (0, 8192, 16384, LISTSZ - 8192): e(f"ds_write_b128 v{t+9}, {vr(t,4)} offset:{o}")

def init_tables(t):
    fill_list(t)
    for i in range(4): e(f"v_mov_b32 v{t+4+i}, 0")
    e(f"v_add_u32 v{t+8}, {L_SEL}, v{t+8}")
    for o in (0, 8192, 16384): e(f"ds_write_b128 v{t+8}, {vr(t+4,4)} offset:{o}")
    e(f"v_min_u32 v{t+8}, {GTH*4-1}, v{V_TID}")
    e(f"v_lshlrev_b32 v{t+8}, 3, v{t+8}")
    e(f"v_add_u32 v{t+8}, {L_GT}, v{t+8}")
    e(f"v_mov_b32 v{t+10}, {NPB*LS}")
    e(f"v_mov_b32 v{t+11}, {NPB*LS}")
    e(f"ds_write_b64 v{t+8}, {vr(t+10,2)}")

def static_writes(t, tag):
    e(f"s_cmp_eq_u32 s{S_W}, 1")
    e(f"s_cbranch_scc0 STW{tag}")
    e(f"v_lshlrev_b32 v{t}, 2, v{V_LANE}")
    e(f"v_mov_b32 v{t+1}, 0")
    e(f"ds_write_b32 v{t}, v{V_L0} offset:{L_CNT2}")
    e(f"ds_write_b32 v{t+1}, v{t+1} offset:{L_FLAG}")
    e(f"v_lshl_add_u32 v{t}, v{V_COL}, 2, v{V_GB}")
    e(f"v_lshrrev_b32 v{t+1}, 1, v{V_COL}")
    e(f"v_mul_u32_u24 v{t+1}, {SELS//2}, v{t+1}")
    e(f"v_and_b32 v{t+2}, 1, v{V_COL}")
    e(f"v_lshl_add_u32 v{t+1}, v{t+2}, 1, v{t+1}")
    e(f"v_add_u32 v{t+1}, v{t+1}, v{V_SB}")
    e(f"v_mov_b32 v{t+2}, 0x3f80")
    e(f"s_bfm_b64 exec, {NPB}, 0")
    e(f"ds_write_b32 v{t}, v{V_GV}")
    e(f"ds_write_b16 v{t+1}, v{t+2}")
    e("s_mov_b64 exec, -1")
    lab(f"STW{tag}")

def desc_soff():
    e(f"s_lshr_b32 s5, s{S_B}, 2")
    e(f"s_and_b32 s7, s{S_B}, 1")
    e("s_lshl1_add_u32 s5, s5, s7")
    e(f"s_and_b32 s7, s{S_B}, 2")
    e("s_lshl_b32 s7, s7, 6")
    e("s_add_u32 s5, s5, s7")
    e(f"s_lshl3_add_u32 s5, s5, {WS_DESC}")

def flag_load(first=False):
    if first:
        e(f"v_lshlrev_b32 v62, 3, v{V_CHK}")
        e("s_and_b32 s84, s2, 7")
        e(f"s_mul_i32 s84, s84, {DS}")
        e(f"s_add_u32 s84, s84, {WS_FLAG}")
    e(f"buffer_load_dwordx2 v[60:61], v62, {sr(S_WS)}, s84 offen sc1")

def wave_reset():
    e(f"v_mov_b32 v{V_GIA}, v{V_SAVE}")
    e(f"v_mov_b32 v{V_GMA}, v{V_SAVE+1}")
    e(f"v_mov_b32 v{V_GQA}, v{V_SAVE+2}")
    e(f"v_mov_b32 v{V_SELA}, v{V_SAVE+3}")
    e(f"ds_read_u16 v{V_LI}, v{V_GIA}")
    e(f"ds_read_u16 v{V_LM}, v{V_GMA}")
    e(f"ds_read_u16 v{V_GQ}, v{V_GQA} offset:2")
    for i in range(2):
        e(f"v_mov_b32 v{NN+i}, 0")
        e(f"v_mov_b32 v{DD+i}, 1.0")
    e(f"v_mov_b32 v{V_DMAX}, 0")
    for r in list(range(SL, SL + 20, 2)) + list(range(C[0], C[0] + 32, 2)):
        e(f"v_pk_mul_f32 {vr(r,2)}, {vr(NN,2)}, {vr(NN,2)}")
    e("s_waitcnt lgkmcnt(0)")
    e(f"v_add_u32 v{V_LI}, v{V_LI}, v{V_LIO}")
    e(f"v_add_u32 v{V_LM}, v{V_LM}, v{V_LMO}")
    e(QAB)

def first_tile(mid=None):
    e(f"ds_read_b128 {vr(IDX,4)}, v{V_LI}")
    e(f"ds_read_b32 v{V_M}, v{V_LM}")
    n = 1
    if mid: n += mid()
    e(f"s_mov_b32 m0, s{S_M0[0]}")
    e(f"s_waitcnt lgkmcnt({n})")
    for s in mads(IDX): e(s)
    for s in dma(0): e(s)

def kernel():
    lab(KN)
    e("s_cmpk_ge_u32 s2, 256")
    e("s_cbranch_scc1 K_END")
    if DIAG: e("v_mov_b32 v255, 0")
    stamp(30, True); stamp(0); lstamp(0)
    for s, off in ((S_DST, 24), (S_X, 0), (S_W1, 32), (S_WS, 80), (S_SRC, 16), (S_E, 8)):
        e(f"s_load_dwordx2 {sr(s,2)}, s[0:1], {off}")
    if CPF == 1:
        e("s_getpc_b64 s[90:91]")
        lab("CPF_PC")
        e("s_and_b32 s5, s2, -8")
        e("v_subrev_u32 v18, 504, v0")
        e("v_add_lshl_u32 v16, v18, s5, 7")
        e("v_add_u32 v16, 2048, v16")
        e("v_min_u32 v16, CODE_REST, v16")
        e("v_mov_b32 v17, s91")
        e("v_add_co_u32 v16, vcc, s90, v16")
        e("v_cmp_gt_u32 s[76:77], 8, v18")
        e("s_nop 0")
        e("v_addc_co_u32 v17, vcc, 0, v17, vcc")
        e("s_mov_b64 exec, s[76:77]")
        e("s_cbranch_execz CPF_E")
        e("global_load_dword v18, v[16:17], off")
        lab("CPF_E")
        e("s_mov_b64 exec, -1")
    e(f"v_readfirstlane_b32 s{S_W}, v0")
    e(f"v_and_b32 v{V_LANE}, 63, v0")
    e("v_mov_b32 v88, 0")
    e("v_mov_b32 v89, 0")
    e("v_lshlrev_b32 v92, 3, v0")
    e("ds_write_b64 v92, v[88:89]")
    e(f"s_mov_b32 s{S_DST+3}, 0x00020000")
    e(f"s_mov_b32 s{S_DST+2}, {E*4}")
    e(f"s_mov_b32 s{S_X+2}, {N*128}")
    e(f"s_mov_b32 s{S_X+3}, s{S_DST+3}")
    e(f"s_mov_b32 s{S_W1+2}, {129*256}")
    e(f"s_mov_b32 s{S_W1+3}, s{S_DST+3}")
    e(f"s_lshr_b32 s{S_W}, s{S_W}, 6")
    e(f"s_and_b32 s{S_B}, s2, 7")
    e(f"s_lshl_b32 s{S_B}, s{S_B}, 5")
    e("s_lshr_b32 s5, s2, 3")
    e(f"s_add_u32 s{S_B}, s{S_B}, s5")
    e(f"s_mul_i32 s5, s2, {CH*4}")
    e("v_lshl_add_u32 v32, v0, 4, s5")
    e("s_cmpk_eq_u32 s2, 255")
    e(f"s_movk_i32 s6, {NQ-512}")
    e(f"s_cmovk_i32 s6, {NQL-512}")
    e("v_cmp_gt_u32 s[74:75], s6, v0")
    e(f"v_lshrrev_b32 v37, 4, v{V_LANE}")
    e(f"v_lshrrev_b32 v47, 3, v{V_LANE}")
    e(f"v_and_b32 v48, 7, v{V_LANE}")
    e("v_and_b32 v45, 1, v37")
    e("v_and_b32 v58, 4, v47")
    e("v_and_b32 v59, 1, v47")
    e("v_lshl_add_u32 v58, v59, 1, v58")
    e("v_add_u32 v58, v58, v45")
    e("v_xor_b32 v59, v48, v37")
    e("v_lshlrev_b32 v59, 4, v59")
    e("v_lshl_add_u32 v58, v58, 15, v59")
    e(f"s_lshl_b32 s85, s{S_W}, 11")
    e(f"s_add_u32 s5, s85, s{S_B}")
    e("s_lshl_b32 s5, s5, 7")
    e("v_add_u32 v58, s5, v58")
    e("v_lshlrev_b32 v31, 2, v37")
    e(f"v_xor_b32 v31, v31, v{V_LANE}")
    e("v_lshlrev_b32 v31, 4, v31")
    e(f"s_mul_i32 s84, s{S_W}, 1088")
    e(f"s_add_u32 m0, s84, {L_XS}")
    e("s_movk_i32 s86, 8192")
    lstamp(21)
    e("s_waitcnt lgkmcnt(0)")
    lstamp(22)
    e(f"buffer_load_dwordx4 v[64:67], v32, {sr(S_DST)}, 0 offen {LDF}")
    e("s_mov_b64 exec, s[74:75]")
    e("s_cbranch_execz P0_ND")
    e(f"buffer_load_dwordx4 v[68:71], v32, {sr(S_DST)}, s86 offen {LDF}")
    lab("P0_ND")
    e("s_mov_b64 exec, -1")
    e("s_barrier")
    e(f"buffer_load_dwordx4 v58, {sr(S_X)}, 0 offen lds")
    e(f"s_add_u32 m0, s85, {L_W1S}")
    e(f"s_load_dwordx2 s[78:79], {sr(S_WS,2)}, {WS_EPOCH}")
    for k in range(2): e(f"buffer_load_dwordx4 v31, {sr(S_W1)}, s85 offen offset:{1024*k} lds")
    lab("P0_ISS")
    stamp(15); lstamp(15)
    for s, off in ((S_B1, 40), (S_W2, 48), (S_B2, 56), (S_OUT, 64)):
        e(f"s_load_dwordx2 {sr(s,2)}, s[0:1], {off}")
    e(f"v_mov_b32 v{V_TID}, v0")
    for s, sz in ((S_SRC, E*4), (S_E, E*2), (S_B1, 256), (S_W2, 16384), (S_B2, 128), (S_WS, WS_SIZE), (S_OUT, N*128), (S_P, 256*NPB*256 + PSH)):
        e(f"s_mov_b32 s{s+2}, {sz}")
        e(f"s_mov_b32 s{s+3}, s{S_DST+3}")
    e(f"s_mov_b32 s80, {hex(f2u(-LOG2E))}")
    e("s_mov_b32 s81, s80")
    e(f"v_lshrrev_b32 v38, 5, v{V_LANE}")
    e(f"v_and_b32 v39, 31, v{V_LANE}")
    e("v_bfe_u32 v40, v39, 2, 1")
    e("v_and_b32 v41, 1, v39")
    e("v_lshl_add_u32 v40, v40, 1, v41")
    e("v_lshrrev_b32 v42, 3, v39")
    e("v_bfe_u32 v43, v39, 1, 1")
    e(f"v_bfe_u32 v44, v{V_LANE}, 2, 2")
    e(f"v_and_b32 v46, 3, v{V_LANE}")
    e("v_lshlrev_b32 v46, 3, v46")
    e("v_lshl_add_u32 v46, v45, 5, v46")
    e(f"s_and_b32 s82, s{S_W}, 3")
    e(f"s_lshr_b32 s83, s{S_W}, 2")
    e("v_xor_b32 v50, s82, v44")
    e("v_lshl_add_u32 v50, v50, 6, v46")
    e("v_lshl_add_u32 v51, v38, 3, v44")
    e("v_lshl_add_u32 v50, v51, 8, v50")
    e("v_lshl_add_u32 v51, v40, 1, v43")
    e("v_mul_u32_u24 v52, 1088, v42")
    e("v_lshl_add_u32 v52, v51, 7, v52")
    e("s_mul_i32 s5, s83, 4352")
    e(f"s_add_u32 s5, s5, {L_XS}")
    e("v_add_u32 v52, s5, v52")
    e("v_xor_b32 v53, v38, v40")
    e("v_lshl_add_u32 v51, v53, 4, v52")
    e("v_xor_b32 v53, 2, v53")
    e("v_lshl_add_u32 v52, v53, 4, v52")
    e("s_lshl_b32 s5, s83, 5")
    e("v_add_u32 v55, s5, v39")
    e(f"v_cmp_gt_u32 s[88:89], {NPB}, v55")
    e("s_lshl_b32 s82, s82, 6")
    e("v_lshl_add_u32 v49, v38, 3, s82")
    e(f"v_add_u32 v56, {L_QT}, v49")
    e(f"v_mul_u32_u24 v53, {PS}, v55")
    e("v_add_u32 v53, v53, v56")
    e(f"v_mul_u32_u24 v54, {QS}, v55")
    e("v_add_u32 v54, v54, v56")
    assert PS == 272
    e(f"s_mov_b32 s7, {L_PS}")
    e("v_lshlrev_b32 v61, 4, v0")
    e("v_and_b32 v56, -16, v0")
    e("v_add3_u32 v62, v61, v56, s7")
    e(f"s_min_u32 s5, s{S_W}, 2")
    e(f"s_lshl2_add_u32 s5, s{S_W}, s5")
    e("s_add_u32 s5, s5, 64")
    e("s_lshl_b32 s5, s5, 3")
    e(f"v_add_u32 v55, s5, v{V_LANE}")
    e("v_lshlrev_b32 v63, 4, v55")
    e("v_and_b32 v56, -16, v55")
    e("v_add3_u32 v22, v63, v56, s7")
    e(f"s_cmp_lt_u32 s{S_W}, 2")
    e("s_cselect_b32 s71, 40, 32")
    lstamp(23)
    if not LATEI: init_tables(84)
    e(f"s_mul_i32 s6, s{S_B}, {NPB*256}")
    e(f"s_add_u32 s6, s6, {WS_PT}")
    e(f"s_mov_b32 s87, {128*256}")
    e("v_mov_b32 v55, 1")
    e(f"v_lshlrev_b32 v36, 2, v{V_LANE}")
    e("v_lshrrev_b32 v34, 1, v32")
    e("s_movk_i32 s84, 4096")
    stamp(16); lstamp(16)
    SD = "dst_sel:DWORD dst_unused:UNUSED_PAD src0_sel:DWORD"
    def binA(j):
        e(f"v_lshlrev_b32_sdwa v{112+j}, 2, v{64+j} {SD} src1_sel:BYTE_0")
        e(f"ds_add_rtn_u32 v{120+j}, v{112+j}, v55 offset:{L_CNT1}")
    def binB(j):
        e(f"v_lshlrev_b32_sdwa v{129+2*j}, 2, v{64+j} {SD} src1_sel:BYTE_1")
        if j % 2 == 0: e(f"v_lshlrev_b32 v56, 16, v{80+j//2}")
        else: e(f"v_and_b32 v56, 0xffff0000, v{80+j//2}")
        e(f"v_mul_u32_u24_sdwa v57, {NPB}, v{72+j} {SD} src1_sel:BYTE_0")
        e(f"v_add_u32_sdwa v57, v57, v{72+j} {SD} src1_sel:BYTE_1")
        e(f"v_or3_b32 v{128+2*j}, v56, v57, s87")
    def masked(tag, f):
        e("s_mov_b64 exec, s[74:75]")
        e(f"s_cbranch_execz {tag}")
        f()
        lab(tag)
        e("s_mov_b64 exec, -1")
    assert 128 * 256 == 0x8000
    e(f"v_lshlrev_b32 v58, 4, v{V_LANE}")
    e(f"v_lshlrev_b32 v23, 1, v{V_LANE}")
    e("s_waitcnt vmcnt(3)")
    stamp(3)
    def ldA():
        e(f"buffer_load_dwordx4 v[72:75], v32, {sr(S_SRC)}, 0 offen {LDF}")
        e(f"buffer_load_dwordx2 v[80:81], v34, {sr(S_E)}, 0 offen {LDF}")
    def ldB():
        e(f"buffer_load_dwordx4 v[76:79], v32, {sr(S_SRC)}, s86 offen {LDF}")
        e(f"buffer_load_dwordx2 v[82:83], v34, {sr(S_E)}, s84 offen {LDF}")
    if ORD == 1: ldA()
    for j in range(4): binA(j)
    if ORD == 2: ldA()
    e("s_mov_b64 exec, s[74:75]")
    e("s_cbranch_execz P1_A")
    if ORD == 1: ldB()
    for j in range(4, 8): binA(j)
    if ORD == 2: ldB()
    e("s_mov_b64 exec, -1")
    e("s_waitcnt vmcnt(4)")
    e("s_branch P1_A2")
    lab("P1_A")
    e("s_mov_b64 exec, -1")
    e("s_waitcnt vmcnt(2)")
    lab("P1_A2")
    e("s_add_u32 s86, s85, 16384")
    e(f"s_add_u32 m0, s86, {L_W1S}")
    e(f"s_cmp_eq_u32 s{S_W}, 7")
    e("s_waitcnt lgkmcnt(0)")
    e("s_barrier")
    stamp(4); lflush()
    def tags():
        e(f"s_mul_i32 s{S_TAGB}, s78, 1664525")
        e(f"s_add_u32 s{S_TAGB}, s{S_TAGB}, 1013904223")
        e(f"s_add_u32 s{S_TAGA}, s79, 0x01000000")
        e(f"s_and_b32 s{S_TAGA}, s{S_TAGA}, 0xff000000")
    def p_reads():
        for ks in range(4):
            e(f"ds_read_b64_tr_b16 {vr(88+4*ks,2)}, v50 offset:{L_W1S+4096*ks}")
            e(f"ds_read_b64_tr_b16 {vr(90+4*ks,2)}, v50 offset:{L_W1S+4096*ks+1024}")
            e(f"ds_read_b128 {vr(160+4*ks,4)}, v{51+(ks&1)} offset:{64*(ks>>1)}")
    def p_mfma(counted=False):
        for ks in range(4):
            if counted: e(f"s_waitcnt lgkmcnt({9-3*ks})")
            e(mf16(144, 88 + 4*ks, 160 + 4*ks, "0" if ks == 0 else vr(144, 16)))
    def p_fin():
        for i in range(8): e(f"v_pk_mul_f32 {vr(144+2*i,2)}, {vr(144+2*i,2)}, s[80:81]")
        for i in range(8): e(f"v_cvt_pk_bf16_f32 v{88+i}, v{144+2*i}, v{145+2*i}")
        e("s_mov_b64 exec, s[88:89]")
        for q in range(4): e(f"ds_write_b64 v53, {vr(88+2*q,2)} offset:{16*q}")
        e("s_mov_b64 exec, -1")
    def late():
        for k in range(2): e(f"buffer_load_dwordx4 v31, {sr(S_W1)}, s86 offen offset:{1024*k} lds")
    e("s_cbranch_scc1 P1_SCAN")
    p_reads()
    p_mfma(True)
    tags()
    e(f"s_cmp_eq_u32 s{S_W}, 6")
    e("s_cbranch_scc0 P1_H6")
    e(f"buffer_load_dword v20, v36, {sr(S_W1)}, s87 offen")
    e(f"buffer_load_ushort v21, v23, {sr(S_B2)}, 0 offen")
    e(f"buffer_load_dword v19, v36, {sr(S_B1)}, 0 offen")
    lab("P1_H6")
    e("s_nop 3")
    e("s_branch P1_HJ")
    lab("P1_SCAN")
    e("s_setprio 3")
    e(f"ds_read_b128 v[136:139], v58 offset:{L_CNT1}")
    p_reads()
    tags()
    e(f"s_mul_i32 s7, s2, {DS}")
    e(f"s_add_u32 s7, s7, {WS_DESC}")
    e("s_waitcnt lgkmcnt(0)")
    p_mfma()
    e("v_add_u32 v57, v136, v137")
    e("v_add_u32 v56, v57, v138")
    e("v_add_u32 v59, v56, v139")
    e("v_mov_b32 v60, v59")
    scan64(59)
    e("v_sub_u32 v140, v59, v60")
    e("v_add_u32 v141, v140, v136")
    e("v_add_u32 v142, v140, v57")
    e("v_add_u32 v143, v140, v56")
    e(f"ds_write_b128 v58, v[140:143] offset:{L_BASE1}")
    lab("P1_HJ")
    late()
    p_fin()
    e("s_waitcnt lgkmcnt(0)")
    e("s_barrier")
    e("s_setprio 0")
    stamp(5)
    e("ds_read_b128 v[104:107], v62")
    e("ds_read_b128 v[108:111], v22")
    for j in range(4): e(f"ds_read_b32 v{112+j}, v{112+j} offset:{L_BASE1}")
    e("s_waitcnt lgkmcnt(4)")
    e(f"buffer_store_dwordx4 v[104:107], v61, {sr(S_WS)}, s6 offen {STF}")
    e("s_bfm_b64 exec, s71, 0")
    e(f"buffer_store_dwordx4 v[108:111], v63, {sr(S_WS)}, s6 offen {STF}")
    def w(j):
        e(f"v_add_lshl_u32 v{112+j}, v{112+j}, v{120+j}, 3")
        e(f"ds_write_b64 v{112+j}, {vr(128+2*j,2)} offset:{L_STG}")
    def partA():
        for j in range(4): binB(j)
        e("s_waitcnt lgkmcnt(0)")
        for j in range(4): w(j)
    e("s_mov_b64 exec, s[74:75]")
    e("s_cbranch_execz P1_S1")
    for j in range(4, 8): e(f"ds_read_b32 v{112+j}, v{112+j} offset:{L_BASE1}")
    e("s_mov_b64 exec, -1")
    e("s_waitcnt vmcnt(6)")
    partA()
    e("s_mov_b64 exec, s[74:75]")
    e("s_waitcnt vmcnt(4)")
    for j in range(4, 8): binB(j)
    for j in range(4, 8): w(j)
    e("s_mov_b64 exec, -1")
    e("s_branch P1_JOIN")
    lab("P1_S1")
    e("s_mov_b64 exec, -1")
    e(f"s_cmp_eq_u32 s{S_W}, 7")
    e("s_cbranch_scc0 P1_S2")
    for j in range(4):
        e(f"v_lshl_or_b32 v{96+2*j}, v{136+j}, 12, v{140+j}")
        e(f"v_or_b32 v{96+2*j}, s{S_TAGA}, v{96+2*j}")
        e(f"v_mov_b32 v{97+2*j}, s{S_TAGB}")
    e(f"buffer_store_dwordx4 v[96:99], v58, {sr(S_WS)}, s7 offen sc1")
    e(f"buffer_store_dwordx4 v[100:103], v58, {sr(S_WS)}, s7 offen offset:1024 sc1")
    lab("P1_S2")
    e(f"s_cmp_ge_u32 s{S_W}, 6")
    e("s_waitcnt vmcnt(6)")
    e("s_cbranch_scc1 P1_S3")
    e("s_waitcnt vmcnt(4)")
    lab("P1_S3")
    partA()
    lab("P1_JOIN")
    e(f"s_mul_i32 s5, s2, {GCS}")
    e(f"s_add_u32 s5, s5, {WS_ENT}")
    e("s_waitcnt lgkmcnt(0)")
    e("s_barrier")
    stamp(6)
    for k in range(3): e(f"ds_read_b128 {vr(64+4*k,4)}, v61 offset:{L_STG+8192*k}")
    e(f"s_cmp_eq_u32 s{S_W}, 7")
    e("s_cbranch_scc0 P1_C")
    e(f"ds_read_b128 v[76:79], v58 offset:{L_STG+24576}")
    e("s_add_u32 s7, s5, 24576")
    e("s_bfm_b64 exec, 32, 0")
    e("s_waitcnt lgkmcnt(0)")
    e(f"buffer_store_dwordx4 v[76:79], v58, {sr(S_WS)}, s7 offen {STF}")
    e("s_mov_b64 exec, -1")
    lab("P1_C")
    for k in range(3):
        e(f"s_waitcnt lgkmcnt({2-k})")
        e(f"buffer_store_dwordx4 {vr(64+4*k,4)}, v61, {sr(S_WS)}, s5 offen {STF}")
        if k < 2: e("s_add_u32 s5, s5, 8192")
    def loop_consts():
        e("v_lshlrev_b32 v58, 1, v39")
        e("v_lshl_add_u32 v58, v38, 9, v58")
        e(f"v_add_u32 v{V_CA}, s{S_M0[0]}, v58")
        e("v_lshlrev_b32 v58, 4, v48")
        e(f"v_add_u32 v{V_DMAC}, 0x800000, v58")
        e("v_and_b32 v58, 1, v47")
        e("v_lshlrev_b32 v58, 4, v58")
        e(f"v_add_u32 v{V_LIO}, {L_LIST}, v58")
        e("v_lshl_add_u32 v58, v42, 1, v43")
        e("v_lshlrev_b32 v58, 2, v58")
        e(f"v_add_u32 v{V_LMO}, {L_LIST}, v58")
        e(f"s_sub_u32 s76, {GTH+7}, s{S_W}")
        e(f"s_sub_u32 s77, {HT+7}, s{S_W}")
        e(f"s_cmp_lt_u32 s{S_W}, 4")
        e(f"s_cselect_b32 s76, s{S_W}, s76")
        e(f"s_cselect_b32 s77, s{S_W}, s77")
        e("s_lshl_b32 s76, s76, 4")
        e(f"s_add_u32 s76, s76, {L_GT}")
        e(f"s_mul_i32 s77, s77, {SELS}")
        e(f"s_add_u32 s77, s77, {L_SEL}")
        e(f"v_lshl_add_u32 v{V_SAVE}, v37, 2, s76")
        e(f"v_lshl_add_u32 v{V_SAVE+1}, v40, 2, s76")
        e(f"v_lshl_add_u32 v{V_SAVE+2}, v44, 2, s76")
        e(f"v_mul_u32_u24 v58, {SELS//2}, v38")
        e("v_lshl_add_u32 v58, v39, 2, v58")
        e(f"v_add_u32 v{V_SAVE+3}, s77, v58")
        e("v_cmp_eq_u32 vcc, 0, v38")
        e("v_mov_b32 v59, 0x03020100")
        e("v_mov_b32 v58, 0x0c080c0c")
        e(f"v_cndmask_b32 v{V_PSEL}, v59, v58, vcc")
        e(f"v_cndmask_b32 v{V_QMUL}, 0, 1, vcc")
        e("v_add_u32 v58, 1, v44")
        e("v_lshrrev_b32 v58, 1, v58")
        e("v_and_b32 v59, 1, v44")
        e("v_mul_u32_u24 v58, v58, v59")
        e("v_mul_u32_u24 v58, 320, v58")
        e(f"v_add_u32 v58, {L_EXT}, v58")
        e(f"v_mov_b32 v59, {L_QT}")
        e("v_cndmask_b32 v58, v58, v59, vcc")
        e(f"v_add_u32 v{V_QC}, v46, v58")
        e(f"v_mov_b32 v58, {hex(find_cx(0x00803F80))}")
        e(f"v_mov_b32 v59, {hex(find_cx(0x3F800000))}")
        e("v_cmp_eq_u32 s[6:7], 1, v41")
        e("v_cmp_gt_u32 s[76:77], 2, v40")
        e("s_nop 0")
        e("v_cndmask_b32 v58, v58, v59, s[6:7]")
        e("v_cndmask_b32 v59, 0, v58, s[76:77]")
        e("v_cndmask_b32 v58, v58, 0, s[76:77]")
        e(f"v_cndmask_b32 v{CX}, 1.0, v59, vcc")
        e(f"v_cndmask_b32 v{CX+1}, 1.0, v58, vcc")
        e("v_lshl_add_u32 v58, v38, 2, v44")
        e("v_lshl_add_u32 v58, v58, 7, v46")
        e("v_lshrrev_b32 v59, 1, v44")
        e("v_lshl_add_u32 v58, v59, 6, v58")
        e(f"v_add_u32 v{V_W2A}, {L_W2}, v58")
    if PFL == 1:
        e(f"s_lshl_b32 s5, s{S_W}, 5")
        e("s_lshr_b32 s6, s2, 3")
        e("s_add_u32 s90, s5, s6")
        e("s_and_b32 s6, s2, 7")
        e(f"s_mul_i32 s6, s6, {DS}")
        e("s_lshl_b32 s5, s90, 3")
        e("s_add_u32 s5, s5, s6")
        e(f"s_add_u32 s91, s5, {WS_PFLAG}")
    if LATEI: init_tables(120)
    e("v_lshlrev_b32 v31, 2, v45")
    e(f"v_xor_b32 v31, v31, v{V_LANE}")
    e("v_lshlrev_b32 v31, 4, v31")
    e(f"s_mov_b32 s{S_EARLY}, 2")
    e(f"s_cmp_eq_u32 s{S_W}, 6")
    e("s_cbranch_scc0 P0_NOEXT")
    e("s_waitcnt vmcnt(5)")
    e("v_lshlrev_b32 v118, 16, v19")
    e("v_and_b32 v119, 0xffff0000, v19")
    e("v_lshlrev_b32 v117, 1, v36")
    e(f"ds_write_b64 v117, v[118:119] offset:{L_B1}")
    e("v_lshlrev_b32 v112, 16, v20")
    e("v_and_b32 v113, 0xffff0000, v20")
    e("v_mul_f32 v112, s80, v112")
    e("v_mul_f32 v113, s80, v113")
    e("v_cvt_pk_bf16_f32 v114, v112, v113")
    e("v_lshlrev_b32 v115, 16, v114")
    e("v_and_b32 v116, 0xffff0000, v114")
    e("v_sub_f32 v115, v112, v115")
    e("v_sub_f32 v116, v113, v116")
    e("v_cvt_pk_bf16_f32 v115, v115, v116")
    e("v_lshlrev_b32 v116, 16, v21")
    e(f"ds_write_b32 v36, v114 offset:{L_EXT+320}")
    e(f"ds_write_b32 v36, v115 offset:{L_EXT+640}")
    e(f"ds_write_b32 v36, v116 offset:{L_B2}")
    lab("P0_NOEXT")
    e(f"s_add_u32 s{S_P}, s{S_WS}, {WS_PT - PSH}")
    e(f"s_addc_u32 s{S_P+1}, s{S_WS+1}, 0")
    e(f"v_mov_b32 v252, s{S_TAGA}")
    e(f"v_mov_b32 v253, s{S_TAGB}")
    e(f"v_mul_u32_u24 v254, {DS}, v{V_LANE}")
    e("v_lshlrev_b32 v49, 1, v49")
    for j in range(8): e(f"s_movk_i32 s{S_SOFF+j}, {PSH - 1024*(j&3) + 128*(j>>2)}")
    e(f"s_movk_i32 s{S_256}, 256")
    e(f"s_mul_i32 s{S_M0[0]}, s{S_W}, {TBW}")
    e(f"s_add_u32 s{S_M0[0]}, s{S_M0[0]}, {L_TB}")
    e(f"s_add_u32 s{S_M0[1]}, s{S_M0[0]}, 4096")
    e(f"s_mov_b32 s{S_WN}, 32")
    e(f"s_mov_b32 s{S_RB}, 0")
    e(f"s_mov_b32 s{S_SAFE}, 0")
    e(f"s_mov_b32 s{S_SPIN}, 0x40000")
    e(f"v_cmp_le_u32 vcc, {SPLIT}, v{V_LANE}")
    e(f"v_mul_u32_u24 v56, {LS}, v{V_LANE}")
    e(f"v_mul_u32_u24 v57, {QS}, v{V_LANE}")
    e(f"v_add_u32 v{V_L0}, {L_LIST}, v56")
    e(f"v_lshl_or_b32 v{V_GV}, v57, 16, v56")
    e("v_cndmask_b32 v56, 0, 1, vcc")
    e(f"v_mul_u32_u24 v57, {SPLIT}, v56")
    e(f"v_sub_u32 v{V_COL}, v{V_LANE}, v57")
    e(f"v_mul_u32_u24 v57, {GTH*16}, v56")
    e(f"v_add_u32 v{V_GB}, {L_GT}, v57")
    e(f"v_mul_u32_u24 v57, {HT*SELS}, v56")
    e(f"v_lshl_add_u32 v57, v{V_COL}, 2, v57")
    e(f"v_add_u32 v{V_SB}, {L_SEL}, v57")
    if PFL == 1:
        e(f"s_load_dwordx2 s[92:93], {sr(S_WS,2)}, s91 glc")
    if not CL: loop_consts()
    if LATEI:
        e("s_waitcnt lgkmcnt(0)")
        e("s_barrier")
    static_writes(56, "A")
    e("v_lshl_add_u32 v56, v37, 3, v48")
    e(f"s_lshl_b32 s5, s{S_W}, 5")
    e(f"v_add_u32 v{V_CHK}, s5, v56")
    e(f"v_and_b32 v{V_J0}, 15, v{V_LANE}")
    e(f"v_mul_u32_u24 v33, {DS}, v{V_CHK}")
    desc_soff()
    e(f"buffer_load_dwordx2 v[34:35], v33, {sr(S_WS)}, s5 offen sc1")
    nyoung = 1
    if PFL == 1:
        e("s_and_b32 s6, s90, 7")
        e("s_lshl_b32 s6, s6, 5")
        e("s_lshr_b32 s7, s90, 3")
        e("s_add_u32 s6, s6, s7")
        e(f"s_mul_i32 s6, s6, {NPB*256}")
        e(f"s_add_u32 s6, s6, {PSH}")
        e(f"v_min_u32 v56, {NPB-1}, v{V_LANE}")
        e("v_lshlrev_b32 v56, 8, v56")
        e("s_waitcnt lgkmcnt(0)")
        e(f"s_cmp_eq_u64 s[92:93], s[{S_TAGA}:{S_TAGB}]")
        e("s_cselect_b32 s6, s6, 0x7f000000")
        e("v_add_u32 v56, s6, v56")
        e(f"buffer_load_dword v57, v56, {sr(S_P)}, 0 offen")
        e(f"buffer_load_dword v58, v56, {sr(S_P)}, 0 offen offset:128")
        nyoung = 3
    e("s_lshl_b32 s6, s2, 3")
    e(f"s_add_u32 s6, s6, {WS_FLAG}")
    stamp(18)
    e(f"s_waitcnt vmcnt({nyoung}) lgkmcnt(0)")
    e("s_barrier")
    stamp(7)
    e(f"s_cmp_eq_u32 s{S_W}, 0")
    e("s_cbranch_scc0 P1_NF")
    e("s_mov_b64 exec, 0xff")
    e(f"buffer_store_dwordx2 v[252:253], v254, {sr(S_WS)}, s6 offen sc1")
    e("s_mov_b64 exec, -1")
    lab("P1_NF")
    if OWN:
        e(f"s_mul_i32 s6, s{S_B}, {NPB*256}")
        e(f"s_mul_i32 s7, s{S_W}, 13")
        e(f"v_add_u32 v56, s7, v{V_LANE}")
        e(f"v_min_u32 v56, {2*NPB-1}, v56")
        e("v_lshl_add_u32 v56, v56, 7, s6")
        e("s_bfm_b64 exec, 13, 0")
        e(f"buffer_load_dword v57, v56, {sr(S_P)}, s{S_SOFF} offen")
        e("s_mov_b64 exec, -1")
    for q in range(4): e(f"ds_read_b128 {vr(144+4*q,4)}, v49 offset:{L_B1+32*q}")
    for ks in range(4):
        e(f"ds_read_b64_tr_b16 {vr(80+4*ks,2)}, v50 offset:{L_W1S+16384+4096*ks}")
        e(f"ds_read_b64_tr_b16 {vr(82+4*ks,2)}, v50 offset:{L_W1S+16384+4096*ks+1024}")
    for ks in range(4):
        e(f"s_waitcnt lgkmcnt({6-2*ks})")
        e(mf16(144, 80 + 4*ks, 160 + 4*ks, vr(144, 16)))
    e("s_nop 7")
    e("s_nop 3")
    for i in range(8): e(f"v_pk_mul_f32 {vr(144+2*i,2)}, {vr(144+2*i,2)}, s[80:81]")
    for i in range(8): e(f"v_cvt_pk_bf16_f32 v{64+i}, v{144+2*i}, v{145+2*i}")
    e("s_mov_b64 exec, s[88:89]")
    for q in range(4): e(f"ds_write_b64 v54, {vr(64+2*q,2)} offset:{16*q}")
    e("s_mov_b64 exec, -1")
    stamp(19)
    if CL: loop_consts()

    lab("POLL1")
    e(f"v_mul_u32_u24 v32, {GCS}, v{V_CHK}")
    e(f"v_add_u32 v37, 16, v{V_J0}")
    e("v_bfrev_b32 v43, -2")
    e(f"v_cmp_gt_u32 vcc, s{S_WN}, v{V_J0}")
    e(f"v_add_u32 v38, s{S_RB}, v{V_J0}")
    e(f"v_add_u32 v39, s{S_RB}, v37")
    e("v_lshlrev_b32 v36, 3, v38")
    e("v_cndmask_b32 v38, v43, v38, vcc")
    e(f"v_cmp_gt_u32 vcc, s{S_WN}, v37")
    e(f"s_mov_b32 s7, {WS_ENT}")
    e("v_mov_b32 v55, 4")
    e("v_cndmask_b32 v39, v43, v39, vcc")
    e(f"s_waitcnt vmcnt({OWN})")
    lab("POLL")
    e(f"v_xor_b32 v34, s{S_TAGA}, v34")
    e(f"v_cmp_ne_u32 s[76:77], s{S_TAGB}, v35")
    e("v_cmp_le_u32 vcc, 0x1000000, v34")
    e("s_or_b64 vcc, vcc, s[76:77]")
    e("s_cbranch_scc0 POLLED")
    e(f"s_sub_u32 s{S_SPIN}, s{S_SPIN}, 1")
    e("s_cbranch_scc1 K_END")
    e(f"s_sleep {SLP}")
    e(f"buffer_load_dwordx2 v[34:35], v33, {sr(S_WS)}, s5 offen sc1")
    e("s_waitcnt vmcnt(0)")
    e("s_branch POLL")
    lab("POLLED")
    stamp(8)
    e("v_and_b32 v35, 0xfff, v34")
    e("v_lshrrev_b32 v34, 12, v34")
    e("v_lshl_add_u32 v35, v35, 3, v32")
    e(f"s_add_u32 s5, s{S_RB}, s{S_WN}")
    e("v_cmp_lt_u32 s[74:75], s5, v34")
    DP = "row_mask:0xf bank_mask:0xf"
    for i in range(8):
        e(f"v_mov_b32_dpp v43, v34 row_newbcast:{i} {DP}")
        e(f"v_add_u32_dpp v{44+i}, v35, v36 row_newbcast:{i} {DP}")
        e(f"v_cmp_lt_u32 {sr(S_MASK+2*i,2)}, v38, v43")
        e(f"v_cmp_lt_u32 {sr(S_MASK+16+2*i,2)}, v39, v43")
    e(f"v_lshlrev_b32 v54, 2, v{V_LANE}")
    e("v_mov_b32 v53, 0")
    e("s_mov_b64 exec, s[74:75]")
    e(f"ds_write_b32 v53, v55 offset:{L_FLAG}")
    e("s_mov_b64 exec, -1")
    if not W5: wave_reset()
    flag_load(True)
    lab("FPOLL")
    e("s_waitcnt vmcnt(0)")
    e(f"v_cmp_ne_u32 s[76:77], s{S_TAGB}, v61")
    e(f"v_cmp_ne_u32 vcc, s{S_TAGA}, v60")
    e("s_or_b64 vcc, vcc, s[76:77]")
    e("s_cbranch_scc0 FPOLLED")
    e(f"s_sub_u32 s{S_SPIN}, s{S_SPIN}, 1")
    e("s_cbranch_scc1 K_END")
    e(f"s_sleep {SLP}")
    flag_load()
    e("s_branch FPOLL")
    lab("FPOLLED")
    stamp(17)
    for k in range(8, 16):
        e(f"s_mov_b64 exec, {sr(S_MASK+2*k,2)}")
        e(f"s_cbranch_execz R_L{k}")
        e(f"buffer_load_dwordx2 {vr(112+2*k,2)}, v{44+(k&7)}, {sr(S_WS)}, s7 offen offset:128 {ELF}")
        lab(f"R_L{k}")
    for k in range(8):
        e(f"s_or_b64 exec, {sr(S_MASK+2*k,2)}, 1")
        e(f"buffer_load_dwordx2 {vr(112+2*k,2)}, v{44+k}, {sr(S_WS)}, s7 offen {ELF}")
    e("s_mov_b64 exec, -1")
    if W5: wave_reset()
    e(f"s_cmp_eq_u32 s{S_EARLY}, 2")
    e("s_cbranch_scc0 R_NH")
    for i in range(32): e(f"v_pk_mul_f32 {vr(H+2*i,2)}, {vr(NN,2)}, {vr(NN,2)}")
    lab("R_NH")
    e("s_waitcnt vmcnt(8)")
    for k in list(range(8, 16)) + list(range(8)):
        e(f"s_mov_b64 exec, {sr(S_MASK+2*k,2)}")
        if k >= 8: e(f"s_cbranch_execz R_A{k}")
        else: e(f"s_waitcnt vmcnt({7-k})")
        e(f"ds_add_rtn_u32 v{T+k}, v{113+2*k}, v55 offset:{L_CNT2}")
        if k >= 8: lab(f"R_A{k}")
    def list_writes(tag):
        for k in list(range(8, 16)) + list(range(8)):
            e(f"s_mov_b64 exec, {sr(S_MASK+2*k,2)}")
            if k >= 8: e(f"s_cbranch_execz {tag}{k}")
            e(f"ds_write_b32 v{T+k}, v{112+2*k}")
            if k >= 8: lab(f"{tag}{k}")
        e("s_mov_b64 exec, -1")
    e("s_mov_b64 exec, -1")
    e(f"s_cmp_eq_u32 s{S_EARLY}, 2")
    e("s_cbranch_scc0 R_NW2")
    e(f"s_add_u32 m0, s85, {L_W2}")
    e(f"s_mov_b32 s{S_EARLY}, 0")
    for k in range(2): e(f"buffer_load_dwordx4 v31, {sr(S_W2)}, s85 offen offset:{1024*k} lds")
    if POST:
        e("s_lshr_b32 s6, s2, 3")
        e("s_and_b32 s7, s6, 7")
        e("s_lshl_b32 s7, s7, 5")
        e("s_lshr_b32 s6, s6, 3")
        e(f"s_lshl2_add_u32 s6, s{S_W}, s6")
        e("s_add_u32 s6, s6, s7")
        e(f"s_mul_i32 s6, s6, {NPB*256}")
        e(f"v_lshl_add_u32 v56, v{V_LANE}, 7, s6")
        e(f"s_bfm_b64 exec, {POST}, 0")
        e(f"buffer_load_dword v57, v56, {sr(S_P)}, s{S_SOFF} offen")
        e("s_mov_b64 exec, -1")
    lab("R_NW2")
    e("s_waitcnt lgkmcnt(0)")
    stamp(20)
    list_writes("R_C")
    e("s_waitcnt lgkmcnt(0)")
    e("s_barrier")
    stamp(9)
    def mid():
        e(f"ds_read_b32 v32, v54 offset:{L_CNT2}")
        e(f"ds_read_b32 v33, v53 offset:{L_FLAG}")
        e(f"ds_read_b32 v34, v54 offset:{L_DEG}")
        return 3
    first_tile(mid)
    e("s_waitcnt lgkmcnt(0)")
    e(f"v_sub_u32 v32, v32, v{V_L0}")
    e("v_max_u32 v35, 4, v32")
    e("v_subrev_u32 v35, 4, v35")
    e("v_lshrrev_b32 v35, 5, v35")
    e("v_mov_b32 v36, v35")
    e(f"v_cmp_lt_u32 s[76:77], {LCAP//8-1}, v35")
    scan64(36)
    e(f"v_readfirstlane_b32 s{S_MORE}, v33")
    e(f"v_readlane_b32 s6, v36, {SPLIT-1}")
    e("v_readlane_b32 s7, v36, 63")
    e(f"v_cmp_le_u32 vcc, {SPLIT}, v{V_LANE}")
    e("v_sub_u32 v36, v36, v35")
    e("v_lshrrev_b32 v32, 2, v32")
    e("s_sub_u32 s7, s7, s6")
    e(f"s_add_u32 s82, s6, {SPLIT+3}")
    e(f"s_add_u32 s83, s7, {NPB-SPLIT+3}")
    e("s_max_u32 s5, s82, s83")
    e(f"s_cmp_ge_u32 s5, {4*HT+4}")
    e("s_cbranch_scc0 R_FITS")
    e(f"s_mov_b32 s{S_WN}, {WSLOW}")
    e("s_branch NEXT_ROUND")
    lab("R_FITS")
    e(f"s_sub_u32 s6, {NPB-SPLIT-1}, s6")
    e(f"v_add_u32 v37, {SPLIT-1}, v36")
    e("v_add_u32 v38, s6, v36")
    e("v_cndmask_b32 v37, v37, v38, vcc")
    e(f"v_mov_b32 v39, v{V_GV}")
    e(f"s_mov_b32 s{S_EARLY}, 1")
    e("s_cmp_eq_u64 s[76:77], 0")
    e("s_cbranch_scc0 R_COMPACT")
    lab("R_TABLE")
    e("v_mov_b32 v41, 0x3f80")
    e(f"s_add_u32 s6, s{S_W}, 1")
    lab("R_GT")
    e("v_cmp_le_u32 vcc, s6, v35")
    e("s_and_b64 exec, exec, vcc")
    e("s_cbranch_execz R_GTE")
    e("v_add_u32 v44, s6, v37")
    e("s_lshl_b32 s7, s6, 5")
    e(f"v_lshl_add_u32 v45, v44, 2, v{V_GB}")
    e("v_add_u32 v47, s7, v39")
    e("ds_write_b32 v45, v47")
    e("v_lshrrev_b32 v46, 1, v44")
    e(f"v_mul_u32_u24 v46, {SELS//2}, v46")
    e("v_and_b32 v44, 1, v44")
    e("v_lshl_add_u32 v46, v44, 1, v46")
    e(f"v_add_u32 v46, v46, v{V_SB}")
    e("ds_write_b16 v46, v41")
    e("s_add_u32 s6, s6, 8")
    e("s_branch R_GT")
    lab("R_GTE")
    e("s_mov_b64 exec, -1")
    e("s_waitcnt vmcnt(4) lgkmcnt(0)")
    e("s_barrier")
    stamp(10)
    e(f"s_cmp_eq_u32 s{S_W}, 0")
    e("s_cbranch_scc0 R_ND")
    e("v_add_u32 v34, v34, v32")
    e(f"ds_write_b32 v54, v34 offset:{L_DEG}")
    lab("R_ND")
    e(f"s_sub_u32 s5, 7, s{S_W}")
    e(f"s_cmp_lt_u32 s{S_W}, 4")
    e(f"s_cselect_b32 s5, s{S_W}, s5")
    e("s_cselect_b32 s6, s82, s83")
    e("s_lshr_b32 s6, s6, 2")
    e("s_sub_u32 s6, s6, s5")
    e("s_add_u32 s6, s6, 3")
    e(f"s_lshr_b32 s{S_NT}, s6, 2")
    e(f"s_or_b32 s6, s{S_MORE}, s{S_RB}")
    e(f"s_or_b32 s{S_SAFE}, s{S_SAFE}, s6")
    e(f"s_cmp_eq_u32 s{S_EARLY}, 0")
    e("s_cbranch_scc1 WAVE_REDO")
    lab("WAVE_GO")
    e(f"ds_read_u16 v{V_LI}, v{V_GIA} offset:64")
    e(f"s_mov_b32 m0, s{S_M0[1]}")
    e(f"s_sub_u32 s{S_REM}, s{S_NT}, 1")
    e("s_waitcnt lgkmcnt(0)")
    e(f"v_add_u32 v{V_LI}, v{V_LI}, v{V_LIO}")
    e(f"ds_read_b128 {vr(IDR,4)}, v{V_LI}")
    e(PERM)
    e(AXB)
    if PEEL:
        e("s_waitcnt vmcnt(0)")
        for s in c_reads(0)[:16] + [tr_read(0)]: e(s)
        for s in dma(1): e(s)
        for s in memphase(0, 0)[2+16:-4]:
            if s != tr_read(0): e(s)
        e(mfext(0))
        for s in mads(): e(s)
        e("s_nop 5")
        stamp(11); stamp(28, True)
        e(f"s_cmp_lg_u32 s{S_SAFE}, 0")
        e("s_cbranch_scc1 PEELS")
        for safe in (False, True):
            out.append(".p2align 3")
            if safe: lab("PEELS")
            emit(block(0, 0, safe))
            for s in dma(0): e(s)
            e(f"s_branch ENTER{'S' if safe else 'F'}")
    else:
        for s in dma(1): e(s)
        e("s_waitcnt lgkmcnt(0)")
        for s in mads(): e(s)
        for s in memphase(0, 0): e(s)
        e(mfext(0))
        e("s_nop 7")
        e("s_nop 1")
        stamp(11); stamp(28, True)
        e(f"s_cmp_lg_u32 s{S_SAFE}, 0")
        e("s_cbranch_scc1 ENTERS")
        e("s_branch ENTERF")

    lab("R_COMPACT")
    e("s_barrier")
    fill_list(40)
    e(f"v_add_lshl_u32 v38, v36, v{V_LANE}, 5")
    e(f"v_add_u32 v38, {L_LIST}, v38")
    e(f"v_sub_u32 v38, v38, v{V_L0}")
    e("v_add_u32 v39, v39, v38")
    for k in range(16): e(f"ds_bpermute_b32 v{113+2*k}, v{113+2*k}, v38")
    e(f"v_lshl_add_u32 v45, v{V_COL}, 2, v{V_GB}")
    e(f"s_bfm_b64 exec, {NPB}, 0")
    e("ds_write_b32 v45, v39")
    e("s_mov_b64 exec, -1")
    e("s_waitcnt lgkmcnt(0)")
    e("s_barrier")
    for k in range(16): e(f"v_add_u32 v{T+k}, v{T+k}, v{113+2*k}")
    list_writes("R_D")
    e(f"s_mov_b32 s{S_EARLY}, 0")
    e("s_branch R_TABLE")
    lab("WAVE_REDO")
    e("s_waitcnt vmcnt(0)")
    wave_reset()
    first_tile()
    e("s_branch WAVE_GO")

    mainloop(False)
    mainloop(True)

    lab("NEXTR")
    e(f"s_add_u32 s{S_RB}, s{S_RB}, s{S_WN}")
    lab("NEXT_ROUND")
    e("s_setprio 0")
    e("s_waitcnt vmcnt(0) lgkmcnt(0)")
    e("s_barrier")
    init_tables(32)
    e("s_waitcnt lgkmcnt(0)")
    e("s_barrier")
    static_writes(32, "B")
    e(f"v_mul_u32_u24 v33, {DS}, v{V_CHK}")
    desc_soff()
    e(f"buffer_load_dwordx2 v[34:35], v33, {sr(S_WS)}, s5 offen sc1")
    e("s_waitcnt vmcnt(0) lgkmcnt(0)")
    e("s_barrier")
    e("s_branch POLL1")

    out.append(".p2align 3")
    lab("DRAIN")
    e("s_waitcnt lgkmcnt(0)")
    e(f"s_cmp_lg_u32 s{S_MORE}, 0")
    for ct in range(4): e(mfsel(ct))
    stamp(12); stamp(29, True)
    e("s_cbranch_scc1 NEXTR")
    e(f"v_lshrrev_b32 v96, 5, v{V_LANE}")
    e(f"v_and_b32 v97, 31, v{V_LANE}")
    e("v_mul_u32_u24 v97, 272, v97")
    e("v_lshl_add_u32 v97, v96, 4, v97")
    e(f"v_add_u32 v97, s{S_M0[0]}, v97")
    e(f"s_mov_b32 s6, {hex(f2u(2.0**120))}")
    e(f"v_cmp_nge_f32 s[76:77], s6, v{V_DMAX}")
    e(f"v_lshrrev_b32 v98, 3, v{V_TID}")
    e(f"v_and_b32 v99, 7, v{V_TID}")
    O = D
    cv = lambda ct: [f"v_cvt_pk_bf16_f32 v{64+8*ct+i}, v{H+16*ct+2*i}, v{H+16*ct+2*i+1}" for i in range(8)]
    for s in cv(0): e(s)
    rest = [f"v_cmp_le_u32 vcc, {SPLIT}, v98", "v_mul_u32_u24 v100, 272, v98", "v_lshl_add_u32 v100, v99, 5, v100",
            f"v_add_u32 v101, {4*TBW - SPLIT*272}, v100", "v_cndmask_b32 v100, v100, v101, vcc",
            "v_lshlrev_b32 v101, 2, v98", "v_lshlrev_b32 v102, 5, v99", "v_lshlrev_b32 v103, 15, v98"]
    for ct in range(4):
        nxt = cv(ct + 1) if ct < 3 else rest
        for s in range(2):
            for mt in range(2):
                ks = 2 * ct + s
                for x in nxt[4*s + 2*mt: 4*s + 2*mt + 2]: e(x)
                e(mf16(O[mt], w2f(ks, mt), 64 + 4*ks, "0" if ks == 0 else vr(O[mt], 16)))
    e("v_lshl_add_u32 v103, v99, 4, v103")
    e(f"s_lshl_b32 s5, s{S_B}, 7")
    e("v_add_u32 v103, s5, v103")
    e("s_movk_i32 s7, 0x207")
    e("s_waitcnt vmcnt(0)")
    e("s_nop 5")
    e(f"v_cmp_class_f32 vcc, v{O[0]}, s7")
    e("s_or_b64 s[76:77], s[76:77], vcc")
    e("s_cbranch_scc0 EPI_OK")
    e(f"s_cmp_lg_u32 s{S_SAFE}, 0")
    e("s_cbranch_scc1 EPI_OK")
    e(f"s_mov_b32 s{S_SAFE}, 1")
    for i in range(64): e(f"v_mov_b32 v{H+i}, 0")
    e("s_branch WAVE_REDO")
    lab("EPI_OK")
    for mt in range(2):
        for q in range(4):
            e(f"ds_write_b128 v97, {vr(O[mt]+4*q,4)} offset:{128*mt+32*q}")
    e(f"ds_read_b128 v[32:35], v102 offset:{L_B2}")
    e(f"ds_read_b128 v[36:39], v102 offset:{L_B2+16}")
    e(f"v_cmp_gt_u32 vcc, {NPB}, v98")
    e(f"s_or_b32 s6, s2, s{S_W}")
    e("s_cbranch_scc1 EPI_NE")
    e(f"v_mov_b32 v42, s{S_TAGB}")
    e(f"v_mov_b32 v43, s{S_TAGA}")
    e("v_mov_b32 v44, 0")
    e("s_mov_b64 exec, 1")
    e(f"buffer_store_dwordx2 v[42:43], v44, {sr(S_WS)}, 0 offen offset:{WS_EPOCH}")
    e("s_mov_b64 exec, -1")
    lab("EPI_NE")
    e("s_waitcnt lgkmcnt(0)")
    e("s_barrier")
    stamp(13)
    e("s_and_b64 exec, exec, vcc")
    e("s_cbranch_execz K_FIN")
    e(f"ds_read_b32 v40, v101 offset:{L_DEG}")
    for s in range(4):
        e(f"ds_read_b128 {vr(64+8*s,4)}, v100 offset:{L_TB+s*TBW}")
        e(f"ds_read_b128 {vr(68+8*s,4)}, v100 offset:{L_TB+s*TBW+16}")
    e(f"s_mov_b32 s6, {hex(f2u(-LN2))}")
    e("s_mov_b32 s7, s6")
    e("s_waitcnt lgkmcnt(8)")
    e("v_cvt_f32_u32 v40, v40")
    for i in range(4): e(f"v_pk_mul_f32 {vr(32+2*i,2)}, {vr(32+2*i,2)}, v[40:41] op_sel_hi:[1,0]")
    for s in range(4):
        e(f"s_waitcnt lgkmcnt({6-2*s})")
        for i in range(4): e(f"v_pk_fma_f32 {vr(32+2*i,2)}, {vr(64+8*s+2*i,2)}, s[6:7], {vr(32+2*i,2)}")
    for i in range(4): e(f"v_cvt_pk_bf16_f32 v{44+i}, v{32+2*i}, v{33+2*i}")
    e(f"buffer_store_dwordx4 v[44:47], v103, {sr(S_OUT)}, 0 offen")
    lab("K_FIN")
    if AMP[0] >= 0:
        if AMP[1] == 14:
            e("s_waitcnt vmcnt(0)")
            stamp(14)
        e("s_sub_u32 s100, s100, s98")
        if AMP[2] >= 0:
            e(f"s_cmp_eq_u32 s2, {AMP[2]}")
            e("s_cselect_b32 s100, s100, 0")
        e("s_add_u32 s100, s100, 6000")
        lab("AMPL")
        e("s_memrealtime s[98:99]")
        e("s_waitcnt lgkmcnt(0)")
        e("s_sub_u32 s98, s98, s96")
        e("s_cmp_lt_u32 s98, s100")
        e("s_cbranch_scc1 AMPL")
    if SPIN >= 0:
        lab("SPINL")
        e("s_memrealtime s[98:99]")
        e("s_waitcnt lgkmcnt(0)")
        e("s_sub_u32 s98, s98, s96")
        e("s_cmp_lt_u32 s98, 6000")
        e("s_cbranch_scc1 SPINL")
    if DIAG:
        e("s_mov_b64 exec, -1")
        e("s_waitcnt vmcnt(0)")
        stamp(14); stamp(31, True)
        e(f"v_writelane_b32 v255, s{S_NT}, 27")
        e("s_lshl_b32 s5, s2, 11")
        e(f"s_add_u32 s5, s5, {WS_STAMP}")
        e(f"v_lshlrev_b32 v1, 2, v{V_TID}")
        e(f"buffer_store_dword v255, v1, {sr(S_WS)}, s5 offen")
    lab("K_END")
    e("s_endpgm")
    if CPF: out.append(".set CODE_REST, K_END - CPF_PC")

hdr = open("standalone__edge_featured_mpnn_mpnn__graph.s.ref").read().split("; Override")[0]
out.append(hdr.rstrip())
out.append(f"; @launch grid=(256,1,1) block=(512,1,1) lds={L_END}")
out.append('.amdgcn_target "amdgcn-amd-amdhsa--gfx950"')
out.append(".text")
out.append(f".globl {KN}")
out.append(f".p2align {AL}")
out.append(f".type {KN},@function")
kernel()
out.append(f""".section .rodata,"a"
.p2align 6
.amdhsa_kernel {KN}
  .amdhsa_next_free_vgpr 256
  .amdhsa_next_free_sgpr 102
  .amdhsa_accum_offset 256
  .amdhsa_group_segment_fixed_size 0
  .amdhsa_kernarg_size 88
  .amdhsa_user_sgpr_count 2
  .amdhsa_user_sgpr_kernarg_segment_ptr 1
  .amdhsa_system_sgpr_workgroup_id_x 1
.end_amdhsa_kernel""")
dst = sys.argv[1] if len(sys.argv) > 1 else "standalone__edge_featured_mpnn_mpnn__graph.s"
open(dst, "w").write("\n".join(out) + "\n")
print("written", dst, "LDS", L_END)
```

```python
import struct, sys, os
import numpy as np
from align import align, isize

N, E = 12500, 800000
NPB, SPLIT = 49, 25
CH, CHS, GCS, DS = 3128, 25088, 25216, 2176
NQ, NQL = CH // 4, (E - 255 * CH) // 4
LOG2E = 1.4426950408889634
LN2 = 0.6931471805599453
KN = "standalone__edge_featured_mpnn_mpnn__graph_kernel"
DIAG = int(os.environ.get("DIAG", "0"))
PREF = int(os.environ.get("PREF", "0"))
X_NOP = int(os.environ.get("X_NOP", "0"))
STF = os.environ.get("STF", "sc1")
LDF = os.environ.get("LDF", "")
TRANS = int(os.environ.get("TRANS", "0"))
ELF = os.environ.get("ELF", "")
SLP = int(os.environ.get("SLP", "1"))
ORD = int(os.environ.get("ORD", "2"))
PFL = 0
PSF = os.environ.get("PSF", "sc1")
CL = int(os.environ.get("CL", "1"))
W5 = int(os.environ.get("W5", "0"))
OWN = int(os.environ.get("OWN", "1"))
POST = int(os.environ.get("POST", "16"))
LATEI = int(os.environ.get("LATEI", "1"))
AL = int(os.environ.get("AL", "12"))
CPF = int(os.environ.get("CPF", "1"))
CPF0 = int(os.environ.get("CPF0", "0"))
PEEL = int(os.environ.get("PEEL", "1"))
STOUCH = int(os.environ.get("STOUCH", "0"))
TOUCH = int(os.environ.get("TOUCH", "0"))

def f2u(x): return struct.unpack("<I", struct.pack("<f", x))[0]
def u2f(u): return struct.unpack("<f", struct.pack("<I", u))[0]

WS_EPOCH = 0
WSOFF = int(os.environ.get("WSOFF", "0")) << 20
WS_PT = WSOFF + 4096
WS_DESC = WS_PT + 12544 * 256
WS_FLAG = WS_DESC + 256 * DS
WS_PFLAG = WS_FLAG + 8 * DS
WS_ENT = WS_PFLAG + 8 * DS
WS_SIZE = WS_ENT + 256 * GCS
WS_STAMP = 12 << 20
if DIAG: WS_SIZE = 16 << 20

L_CNT1, L_BASE1 = 0, 1024
L_CNT2, L_FLAG, L_DEG, L_B2 = 2048, 2304, 2368, 2816
L_B1 = 0
L_EXT = 3072
L_TB = 4096
TBW = 8704
L_STG, L_W1S, L_XS = L_TB, L_TB + CHS, L_TB + CHS + 32768
PS = 272
assert L_XS + 8704 <= L_TB + 8 * TBW and L_W1S % 256 == 0
HT, GTH = 60, 72
L_SEL = L_TB + 8 * TBW
SELS, SELSZ = 200, 24576
assert 2 * HT * SELS + 56 <= SELSZ
L_GT = L_SEL + SELSZ
L_QT = L_GT + 2 * GTH * 16
QS = 328
L_PS = L_QT
assert L_PS % 16 == 0
L_W2 = (L_QT + NPB * QS + 255) // 256 * 256
L_LIST = L_W2 + 16384
LS, LCAP = 528, 128
LISTSZ = (NPB + 1) * LS
L_END = L_LIST + LISTSZ
assert L_END <= 163840, L_END
PADENT = 0x00007000
PSH = 3072
WSLOW = 6

out = []
def e(s): out.append("    " + s)
def lab(s): out.append(s + ":")
def c(s): out.append("    ; " + s)
def vr(a, n): return f"v[{a}:{a+n-1}]"
def sr(a, n=4): return f"s[{a}:{a+n-1}]"

SPIN = int(os.environ.get("SPIN", "-1"))
AMP = [int(x) for x in os.environ.get("AMP", "-1,-1,-1").split(",")]
def stamp(i, real=False):
    if AMP[0] >= 0:
        if i == 0: e("s_memrealtime s[96:97]")
        if i == AMP[0]:
            if i: e("s_waitcnt lgkmcnt(0)")
            e("s_memtime s[98:99]")
            if i: e("s_waitcnt lgkmcnt(0)")
        if i == AMP[1]:
            e("s_waitcnt lgkmcnt(0)")
            e("s_memtime s[100:101]")
            e("s_waitcnt lgkmcnt(0)")
    if SPIN == i:
        e("s_waitcnt lgkmcnt(0)")
        e("s_memrealtime s[96:97]")
        e("s_waitcnt lgkmcnt(0)")
    if not DIAG: return
    if DIAG in (2, 4) and i not in (0, 30, 28, 29, 31, 11, 12, 14, 9): return
    if DIAG == 3 and i in (0, 30, 15, 16): return
    e("s_waitcnt lgkmcnt(0)")
    e(f"{'s_memrealtime' if real else 's_memtime'} s[98:99]")
    e("s_waitcnt lgkmcnt(0)")
    e(f"v_writelane_b32 v255, s98, {i}")

lazy = []
def lstamp(i):
    if DIAG != 3: return
    r = 52 + 2 * len(lazy)
    e(f"s_memtime s[{r}:{r+1}]")
    lazy.append((i, r))
def lflush():
    for i, r in lazy: e(f"v_writelane_b32 v255, s{r}, {i}")

def scan64(v):
    for sh in (1, 2, 4, 8):
        e("s_nop 1")
        e(f"v_add_u32_dpp v{v}, v{v}, v{v} row_shr:{sh} row_mask:0xf bank_mask:0xf bound_ctrl:1")
    e("s_nop 1")
    e(f"v_add_u32_dpp v{v}, v{v}, v{v} row_bcast:15 row_mask:0xa bank_mask:0xf")
    e("s_nop 1")
    e(f"v_add_u32_dpp v{v}, v{v}, v{v} row_bcast:31 row_mask:0xc bank_mask:0xf")

H = 176
C = (144, 160)
D = (112, 128)
T = 96
P = 80
SL = 76
BX = (72, 74)
IDX, IDR = 64, 68
NN, DD, RR, AX, CX, V_M = 16, 18, 20, 22, 24, 26
V_CA, V_DMAC, V_LI, V_LM, V_GQA, V_SELA, V_PSEL, V_QMUL, V_QC, V_GQ, V_QA, V_DMAX, V_TID, V_LANE, V_GIA = range(1, 16)
V_GMA, V_LIO, V_LMO = 28, 29, 30
V_SAVE = 240
V_CHK, V_J0, V_W2A = 244, 245, 246
S_X, S_E, S_SRC, S_DST, S_W1, S_B1, S_W2, S_B2, S_OUT, S_WS, S_P = 8, 12, 16, 20, 24, 28, 92, 36, 40, 44, 48
S_MASK = 8
S_SOFF = 52
S_256, S_REM, S_M0, S_WN, S_RB, S_MORE, S_SAFE, S_NT, S_EARLY, S_TAGA, S_TAGB, S_SPIN = 60, 61, (62, 63), 64, 65, 66, 67, 68, 69, 72, 73, 70
S_B, S_W = 3, 4

def mf16(d, a, b, cc): return f"v_mfma_f32_32x32x16_bf16 {vr(d,16)}, {vr(a,4)}, {vr(b,4)}, {cc}"
def mfext(ct): return f"v_mfma_f32_32x32x8_bf16 {vr(D[ct&1],16)}, {vr(AX,2)}, {vr(BX[ct&1],2)}, {vr(C[ct&1],16)}"
def mfsel(ct): return mf16(H + 16 * ct, P + 4 * ct, SL, vr(H + 16 * ct, 16))
def dma(half):
    return [f"buffer_load_dwordx4 v{IDX+j}, {sr(S_P)}, s{S_SOFF+4*half+j} offen offset:{1024*j} lds" for j in range(4)]
def mads(src=IDR): return [f"v_mad_i32_i16 v{IDX+j}, v{src+j}, s{S_256}, v{V_DMAC}" for j in range(4)]
def c_reads(half):
    L = []
    for ctl in range(2):
        for r in range(16):
            mm = r >> 1
            L.append(f"ds_read_u16_d16_hi v{C[ctl]+r}, v{V_CA} offset:{half*4096 + (mm&3)*1024 + (2*(r&1) + (mm>>2))*128 + ctl*64}")
    return L
def tr_read(ct): return f"ds_read_b64_tr_b16 {vr(BX[ct&1],2)}, v{V_QA} offset:{64*ct}"
AXB = f"v_pk_mul_f32 {vr(AX,2)}, {vr(CX,2)}, {vr(V_M,2)} op_sel_hi:[1,0]"
QAB = f"v_mad_u32_u24 v{V_QA}, v{V_GQ}, v{V_QMUL}, v{V_QC}"
PERM = f"v_perm_b32 v{V_M}, v{V_M}, v{V_M}, v{V_PSEL}"

def block(tau, ct, safe, gate=False, last=False):
    cur = D[ct & 1]
    pc, pt = (ct - 1) & 3, (tau if ct > 0 else (tau - 1) & 3)
    tr = [f"v_exp_f32 v{T+i}, v{cur+i}" for i in range(16)] + [f"v_rcp_f32 v{RR}, v{DD}", f"v_rcp_f32 v{RR+1}, v{DD+1}"]
    mf = [] if last else [mfext((ct + 1) & 3)]
    if tau == 0: mf.append(mfsel(ct))
    fill = []
    if ct == 0: fill += [f"v_add_u32 v{V_LI}, v{V_LI}, v{V_LIO}", f"v_add_u32 v{V_LM}, v{V_LM}, v{V_LMO}"]
    if ct == 1: fill += mads() + [PERM]
    if ct == 2:
        fill += [QAB]
        if tau == 3:
            fill += [f"v_add_u32 v{V_GIA}, 256, v{V_GIA}", f"v_add_u32 v{V_GMA}, 256, v{V_GMA}",
                     f"v_add_u32 v{V_GQA}, 256, v{V_GQA}", f"v_add_u32 v{V_SELA}, {16*SELS}, v{V_SELA}"]
    fill.append(f"v_max3_f32 v{V_DMAX}, v{DD}, v{DD+1}, v{V_DMAX}")
    L = []
    k = 0
    if gate:
        L += [tr[0], "s_setprio 3"]; k = 1
    for m in mf:
        L.append(m); L += tr[k:k+4]; k += 4
    L += tr[k:] + fill
    L.append(f"v_pk_mul_f32 {vr(RR,2)}, {vr(NN,2)}, {vr(RR,2)}")
    cvt = f"v_cvt_pk_bf16_f32 v{P+4*pc+pt}, v{RR}, v{RR+1}"
    if not safe:
        L += [f"v_pk_add_f32 {vr(DD,2)}, {vr(T,2)}, 1.0 op_sel_hi:[1,0]", cvt]
        if ct == 2: L.append(AXB)
        for j in range(1, 8):
            n_in = vr(cur, 2) if j == 1 else vr(NN, 2)
            L += [f"v_pk_fma_f32 {vr(NN,2)}, {n_in}, {vr(T+2*j,2)}, {n_in}",
                  f"v_pk_fma_f32 {vr(NN,2)}, {vr(cur+2*j,2)}, {vr(DD,2)}, {vr(NN,2)}",
                  f"v_pk_fma_f32 {vr(DD,2)}, {vr(DD,2)}, {vr(T+2*j,2)}, {vr(DD,2)}"]
    else:
        L += [f"v_pk_add_f32 {vr(T+2*j,2)}, {vr(T+2*j,2)}, 1.0 op_sel_hi:[1,0]" for j in range(8)] + [cvt]
        if ct == 2: L.append(AXB)
        L += [f"v_rcp_f32 v{T+i}, v{T+i}" for i in range(16)]
        L.append(f"v_pk_mul_f32 {vr(NN,2)}, {vr(cur,2)}, {vr(T,2)}")
        L += [f"v_pk_fma_f32 {vr(NN,2)}, {vr(cur+2*j,2)}, {vr(T+2*j,2)}, {vr(NN,2)}" for j in range(1, 8)]
    return L

def memphase(tau, half):
    L = ["s_setprio 0", "s_waitcnt vmcnt(4)"]
    L += c_reads(half) + [tr_read(2 * half), tr_read(2 * half + 1)]
    if half == 0:
        L += [f"ds_read_u16 v{V_LI}, v{V_GIA} offset:{(tau+2)*64}",
              f"ds_read_u16 v{V_LM}, v{V_GMA} offset:{(tau+1)*64}"]
    if half == 1:
        L += [f"ds_read_b128 {vr(IDR,4)}, v{V_LI}",
              f"ds_read_b32 v{V_M}, v{V_LM}",
              f"ds_read_u16 v{V_GQ}, v{V_GQA} offset:{(tau+1)*64+2}"]
        if tau == 1: L.append(f"ds_read_b32 v{SL}, v{V_SELA}")
        if tau >= 1: L.append(f"ds_read_b32 v{SL+tau}, v{V_SELA} offset:{tau*4*SELS}")
    if DIAG == 4 and half == 1: L = ["s_memtime s[98:99]"] + L
    L += [f"s_mov_b32 m0, s{S_M0[half]}", "s_waitcnt lgkmcnt(0)"]
    L += dma(half)
    if DIAG == 4 and half == 1: L += [f"s_add_u32 m0, s{S_REM}, 32", "s_nop 0", "v_writelane_b32 v255, s98, m0"]
    return L

def w2f(ks, mt): return (32 if ks < 4 else 144) + 8 * (ks & 3) + 4 * mt
def w2_reads():
    return [f"ds_read_b64_tr_b16 {vr(w2f(ks,mt)+2*t,2)}, v{27 if mt else V_W2A} offset:{2048*ks+1024*t}"
            for ks in range(8) for mt in range(2) for t in range(2)]

def emit(L):
    L = align(L)
    assert sum(isize(x) for x in L) % 8 == 0
    for s in L: e(s)

def mainloop(safe):
    x = "S" if safe else "F"
    out.append(".p2align 6")
    lab(f"LOOP{x}")
    for tau in range(4):
        c(f"==== tile slot {tau}")
        emit(memphase(tau, 0))
        emit(block((tau - 1) & 3, 3, safe, gate=True))
        if tau == 0 and not PEEL: lab(f"ENTER{x}")
        emit(block(tau, 0, safe))
        if tau == 0 and PEEL: lab(f"ENTER{x}")
        emit(memphase(tau, 1))
        emit(block(tau, 1, safe, gate=True))
        emit(block(tau, 2, safe))
        e(f"s_sub_u32 s{S_REM}, s{S_REM}, 1")
        if tau < 3: e(f"s_cbranch_scc1 TAIL{x}{tau}")
        else: e(f"s_cbranch_scc0 LOOP{x}")
    for tau in (3, 0, 1, 2):
        lab(f"TAIL{x}{tau}")
        emit(["s_setprio 0", f"v_xor_b32 v27, 64, v{V_W2A}"] + w2_reads())
        emit(block(tau, 3, safe, gate=True, last=True))
        if tau == 0: e(f"ds_read_b32 v{SL}, v{V_SELA}")
        e(f"v_rcp_f32 v{RR}, v{DD}")
        e(f"v_rcp_f32 v{RR+1}, v{DD+1}")
        e(f"v_max3_f32 v{V_DMAX}, v{DD}, v{DD+1}, v{V_DMAX}")
        e(f"v_pk_mul_f32 {vr(RR,2)}, {vr(NN,2)}, {vr(RR,2)}")
        for t2 in range(tau + 1, 4): e(f"v_mov_b32_e64 v{SL+t2}, 0")
        e(f"v_cvt_pk_bf16_f32 v{P+12+tau}, v{RR}, v{RR+1}")
        e("s_nop 0")
        e("s_branch DRAIN")

def find_cx(target):
    m = np.float64(u2f(0x00FF0000))
    g = f2u(float(np.float32(np.float64(u2f(target)) / m)))
    for d in range(-3, 4):
        if f2u(float(np.float32(np.float64(u2f(g + d)) * m))) == target: return g + d
    raise SystemExit("no cx")

V_GV, V_GB, V_SB, V_L0, V_COL = 247, 248, 249, 250, 251

def fill_list(t):
    e(f"v_lshlrev_b32 v{t+8}, 4, v{V_TID}")
    e(f"v_add_u32 v{t+9}, {L_LIST}, v{t+8}")
    for i in range(4): e(f"v_mov_b32 v{t+i}, {hex(PADENT)}")
    for o in (0, 8192, 16384, LISTSZ - 8192): e(f"ds_write_b128 v{t+9}, {vr(t,4)} offset:{o}")

def init_tables(t):
    fill_list(t)
    for i in range(4): e(f"v_mov_b32 v{t+4+i}, 0")
    e(f"v_add_u32 v{t+8}, {L_SEL}, v{t+8}")
    for o in (0, 8192, 16384): e(f"ds_write_b128 v{t+8}, {vr(t+4,4)} offset:{o}")
    e(f"v_min_u32 v{t+8}, {GTH*4-1}, v{V_TID}")
    e(f"v_lshlrev_b32 v{t+8}, 3, v{t+8}")
    e(f"v_add_u32 v{t+8}, {L_GT}, v{t+8}")
    e(f"v_mov_b32 v{t+10}, {NPB*LS}")
    e(f"v_mov_b32 v{t+11}, {NPB*LS}")
    e(f"ds_write_b64 v{t+8}, {vr(t+10,2)}")

def static_writes(t, tag):
    e(f"s_cmp_eq_u32 s{S_W}, 1")
    e(f"s_cbranch_scc0 STW{tag}")
    e(f"v_lshlrev_b32 v{t}, 2, v{V_LANE}")
    e(f"v_mov_b32 v{t+1}, 0")
    e(f"ds_write_b32 v{t}, v{V_L0} offset:{L_CNT2}")
    e(f"ds_write_b32 v{t+1}, v{t+1} offset:{L_FLAG}")
    e(f"v_lshl_add_u32 v{t}, v{V_COL}, 2, v{V_GB}")
    e(f"v_lshrrev_b32 v{t+1}, 1, v{V_COL}")
    e(f"v_mul_u32_u24 v{t+1}, {SELS//2}, v{t+1}")
    e(f"v_and_b32 v{t+2}, 1, v{V_COL}")
    e(f"v_lshl_add_u32 v{t+1}, v{t+2}, 1, v{t+1}")
    e(f"v_add_u32 v{t+1}, v{t+1}, v{V_SB}")
    e(f"v_mov_b32 v{t+2}, 0x3f80")
    e(f"s_bfm_b64 exec, {NPB}, 0")
    e(f"ds_write_b32 v{t}, v{V_GV}")
    e(f"ds_write_b16 v{t+1}, v{t+2}")
    e("s_mov_b64 exec, -1")
    lab(f"STW{tag}")

def desc_soff():
    e(f"s_lshr_b32 s5, s{S_B}, 2")
    e(f"s_and_b32 s7, s{S_B}, 1")
    e("s_lshl1_add_u32 s5, s5, s7")
    e(f"s_and_b32 s7, s{S_B}, 2")
    e("s_lshl_b32 s7, s7, 6")
    e("s_add_u32 s5, s5, s7")
    e(f"s_lshl3_add_u32 s5, s5, {WS_DESC}")

def flag_load(first=False):
    if first:
        e(f"v_lshlrev_b32 v62, 3, v{V_CHK}")
        e("s_and_b32 s84, s2, 7")
        e(f"s_mul_i32 s84, s84, {DS}")
        e(f"s_add_u32 s84, s84, {WS_FLAG}")
    e(f"buffer_load_dwordx2 v[60:61], v62, {sr(S_WS)}, s84 offen sc1")

def wave_reset():
    e(f"v_mov_b32 v{V_GIA}, v{V_SAVE}")
    e(f"v_mov_b32 v{V_GMA}, v{V_SAVE+1}")
    e(f"v_mov_b32 v{V_GQA}, v{V_SAVE+2}")
    e(f"v_mov_b32 v{V_SELA}, v{V_SAVE+3}")
    e(f"ds_read_u16 v{V_LI}, v{V_GIA}")
    e(f"ds_read_u16 v{V_LM}, v{V_GMA}")
    e(f"ds_read_u16 v{V_GQ}, v{V_GQA} offset:2")
    for i in range(2):
        e(f"v_mov_b32 v{NN+i}, 0")
        e(f"v_mov_b32 v{DD+i}, 1.0")
    e(f"v_mov_b32 v{V_DMAX}, 0")
    for r in list(range(SL, SL + 20, 2)) + list(range(C[0], C[0] + 32, 2)):
        e(f"v_pk_mul_f32 {vr(r,2)}, {vr(NN,2)}, {vr(NN,2)}")
    e("s_waitcnt lgkmcnt(0)")
    e(f"v_add_u32 v{V_LI}, v{V_LI}, v{V_LIO}")
    e(f"v_add_u32 v{V_LM}, v{V_LM}, v{V_LMO}")
    e(QAB)

def first_tile(mid=None):
    e(f"ds_read_b128 {vr(IDX,4)}, v{V_LI}")
    e(f"ds_read_b32 v{V_M}, v{V_LM}")
    n = 1
    if mid: n += mid()
    e(f"s_mov_b32 m0, s{S_M0[0]}")
    e(f"s_waitcnt lgkmcnt({n})")
    for s in mads(IDX): e(s)
    for s in dma(0): e(s)

def kernel():
    lab(KN)
    e("s_cmpk_ge_u32 s2, 256")
    e("s_cbranch_scc1 K_END")
    if DIAG: e("v_mov_b32 v255, 0")
    stamp(30, True); stamp(0); lstamp(0)
    for s, off in ((S_DST, 24), (S_X, 0), (S_W1, 32), (S_WS, 80), (S_SRC, 16), (S_E, 8)):
        e(f"s_load_dwordx2 {sr(s,2)}, s[0:1], {off}")
    if CPF == 1:
        e("s_getpc_b64 s[90:91]")
        lab("CPF_PC")
        e("s_and_b32 s5, s2, -8")
        e("v_subrev_u32 v18, 504, v0")
        e("v_add_lshl_u32 v16, v18, s5, 7")
        e("v_add_u32 v16, 2048, v16")
        e("v_min_u32 v16, CODE_REST, v16")
        e("v_mov_b32 v17, s91")
        e("v_add_co_u32 v16, vcc, s90, v16")
        e("v_cmp_gt_u32 s[76:77], 8, v18")
        e("s_nop 0")
        e("v_addc_co_u32 v17, vcc, 0, v17, vcc")
        e("s_mov_b64 exec, s[76:77]")
        e("s_cbranch_execz CPF_E")
        e("global_load_dword v18, v[16:17], off")
        lab("CPF_E")
        e("s_mov_b64 exec, -1")
    e(f"v_readfirstlane_b32 s{S_W}, v0")
    e(f"v_and_b32 v{V_LANE}, 63, v0")
    e("v_mov_b32 v88, 0")
    e("v_mov_b32 v89, 0")
    e("v_lshlrev_b32 v92, 3, v0")
    e("ds_write_b64 v92, v[88:89]")
    e(f"s_mov_b32 s{S_DST+3}, 0x00020000")
    e(f"s_mov_b32 s{S_DST+2}, {E*4}")
    e(f"s_mov_b32 s{S_X+2}, {N*128}")
    e(f"s_mov_b32 s{S_X+3}, s{S_DST+3}")
    e(f"s_mov_b32 s{S_W1+2}, {129*256}")
    e(f"s_mov_b32 s{S_W1+3}, s{S_DST+3}")
    e(f"s_lshr_b32 s{S_W}, s{S_W}, 6")
    e(f"s_and_b32 s{S_B}, s2, 7")
    e(f"s_lshl_b32 s{S_B}, s{S_B}, 5")
    e("s_lshr_b32 s5, s2, 3")
    e(f"s_add_u32 s{S_B}, s{S_B}, s5")
    e(f"s_mul_i32 s5, s2, {CH*4}")
    e("v_lshl_add_u32 v32, v0, 4, s5")
    e("s_cmpk_eq_u32 s2, 255")
    e(f"s_movk_i32 s6, {NQ-512}")
    e(f"s_cmovk_i32 s6, {NQL-512}")
    e("v_cmp_gt_u32 s[74:75], s6, v0")
    e(f"v_lshrrev_b32 v37, 4, v{V_LANE}")
    e(f"v_lshrrev_b32 v47, 3, v{V_LANE}")
    e(f"v_and_b32 v48, 7, v{V_LANE}")
    e("v_and_b32 v45, 1, v37")
    e("v_and_b32 v58, 4, v47")
    e("v_and_b32 v59, 1, v47")
    e("v_lshl_add_u32 v58, v59, 1, v58")
    e("v_add_u32 v58, v58, v45")
    e("v_xor_b32 v59, v48, v37")
    e("v_lshlrev_b32 v59, 4, v59")
    e("v_lshl_add_u32 v58, v58, 15, v59")
    e(f"s_lshl_b32 s85, s{S_W}, 11")
    e(f"s_add_u32 s5, s85, s{S_B}")
    e("s_lshl_b32 s5, s5, 7")
    e("v_add_u32 v58, s5, v58")
    e("v_lshlrev_b32 v31, 2, v37")
    e(f"v_xor_b32 v31, v31, v{V_LANE}")
    e("v_lshlrev_b32 v31, 4, v31")
    e(f"s_mul_i32 s84, s{S_W}, 1088")
    e(f"s_add_u32 m0, s84, {L_XS}")
    e("s_movk_i32 s86, 8192")
    lstamp(21)
    e("s_waitcnt lgkmcnt(0)")
    lstamp(22)
    e(f"buffer_load_dwordx4 v[64:67], v32, {sr(S_DST)}, 0 offen {LDF}")
    e("s_mov_b64 exec, s[74:75]")
    e("s_cbranch_execz P0_ND")
    e(f"buffer_load_dwordx4 v[68:71], v32, {sr(S_DST)}, s86 offen {LDF}")
    lab("P0_ND")
    e("s_mov_b64 exec, -1")
    e("s_barrier")
    e(f"buffer_load_dwordx4 v58, {sr(S_X)}, 0 offen lds")
    e(f"s_add_u32 m0, s85, {L_W1S}")
    e(f"s_load_dwordx2 s[78:79], {sr(S_WS,2)}, {WS_EPOCH}")
    for k in range(2): e(f"buffer_load_dwordx4 v31, {sr(S_W1)}, s85 offen offset:{1024*k} lds")
    lab("P0_ISS")
    stamp(15); lstamp(15)
    for s, off in ((S_B1, 40), (S_W2, 48), (S_B2, 56), (S_OUT, 64)):
        e(f"s_load_dwordx2 {sr(s,2)}, s[0:1], {off}")
    e(f"v_mov_b32 v{V_TID}, v0")
    for s, sz in ((S_SRC, E*4), (S_E, E*2), (S_B1, 256), (S_W2, 16384), (S_B2, 128), (S_WS, WS_SIZE), (S_OUT, N*128), (S_P, 256*NPB*256 + PSH)):
        e(f"s_mov_b32 s{s+2}, {sz}")
        e(f"s_mov_b32 s{s+3}, s{S_DST+3}")
    e(f"s_mov_b32 s80, {hex(f2u(-LOG2E))}")
    e("s_mov_b32 s81, s80")
    e(f"v_lshrrev_b32 v38, 5, v{V_LANE}")
    e(f"v_and_b32 v39, 31, v{V_LANE}")
    e("v_bfe_u32 v40, v39, 2, 1")
    e("v_and_b32 v41, 1, v39")
    e("v_lshl_add_u32 v40, v40, 1, v41")
    e("v_lshrrev_b32 v42, 3, v39")
    e("v_bfe_u32 v43, v39, 1, 1")
    e(f"v_bfe_u32 v44, v{V_LANE}, 2, 2")
    e(f"v_and_b32 v46, 3, v{V_LANE}")
    e("v_lshlrev_b32 v46, 3, v46")
    e("v_lshl_add_u32 v46, v45, 5, v46")
    e(f"s_and_b32 s82, s{S_W}, 3")
    e(f"s_lshr_b32 s83, s{S_W}, 2")
    e("v_xor_b32 v50, s82, v44")
    e("v_lshl_add_u32 v50, v50, 6, v46")
    e("v_lshl_add_u32 v51, v38, 3, v44")
    e("v_lshl_add_u32 v50, v51, 8, v50")
    e("v_lshl_add_u32 v51, v40, 1, v43")
    e("v_mul_u32_u24 v52, 1088, v42")
    e("v_lshl_add_u32 v52, v51, 7, v52")
    e("s_mul_i32 s5, s83, 4352")
    e(f"s_add_u32 s5, s5, {L_XS}")
    e("v_add_u32 v52, s5, v52")
    e("v_xor_b32 v53, v38, v40")
    e("v_lshl_add_u32 v51, v53, 4, v52")
    e("v_xor_b32 v53, 2, v53")
    e("v_lshl_add_u32 v52, v53, 4, v52")
    e("s_lshl_b32 s5, s83, 5")
    e("v_add_u32 v55, s5, v39")
    e(f"v_cmp_gt_u32 s[88:89], {NPB}, v55")
    e("s_lshl_b32 s82, s82, 6")
    e("v_lshl_add_u32 v49, v38, 3, s82")
    e(f"v_add_u32 v56, {L_QT}, v49")
    e(f"v_mul_u32_u24 v53, {PS}, v55")
    e("v_add_u32 v53, v53, v56")
    e(f"v_mul_u32_u24 v54, {QS}, v55")
    e("v_add_u32 v54, v54, v56")
    assert PS == 272
    e(f"s_mov_b32 s7, {L_PS}")
    e("v_lshlrev_b32 v61, 4, v0")
    e("v_and_b32 v56, -16, v0")
    e("v_add3_u32 v62, v61, v56, s7")
    e(f"s_min_u32 s5, s{S_W}, 2")
    e(f"s_lshl2_add_u32 s5, s{S_W}, s5")
    e("s_add_u32 s5, s5, 64")
    e("s_lshl_b32 s5, s5, 3")
    e(f"v_add_u32 v55, s5, v{V_LANE}")
    e("v_lshlrev_b32 v63, 4, v55")
    e("v_and_b32 v56, -16, v55")
    e("v_add3_u32 v22, v63, v56, s7")
    e(f"s_cmp_lt_u32 s{S_W}, 2")
    e("s_cselect_b32 s71, 40, 32")
    lstamp(23)
    if not LATEI: init_tables(84)
    e(f"s_mul_i32 s6, s{S_B}, {NPB*256}")
    e(f"s_add_u32 s6, s6, {WS_PT}")
    e(f"s_mov_b32 s87, {128*256}")
    e("v_mov_b32 v55, 1")
    e(f"v_lshlrev_b32 v36, 2, v{V_LANE}")
    e("v_lshrrev_b32 v34, 1, v32")
    e("s_movk_i32 s84, 4096")
    stamp(16); lstamp(16)
    SD = "dst_sel:DWORD dst_unused:UNUSED_PAD src0_sel:DWORD"
    def binA(j):
        e(f"v_lshlrev_b32_sdwa v{112+j}, 2, v{64+j} {SD} src1_sel:BYTE_0")
        e(f"ds_add_rtn_u32 v{120+j}, v{112+j}, v55 offset:{L_CNT1}")
    def binB(j):
        e(f"v_lshlrev_b32_sdwa v{129+2*j}, 2, v{64+j} {SD} src1_sel:BYTE_1")
        if j % 2 == 0: e(f"v_lshlrev_b32 v56, 16, v{80+j//2}")
        else: e(f"v_and_b32 v56, 0xffff0000, v{80+j//2}")
        e(f"v_mul_u32_u24_sdwa v57, {NPB}, v{72+j} {SD} src1_sel:BYTE_0")
        e(f"v_add_u32_sdwa v57, v57, v{72+j} {SD} src1_sel:BYTE_1")
        e(f"v_or3_b32 v{128+2*j}, v56, v57, s87")
    def masked(tag, f):
        e("s_mov_b64 exec, s[74:75]")
        e(f"s_cbranch_execz {tag}")
        f()
        lab(tag)
        e("s_mov_b64 exec, -1")
    assert 128 * 256 == 0x8000
    e(f"v_lshlrev_b32 v58, 4, v{V_LANE}")
    e(f"v_lshlrev_b32 v23, 1, v{V_LANE}")
    e("s_waitcnt vmcnt(3)")
    stamp(3)
    def ldA():
        e(f"buffer_load_dwordx4 v[72:75], v32, {sr(S_SRC)}, 0 offen {LDF}")
        e(f"buffer_load_dwordx2 v[80:81], v34, {sr(S_E)}, 0 offen {LDF}")
    def ldB():
        e(f"buffer_load_dwordx4 v[76:79], v32, {sr(S_SRC)}, s86 offen {LDF}")
        e(f"buffer_load_dwordx2 v[82:83], v34, {sr(S_E)}, s84 offen {LDF}")
    if ORD == 1: ldA()
    for j in range(4): binA(j)
    if ORD == 2: ldA()
    e("s_mov_b64 exec, s[74:75]")
    e("s_cbranch_execz P1_A")
    if ORD == 1: ldB()
    for j in range(4, 8): binA(j)
    if ORD == 2: ldB()
    e("s_mov_b64 exec, -1")
    e("s_waitcnt vmcnt(4)")
    e("s_branch P1_A2")
    lab("P1_A")
    e("s_mov_b64 exec, -1")
    e("s_waitcnt vmcnt(2)")
    lab("P1_A2")
    e("s_add_u32 s86, s85, 16384")
    e(f"s_add_u32 m0, s86, {L_W1S}")
    e(f"s_cmp_eq_u32 s{S_W}, 7")
    e("s_waitcnt lgkmcnt(0)")
    e("s_barrier")
    stamp(4); lflush()
    def tags():
        e(f"s_mul_i32 s{S_TAGB}, s78, 1664525")
        e(f"s_add_u32 s{S_TAGB}, s{S_TAGB}, 1013904223")
        e(f"s_add_u32 s{S_TAGA}, s79, 0x01000000")
        e(f"s_and_b32 s{S_TAGA}, s{S_TAGA}, 0xff000000")
    def p_reads():
        for ks in range(4):
            e(f"ds_read_b64_tr_b16 {vr(88+4*ks,2)}, v50 offset:{L_W1S+4096*ks}")
            e(f"ds_read_b64_tr_b16 {vr(90+4*ks,2)}, v50 offset:{L_W1S+4096*ks+1024}")
            e(f"ds_read_b128 {vr(160+4*ks,4)}, v{51+(ks&1)} offset:{64*(ks>>1)}")
    def p_mfma(counted=False):
        for ks in range(4):
            if counted: e(f"s_waitcnt lgkmcnt({9-3*ks})")
            e(mf16(144, 88 + 4*ks, 160 + 4*ks, "0" if ks == 0 else vr(144, 16)))
    def p_fin():
        for i in range(8): e(f"v_pk_mul_f32 {vr(144+2*i,2)}, {vr(144+2*i,2)}, s[80:81]")
        for i in range(8): e(f"v_cvt_pk_bf16_f32 v{88+i}, v{144+2*i}, v{145+2*i}")
        e("s_mov_b64 exec, s[88:89]")
        for q in range(4): e(f"ds_write_b64 v53, {vr(88+2*q,2)} offset:{16*q}")
        e("s_mov_b64 exec, -1")
    def late():
        for k in range(2): e(f"buffer_load_dwordx4 v31, {sr(S_W1)}, s86 offen offset:{1024*k} lds")
    e("s_cbranch_scc1 P1_SCAN")
    p_reads()
    p_mfma(True)
    tags()
    e(f"s_cmp_eq_u32 s{S_W}, 6")
    e("s_cbranch_scc0 P1_H6")
    e(f"buffer_load_dword v20, v36, {sr(S_W1)}, s87 offen")
    e(f"buffer_load_ushort v21, v23, {sr(S_B2)}, 0 offen")
    e(f"buffer_load_dword v19, v36, {sr(S_B1)}, 0 offen")
    lab("P1_H6")
    e("s_nop 3")
    e("s_branch P1_HJ")
    lab("P1_SCAN")
    e("s_setprio 3")
    e(f"ds_read_b128 v[136:139], v58 offset:{L_CNT1}")
    p_reads()
    tags()
    e(f"s_mul_i32 s7, s2, {DS}")
    e(f"s_add_u32 s7, s7, {WS_DESC}")
    e("s_waitcnt lgkmcnt(0)")
    p_mfma()
    e("v_add_u32 v57, v136, v137")
    e("v_add_u32 v56, v57, v138")
    e("v_add_u32 v59, v56, v139")
    e("v_mov_b32 v60, v59")
    scan64(59)
    e("v_sub_u32 v140, v59, v60")
    e("v_add_u32 v141, v140, v136")
    e("v_add_u32 v142, v140, v57")
    e("v_add_u32 v143, v140, v56")
    e(f"ds_write_b128 v58, v[140:143] offset:{L_BASE1}")
    lab("P1_HJ")
    late()
    p_fin()
    e("s_waitcnt lgkmcnt(0)")
    e("s_barrier")
    e("s_setprio 0")
    stamp(5)
    e("ds_read_b128 v[104:107], v62")
    e("ds_read_b128 v[108:111], v22")
    for j in range(4): e(f"ds_read_b32 v{112+j}, v{112+j} offset:{L_BASE1}")
    e("s_waitcnt lgkmcnt(4)")
    e(f"buffer_store_dwordx4 v[104:107], v61, {sr(S_WS)}, s6 offen {PSF}")
    e("s_bfm_b64 exec, s71, 0")
    e(f"buffer_store_dwordx4 v[108:111], v63, {sr(S_WS)}, s6 offen {PSF}")
    def w(j):
        e(f"v_add_lshl_u32 v{112+j}, v{112+j}, v{120+j}, 3")
        e(f"ds_write_b64 v{112+j}, {vr(128+2*j,2)} offset:{L_STG}")
    def partA():
        for j in range(4): binB(j)
        e("s_waitcnt lgkmcnt(0)")
        for j in range(4): w(j)
    e("s_mov_b64 exec, s[74:75]")
    e("s_cbranch_execz P1_S1")
    for j in range(4, 8): e(f"ds_read_b32 v{112+j}, v{112+j} offset:{L_BASE1}")
    e("s_mov_b64 exec, -1")
    e("s_waitcnt vmcnt(6)")
    partA()
    e("s_mov_b64 exec, s[74:75]")
    e("s_waitcnt vmcnt(4)")
    for j in range(4, 8): binB(j)
    for j in range(4, 8): w(j)
    e("s_mov_b64 exec, -1")
    e("s_branch P1_JOIN")
    lab("P1_S1")
    e("s_mov_b64 exec, -1")
    e(f"s_cmp_eq_u32 s{S_W}, 7")
    e("s_cbranch_scc0 P1_S2")
    for j in range(4):
        e(f"v_lshl_or_b32 v{96+2*j}, v{136+j}, 12, v{140+j}")
        e(f"v_or_b32 v{96+2*j}, s{S_TAGA}, v{96+2*j}")
        e(f"v_mov_b32 v{97+2*j}, s{S_TAGB}")
    e(f"buffer_store_dwordx4 v[96:99], v58, {sr(S_WS)}, s7 offen sc1")
    e(f"buffer_store_dwordx4 v[100:103], v58, {sr(S_WS)}, s7 offen offset:1024 sc1")
    lab("P1_S2")
    e(f"s_cmp_ge_u32 s{S_W}, 6")
    e("s_waitcnt vmcnt(6)")
    e("s_cbranch_scc1 P1_S3")
    e("s_waitcnt vmcnt(4)")
    lab("P1_S3")
    partA()
    lab("P1_JOIN")
    e(f"s_mul_i32 s5, s2, {GCS}")
    e(f"s_add_u32 s5, s5, {WS_ENT}")
    e("s_waitcnt lgkmcnt(0)")
    e("s_barrier")
    stamp(6)
    for k in range(3): e(f"ds_read_b128 {vr(64+4*k,4)}, v61 offset:{L_STG+8192*k}")
    e(f"s_cmp_eq_u32 s{S_W}, 7")
    e("s_cbranch_scc0 P1_C")
    e(f"ds_read_b128 v[76:79], v58 offset:{L_STG+24576}")
    e("s_add_u32 s7, s5, 24576")
    e("s_bfm_b64 exec, 32, 0")
    e("s_waitcnt lgkmcnt(0)")
    e(f"buffer_store_dwordx4 v[76:79], v58, {sr(S_WS)}, s7 offen {STF}")
    e("s_mov_b64 exec, -1")
    lab("P1_C")
    for k in range(3):
        e(f"s_waitcnt lgkmcnt({2-k})")
        e(f"buffer_store_dwordx4 {vr(64+4*k,4)}, v61, {sr(S_WS)}, s5 offen {STF}")
        if k < 2: e("s_add_u32 s5, s5, 8192")
    def loop_consts():
        e("v_lshlrev_b32 v58, 1, v39")
        e("v_lshl_add_u32 v58, v38, 9, v58")
        e(f"v_add_u32 v{V_CA}, s{S_M0[0]}, v58")
        e("v_lshlrev_b32 v58, 4, v48")
        e(f"v_add_u32 v{V_DMAC}, 0x800000, v58")
        e("v_and_b32 v58, 1, v47")
        e("v_lshlrev_b32 v58, 4, v58")
        e(f"v_add_u32 v{V_LIO}, {L_LIST}, v58")
        e("v_lshl_add_u32 v58, v42, 1, v43")
        e("v_lshlrev_b32 v58, 2, v58")
        e(f"v_add_u32 v{V_LMO}, {L_LIST}, v58")
        e(f"s_sub_u32 s76, {GTH+7}, s{S_W}")
        e(f"s_sub_u32 s77, {HT+7}, s{S_W}")
        e(f"s_cmp_lt_u32 s{S_W}, 4")
        e(f"s_cselect_b32 s76, s{S_W}, s76")
        e(f"s_cselect_b32 s77, s{S_W}, s77")
        e("s_lshl_b32 s76, s76, 4")
        e(f"s_add_u32 s76, s76, {L_GT}")
        e(f"s_mul_i32 s77, s77, {SELS}")
        e(f"s_add_u32 s77, s77, {L_SEL}")
        e(f"v_lshl_add_u32 v{V_SAVE}, v37, 2, s76")
        e(f"v_lshl_add_u32 v{V_SAVE+1}, v40, 2, s76")
        e(f"v_lshl_add_u32 v{V_SAVE+2}, v44, 2, s76")
        e(f"v_mul_u32_u24 v58, {SELS//2}, v38")
        e("v_lshl_add_u32 v58, v39, 2, v58")
        e(f"v_add_u32 v{V_SAVE+3}, s77, v58")
        e("v_cmp_eq_u32 vcc, 0, v38")
        e("v_mov_b32 v59, 0x03020100")
        e("v_mov_b32 v58, 0x0c080c0c")
        e(f"v_cndmask_b32 v{V_PSEL}, v59, v58, vcc")
        e(f"v_cndmask_b32 v{V_QMUL}, 0, 1, vcc")
        e("v_add_u32 v58, 1, v44")
        e("v_lshrrev_b32 v58, 1, v58")
        e("v_and_b32 v59, 1, v44")
        e("v_mul_u32_u24 v58, v58, v59")
        e("v_mul_u32_u24 v58, 320, v58")
        e(f"v_add_u32 v58, {L_EXT}, v58")
        e(f"v_mov_b32 v59, {L_QT}")
        e("v_cndmask_b32 v58, v58, v59, vcc")
        e(f"v_add_u32 v{V_QC}, v46, v58")
        e(f"v_mov_b32 v58, {hex(find_cx(0x00803F80))}")
        e(f"v_mov_b32 v59, {hex(find_cx(0x3F800000))}")
        e("v_cmp_eq_u32 s[6:7], 1, v41")
        e("v_cmp_gt_u32 s[76:77], 2, v40")
        e("s_nop 0")
        e("v_cndmask_b32 v58, v58, v59, s[6:7]")
        e("v_cndmask_b32 v59, 0, v58, s[76:77]")
        e("v_cndmask_b32 v58, v58, 0, s[76:77]")
        e(f"v_cndmask_b32 v{CX}, 1.0, v59, vcc")
        e(f"v_cndmask_b32 v{CX+1}, 1.0, v58, vcc")
        e("v_lshl_add_u32 v58, v38, 2, v44")
        e("v_lshl_add_u32 v58, v58, 7, v46")
        e("v_lshrrev_b32 v59, 1, v44")
        e("v_lshl_add_u32 v58, v59, 6, v58")
        e(f"v_add_u32 v{V_W2A}, {L_W2}, v58")
    if PFL == 1:
        e(f"s_lshl_b32 s5, s{S_W}, 5")
        e("s_lshr_b32 s6, s2, 3")
        e("s_add_u32 s90, s5, s6")
        e("s_and_b32 s6, s2, 7")
        e(f"s_mul_i32 s6, s6, {DS}")
        e("s_lshl_b32 s5, s90, 3")
        e("s_add_u32 s5, s5, s6")
        e(f"s_add_u32 s91, s5, {WS_PFLAG}")
    if LATEI: init_tables(120)
    e("v_lshlrev_b32 v31, 2, v45")
    e(f"v_xor_b32 v31, v31, v{V_LANE}")
    e("v_lshlrev_b32 v31, 4, v31")
    e(f"s_mov_b32 s{S_EARLY}, 2")
    e(f"s_cmp_eq_u32 s{S_W}, 6")
    e("s_cbranch_scc0 P0_NOEXT")
    e("s_waitcnt vmcnt(5)")
    e("v_lshlrev_b32 v118, 16, v19")
    e("v_and_b32 v119, 0xffff0000, v19")
    e("v_lshlrev_b32 v117, 1, v36")
    e(f"ds_write_b64 v117, v[118:119] offset:{L_B1}")
    e("v_lshlrev_b32 v112, 16, v20")
    e("v_and_b32 v113, 0xffff0000, v20")
    e("v_mul_f32 v112, s80, v112")
    e("v_mul_f32 v113, s80, v113")
    e("v_cvt_pk_bf16_f32 v114, v112, v113")
    e("v_lshlrev_b32 v115, 16, v114")
    e("v_and_b32 v116, 0xffff0000, v114")
    e("v_sub_f32 v115, v112, v115")
    e("v_sub_f32 v116, v113, v116")
    e("v_cvt_pk_bf16_f32 v115, v115, v116")
    e("v_lshlrev_b32 v116, 16, v21")
    e(f"ds_write_b32 v36, v114 offset:{L_EXT+320}")
    e(f"ds_write_b32 v36, v115 offset:{L_EXT+640}")
    e(f"ds_write_b32 v36, v116 offset:{L_B2}")
    lab("P0_NOEXT")
    e(f"s_add_u32 s{S_P}, s{S_WS}, {WS_PT - PSH}")
    e(f"s_addc_u32 s{S_P+1}, s{S_WS+1}, 0")
    e(f"v_mov_b32 v252, s{S_TAGA}")
    e(f"v_mov_b32 v253, s{S_TAGB}")
    e(f"v_mul_u32_u24 v254, {DS}, v{V_LANE}")
    e("v_lshlrev_b32 v49, 1, v49")
    for j in range(8): e(f"s_movk_i32 s{S_SOFF+j}, {PSH - 1024*(j&3) + 128*(j>>2)}")
    e(f"s_movk_i32 s{S_256}, 256")
    e(f"s_mul_i32 s{S_M0[0]}, s{S_W}, {TBW}")
    e(f"s_add_u32 s{S_M0[0]}, s{S_M0[0]}, {L_TB}")
    e(f"s_add_u32 s{S_M0[1]}, s{S_M0[0]}, 4096")
    e(f"s_mov_b32 s{S_WN}, 32")
    e(f"s_mov_b32 s{S_RB}, 0")
    e(f"s_mov_b32 s{S_SAFE}, 0")
    e(f"s_mov_b32 s{S_SPIN}, 0x40000")
    e(f"v_cmp_le_u32 vcc, {SPLIT}, v{V_LANE}")
    e(f"v_mul_u32_u24 v56, {LS}, v{V_LANE}")
    e(f"v_mul_u32_u24 v57, {QS}, v{V_LANE}")
    e(f"v_add_u32 v{V_L0}, {L_LIST}, v56")
    e(f"v_lshl_or_b32 v{V_GV}, v57, 16, v56")
    e("v_cndmask_b32 v56, 0, 1, vcc")
    e(f"v_mul_u32_u24 v57, {SPLIT}, v56")
    e(f"v_sub_u32 v{V_COL}, v{V_LANE}, v57")
    e(f"v_mul_u32_u24 v57, {GTH*16}, v56")
    e(f"v_add_u32 v{V_GB}, {L_GT}, v57")
    e(f"v_mul_u32_u24 v57, {HT*SELS}, v56")
    e(f"v_lshl_add_u32 v57, v{V_COL}, 2, v57")
    e(f"v_add_u32 v{V_SB}, {L_SEL}, v57")
    if PFL == 1:
        e(f"s_load_dwordx2 s[92:93], {sr(S_WS,2)}, s91 glc")
    if not CL: loop_consts()
    if LATEI:
        e("s_waitcnt lgkmcnt(0)")
        e("s_barrier")
    static_writes(56, "A")
    e("v_lshl_add_u32 v56, v37, 3, v48")
    e(f"s_lshl_b32 s5, s{S_W}, 5")
    e(f"v_add_u32 v{V_CHK}, s5, v56")
    e(f"v_and_b32 v{V_J0}, 15, v{V_LANE}")
    e(f"v_mul_u32_u24 v33, {DS}, v{V_CHK}")
    desc_soff()
    e(f"buffer_load_dwordx2 v[34:35], v33, {sr(S_WS)}, s5 offen sc1")
    nyoung = 1
    if PFL == 1:
        e("s_and_b32 s6, s90, 7")
        e("s_lshl_b32 s6, s6, 5")
        e("s_lshr_b32 s7, s90, 3")
        e("s_add_u32 s6, s6, s7")
        e(f"s_mul_i32 s6, s6, {NPB*256}")
        e(f"s_add_u32 s6, s6, {PSH}")
        e(f"v_min_u32 v56, {NPB-1}, v{V_LANE}")
        e("v_lshlrev_b32 v56, 8, v56")
        e("s_waitcnt lgkmcnt(0)")
        e(f"s_cmp_eq_u64 s[92:93], s[{S_TAGA}:{S_TAGB}]")
        e("s_cselect_b32 s6, s6, 0x7f000000")
        e("v_add_u32 v56, s6, v56")
        e(f"buffer_load_dword v57, v56, {sr(S_P)}, 0 offen")
        e(f"buffer_load_dword v58, v56, {sr(S_P)}, 0 offen offset:128")
        nyoung = 3
    e("s_lshl_b32 s6, s2, 3")
    e(f"s_add_u32 s6, s6, {WS_FLAG}")
    stamp(18)
    e(f"s_waitcnt vmcnt({nyoung}) lgkmcnt(0)")
    e("s_barrier")
    stamp(7)
    e(f"s_cmp_eq_u32 s{S_W}, 0")
    e("s_cbranch_scc0 P1_NF")
    e("s_mov_b64 exec, 0xff")
    e(f"buffer_store_dwordx2 v[252:253], v254, {sr(S_WS)}, s6 offen sc1")
    e("s_mov_b64 exec, -1")
    lab("P1_NF")
    if OWN:
        e(f"s_mul_i32 s6, s{S_B}, {NPB*256}")
        e(f"s_mul_i32 s7, s{S_W}, 13")
        e(f"v_add_u32 v56, s7, v{V_LANE}")
        e(f"v_min_u32 v56, {2*NPB-1}, v56")
        e("v_lshl_add_u32 v56, v56, 7, s6")
        e("s_bfm_b64 exec, 13, 0")
        e(f"buffer_load_dword v57, v56, {sr(S_P)}, s{S_SOFF} offen")
        e("s_mov_b64 exec, -1")
    for q in range(4): e(f"ds_read_b128 {vr(144+4*q,4)}, v49 offset:{L_B1+32*q}")
    for ks in range(4):
        e(f"ds_read_b64_tr_b16 {vr(80+4*ks,2)}, v50 offset:{L_W1S+16384+4096*ks}")
        e(f"ds_read_b64_tr_b16 {vr(82+4*ks,2)}, v50 offset:{L_W1S+16384+4096*ks+1024}")
    for ks in range(4):
        e(f"s_waitcnt lgkmcnt({6-2*ks})")
        e(mf16(144, 80 + 4*ks, 160 + 4*ks, vr(144, 16)))
    e("s_nop 7")
    e("s_nop 3")
    for i in range(8): e(f"v_pk_mul_f32 {vr(144+2*i,2)}, {vr(144+2*i,2)}, s[80:81]")
    for i in range(8): e(f"v_cvt_pk_bf16_f32 v{64+i}, v{144+2*i}, v{145+2*i}")
    e("s_mov_b64 exec, s[88:89]")
    for q in range(4): e(f"ds_write_b64 v54, {vr(64+2*q,2)} offset:{16*q}")
    e("s_mov_b64 exec, -1")
    stamp(19)
    if CL: loop_consts()

    lab("POLL1")
    e(f"v_mul_u32_u24 v32, {GCS}, v{V_CHK}")
    e(f"v_add_u32 v37, 16, v{V_J0}")
    e("v_bfrev_b32 v43, -2")
    e(f"v_cmp_gt_u32 vcc, s{S_WN}, v{V_J0}")
    e(f"v_add_u32 v38, s{S_RB}, v{V_J0}")
    e(f"v_add_u32 v39, s{S_RB}, v37")
    e("v_lshlrev_b32 v36, 3, v38")
    e("v_cndmask_b32 v38, v43, v38, vcc")
    e(f"v_cmp_gt_u32 vcc, s{S_WN}, v37")
    e(f"s_mov_b32 s7, {WS_ENT}")
    e("v_mov_b32 v55, 4")
    e("v_cndmask_b32 v39, v43, v39, vcc")
    e(f"s_waitcnt vmcnt({OWN})")
    lab("POLL")
    e(f"v_xor_b32 v34, s{S_TAGA}, v34")
    e(f"v_cmp_ne_u32 s[76:77], s{S_TAGB}, v35")
    e("v_cmp_le_u32 vcc, 0x1000000, v34")
    e("s_or_b64 vcc, vcc, s[76:77]")
    e("s_cbranch_scc0 POLLED")
    e(f"s_sub_u32 s{S_SPIN}, s{S_SPIN}, 1")
    e("s_cbranch_scc1 K_END")
    e(f"s_sleep {SLP}")
    e(f"buffer_load_dwordx2 v[34:35], v33, {sr(S_WS)}, s5 offen sc1")
    e("s_waitcnt vmcnt(0)")
    e("s_branch POLL")
    lab("POLLED")
    stamp(8)
    e("v_and_b32 v35, 0xfff, v34")
    e("v_lshrrev_b32 v34, 12, v34")
    e("v_lshl_add_u32 v35, v35, 3, v32")
    e(f"s_add_u32 s5, s{S_RB}, s{S_WN}")
    e("v_cmp_lt_u32 s[74:75], s5, v34")
    DP = "row_mask:0xf bank_mask:0xf"
    for i in range(8):
        e(f"v_mov_b32_dpp v43, v34 row_newbcast:{i} {DP}")
        e(f"v_add_u32_dpp v{44+i}, v35, v36 row_newbcast:{i} {DP}")
        e(f"v_cmp_lt_u32 {sr(S_MASK+2*i,2)}, v38, v43")
        e(f"v_cmp_lt_u32 {sr(S_MASK+16+2*i,2)}, v39, v43")
    e(f"v_lshlrev_b32 v54, 2, v{V_LANE}")
    e("v_mov_b32 v53, 0")
    e("s_mov_b64 exec, s[74:75]")
    e(f"ds_write_b32 v53, v55 offset:{L_FLAG}")
    e("s_mov_b64 exec, -1")
    if not W5: wave_reset()
    flag_load(True)
    lab("FPOLL")
    e("s_waitcnt vmcnt(0)")
    e(f"v_cmp_ne_u32 s[76:77], s{S_TAGB}, v61")
    e(f"v_cmp_ne_u32 vcc, s{S_TAGA}, v60")
    e("s_or_b64 vcc, vcc, s[76:77]")
    e("s_cbranch_scc0 FPOLLED")
    e(f"s_sub_u32 s{S_SPIN}, s{S_SPIN}, 1")
    e("s_cbranch_scc1 K_END")
    e(f"s_sleep {SLP}")
    flag_load()
    e("s_branch FPOLL")
    lab("FPOLLED")
    stamp(17)
    for k in range(8, 16):
        e(f"s_mov_b64 exec, {sr(S_MASK+2*k,2)}")
        e(f"s_cbranch_execz R_L{k}")
        e(f"buffer_load_dwordx2 {vr(112+2*k,2)}, v{44+(k&7)}, {sr(S_WS)}, s7 offen offset:128 {ELF}")
        lab(f"R_L{k}")
    for k in range(8):
        e(f"s_or_b64 exec, {sr(S_MASK+2*k,2)}, 1")
        e(f"buffer_load_dwordx2 {vr(112+2*k,2)}, v{44+k}, {sr(S_WS)}, s7 offen {ELF}")
    e("s_mov_b64 exec, -1")
    if W5: wave_reset()
    e(f"s_cmp_eq_u32 s{S_EARLY}, 2")
    e("s_cbranch_scc0 R_NH")
    for i in range(32): e(f"v_pk_mul_f32 {vr(H+2*i,2)}, {vr(NN,2)}, {vr(NN,2)}")
    lab("R_NH")
    e("s_waitcnt vmcnt(8)")
    for k in list(range(8, 16)) + list(range(8)):
        e(f"s_mov_b64 exec, {sr(S_MASK+2*k,2)}")
        if k >= 8: e(f"s_cbranch_execz R_A{k}")
        else: e(f"s_waitcnt vmcnt({7-k})")
        e(f"ds_add_rtn_u32 v{T+k}, v{113+2*k}, v55 offset:{L_CNT2}")
        if k >= 8: lab(f"R_A{k}")
    def list_writes(tag):
        for k in list(range(8, 16)) + list(range(8)):
            e(f"s_mov_b64 exec, {sr(S_MASK+2*k,2)}")
            if k >= 8: e(f"s_cbranch_execz {tag}{k}")
            e(f"ds_write_b32 v{T+k}, v{112+2*k}")
            if k >= 8: lab(f"{tag}{k}")
        e("s_mov_b64 exec, -1")
    e("s_mov_b64 exec, -1")
    e(f"s_cmp_eq_u32 s{S_EARLY}, 2")
    e("s_cbranch_scc0 R_NW2")
    e(f"s_add_u32 m0, s85, {L_W2}")
    e(f"s_mov_b32 s{S_EARLY}, 0")
    for k in range(2): e(f"buffer_load_dwordx4 v31, {sr(S_W2)}, s85 offen offset:{1024*k} lds")
    if POST:
        e("s_lshr_b32 s6, s2, 3")
        e("s_and_b32 s7, s6, 7")
        e("s_lshl_b32 s7, s7, 5")
        e("s_lshr_b32 s6, s6, 3")
        e(f"s_lshl2_add_u32 s6, s{S_W}, s6")
        e("s_add_u32 s6, s6, s7")
        e(f"s_mul_i32 s6, s6, {NPB*256}")
        e(f"v_lshl_add_u32 v56, v{V_LANE}, 7, s6")
        e(f"s_bfm_b64 exec, {POST}, 0")
        e(f"buffer_load_dword v57, v56, {sr(S_P)}, s{S_SOFF} offen")
        e("s_mov_b64 exec, -1")
    lab("R_NW2")
    e("s_waitcnt lgkmcnt(0)")
    stamp(20)
    list_writes("R_C")
    e("s_waitcnt lgkmcnt(0)")
    e("s_barrier")
    stamp(9)
    def mid():
        e(f"ds_read_b32 v32, v54 offset:{L_CNT2}")
        e(f"ds_read_b32 v33, v53 offset:{L_FLAG}")
        e(f"ds_read_b32 v34, v54 offset:{L_DEG}")
        return 3
    first_tile(mid)
    e("s_waitcnt lgkmcnt(0)")
    e(f"v_sub_u32 v32, v32, v{V_L0}")
    e("v_max_u32 v35, 4, v32")
    e("v_subrev_u32 v35, 4, v35")
    e("v_lshrrev_b32 v35, 5, v35")
    e("v_mov_b32 v36, v35")
    e(f"v_cmp_lt_u32 s[76:77], {LCAP//8-1}, v35")
    scan64(36)
    e(f"v_readfirstlane_b32 s{S_MORE}, v33")
    e(f"v_readlane_b32 s6, v36, {SPLIT-1}")
    e("v_readlane_b32 s7, v36, 63")
    e(f"v_cmp_le_u32 vcc, {SPLIT}, v{V_LANE}")
    e("v_sub_u32 v36, v36, v35")
    e("v_lshrrev_b32 v32, 2, v32")
    e("s_sub_u32 s7, s7, s6")
    e(f"s_add_u32 s82, s6, {SPLIT+3}")
    e(f"s_add_u32 s83, s7, {NPB-SPLIT+3}")
    e("s_max_u32 s5, s82, s83")
    e(f"s_cmp_ge_u32 s5, {4*HT+4}")
    e("s_cbranch_scc0 R_FITS")
    e(f"s_mov_b32 s{S_WN}, {WSLOW}")
    e("s_branch NEXT_ROUND")
    lab("R_FITS")
    e(f"s_sub_u32 s6, {NPB-SPLIT-1}, s6")
    e(f"v_add_u32 v37, {SPLIT-1}, v36")
    e("v_add_u32 v38, s6, v36")
    e("v_cndmask_b32 v37, v37, v38, vcc")
    e(f"v_mov_b32 v39, v{V_GV}")
    e(f"s_mov_b32 s{S_EARLY}, 1")
    e("s_cmp_eq_u64 s[76:77], 0")
    e("s_cbranch_scc0 R_COMPACT")
    lab("R_TABLE")
    e("v_mov_b32 v41, 0x3f80")
    e(f"s_add_u32 s6, s{S_W}, 1")
    lab("R_GT")
    e("v_cmp_le_u32 vcc, s6, v35")
    e("s_and_b64 exec, exec, vcc")
    e("s_cbranch_execz R_GTE")
    e("v_add_u32 v44, s6, v37")
    e("s_lshl_b32 s7, s6, 5")
    e(f"v_lshl_add_u32 v45, v44, 2, v{V_GB}")
    e("v_add_u32 v47, s7, v39")
    e("ds_write_b32 v45, v47")
    e("v_lshrrev_b32 v46, 1, v44")
    e(f"v_mul_u32_u24 v46, {SELS//2}, v46")
    e("v_and_b32 v44, 1, v44")
    e("v_lshl_add_u32 v46, v44, 1, v46")
    e(f"v_add_u32 v46, v46, v{V_SB}")
    e("ds_write_b16 v46, v41")
    e("s_add_u32 s6, s6, 8")
    e("s_branch R_GT")
    lab("R_GTE")
    e("s_mov_b64 exec, -1")
    e("s_waitcnt vmcnt(4) lgkmcnt(0)")
    e("s_barrier")
    stamp(10)
    e(f"s_cmp_eq_u32 s{S_W}, 0")
    e("s_cbranch_scc0 R_ND")
    e("v_add_u32 v34, v34, v32")
    e(f"ds_write_b32 v54, v34 offset:{L_DEG}")
    lab("R_ND")
    e(f"s_sub_u32 s5, 7, s{S_W}")
    e(f"s_cmp_lt_u32 s{S_W}, 4")
    e(f"s_cselect_b32 s5, s{S_W}, s5")
    e("s_cselect_b32 s6, s82, s83")
    e("s_lshr_b32 s6, s6, 2")
    e("s_sub_u32 s6, s6, s5")
    e("s_add_u32 s6, s6, 3")
    e(f"s_lshr_b32 s{S_NT}, s6, 2")
    e(f"s_or_b32 s6, s{S_MORE}, s{S_RB}")
    e(f"s_or_b32 s{S_SAFE}, s{S_SAFE}, s6")
    e(f"s_cmp_eq_u32 s{S_EARLY}, 0")
    e("s_cbranch_scc1 WAVE_REDO")
    lab("WAVE_GO")
    e(f"ds_read_u16 v{V_LI}, v{V_GIA} offset:64")
    e(f"s_mov_b32 m0, s{S_M0[1]}")
    e(f"s_sub_u32 s{S_REM}, s{S_NT}, 1")
    e("s_waitcnt lgkmcnt(0)")
    e(f"v_add_u32 v{V_LI}, v{V_LI}, v{V_LIO}")
    e(f"ds_read_b128 {vr(IDR,4)}, v{V_LI}")
    e(PERM)
    e(AXB)
    if PEEL:
        e("s_waitcnt vmcnt(0)")
        for s in c_reads(0)[:16] + [tr_read(0)]: e(s)
        for s in dma(1): e(s)
        for s in memphase(0, 0)[2+16:-4]:
            if s != tr_read(0): e(s)
        e(mfext(0))
        for s in mads(): e(s)
        e("s_nop 5")
        stamp(11); stamp(28, True)
        e(f"s_cmp_lg_u32 s{S_SAFE}, 0")
        e("s_cbranch_scc1 PEELS")
        for safe in (False, True):
            out.append(".p2align 3")
            if safe: lab("PEELS")
            emit(block(0, 0, safe))
            for s in dma(0): e(s)
            e(f"s_branch ENTER{'S' if safe else 'F'}")
    else:
        for s in dma(1): e(s)
        e("s_waitcnt lgkmcnt(0)")
        for s in mads(): e(s)
        for s in memphase(0, 0): e(s)
        e(mfext(0))
        e("s_nop 7")
        e("s_nop 1")
        stamp(11); stamp(28, True)
        e(f"s_cmp_lg_u32 s{S_SAFE}, 0")
        e("s_cbranch_scc1 ENTERS")
        e("s_branch ENTERF")

    lab("R_COMPACT")
    e("s_barrier")
    fill_list(40)
    e(f"v_add_lshl_u32 v38, v36, v{V_LANE}, 5")
    e(f"v_add_u32 v38, {L_LIST}, v38")
    e(f"v_sub_u32 v38, v38, v{V_L0}")
    e("v_add_u32 v39, v39, v38")
    for k in range(16): e(f"ds_bpermute_b32 v{113+2*k}, v{113+2*k}, v38")
    e(f"v_lshl_add_u32 v45, v{V_COL}, 2, v{V_GB}")
    e(f"s_bfm_b64 exec, {NPB}, 0")
    e("ds_write_b32 v45, v39")
    e("s_mov_b64 exec, -1")
    e("s_waitcnt lgkmcnt(0)")
    e("s_barrier")
    for k in range(16): e(f"v_add_u32 v{T+k}, v{T+k}, v{113+2*k}")
    list_writes("R_D")
    e(f"s_mov_b32 s{S_EARLY}, 0")
    e("s_branch R_TABLE")
    lab("WAVE_REDO")
    e("s_waitcnt vmcnt(0)")
    wave_reset()
    first_tile()
    e("s_branch WAVE_GO")

    mainloop(False)
    mainloop(True)

    lab("NEXTR")
    e(f"s_add_u32 s{S_RB}, s{S_RB}, s{S_WN}")
    lab("NEXT_ROUND")
    e("s_setprio 0")
    e("s_waitcnt vmcnt(0) lgkmcnt(0)")
    e("s_barrier")
    init_tables(32)
    e("s_waitcnt lgkmcnt(0)")
    e("s_barrier")
    static_writes(32, "B")
    e(f"v_mul_u32_u24 v33, {DS}, v{V_CHK}")
    desc_soff()
    e(f"buffer_load_dwordx2 v[34:35], v33, {sr(S_WS)}, s5 offen sc1")
    e("s_waitcnt vmcnt(0) lgkmcnt(0)")
    e("s_barrier")
    e("s_branch POLL1")

    out.append(".p2align 3")
    lab("DRAIN")
    e("s_waitcnt lgkmcnt(0)")
    e(f"s_cmp_lg_u32 s{S_MORE}, 0")
    for ct in range(4): e(mfsel(ct))
    stamp(12); stamp(29, True)
    e("s_cbranch_scc1 NEXTR")
    e(f"v_lshrrev_b32 v96, 5, v{V_LANE}")
    e(f"v_and_b32 v97, 31, v{V_LANE}")
    e("v_mul_u32_u24 v97, 272, v97")
    e("v_lshl_add_u32 v97, v96, 4, v97")
    e(f"v_add_u32 v97, s{S_M0[0]}, v97")
    e(f"s_mov_b32 s6, {hex(f2u(2.0**120))}")
    e(f"v_cmp_nge_f32 s[76:77], s6, v{V_DMAX}")
    e(f"v_lshrrev_b32 v98, 3, v{V_TID}")
    e(f"v_and_b32 v99, 7, v{V_TID}")
    O = D
    cv = lambda ct: [f"v_cvt_pk_bf16_f32 v{64+8*ct+i}, v{H+16*ct+2*i}, v{H+16*ct+2*i+1}" for i in range(8)]
    for s in cv(0): e(s)
    rest = [f"v_cmp_le_u32 vcc, {SPLIT}, v98", "v_mul_u32_u24 v100, 272, v98", "v_lshl_add_u32 v100, v99, 5, v100",
            f"v_add_u32 v101, {4*TBW - SPLIT*272}, v100", "v_cndmask_b32 v100, v100, v101, vcc",
            "v_lshlrev_b32 v101, 2, v98", "v_lshlrev_b32 v102, 5, v99", "v_lshlrev_b32 v103, 15, v98"]
    for ct in range(4):
        nxt = cv(ct + 1) if ct < 3 else rest
        for s in range(2):
            for mt in range(2):
                ks = 2 * ct + s
                for x in nxt[4*s + 2*mt: 4*s + 2*mt + 2]: e(x)
                e(mf16(O[mt], w2f(ks, mt), 64 + 4*ks, "0" if ks == 0 else vr(O[mt], 16)))
    e("v_lshl_add_u32 v103, v99, 4, v103")
    e(f"s_lshl_b32 s5, s{S_B}, 7")
    e("v_add_u32 v103, s5, v103")
    e("s_movk_i32 s7, 0x207")
    e("s_waitcnt vmcnt(0)")
    e("s_nop 5")
    e(f"v_cmp_class_f32 vcc, v{O[0]}, s7")
    e("s_or_b64 s[76:77], s[76:77], vcc")
    e("s_cbranch_scc0 EPI_OK")
    e(f"s_cmp_lg_u32 s{S_SAFE}, 0")
    e("s_cbranch_scc1 EPI_OK")
    e(f"s_mov_b32 s{S_SAFE}, 1")
    for i in range(64): e(f"v_mov_b32 v{H+i}, 0")
    e("s_branch WAVE_REDO")
    lab("EPI_OK")
    for mt in range(2):
        for q in range(4):
            e(f"ds_write_b128 v97, {vr(O[mt]+4*q,4)} offset:{128*mt+32*q}")
    e(f"ds_read_b128 v[32:35], v102 offset:{L_B2}")
    e(f"ds_read_b128 v[36:39], v102 offset:{L_B2+16}")
    e(f"v_cmp_gt_u32 vcc, {NPB}, v98")
    e(f"s_or_b32 s6, s2, s{S_W}")
    e("s_cbranch_scc1 EPI_NE")
    e(f"v_mov_b32 v42, s{S_TAGB}")
    e(f"v_mov_b32 v43, s{S_TAGA}")
    e("v_mov_b32 v44, 0")
    e("s_mov_b64 exec, 1")
    e(f"buffer_store_dwordx2 v[42:43], v44, {sr(S_WS)}, 0 offen offset:{WS_EPOCH}")
    e("s_mov_b64 exec, -1")
    lab("EPI_NE")
    e("s_waitcnt lgkmcnt(0)")
    e("s_barrier")
    stamp(13)
    e("s_and_b64 exec, exec, vcc")
    e("s_cbranch_execz K_FIN")
    e(f"ds_read_b32 v40, v101 offset:{L_DEG}")
    for s in range(4):
        e(f"ds_read_b128 {vr(64+8*s,4)}, v100 offset:{L_TB+s*TBW}")
        e(f"ds_read_b128 {vr(68+8*s,4)}, v100 offset:{L_TB+s*TBW+16}")
    e(f"s_mov_b32 s6, {hex(f2u(-LN2))}")
    e("s_mov_b32 s7, s6")
    e("s_waitcnt lgkmcnt(8)")
    e("v_cvt_f32_u32 v40, v40")
    for i in range(4): e(f"v_pk_mul_f32 {vr(32+2*i,2)}, {vr(32+2*i,2)}, v[40:41] op_sel_hi:[1,0]")
    for s in range(4):
        e(f"s_waitcnt lgkmcnt({6-2*s})")
        for i in range(4): e(f"v_pk_fma_f32 {vr(32+2*i,2)}, {vr(64+8*s+2*i,2)}, s[6:7], {vr(32+2*i,2)}")
    for i in range(4): e(f"v_cvt_pk_bf16_f32 v{44+i}, v{32+2*i}, v{33+2*i}")
    e(f"buffer_store_dwordx4 v[44:47], v103, {sr(S_OUT)}, 0 offen")
    lab("K_FIN")
    if AMP[0] >= 0:
        if AMP[1] == 14:
            e("s_waitcnt vmcnt(0)")
            stamp(14)
        e("s_sub_u32 s100, s100, s98")
        if AMP[2] >= 0:
            e(f"s_cmp_eq_u32 s2, {AMP[2]}")
            e("s_cselect_b32 s100, s100, 0")
        e("s_add_u32 s100, s100, 6000")
        lab("AMPL")
        e("s_memrealtime s[98:99]")
        e("s_waitcnt lgkmcnt(0)")
        e("s_sub_u32 s98, s98, s96")
        e("s_cmp_lt_u32 s98, s100")
        e("s_cbranch_scc1 AMPL")
    if SPIN >= 0:
        lab("SPINL")
        e("s_memrealtime s[98:99]")
        e("s_waitcnt lgkmcnt(0)")
        e("s_sub_u32 s98, s98, s96")
        e("s_cmp_lt_u32 s98, 6000")
        e("s_cbranch_scc1 SPINL")
    if DIAG:
        e("s_mov_b64 exec, -1")
        e("s_waitcnt vmcnt(0)")
        stamp(14); stamp(31, True)
        e(f"v_writelane_b32 v255, s{S_NT}, 27")
        e("s_lshl_b32 s5, s2, 11")
        e(f"s_add_u32 s5, s5, {WS_STAMP}")
        e(f"v_lshlrev_b32 v1, 2, v{V_TID}")
        e(f"buffer_store_dword v255, v1, {sr(S_WS)}, s5 offen")
    lab("K_END")
    e("s_endpgm")
    if CPF: out.append(".set CODE_REST, K_END - CPF_PC")

hdr = open("standalone__edge_featured_mpnn_mpnn__graph.s.ref").read().split("; Override")[0]
out.append(hdr.rstrip())
out.append(f"; @launch grid=(256,1,1) block=(512,1,1) lds={L_END}")
out.append('.amdgcn_target "amdgcn-amd-amdhsa--gfx950"')
out.append(".text")
out.append(f".globl {KN}")
out.append(f".p2align {AL}")
out.append(f".type {KN},@function")
kernel()
out.append(f""".section .rodata,"a"
.p2align 6
.amdhsa_kernel {KN}
  .amdhsa_next_free_vgpr 256
  .amdhsa_next_free_sgpr 102
  .amdhsa_accum_offset 256
  .amdhsa_group_segment_fixed_size 0
  .amdhsa_kernarg_size 88
  .amdhsa_user_sgpr_count 2
  .amdhsa_user_sgpr_kernarg_segment_ptr 1
  .amdhsa_system_sgpr_workgroup_id_x 1
.end_amdhsa_kernel""")
dst = sys.argv[1] if len(sys.argv) > 1 else "standalone__edge_featured_mpnn_mpnn__graph.s"
open(dst, "w").write("\n".join(out) + "\n")
print("written", dst, "LDS", L_END)
```

```python
import struct, sys, os
import numpy as np
from align import align, isize

N, E = 12500, 800000
NPB, SPLIT = 49, 25
CH, CHS, GCS, DS = 3128, 25088, 25216, 2176
NQ, NQL = CH // 4, (E - 255 * CH) // 4
LOG2E = 1.4426950408889634
LN2 = 0.6931471805599453
KN = "standalone__edge_featured_mpnn_mpnn__graph_kernel"
DIAG = int(os.environ.get("DIAG", "0"))
PREF = int(os.environ.get("PREF", "0"))
X_NOP = int(os.environ.get("X_NOP", "0"))
STF = os.environ.get("STF", "sc1")
LDF = os.environ.get("LDF", "")
TRANS = int(os.environ.get("TRANS", "0"))
ELF = os.environ.get("ELF", "")
SLP = int(os.environ.get("SLP", "1"))
ORD = int(os.environ.get("ORD", "2"))
PFL = 0
PSF = os.environ.get("PSF", "sc1")
CL = int(os.environ.get("CL", "1"))
W5 = int(os.environ.get("W5", "0"))
OWN = int(os.environ.get("OWN", "1"))
POST = int(os.environ.get("POST", "16"))
LATEI = int(os.environ.get("LATEI", "1"))
AL = int(os.environ.get("AL", "12"))
CPF = int(os.environ.get("CPF", "1"))
CPF0 = int(os.environ.get("CPF0", "0"))
PEEL = int(os.environ.get("PEEL", "1"))
STOUCH = int(os.environ.get("STOUCH", "0"))
TOUCH = int(os.environ.get("TOUCH", "0"))

def f2u(x): return struct.unpack("<I", struct.pack("<f", x))[0]
def u2f(u): return struct.unpack("<f", struct.pack("<I", u))[0]

WS_EPOCH = 0
WSOFF = int(os.environ.get("WSOFF", "0")) << 20
WS_PT = WSOFF + 4096
WS_DESC = WS_PT + 12544 * 256
WS_FLAG = WS_DESC + 256 * DS
WS_PFLAG = WS_FLAG + 8 * DS
WS_ENT = WS_PFLAG + 8 * DS
WS_SIZE = WS_ENT + 256 * GCS
XT = os.environ.get("XT", "")
if XT: WS_SIZE += 256 * GCS
WS_STAMP = 12 << 20
if DIAG: WS_SIZE = 16 << 20

L_CNT1, L_BASE1 = 0, 1024
L_CNT2, L_FLAG, L_DEG, L_B2 = 2048, 2304, 2368, 2816
L_B1 = 0
L_EXT = 3072
L_TB = 4096
TBW = 8704
L_STG, L_W1S, L_XS = L_TB, L_TB + CHS, L_TB + CHS + 32768
PS = 272
assert L_XS + 8704 <= L_TB + 8 * TBW and L_W1S % 256 == 0
HT, GTH = 60, 72
L_SEL = L_TB + 8 * TBW
SELS, SELSZ = 200, 24576
assert 2 * HT * SELS + 56 <= SELSZ
L_GT = L_SEL + SELSZ
L_QT = L_GT + 2 * GTH * 16
QS = 328
L_PS = L_QT
assert L_PS % 16 == 0
L_W2 = (L_QT + NPB * QS + 255) // 256 * 256
L_LIST = L_W2 + 16384
LS, LCAP = 528, 128
LISTSZ = (NPB + 1) * LS
L_END = L_LIST + LISTSZ
assert L_END <= 163840, L_END
PADENT = 0x00007000
PSH = 3072
WSLOW = 6

out = []
def e(s): out.append("    " + s)
def lab(s): out.append(s + ":")
def c(s): out.append("    ; " + s)
def vr(a, n): return f"v[{a}:{a+n-1}]"
def sr(a, n=4): return f"s[{a}:{a+n-1}]"

SPIN = int(os.environ.get("SPIN", "-1"))
AMP = [int(x) for x in os.environ.get("AMP", "-1,-1,-1").split(",")]
def stamp(i, real=False):
    if AMP[0] >= 0:
        if i == 0: e("s_memrealtime s[96:97]")
        if i == AMP[0]:
            if i: e("s_waitcnt lgkmcnt(0)")
            e("s_memtime s[98:99]")
            if i: e("s_waitcnt lgkmcnt(0)")
        if i == AMP[1]:
            e("s_waitcnt lgkmcnt(0)")
            e("s_memtime s[100:101]")
            e("s_waitcnt lgkmcnt(0)")
    if SPIN == i:
        e("s_waitcnt lgkmcnt(0)")
        e("s_memrealtime s[96:97]")
        e("s_waitcnt lgkmcnt(0)")
    if not DIAG: return
    if DIAG in (2, 4) and i not in (0, 30, 28, 29, 31, 11, 12, 14, 9): return
    if DIAG == 3 and i in (0, 30, 15, 16): return
    e("s_waitcnt lgkmcnt(0)")
    e(f"{'s_memrealtime' if real else 's_memtime'} s[98:99]")
    e("s_waitcnt lgkmcnt(0)")
    e(f"v_writelane_b32 v255, s98, {i}")

lazy = []
def lstamp(i):
    if DIAG != 3: return
    r = 52 + 2 * len(lazy)
    e(f"s_memtime s[{r}:{r+1}]")
    lazy.append((i, r))
def lflush():
    for i, r in lazy: e(f"v_writelane_b32 v255, s{r}, {i}")

def scan64(v):
    for sh in (1, 2, 4, 8):
        e("s_nop 1")
        e(f"v_add_u32_dpp v{v}, v{v}, v{v} row_shr:{sh} row_mask:0xf bank_mask:0xf bound_ctrl:1")
    e("s_nop 1")
    e(f"v_add_u32_dpp v{v}, v{v}, v{v} row_bcast:15 row_mask:0xa bank_mask:0xf")
    e("s_nop 1")
    e(f"v_add_u32_dpp v{v}, v{v}, v{v} row_bcast:31 row_mask:0xc bank_mask:0xf")

H = 176
C = (144, 160)
D = (112, 128)
T = 96
P = 80
SL = 76
BX = (72, 74)
IDX, IDR = 64, 68
NN, DD, RR, AX, CX, V_M = 16, 18, 20, 22, 24, 26
V_CA, V_DMAC, V_LI, V_LM, V_GQA, V_SELA, V_PSEL, V_QMUL, V_QC, V_GQ, V_QA, V_DMAX, V_TID, V_LANE, V_GIA = range(1, 16)
V_GMA, V_LIO, V_LMO = 28, 29, 30
V_SAVE = 240
V_CHK, V_J0, V_W2A = 244, 245, 246
S_X, S_E, S_SRC, S_DST, S_W1, S_B1, S_W2, S_B2, S_OUT, S_WS, S_P = 8, 12, 16, 20, 24, 28, 92, 36, 40, 44, 48
S_MASK = 8
S_SOFF = 52
S_256, S_REM, S_M0, S_WN, S_RB, S_MORE, S_SAFE, S_NT, S_EARLY, S_TAGA, S_TAGB, S_SPIN = 60, 61, (62, 63), 64, 65, 66, 67, 68, 69, 72, 73, 70
S_B, S_W = 3, 4

def mf16(d, a, b, cc): return f"v_mfma_f32_32x32x16_bf16 {vr(d,16)}, {vr(a,4)}, {vr(b,4)}, {cc}"
def mfext(ct): return f"v_mfma_f32_32x32x8_bf16 {vr(D[ct&1],16)}, {vr(AX,2)}, {vr(BX[ct&1],2)}, {vr(C[ct&1],16)}"
def mfsel(ct): return mf16(H + 16 * ct, P + 4 * ct, SL, vr(H + 16 * ct, 16))
def dma(half):
    return [f"buffer_load_dwordx4 v{IDX+j}, {sr(S_P)}, s{S_SOFF+4*half+j} offen offset:{1024*j} lds" for j in range(4)]
def mads(src=IDR): return [f"v_mad_i32_i16 v{IDX+j}, v{src+j}, s{S_256}, v{V_DMAC}" for j in range(4)]
def c_reads(half):
    L = []
    for ctl in range(2):
        for r in range(16):
            mm = r >> 1
            L.append(f"ds_read_u16_d16_hi v{C[ctl]+r}, v{V_CA} offset:{half*4096 + (mm&3)*1024 + (2*(r&1) + (mm>>2))*128 + ctl*64}")
    return L
def tr_read(ct): return f"ds_read_b64_tr_b16 {vr(BX[ct&1],2)}, v{V_QA} offset:{64*ct}"
AXB = f"v_pk_mul_f32 {vr(AX,2)}, {vr(CX,2)}, {vr(V_M,2)} op_sel_hi:[1,0]"
QAB = f"v_mad_u32_u24 v{V_QA}, v{V_GQ}, v{V_QMUL}, v{V_QC}"
PERM = f"v_perm_b32 v{V_M}, v{V_M}, v{V_M}, v{V_PSEL}"

def block(tau, ct, safe, gate=False, last=False):
    cur = D[ct & 1]
    pc, pt = (ct - 1) & 3, (tau if ct > 0 else (tau - 1) & 3)
    tr = [f"v_exp_f32 v{T+i}, v{cur+i}" for i in range(16)] + [f"v_rcp_f32 v{RR}, v{DD}", f"v_rcp_f32 v{RR+1}, v{DD+1}"]
    mf = [] if last else [mfext((ct + 1) & 3)]
    if tau == 0: mf.append(mfsel(ct))
    fill = []
    if ct == 0: fill += [f"v_add_u32 v{V_LI}, v{V_LI}, v{V_LIO}", f"v_add_u32 v{V_LM}, v{V_LM}, v{V_LMO}"]
    if ct == 1: fill += mads() + [PERM]
    if ct == 2:
        fill += [QAB]
        if tau == 3:
            fill += [f"v_add_u32 v{V_GIA}, 256, v{V_GIA}", f"v_add_u32 v{V_GMA}, 256, v{V_GMA}",
                     f"v_add_u32 v{V_GQA}, 256, v{V_GQA}", f"v_add_u32 v{V_SELA}, {16*SELS}, v{V_SELA}"]
    fill.append(f"v_max3_f32 v{V_DMAX}, v{DD}, v{DD+1}, v{V_DMAX}")
    L = []
    k = 0
    if gate:
        L += [tr[0], "s_setprio 3"]; k = 1
    for m in mf:
        L.append(m); L += tr[k:k+4]; k += 4
    L += tr[k:] + fill
    L.append(f"v_pk_mul_f32 {vr(RR,2)}, {vr(NN,2)}, {vr(RR,2)}")
    cvt = f"v_cvt_pk_bf16_f32 v{P+4*pc+pt}, v{RR}, v{RR+1}"
    if not safe:
        L += [f"v_pk_add_f32 {vr(DD,2)}, {vr(T,2)}, 1.0 op_sel_hi:[1,0]", cvt]
        if ct == 2: L.append(AXB)
        for j in range(1, 8):
            n_in = vr(cur, 2) if j == 1 else vr(NN, 2)
            L += [f"v_pk_fma_f32 {vr(NN,2)}, {n_in}, {vr(T+2*j,2)}, {n_in}",
                  f"v_pk_fma_f32 {vr(NN,2)}, {vr(cur+2*j,2)}, {vr(DD,2)}, {vr(NN,2)}",
                  f"v_pk_fma_f32 {vr(DD,2)}, {vr(DD,2)}, {vr(T+2*j,2)}, {vr(DD,2)}"]
    else:
        L += [f"v_pk_add_f32 {vr(T+2*j,2)}, {vr(T+2*j,2)}, 1.0 op_sel_hi:[1,0]" for j in range(8)] + [cvt]
        if ct == 2: L.append(AXB)
        L += [f"v_rcp_f32 v{T+i}, v{T+i}" for i in range(16)]
        L.append(f"v_pk_mul_f32 {vr(NN,2)}, {vr(cur,2)}, {vr(T,2)}")
        L += [f"v_pk_fma_f32 {vr(NN,2)}, {vr(cur+2*j,2)}, {vr(T+2*j,2)}, {vr(NN,2)}" for j in range(1, 8)]
    return L

def memphase(tau, half):
    L = ["s_setprio 0", "s_waitcnt vmcnt(4)"]
    L += c_reads(half) + [tr_read(2 * half), tr_read(2 * half + 1)]
    if half == 0:
        L += [f"ds_read_u16 v{V_LI}, v{V_GIA} offset:{(tau+2)*64}",
              f"ds_read_u16 v{V_LM}, v{V_GMA} offset:{(tau+1)*64}"]
    if half == 1:
        L += [f"ds_read_b128 {vr(IDR,4)}, v{V_LI}",
              f"ds_read_b32 v{V_M}, v{V_LM}",
              f"ds_read_u16 v{V_GQ}, v{V_GQA} offset:{(tau+1)*64+2}"]
        if tau == 1: L.append(f"ds_read_b32 v{SL}, v{V_SELA}")
        if tau >= 1: L.append(f"ds_read_b32 v{SL+tau}, v{V_SELA} offset:{tau*4*SELS}")
    if DIAG == 4 and half == 1: L = ["s_memtime s[98:99]"] + L
    L += [f"s_mov_b32 m0, s{S_M0[half]}", "s_waitcnt lgkmcnt(0)"]
    L += dma(half)
    if DIAG == 4 and half == 1: L += [f"s_add_u32 m0, s{S_REM}, 32", "s_nop 0", "v_writelane_b32 v255, s98, m0"]
    return L

def w2f(ks, mt): return (32 if ks < 4 else 144) + 8 * (ks & 3) + 4 * mt
def w2_reads():
    return [f"ds_read_b64_tr_b16 {vr(w2f(ks,mt)+2*t,2)}, v{27 if mt else V_W2A} offset:{2048*ks+1024*t}"
            for ks in range(8) for mt in range(2) for t in range(2)]

def emit(L):
    L = align(L)
    assert sum(isize(x) for x in L) % 8 == 0
    for s in L: e(s)

def mainloop(safe):
    x = "S" if safe else "F"
    out.append(".p2align 6")
    lab(f"LOOP{x}")
    for tau in range(4):
        c(f"==== tile slot {tau}")
        emit(memphase(tau, 0))
        emit(block((tau - 1) & 3, 3, safe, gate=True))
        if tau == 0 and not PEEL: lab(f"ENTER{x}")
        emit(block(tau, 0, safe))
        if tau == 0 and PEEL: lab(f"ENTER{x}")
        emit(memphase(tau, 1))
        emit(block(tau, 1, safe, gate=True))
        emit(block(tau, 2, safe))
        e(f"s_sub_u32 s{S_REM}, s{S_REM}, 1")
        if tau < 3: e(f"s_cbranch_scc1 TAIL{x}{tau}")
        else: e(f"s_cbranch_scc0 LOOP{x}")
    for tau in (3, 0, 1, 2):
        lab(f"TAIL{x}{tau}")
        emit(["s_setprio 0", f"v_xor_b32 v27, 64, v{V_W2A}"] + w2_reads())
        emit(block(tau, 3, safe, gate=True, last=True))
        if tau == 0: e(f"ds_read_b32 v{SL}, v{V_SELA}")
        e(f"v_rcp_f32 v{RR}, v{DD}")
        e(f"v_rcp_f32 v{RR+1}, v{DD+1}")
        e(f"v_max3_f32 v{V_DMAX}, v{DD}, v{DD+1}, v{V_DMAX}")
        e(f"v_pk_mul_f32 {vr(RR,2)}, {vr(NN,2)}, {vr(RR,2)}")
        for t2 in range(tau + 1, 4): e(f"v_mov_b32_e64 v{SL+t2}, 0")
        e(f"v_cvt_pk_bf16_f32 v{P+12+tau}, v{RR}, v{RR+1}")
        e("s_nop 0")
        e("s_branch DRAIN")

def find_cx(target):
    m = np.float64(u2f(0x00FF0000))
    g = f2u(float(np.float32(np.float64(u2f(target)) / m)))
    for d in range(-3, 4):
        if f2u(float(np.float32(np.float64(u2f(g + d)) * m))) == target: return g + d
    raise SystemExit("no cx")

V_GV, V_GB, V_SB, V_L0, V_COL = 247, 248, 249, 250, 251

def fill_list(t):
    e(f"v_lshlrev_b32 v{t+8}, 4, v{V_TID}")
    e(f"v_add_u32 v{t+9}, {L_LIST}, v{t+8}")
    for i in range(4): e(f"v_mov_b32 v{t+i}, {hex(PADENT)}")
    for o in (0, 8192, 16384, LISTSZ - 8192): e(f"ds_write_b128 v{t+9}, {vr(t,4)} offset:{o}")

def init_tables(t):
    fill_list(t)
    for i in range(4): e(f"v_mov_b32 v{t+4+i}, 0")
    e(f"v_add_u32 v{t+8}, {L_SEL}, v{t+8}")
    for o in (0, 8192, 16384): e(f"ds_write_b128 v{t+8}, {vr(t+4,4)} offset:{o}")
    e(f"v_min_u32 v{t+8}, {GTH*4-1}, v{V_TID}")
    e(f"v_lshlrev_b32 v{t+8}, 3, v{t+8}")
    e(f"v_add_u32 v{t+8}, {L_GT}, v{t+8}")
    e(f"v_mov_b32 v{t+10}, {NPB*LS}")
    e(f"v_mov_b32 v{t+11}, {NPB*LS}")
    e(f"ds_write_b64 v{t+8}, {vr(t+10,2)}")

def static_writes(t, tag):
    e(f"s_cmp_eq_u32 s{S_W}, 1")
    e(f"s_cbranch_scc0 STW{tag}")
    e(f"v_lshlrev_b32 v{t}, 2, v{V_LANE}")
    e(f"v_mov_b32 v{t+1}, 0")
    e(f"ds_write_b32 v{t}, v{V_L0} offset:{L_CNT2}")
    e(f"ds_write_b32 v{t+1}, v{t+1} offset:{L_FLAG}")
    e(f"v_lshl_add_u32 v{t}, v{V_COL}, 2, v{V_GB}")
    e(f"v_lshrrev_b32 v{t+1}, 1, v{V_COL}")
    e(f"v_mul_u32_u24 v{t+1}, {SELS//2}, v{t+1}")
    e(f"v_and_b32 v{t+2}, 1, v{V_COL}")
    e(f"v_lshl_add_u32 v{t+1}, v{t+2}, 1, v{t+1}")
    e(f"v_add_u32 v{t+1}, v{t+1}, v{V_SB}")
    e(f"v_mov_b32 v{t+2}, 0x3f80")
    e(f"s_bfm_b64 exec, {NPB}, 0")
    e(f"ds_write_b32 v{t}, v{V_GV}")
    e(f"ds_write_b16 v{t+1}, v{t+2}")
    e("s_mov_b64 exec, -1")
    lab(f"STW{tag}")

def desc_soff():
    e(f"s_lshr_b32 s5, s{S_B}, 2")
    e(f"s_and_b32 s7, s{S_B}, 1")
    e("s_lshl1_add_u32 s5, s5, s7")
    e(f"s_and_b32 s7, s{S_B}, 2")
    e("s_lshl_b32 s7, s7, 6")
    e("s_add_u32 s5, s5, s7")
    e(f"s_lshl3_add_u32 s5, s5, {WS_DESC}")

def flag_load(first=False):
    if first:
        e(f"v_lshlrev_b32 v62, 3, v{V_CHK}")
        e("s_and_b32 s84, s2, 7")
        e(f"s_mul_i32 s84, s84, {DS}")
        e(f"s_add_u32 s84, s84, {WS_FLAG}")
    e(f"buffer_load_dwordx2 v[60:61], v62, {sr(S_WS)}, s84 offen sc1")

def wave_reset():
    e(f"v_mov_b32 v{V_GIA}, v{V_SAVE}")
    e(f"v_mov_b32 v{V_GMA}, v{V_SAVE+1}")
    e(f"v_mov_b32 v{V_GQA}, v{V_SAVE+2}")
    e(f"v_mov_b32 v{V_SELA}, v{V_SAVE+3}")
    e(f"ds_read_u16 v{V_LI}, v{V_GIA}")
    e(f"ds_read_u16 v{V_LM}, v{V_GMA}")
    e(f"ds_read_u16 v{V_GQ}, v{V_GQA} offset:2")
    for i in range(2):
        e(f"v_mov_b32 v{NN+i}, 0")
        e(f"v_mov_b32 v{DD+i}, 1.0")
    e(f"v_mov_b32 v{V_DMAX}, 0")
    for r in list(range(SL, SL + 20, 2)) + list(range(C[0], C[0] + 32, 2)):
        e(f"v_pk_mul_f32 {vr(r,2)}, {vr(NN,2)}, {vr(NN,2)}")
    e("s_waitcnt lgkmcnt(0)")
    e(f"v_add_u32 v{V_LI}, v{V_LI}, v{V_LIO}")
    e(f"v_add_u32 v{V_LM}, v{V_LM}, v{V_LMO}")
    e(QAB)

def first_tile(mid=None):
    e(f"ds_read_b128 {vr(IDX,4)}, v{V_LI}")
    e(f"ds_read_b32 v{V_M}, v{V_LM}")
    n = 1
    if mid: n += mid()
    e(f"s_mov_b32 m0, s{S_M0[0]}")
    e(f"s_waitcnt lgkmcnt({n})")
    for s in mads(IDX): e(s)
    for s in dma(0): e(s)

def kernel():
    lab(KN)
    e("s_cmpk_ge_u32 s2, 256")
    e("s_cbranch_scc1 K_END")
    if DIAG: e("v_mov_b32 v255, 0")
    stamp(30, True); stamp(0); lstamp(0)
    for s, off in ((S_DST, 24), (S_X, 0), (S_W1, 32), (S_WS, 80), (S_SRC, 16), (S_E, 8)):
        e(f"s_load_dwordx2 {sr(s,2)}, s[0:1], {off}")
    if CPF == 1:
        e("s_getpc_b64 s[90:91]")
        lab("CPF_PC")
        e("s_and_b32 s5, s2, -8")
        e("v_subrev_u32 v18, 504, v0")
        e("v_add_lshl_u32 v16, v18, s5, 7")
        e("v_add_u32 v16, 2048, v16")
        e("v_min_u32 v16, CODE_REST, v16")
        e("v_mov_b32 v17, s91")
        e("v_add_co_u32 v16, vcc, s90, v16")
        e("v_cmp_gt_u32 s[76:77], 8, v18")
        e("s_nop 0")
        e("v_addc_co_u32 v17, vcc, 0, v17, vcc")
        e("s_mov_b64 exec, s[76:77]")
        e("s_cbranch_execz CPF_E")
        e("global_load_dword v18, v[16:17], off")
        lab("CPF_E")
        e("s_mov_b64 exec, -1")
    e(f"v_readfirstlane_b32 s{S_W}, v0")
    e(f"v_and_b32 v{V_LANE}, 63, v0")
    e("v_mov_b32 v88, 0")
    e("v_mov_b32 v89, 0")
    e("v_lshlrev_b32 v92, 3, v0")
    e("ds_write_b64 v92, v[88:89]")
    e(f"s_mov_b32 s{S_DST+3}, 0x00020000")
    e(f"s_mov_b32 s{S_DST+2}, {E*4}")
    e(f"s_mov_b32 s{S_X+2}, {N*128}")
    e(f"s_mov_b32 s{S_X+3}, s{S_DST+3}")
    e(f"s_mov_b32 s{S_W1+2}, {129*256}")
    e(f"s_mov_b32 s{S_W1+3}, s{S_DST+3}")
    e(f"s_lshr_b32 s{S_W}, s{S_W}, 6")
    e(f"s_and_b32 s{S_B}, s2, 7")
    e(f"s_lshl_b32 s{S_B}, s{S_B}, 5")
    e("s_lshr_b32 s5, s2, 3")
    e(f"s_add_u32 s{S_B}, s{S_B}, s5")
    e(f"s_mul_i32 s5, s2, {CH*4}")
    e("v_lshl_add_u32 v32, v0, 4, s5")
    e("s_cmpk_eq_u32 s2, 255")
    e(f"s_movk_i32 s6, {NQ-512}")
    e(f"s_cmovk_i32 s6, {NQL-512}")
    e("v_cmp_gt_u32 s[74:75], s6, v0")
    e(f"v_lshrrev_b32 v37, 4, v{V_LANE}")
    e(f"v_lshrrev_b32 v47, 3, v{V_LANE}")
    e(f"v_and_b32 v48, 7, v{V_LANE}")
    e("v_and_b32 v45, 1, v37")
    e("v_and_b32 v58, 4, v47")
    e("v_and_b32 v59, 1, v47")
    e("v_lshl_add_u32 v58, v59, 1, v58")
    e("v_add_u32 v58, v58, v45")
    e("v_xor_b32 v59, v48, v37")
    e("v_lshlrev_b32 v59, 4, v59")
    e("v_lshl_add_u32 v58, v58, 15, v59")
    e(f"s_lshl_b32 s85, s{S_W}, 11")
    e(f"s_add_u32 s5, s85, s{S_B}")
    e("s_lshl_b32 s5, s5, 7")
    e("v_add_u32 v58, s5, v58")
    e("v_lshlrev_b32 v31, 2, v37")
    e(f"v_xor_b32 v31, v31, v{V_LANE}")
    e("v_lshlrev_b32 v31, 4, v31")
    e(f"s_mul_i32 s84, s{S_W}, 1088")
    e(f"s_add_u32 m0, s84, {L_XS}")
    e("s_movk_i32 s86, 8192")
    lstamp(21)
    e("s_waitcnt lgkmcnt(0)")
    lstamp(22)
    e(f"buffer_load_dwordx4 v[64:67], v32, {sr(S_DST)}, 0 offen {LDF}")
    e("s_mov_b64 exec, s[74:75]")
    e("s_cbranch_execz P0_ND")
    e(f"buffer_load_dwordx4 v[68:71], v32, {sr(S_DST)}, s86 offen {LDF}")
    lab("P0_ND")
    e("s_mov_b64 exec, -1")
    e("s_barrier")
    e(f"buffer_load_dwordx4 v58, {sr(S_X)}, 0 offen lds")
    e(f"s_add_u32 m0, s85, {L_W1S}")
    e(f"s_load_dwordx2 s[78:79], {sr(S_WS,2)}, {WS_EPOCH}")
    for k in range(2): e(f"buffer_load_dwordx4 v31, {sr(S_W1)}, s85 offen offset:{1024*k} lds")
    lab("P0_ISS")
    stamp(15); lstamp(15)
    for s, off in ((S_B1, 40), (S_W2, 48), (S_B2, 56), (S_OUT, 64)):
        e(f"s_load_dwordx2 {sr(s,2)}, s[0:1], {off}")
    e(f"v_mov_b32 v{V_TID}, v0")
    for s, sz in ((S_SRC, E*4), (S_E, E*2), (S_B1, 256), (S_W2, 16384), (S_B2, 128), (S_WS, WS_SIZE), (S_OUT, N*128), (S_P, 256*NPB*256 + PSH)):
        e(f"s_mov_b32 s{s+2}, {sz}")
        e(f"s_mov_b32 s{s+3}, s{S_DST+3}")
    e(f"s_mov_b32 s80, {hex(f2u(-LOG2E))}")
    e("s_mov_b32 s81, s80")
    e(f"v_lshrrev_b32 v38, 5, v{V_LANE}")
    e(f"v_and_b32 v39, 31, v{V_LANE}")
    e("v_bfe_u32 v40, v39, 2, 1")
    e("v_and_b32 v41, 1, v39")
    e("v_lshl_add_u32 v40, v40, 1, v41")
    e("v_lshrrev_b32 v42, 3, v39")
    e("v_bfe_u32 v43, v39, 1, 1")
    e(f"v_bfe_u32 v44, v{V_LANE}, 2, 2")
    e(f"v_and_b32 v46, 3, v{V_LANE}")
    e("v_lshlrev_b32 v46, 3, v46")
    e("v_lshl_add_u32 v46, v45, 5, v46")
    e(f"s_and_b32 s82, s{S_W}, 3")
    e(f"s_lshr_b32 s83, s{S_W}, 2")
    e("v_xor_b32 v50, s82, v44")
    e("v_lshl_add_u32 v50, v50, 6, v46")
    e("v_lshl_add_u32 v51, v38, 3, v44")
    e("v_lshl_add_u32 v50, v51, 8, v50")
    e("v_lshl_add_u32 v51, v40, 1, v43")
    e("v_mul_u32_u24 v52, 1088, v42")
    e("v_lshl_add_u32 v52, v51, 7, v52")
    e("s_mul_i32 s5, s83, 4352")
    e(f"s_add_u32 s5, s5, {L_XS}")
    e("v_add_u32 v52, s5, v52")
    e("v_xor_b32 v53, v38, v40")
    e("v_lshl_add_u32 v51, v53, 4, v52")
    e("v_xor_b32 v53, 2, v53")
    e("v_lshl_add_u32 v52, v53, 4, v52")
    e("s_lshl_b32 s5, s83, 5")
    e("v_add_u32 v55, s5, v39")
    e(f"v_cmp_gt_u32 s[88:89], {NPB}, v55")
    e("s_lshl_b32 s82, s82, 6")
    e("v_lshl_add_u32 v49, v38, 3, s82")
    e(f"v_add_u32 v56, {L_QT}, v49")
    e(f"v_mul_u32_u24 v53, {PS}, v55")
    e("v_add_u32 v53, v53, v56")
    e(f"v_mul_u32_u24 v54, {QS}, v55")
    e("v_add_u32 v54, v54, v56")
    assert PS == 272
    e(f"s_mov_b32 s7, {L_PS}")
    e("v_lshlrev_b32 v61, 4, v0")
    e("v_and_b32 v56, -16, v0")
    e("v_add3_u32 v62, v61, v56, s7")
    e(f"s_min_u32 s5, s{S_W}, 2")
    e(f"s_lshl2_add_u32 s5, s{S_W}, s5")
    e("s_add_u32 s5, s5, 64")
    e("s_lshl_b32 s5, s5, 3")
    e(f"v_add_u32 v55, s5, v{V_LANE}")
    e("v_lshlrev_b32 v63, 4, v55")
    e("v_and_b32 v56, -16, v55")
    e("v_add3_u32 v22, v63, v56, s7")
    e(f"s_cmp_lt_u32 s{S_W}, 2")
    e("s_cselect_b32 s71, 40, 32")
    lstamp(23)
    if not LATEI: init_tables(84)
    e(f"s_mul_i32 s6, s{S_B}, {NPB*256}")
    e(f"s_add_u32 s6, s6, {WS_PT}")
    e(f"s_mov_b32 s87, {128*256}")
    e("v_mov_b32 v55, 1")
    e(f"v_lshlrev_b32 v36, 2, v{V_LANE}")
    e("v_lshrrev_b32 v34, 1, v32")
    e("s_movk_i32 s84, 4096")
    stamp(16); lstamp(16)
    SD = "dst_sel:DWORD dst_unused:UNUSED_PAD src0_sel:DWORD"
    def binA(j):
        e(f"v_lshlrev_b32_sdwa v{112+j}, 2, v{64+j} {SD} src1_sel:BYTE_0")
        e(f"ds_add_rtn_u32 v{120+j}, v{112+j}, v55 offset:{L_CNT1}")
    def binB(j):
        e(f"v_lshlrev_b32_sdwa v{129+2*j}, 2, v{64+j} {SD} src1_sel:BYTE_1")
        if j % 2 == 0: e(f"v_lshlrev_b32 v56, 16, v{80+j//2}")
        else: e(f"v_and_b32 v56, 0xffff0000, v{80+j//2}")
        e(f"v_mul_u32_u24_sdwa v57, {NPB}, v{72+j} {SD} src1_sel:BYTE_0")
        e(f"v_add_u32_sdwa v57, v57, v{72+j} {SD} src1_sel:BYTE_1")
        e(f"v_or3_b32 v{128+2*j}, v56, v57, s87")
    def masked(tag, f):
        e("s_mov_b64 exec, s[74:75]")
        e(f"s_cbranch_execz {tag}")
        f()
        lab(tag)
        e("s_mov_b64 exec, -1")
    assert 128 * 256 == 0x8000
    e(f"v_lshlrev_b32 v58, 4, v{V_LANE}")
    e(f"v_lshlrev_b32 v23, 1, v{V_LANE}")
    e("s_waitcnt vmcnt(3)")
    stamp(3)
    def ldA():
        e(f"buffer_load_dwordx4 v[72:75], v32, {sr(S_SRC)}, 0 offen {LDF}")
        e(f"buffer_load_dwordx2 v[80:81], v34, {sr(S_E)}, 0 offen {LDF}")
    def ldB():
        e(f"buffer_load_dwordx4 v[76:79], v32, {sr(S_SRC)}, s86 offen {LDF}")
        e(f"buffer_load_dwordx2 v[82:83], v34, {sr(S_E)}, s84 offen {LDF}")
    if ORD == 1: ldA()
    for j in range(4): binA(j)
    if ORD == 2: ldA()
    e("s_mov_b64 exec, s[74:75]")
    e("s_cbranch_execz P1_A")
    if ORD == 1: ldB()
    for j in range(4, 8): binA(j)
    if ORD == 2: ldB()
    e("s_mov_b64 exec, -1")
    e("s_waitcnt vmcnt(4)")
    e("s_branch P1_A2")
    lab("P1_A")
    e("s_mov_b64 exec, -1")
    e("s_waitcnt vmcnt(2)")
    lab("P1_A2")
    e("s_add_u32 s86, s85, 16384")
    e(f"s_add_u32 m0, s86, {L_W1S}")
    e(f"s_cmp_eq_u32 s{S_W}, 7")
    e("s_waitcnt lgkmcnt(0)")
    e("s_barrier")
    stamp(4); lflush()
    if XT:
        reg, n, fl = XT.split(",")
        base, stride = {"fresh": (WS_SIZE - 256 * GCS, GCS), "pt": (WS_PT, NPB * 256), "ent": (WS_ENT, GCS)}[reg]
        e("s_waitcnt vmcnt(0)")
        e("s_barrier")
        stamp(40)
        e(f"s_mul_i32 s90, s{S_B if reg == 'pt' else 2}, {stride}")
        e(f"s_add_u32 s90, s90, {base}")
        for k in range(int(n)):
            e(f"buffer_store_dwordx4 v[64:67], v61, {sr(S_WS)}, s90 offen {fl}")
            e("s_add_u32 s90, s90, 8192")
        e("s_waitcnt vmcnt(0)")
        e("s_barrier")
        stamp(41)
        e(f"s_cmp_eq_u32 s{S_W}, 7")
    def tags():
        e(f"s_mul_i32 s{S_TAGB}, s78, 1664525")
        e(f"s_add_u32 s{S_TAGB}, s{S_TAGB}, 1013904223")
        e(f"s_add_u32 s{S_TAGA}, s79, 0x01000000")
        e(f"s_and_b32 s{S_TAGA}, s{S_TAGA}, 0xff000000")
    def p_reads():
        for ks in range(4):
            e(f"ds_read_b64_tr_b16 {vr(88+4*ks,2)}, v50 offset:{L_W1S+4096*ks}")
            e(f"ds_read_b64_tr_b16 {vr(90+4*ks,2)}, v50 offset:{L_W1S+4096*ks+1024}")
            e(f"ds_read_b128 {vr(160+4*ks,4)}, v{51+(ks&1)} offset:{64*(ks>>1)}")
    def p_mfma(counted=False):
        for ks in range(4):
            if counted: e(f"s_waitcnt lgkmcnt({9-3*ks})")
            e(mf16(144, 88 + 4*ks, 160 + 4*ks, "0" if ks == 0 else vr(144, 16)))
    def p_fin():
        for i in range(8): e(f"v_pk_mul_f32 {vr(144+2*i,2)}, {vr(144+2*i,2)}, s[80:81]")
        for i in range(8): e(f"v_cvt_pk_bf16_f32 v{88+i}, v{144+2*i}, v{145+2*i}")
        e("s_mov_b64 exec, s[88:89]")
        for q in range(4): e(f"ds_write_b64 v53, {vr(88+2*q,2)} offset:{16*q}")
        e("s_mov_b64 exec, -1")
    def late():
        for k in range(2): e(f"buffer_load_dwordx4 v31, {sr(S_W1)}, s86 offen offset:{1024*k} lds")
    e("s_cbranch_scc1 P1_SCAN")
    p_reads()
    p_mfma(True)
    tags()
    e(f"s_cmp_eq_u32 s{S_W}, 6")
    e("s_cbranch_scc0 P1_H6")
    e(f"buffer_load_dword v20, v36, {sr(S_W1)}, s87 offen")
    e(f"buffer_load_ushort v21, v23, {sr(S_B2)}, 0 offen")
    e(f"buffer_load_dword v19, v36, {sr(S_B1)}, 0 offen")
    lab("P1_H6")
    e("s_nop 3")
    e("s_branch P1_HJ")
    lab("P1_SCAN")
    e("s_setprio 3")
    e(f"ds_read_b128 v[136:139], v58 offset:{L_CNT1}")
    p_reads()
    tags()
    e(f"s_mul_i32 s7, s2, {DS}")
    e(f"s_add_u32 s7, s7, {WS_DESC}")
    e("s_waitcnt lgkmcnt(0)")
    p_mfma()
    e("v_add_u32 v57, v136, v137")
    e("v_add_u32 v56, v57, v138")
    e("v_add_u32 v59, v56, v139")
    e("v_mov_b32 v60, v59")
    scan64(59)
    e("v_sub_u32 v140, v59, v60")
    e("v_add_u32 v141, v140, v136")
    e("v_add_u32 v142, v140, v57")
    e("v_add_u32 v143, v140, v56")
    e(f"ds_write_b128 v58, v[140:143] offset:{L_BASE1}")
    lab("P1_HJ")
    late()
    p_fin()
    e("s_waitcnt lgkmcnt(0)")
    e("s_barrier")
    e("s_setprio 0")
    stamp(5)
    e("ds_read_b128 v[104:107], v62")
    e("ds_read_b128 v[108:111], v22")
    for j in range(4): e(f"ds_read_b32 v{112+j}, v{112+j} offset:{L_BASE1}")
    e("s_waitcnt lgkmcnt(4)")
    e(f"buffer_store_dwordx4 v[104:107], v61, {sr(S_WS)}, s6 offen {PSF}")
    e("s_bfm_b64 exec, s71, 0")
    e(f"buffer_store_dwordx4 v[108:111], v63, {sr(S_WS)}, s6 offen {PSF}")
    def w(j):
        e(f"v_add_lshl_u32 v{112+j}, v{112+j}, v{120+j}, 3")
        e(f"ds_write_b64 v{112+j}, {vr(128+2*j,2)} offset:{L_STG}")
    def partA():
        for j in range(4): binB(j)
        e("s_waitcnt lgkmcnt(0)")
        for j in range(4): w(j)
    e("s_mov_b64 exec, s[74:75]")
    e("s_cbranch_execz P1_S1")
    for j in range(4, 8): e(f"ds_read_b32 v{112+j}, v{112+j} offset:{L_BASE1}")
    e("s_mov_b64 exec, -1")
    e("s_waitcnt vmcnt(6)")
    partA()
    e("s_mov_b64 exec, s[74:75]")
    e("s_waitcnt vmcnt(4)")
    for j in range(4, 8): binB(j)
    for j in range(4, 8): w(j)
    e("s_mov_b64 exec, -1")
    e("s_branch P1_JOIN")
    lab("P1_S1")
    e("s_mov_b64 exec, -1")
    e(f"s_cmp_eq_u32 s{S_W}, 7")
    e("s_cbranch_scc0 P1_S2")
    for j in range(4):
        e(f"v_lshl_or_b32 v{96+2*j}, v{136+j}, 12, v{140+j}")
        e(f"v_or_b32 v{96+2*j}, s{S_TAGA}, v{96+2*j}")
        e(f"v_mov_b32 v{97+2*j}, s{S_TAGB}")
    e(f"buffer_store_dwordx4 v[96:99], v58, {sr(S_WS)}, s7 offen sc1")
    e(f"buffer_store_dwordx4 v[100:103], v58, {sr(S_WS)}, s7 offen offset:1024 sc1")
    lab("P1_S2")
    e(f"s_cmp_ge_u32 s{S_W}, 6")
    e("s_waitcnt vmcnt(6)")
    e("s_cbranch_scc1 P1_S3")
    e("s_waitcnt vmcnt(4)")
    lab("P1_S3")
    partA()
    lab("P1_JOIN")
    e(f"s_mul_i32 s5, s2, {GCS}")
    e(f"s_add_u32 s5, s5, {WS_ENT}")
    e("s_waitcnt lgkmcnt(0)")
    e("s_barrier")
    stamp(6)
    for k in range(3): e(f"ds_read_b128 {vr(64+4*k,4)}, v61 offset:{L_STG+8192*k}")
    e(f"s_cmp_eq_u32 s{S_W}, 7")
    e("s_cbranch_scc0 P1_C")
    e(f"ds_read_b128 v[76:79], v58 offset:{L_STG+24576}")
    e("s_add_u32 s7, s5, 24576")
    e("s_bfm_b64 exec, 32, 0")
    e("s_waitcnt lgkmcnt(0)")
    e(f"buffer_store_dwordx4 v[76:79], v58, {sr(S_WS)}, s7 offen {STF}")
    e("s_mov_b64 exec, -1")
    lab("P1_C")
    for k in range(3):
        e(f"s_waitcnt lgkmcnt({2-k})")
        e(f"buffer_store_dwordx4 {vr(64+4*k,4)}, v61, {sr(S_WS)}, s5 offen {STF}")
        if k < 2: e("s_add_u32 s5, s5, 8192")
    def loop_consts():
        e("v_lshlrev_b32 v58, 1, v39")
        e("v_lshl_add_u32 v58, v38, 9, v58")
        e(f"v_add_u32 v{V_CA}, s{S_M0[0]}, v58")
        e("v_lshlrev_b32 v58, 4, v48")
        e(f"v_add_u32 v{V_DMAC}, 0x800000, v58")
        e("v_and_b32 v58, 1, v47")
        e("v_lshlrev_b32 v58, 4, v58")
        e(f"v_add_u32 v{V_LIO}, {L_LIST}, v58")
        e("v_lshl_add_u32 v58, v42, 1, v43")
        e("v_lshlrev_b32 v58, 2, v58")
        e(f"v_add_u32 v{V_LMO}, {L_LIST}, v58")
        e(f"s_sub_u32 s76, {GTH+7}, s{S_W}")
        e(f"s_sub_u32 s77, {HT+7}, s{S_W}")
        e(f"s_cmp_lt_u32 s{S_W}, 4")
        e(f"s_cselect_b32 s76, s{S_W}, s76")
        e(f"s_cselect_b32 s77, s{S_W}, s77")
        e("s_lshl_b32 s76, s76, 4")
        e(f"s_add_u32 s76, s76, {L_GT}")
        e(f"s_mul_i32 s77, s77, {SELS}")
        e(f"s_add_u32 s77, s77, {L_SEL}")
        e(f"v_lshl_add_u32 v{V_SAVE}, v37, 2, s76")
        e(f"v_lshl_add_u32 v{V_SAVE+1}, v40, 2, s76")
        e(f"v_lshl_add_u32 v{V_SAVE+2}, v44, 2, s76")
        e(f"v_mul_u32_u24 v58, {SELS//2}, v38")
        e("v_lshl_add_u32 v58, v39, 2, v58")
        e(f"v_add_u32 v{V_SAVE+3}, s77, v58")
        e("v_cmp_eq_u32 vcc, 0, v38")
        e("v_mov_b32 v59, 0x03020100")
        e("v_mov_b32 v58, 0x0c080c0c")
        e(f"v_cndmask_b32 v{V_PSEL}, v59, v58, vcc")
        e(f"v_cndmask_b32 v{V_QMUL}, 0, 1, vcc")
        e("v_add_u32 v58, 1, v44")
        e("v_lshrrev_b32 v58, 1, v58")
        e("v_and_b32 v59, 1, v44")
        e("v_mul_u32_u24 v58, v58, v59")
        e("v_mul_u32_u24 v58, 320, v58")
        e(f"v_add_u32 v58, {L_EXT}, v58")
        e(f"v_mov_b32 v59, {L_QT}")
        e("v_cndmask_b32 v58, v58, v59, vcc")
        e(f"v_add_u32 v{V_QC}, v46, v58")
        e(f"v_mov_b32 v58, {hex(find_cx(0x00803F80))}")
        e(f"v_mov_b32 v59, {hex(find_cx(0x3F800000))}")
        e("v_cmp_eq_u32 s[6:7], 1, v41")
        e("v_cmp_gt_u32 s[76:77], 2, v40")
        e("s_nop 0")
        e("v_cndmask_b32 v58, v58, v59, s[6:7]")
        e("v_cndmask_b32 v59, 0, v58, s[76:77]")
        e("v_cndmask_b32 v58, v58, 0, s[76:77]")
        e(f"v_cndmask_b32 v{CX}, 1.0, v59, vcc")
        e(f"v_cndmask_b32 v{CX+1}, 1.0, v58, vcc")
        e("v_lshl_add_u32 v58, v38, 2, v44")
        e("v_lshl_add_u32 v58, v58, 7, v46")
        e("v_lshrrev_b32 v59, 1, v44")
        e("v_lshl_add_u32 v58, v59, 6, v58")
        e(f"v_add_u32 v{V_W2A}, {L_W2}, v58")
    if PFL == 1:
        e(f"s_lshl_b32 s5, s{S_W}, 5")
        e("s_lshr_b32 s6, s2, 3")
        e("s_add_u32 s90, s5, s6")
        e("s_and_b32 s6, s2, 7")
        e(f"s_mul_i32 s6, s6, {DS}")
        e("s_lshl_b32 s5, s90, 3")
        e("s_add_u32 s5, s5, s6")
        e(f"s_add_u32 s91, s5, {WS_PFLAG}")
    if LATEI: init_tables(120)
    e("v_lshlrev_b32 v31, 2, v45")
    e(f"v_xor_b32 v31, v31, v{V_LANE}")
    e("v_lshlrev_b32 v31, 4, v31")
    e(f"s_mov_b32 s{S_EARLY}, 2")
    e(f"s_cmp_eq_u32 s{S_W}, 6")
    e("s_cbranch_scc0 P0_NOEXT")
    e("s_waitcnt vmcnt(5)")
    e("v_lshlrev_b32 v118, 16, v19")
    e("v_and_b32 v119, 0xffff0000, v19")
    e("v_lshlrev_b32 v117, 1, v36")
    e(f"ds_write_b64 v117, v[118:119] offset:{L_B1}")
    e("v_lshlrev_b32 v112, 16, v20")
    e("v_and_b32 v113, 0xffff0000, v20")
    e("v_mul_f32 v112, s80, v112")
    e("v_mul_f32 v113, s80, v113")
    e("v_cvt_pk_bf16_f32 v114, v112, v113")
    e("v_lshlrev_b32 v115, 16, v114")
    e("v_and_b32 v116, 0xffff0000, v114")
    e("v_sub_f32 v115, v112, v115")
    e("v_sub_f32 v116, v113, v116")
    e("v_cvt_pk_bf16_f32 v115, v115, v116")
    e("v_lshlrev_b32 v116, 16, v21")
    e(f"ds_write_b32 v36, v114 offset:{L_EXT+320}")
    e(f"ds_write_b32 v36, v115 offset:{L_EXT+640}")
    e(f"ds_write_b32 v36, v116 offset:{L_B2}")
    lab("P0_NOEXT")
    e(f"s_add_u32 s{S_P}, s{S_WS}, {WS_PT - PSH}")
    e(f"s_addc_u32 s{S_P+1}, s{S_WS+1}, 0")
    e(f"v_mov_b32 v252, s{S_TAGA}")
    e(f"v_mov_b32 v253, s{S_TAGB}")
    e(f"v_mul_u32_u24 v254, {DS}, v{V_LANE}")
    e("v_lshlrev_b32 v49, 1, v49")
    for j in range(8): e(f"s_movk_i32 s{S_SOFF+j}, {PSH - 1024*(j&3) + 128*(j>>2)}")
    e(f"s_movk_i32 s{S_256}, 256")
    e(f"s_mul_i32 s{S_M0[0]}, s{S_W}, {TBW}")
    e(f"s_add_u32 s{S_M0[0]}, s{S_M0[0]}, {L_TB}")
    e(f"s_add_u32 s{S_M0[1]}, s{S_M0[0]}, 4096")
    e(f"s_mov_b32 s{S_WN}, 32")
    e(f"s_mov_b32 s{S_RB}, 0")
    e(f"s_mov_b32 s{S_SAFE}, 0")
    e(f"s_mov_b32 s{S_SPIN}, 0x40000")
    e(f"v_cmp_le_u32 vcc, {SPLIT}, v{V_LANE}")
    e(f"v_mul_u32_u24 v56, {LS}, v{V_LANE}")
    e(f"v_mul_u32_u24 v57, {QS}, v{V_LANE}")
    e(f"v_add_u32 v{V_L0}, {L_LIST}, v56")
    e(f"v_lshl_or_b32 v{V_GV}, v57, 16, v56")
    e("v_cndmask_b32 v56, 0, 1, vcc")
    e(f"v_mul_u32_u24 v57, {SPLIT}, v56")
    e(f"v_sub_u32 v{V_COL}, v{V_LANE}, v57")
    e(f"v_mul_u32_u24 v57, {GTH*16}, v56")
    e(f"v_add_u32 v{V_GB}, {L_GT}, v57")
    e(f"v_mul_u32_u24 v57, {HT*SELS}, v56")
    e(f"v_lshl_add_u32 v57, v{V_COL}, 2, v57")
    e(f"v_add_u32 v{V_SB}, {L_SEL}, v57")
    if PFL == 1:
        e(f"s_load_dwordx2 s[92:93], {sr(S_WS,2)}, s91 glc")
    if not CL: loop_consts()
    if LATEI:
        e("s_waitcnt lgkmcnt(0)")
        e("s_barrier")
    static_writes(56, "A")
    e("v_lshl_add_u32 v56, v37, 3, v48")
    e(f"s_lshl_b32 s5, s{S_W}, 5")
    e(f"v_add_u32 v{V_CHK}, s5, v56")
    e(f"v_and_b32 v{V_J0}, 15, v{V_LANE}")
    e(f"v_mul_u32_u24 v33, {DS}, v{V_CHK}")
    desc_soff()
    e(f"buffer_load_dwordx2 v[34:35], v33, {sr(S_WS)}, s5 offen sc1")
    nyoung = 1
    if PFL == 1:
        e("s_and_b32 s6, s90, 7")
        e("s_lshl_b32 s6, s6, 5")
        e("s_lshr_b32 s7, s90, 3")
        e("s_add_u32 s6, s6, s7")
        e(f"s_mul_i32 s6, s6, {NPB*256}")
        e(f"s_add_u32 s6, s6, {PSH}")
        e(f"v_min_u32 v56, {NPB-1}, v{V_LANE}")
        e("v_lshlrev_b32 v56, 8, v56")
        e("s_waitcnt lgkmcnt(0)")
        e(f"s_cmp_eq_u64 s[92:93], s[{S_TAGA}:{S_TAGB}]")
        e("s_cselect_b32 s6, s6, 0x7f000000")
        e("v_add_u32 v56, s6, v56")
        e(f"buffer_load_dword v57, v56, {sr(S_P)}, 0 offen")
        e(f"buffer_load_dword v58, v56, {sr(S_P)}, 0 offen offset:128")
        nyoung = 3
    e("s_lshl_b32 s6, s2, 3")
    e(f"s_add_u32 s6, s6, {WS_FLAG}")
    stamp(18)
    e(f"s_waitcnt vmcnt({nyoung}) lgkmcnt(0)")
    e("s_barrier")
    stamp(7)
    e(f"s_cmp_eq_u32 s{S_W}, 0")
    e("s_cbranch_scc0 P1_NF")
    e("s_mov_b64 exec, 0xff")
    e(f"buffer_store_dwordx2 v[252:253], v254, {sr(S_WS)}, s6 offen sc1")
    e("s_mov_b64 exec, -1")
    lab("P1_NF")
    if OWN:
        e(f"s_mul_i32 s6, s{S_B}, {NPB*256}")
        e(f"s_mul_i32 s7, s{S_W}, 13")
        e(f"v_add_u32 v56, s7, v{V_LANE}")
        e(f"v_min_u32 v56, {2*NPB-1}, v56")
        e("v_lshl_add_u32 v56, v56, 7, s6")
        e("s_bfm_b64 exec, 13, 0")
        e(f"buffer_load_dword v57, v56, {sr(S_P)}, s{S_SOFF} offen")
        e("s_mov_b64 exec, -1")
    for q in range(4): e(f"ds_read_b128 {vr(144+4*q,4)}, v49 offset:{L_B1+32*q}")
    for ks in range(4):
        e(f"ds_read_b64_tr_b16 {vr(80+4*ks,2)}, v50 offset:{L_W1S+16384+4096*ks}")
        e(f"ds_read_b64_tr_b16 {vr(82+4*ks,2)}, v50 offset:{L_W1S+16384+4096*ks+1024}")
    for ks in range(4):
        e(f"s_waitcnt lgkmcnt({6-2*ks})")
        e(mf16(144, 80 + 4*ks, 160 + 4*ks, vr(144, 16)))
    e("s_nop 7")
    e("s_nop 3")
    for i in range(8): e(f"v_pk_mul_f32 {vr(144+2*i,2)}, {vr(144+2*i,2)}, s[80:81]")
    for i in range(8): e(f"v_cvt_pk_bf16_f32 v{64+i}, v{144+2*i}, v{145+2*i}")
    e("s_mov_b64 exec, s[88:89]")
    for q in range(4): e(f"ds_write_b64 v54, {vr(64+2*q,2)} offset:{16*q}")
    e("s_mov_b64 exec, -1")
    stamp(19)
    if CL: loop_consts()

    lab("POLL1")
    e(f"v_mul_u32_u24 v32, {GCS}, v{V_CHK}")
    e(f"v_add_u32 v37, 16, v{V_J0}")
    e("v_bfrev_b32 v43, -2")
    e(f"v_cmp_gt_u32 vcc, s{S_WN}, v{V_J0}")
    e(f"v_add_u32 v38, s{S_RB}, v{V_J0}")
    e(f"v_add_u32 v39, s{S_RB}, v37")
    e("v_lshlrev_b32 v36, 3, v38")
    e("v_cndmask_b32 v38, v43, v38, vcc")
    e(f"v_cmp_gt_u32 vcc, s{S_WN}, v37")
    e(f"s_mov_b32 s7, {WS_ENT}")
    e("v_mov_b32 v55, 4")
    e("v_cndmask_b32 v39, v43, v39, vcc")
    e(f"s_waitcnt vmcnt({OWN})")
    lab("POLL")
    e(f"v_xor_b32 v34, s{S_TAGA}, v34")
    e(f"v_cmp_ne_u32 s[76:77], s{S_TAGB}, v35")
    e("v_cmp_le_u32 vcc, 0x1000000, v34")
    e("s_or_b64 vcc, vcc, s[76:77]")
    e("s_cbranch_scc0 POLLED")
    e(f"s_sub_u32 s{S_SPIN}, s{S_SPIN}, 1")
    e("s_cbranch_scc1 K_END")
    e(f"s_sleep {SLP}")
    e(f"buffer_load_dwordx2 v[34:35], v33, {sr(S_WS)}, s5 offen sc1")
    e("s_waitcnt vmcnt(0)")
    e("s_branch POLL")
    lab("POLLED")
    stamp(8)
    e("v_and_b32 v35, 0xfff, v34")
    e("v_lshrrev_b32 v34, 12, v34")
    e("v_lshl_add_u32 v35, v35, 3, v32")
    e(f"s_add_u32 s5, s{S_RB}, s{S_WN}")
    e("v_cmp_lt_u32 s[74:75], s5, v34")
    DP = "row_mask:0xf bank_mask:0xf"
    for i in range(8):
        e(f"v_mov_b32_dpp v43, v34 row_newbcast:{i} {DP}")
        e(f"v_add_u32_dpp v{44+i}, v35, v36 row_newbcast:{i} {DP}")
        e(f"v_cmp_lt_u32 {sr(S_MASK+2*i,2)}, v38, v43")
        e(f"v_cmp_lt_u32 {sr(S_MASK+16+2*i,2)}, v39, v43")
    e(f"v_lshlrev_b32 v54, 2, v{V_LANE}")
    e("v_mov_b32 v53, 0")
    e("s_mov_b64 exec, s[74:75]")
    e(f"ds_write_b32 v53, v55 offset:{L_FLAG}")
    e("s_mov_b64 exec, -1")
    if not W5: wave_reset()
    flag_load(True)
    lab("FPOLL")
    e("s_waitcnt vmcnt(0)")
    e(f"v_cmp_ne_u32 s[76:77], s{S_TAGB}, v61")
    e(f"v_cmp_ne_u32 vcc, s{S_TAGA}, v60")
    e("s_or_b64 vcc, vcc, s[76:77]")
    e("s_cbranch_scc0 FPOLLED")
    e(f"s_sub_u32 s{S_SPIN}, s{S_SPIN}, 1")
    e("s_cbranch_scc1 K_END")
    e(f"s_sleep {SLP}")
    flag_load()
    e("s_branch FPOLL")
    lab("FPOLLED")
    stamp(17)
    for k in range(8, 16):
        e(f"s_mov_b64 exec, {sr(S_MASK+2*k,2)}")
        e(f"s_cbranch_execz R_L{k}")
        e(f"buffer_load_dwordx2 {vr(112+2*k,2)}, v{44+(k&7)}, {sr(S_WS)}, s7 offen offset:128 {ELF}")
        lab(f"R_L{k}")
    for k in range(8):
        e(f"s_or_b64 exec, {sr(S_MASK+2*k,2)}, 1")
        e(f"buffer_load_dwordx2 {vr(112+2*k,2)}, v{44+k}, {sr(S_WS)}, s7 offen {ELF}")
    e("s_mov_b64 exec, -1")
    if W5: wave_reset()
    e(f"s_cmp_eq_u32 s{S_EARLY}, 2")
    e("s_cbranch_scc0 R_NH")
    for i in range(32): e(f"v_pk_mul_f32 {vr(H+2*i,2)}, {vr(NN,2)}, {vr(NN,2)}")
    lab("R_NH")
    e("s_waitcnt vmcnt(8)")
    for k in list(range(8, 16)) + list(range(8)):
        e(f"s_mov_b64 exec, {sr(S_MASK+2*k,2)}")
        if k >= 8: e(f"s_cbranch_execz R_A{k}")
        else: e(f"s_waitcnt vmcnt({7-k})")
        e(f"ds_add_rtn_u32 v{T+k}, v{113+2*k}, v55 offset:{L_CNT2}")
        if k >= 8: lab(f"R_A{k}")
    def list_writes(tag):
        for k in list(range(8, 16)) + list(range(8)):
            e(f"s_mov_b64 exec, {sr(S_MASK+2*k,2)}")
            if k >= 8: e(f"s_cbranch_execz {tag}{k}")
            e(f"ds_write_b32 v{T+k}, v{112+2*k}")
            if k >= 8: lab(f"{tag}{k}")
        e("s_mov_b64 exec, -1")
    e("s_mov_b64 exec, -1")
    e(f"s_cmp_eq_u32 s{S_EARLY}, 2")
    e("s_cbranch_scc0 R_NW2")
    e(f"s_add_u32 m0, s85, {L_W2}")
    e(f"s_mov_b32 s{S_EARLY}, 0")
    for k in range(2): e(f"buffer_load_dwordx4 v31, {sr(S_W2)}, s85 offen offset:{1024*k} lds")
    if POST:
        e("s_lshr_b32 s6, s2, 3")
        e("s_and_b32 s7, s6, 7")
        e("s_lshl_b32 s7, s7, 5")
        e("s_lshr_b32 s6, s6, 3")
        e(f"s_lshl2_add_u32 s6, s{S_W}, s6")
        e("s_add_u32 s6, s6, s7")
        e(f"s_mul_i32 s6, s6, {NPB*256}")
        e(f"v_lshl_add_u32 v56, v{V_LANE}, 7, s6")
        e(f"s_bfm_b64 exec, {POST}, 0")
        e(f"buffer_load_dword v57, v56, {sr(S_P)}, s{S_SOFF} offen")
        e("s_mov_b64 exec, -1")
    lab("R_NW2")
    e("s_waitcnt lgkmcnt(0)")
    stamp(20)
    list_writes("R_C")
    e("s_waitcnt lgkmcnt(0)")
    e("s_barrier")
    stamp(9)
    def mid():
        e(f"ds_read_b32 v32, v54 offset:{L_CNT2}")
        e(f"ds_read_b32 v33, v53 offset:{L_FLAG}")
        e(f"ds_read_b32 v34, v54 offset:{L_DEG}")
        return 3
    first_tile(mid)
    e("s_waitcnt lgkmcnt(0)")
    e(f"v_sub_u32 v32, v32, v{V_L0}")
    e("v_max_u32 v35, 4, v32")
    e("v_subrev_u32 v35, 4, v35")
    e("v_lshrrev_b32 v35, 5, v35")
    e("v_mov_b32 v36, v35")
    e(f"v_cmp_lt_u32 s[76:77], {LCAP//8-1}, v35")
    scan64(36)
    e(f"v_readfirstlane_b32 s{S_MORE}, v33")
    e(f"v_readlane_b32 s6, v36, {SPLIT-1}")
    e("v_readlane_b32 s7, v36, 63")
    e(f"v_cmp_le_u32 vcc, {SPLIT}, v{V_LANE}")
    e("v_sub_u32 v36, v36, v35")
    e("v_lshrrev_b32 v32, 2, v32")
    e("s_sub_u32 s7, s7, s6")
    e(f"s_add_u32 s82, s6, {SPLIT+3}")
    e(f"s_add_u32 s83, s7, {NPB-SPLIT+3}")
    e("s_max_u32 s5, s82, s83")
    e(f"s_cmp_ge_u32 s5, {4*HT+4}")
    e("s_cbranch_scc0 R_FITS")
    e(f"s_mov_b32 s{S_WN}, {WSLOW}")
    e("s_branch NEXT_ROUND")
    lab("R_FITS")
    e(f"s_sub_u32 s6, {NPB-SPLIT-1}, s6")
    e(f"v_add_u32 v37, {SPLIT-1}, v36")
    e("v_add_u32 v38, s6, v36")
    e("v_cndmask_b32 v37, v37, v38, vcc")
    e(f"v_mov_b32 v39, v{V_GV}")
    e(f"s_mov_b32 s{S_EARLY}, 1")
    e("s_cmp_eq_u64 s[76:77], 0")
    e("s_cbranch_scc0 R_COMPACT")
    lab("R_TABLE")
    e("v_mov_b32 v41, 0x3f80")
    e(f"s_add_u32 s6, s{S_W}, 1")
    lab("R_GT")
    e("v_cmp_le_u32 vcc, s6, v35")
    e("s_and_b64 exec, exec, vcc")
    e("s_cbranch_execz R_GTE")
    e("v_add_u32 v44, s6, v37")
    e("s_lshl_b32 s7, s6, 5")
    e(f"v_lshl_add_u32 v45, v44, 2, v{V_GB}")
    e("v_add_u32 v47, s7, v39")
    e("ds_write_b32 v45, v47")
    e("v_lshrrev_b32 v46, 1, v44")
    e(f"v_mul_u32_u24 v46, {SELS//2}, v46")
    e("v_and_b32 v44, 1, v44")
    e("v_lshl_add_u32 v46, v44, 1, v46")
    e(f"v_add_u32 v46, v46, v{V_SB}")
    e("ds_write_b16 v46, v41")
    e("s_add_u32 s6, s6, 8")
    e("s_branch R_GT")
    lab("R_GTE")
    e("s_mov_b64 exec, -1")
    e("s_waitcnt vmcnt(4) lgkmcnt(0)")
    e("s_barrier")
    stamp(10)
    e(f"s_cmp_eq_u32 s{S_W}, 0")
    e("s_cbranch_scc0 R_ND")
    e("v_add_u32 v34, v34, v32")
    e(f"ds_write_b32 v54, v34 offset:{L_DEG}")
    lab("R_ND")
    e(f"s_sub_u32 s5, 7, s{S_W}")
    e(f"s_cmp_lt_u32 s{S_W}, 4")
    e(f"s_cselect_b32 s5, s{S_W}, s5")
    e("s_cselect_b32 s6, s82, s83")
    e("s_lshr_b32 s6, s6, 2")
    e("s_sub_u32 s6, s6, s5")
    e("s_add_u32 s6, s6, 3")
    e(f"s_lshr_b32 s{S_NT}, s6, 2")
    e(f"s_or_b32 s6, s{S_MORE}, s{S_RB}")
    e(f"s_or_b32 s{S_SAFE}, s{S_SAFE}, s6")
    e(f"s_cmp_eq_u32 s{S_EARLY}, 0")
    e("s_cbranch_scc1 WAVE_REDO")
    lab("WAVE_GO")
    e(f"ds_read_u16 v{V_LI}, v{V_GIA} offset:64")
    e(f"s_mov_b32 m0, s{S_M0[1]}")
    e(f"s_sub_u32 s{S_REM}, s{S_NT}, 1")
    e("s_waitcnt lgkmcnt(0)")
    e(f"v_add_u32 v{V_LI}, v{V_LI}, v{V_LIO}")
    e(f"ds_read_b128 {vr(IDR,4)}, v{V_LI}")
    e(PERM)
    e(AXB)
    if PEEL:
        e("s_waitcnt vmcnt(0)")
        for s in c_reads(0)[:16] + [tr_read(0)]: e(s)
        for s in dma(1): e(s)
        for s in memphase(0, 0)[2+16:-4]:
            if s != tr_read(0): e(s)
        e(mfext(0))
        for s in mads(): e(s)
        e("s_nop 5")
        stamp(11); stamp(28, True)
        e(f"s_cmp_lg_u32 s{S_SAFE}, 0")
        e("s_cbranch_scc1 PEELS")
        for safe in (False, True):
            out.append(".p2align 3")
            if safe: lab("PEELS")
            emit(block(0, 0, safe))
            for s in dma(0): e(s)
            e(f"s_branch ENTER{'S' if safe else 'F'}")
    else:
        for s in dma(1): e(s)
        e("s_waitcnt lgkmcnt(0)")
        for s in mads(): e(s)
        for s in memphase(0, 0): e(s)
        e(mfext(0))
        e("s_nop 7")
        e("s_nop 1")
        stamp(11); stamp(28, True)
        e(f"s_cmp_lg_u32 s{S_SAFE}, 0")
        e("s_cbranch_scc1 ENTERS")
        e("s_branch ENTERF")

    lab("R_COMPACT")
    e("s_barrier")
    fill_list(40)
    e(f"v_add_lshl_u32 v38, v36, v{V_LANE}, 5")
    e(f"v_add_u32 v38, {L_LIST}, v38")
    e(f"v_sub_u32 v38, v38, v{V_L0}")
    e("v_add_u32 v39, v39, v38")
    for k in range(16): e(f"ds_bpermute_b32 v{113+2*k}, v{113+2*k}, v38")
    e(f"v_lshl_add_u32 v45, v{V_COL}, 2, v{V_GB}")
    e(f"s_bfm_b64 exec, {NPB}, 0")
    e("ds_write_b32 v45, v39")
    e("s_mov_b64 exec, -1")
    e("s_waitcnt lgkmcnt(0)")
    e("s_barrier")
    for k in range(16): e(f"v_add_u32 v{T+k}, v{T+k}, v{113+2*k}")
    list_writes("R_D")
    e(f"s_mov_b32 s{S_EARLY}, 0")
    e("s_branch R_TABLE")
    lab("WAVE_REDO")
    e("s_waitcnt vmcnt(0)")
    wave_reset()
    first_tile()
    e("s_branch WAVE_GO")

    mainloop(False)
    mainloop(True)

    lab("NEXTR")
    e(f"s_add_u32 s{S_RB}, s{S_RB}, s{S_WN}")
    lab("NEXT_ROUND")
    e("s_setprio 0")
    e("s_waitcnt vmcnt(0) lgkmcnt(0)")
    e("s_barrier")
    init_tables(32)
    e("s_waitcnt lgkmcnt(0)")
    e("s_barrier")
    static_writes(32, "B")
    e(f"v_mul_u32_u24 v33, {DS}, v{V_CHK}")
    desc_soff()
    e(f"buffer_load_dwordx2 v[34:35], v33, {sr(S_WS)}, s5 offen sc1")
    e("s_waitcnt vmcnt(0) lgkmcnt(0)")
    e("s_barrier")
    e("s_branch POLL1")

    out.append(".p2align 3")
    lab("DRAIN")
    e("s_waitcnt lgkmcnt(0)")
    e(f"s_cmp_lg_u32 s{S_MORE}, 0")
    for ct in range(4): e(mfsel(ct))
    stamp(12); stamp(29, True)
    e("s_cbranch_scc1 NEXTR")
    e(f"v_lshrrev_b32 v96, 5, v{V_LANE}")
    e(f"v_and_b32 v97, 31, v{V_LANE}")
    e("v_mul_u32_u24 v97, 272, v97")
    e("v_lshl_add_u32 v97, v96, 4, v97")
    e(f"v_add_u32 v97, s{S_M0[0]}, v97")
    e(f"s_mov_b32 s6, {hex(f2u(2.0**120))}")
    e(f"v_cmp_nge_f32 s[76:77], s6, v{V_DMAX}")
    e(f"v_lshrrev_b32 v98, 3, v{V_TID}")
    e(f"v_and_b32 v99, 7, v{V_TID}")
    O = D
    cv = lambda ct: [f"v_cvt_pk_bf16_f32 v{64+8*ct+i}, v{H+16*ct+2*i}, v{H+16*ct+2*i+1}" for i in range(8)]
    for s in cv(0): e(s)
    rest = [f"v_cmp_le_u32 vcc, {SPLIT}, v98", "v_mul_u32_u24 v100, 272, v98", "v_lshl_add_u32 v100, v99, 5, v100",
            f"v_add_u32 v101, {4*TBW - SPLIT*272}, v100", "v_cndmask_b32 v100, v100, v101, vcc",
            "v_lshlrev_b32 v101, 2, v98", "v_lshlrev_b32 v102, 5, v99", "v_lshlrev_b32 v103, 15, v98"]
    for ct in range(4):
        nxt = cv(ct + 1) if ct < 3 else rest
        for s in range(2):
            for mt in range(2):
                ks = 2 * ct + s
                for x in nxt[4*s + 2*mt: 4*s + 2*mt + 2]: e(x)
                e(mf16(O[mt], w2f(ks, mt), 64 + 4*ks, "0" if ks == 0 else vr(O[mt], 16)))
    e("v_lshl_add_u32 v103, v99, 4, v103")
    e(f"s_lshl_b32 s5, s{S_B}, 7")
    e("v_add_u32 v103, s5, v103")
    e("s_movk_i32 s7, 0x207")
    e("s_waitcnt vmcnt(0)")
    e("s_nop 5")
    e(f"v_cmp_class_f32 vcc, v{O[0]}, s7")
    e("s_or_b64 s[76:77], s[76:77], vcc")
    e("s_cbranch_scc0 EPI_OK")
    e(f"s_cmp_lg_u32 s{S_SAFE}, 0")
    e("s_cbranch_scc1 EPI_OK")
    e(f"s_mov_b32 s{S_SAFE}, 1")
    for i in range(64): e(f"v_mov_b32 v{H+i}, 0")
    e("s_branch WAVE_REDO")
    lab("EPI_OK")
    for mt in range(2):
        for q in range(4):
            e(f"ds_write_b128 v97, {vr(O[mt]+4*q,4)} offset:{128*mt+32*q}")
    e(f"ds_read_b128 v[32:35], v102 offset:{L_B2}")
    e(f"ds_read_b128 v[36:39], v102 offset:{L_B2+16}")
    e(f"v_cmp_gt_u32 vcc, {NPB}, v98")
    e(f"s_or_b32 s6, s2, s{S_W}")
    e("s_cbranch_scc1 EPI_NE")
    e(f"v_mov_b32 v42, s{S_TAGB}")
    e(f"v_mov_b32 v43, s{S_TAGA}")
    e("v_mov_b32 v44, 0")
    e("s_mov_b64 exec, 1")
    e(f"buffer_store_dwordx2 v[42:43], v44, {sr(S_WS)}, 0 offen offset:{WS_EPOCH}")
    e("s_mov_b64 exec, -1")
    lab("EPI_NE")
    e("s_waitcnt lgkmcnt(0)")
    e("s_barrier")
    stamp(13)
    e("s_and_b64 exec, exec, vcc")
    e("s_cbranch_execz K_FIN")
    e(f"ds_read_b32 v40, v101 offset:{L_DEG}")
    for s in range(4):
        e(f"ds_read_b128 {vr(64+8*s,4)}, v100 offset:{L_TB+s*TBW}")
        e(f"ds_read_b128 {vr(68+8*s,4)}, v100 offset:{L_TB+s*TBW+16}")
    e(f"s_mov_b32 s6, {hex(f2u(-LN2))}")
    e("s_mov_b32 s7, s6")
    e("s_waitcnt lgkmcnt(8)")
    e("v_cvt_f32_u32 v40, v40")
    for i in range(4): e(f"v_pk_mul_f32 {vr(32+2*i,2)}, {vr(32+2*i,2)}, v[40:41] op_sel_hi:[1,0]")
    for s in range(4):
        e(f"s_waitcnt lgkmcnt({6-2*s})")
        for i in range(4): e(f"v_pk_fma_f32 {vr(32+2*i,2)}, {vr(64+8*s+2*i,2)}, s[6:7], {vr(32+2*i,2)}")
    for i in range(4): e(f"v_cvt_pk_bf16_f32 v{44+i}, v{32+2*i}, v{33+2*i}")
    e(f"buffer_store_dwordx4 v[44:47], v103, {sr(S_OUT)}, 0 offen")
    lab("K_FIN")
    if AMP[0] >= 0:
        if AMP[1] == 14:
            e("s_waitcnt vmcnt(0)")
            stamp(14)
        e("s_sub_u32 s100, s100, s98")
        if AMP[2] >= 0:
            e(f"s_cmp_eq_u32 s2, {AMP[2]}")
            e("s_cselect_b32 s100, s100, 0")
        e("s_add_u32 s100, s100, 6000")
        lab("AMPL")
        e("s_memrealtime s[98:99]")
        e("s_waitcnt lgkmcnt(0)")
        e("s_sub_u32 s98, s98, s96")
        e("s_cmp_lt_u32 s98, s100")
        e("s_cbranch_scc1 AMPL")
    if SPIN >= 0:
        lab("SPINL")
        e("s_memrealtime s[98:99]")
        e("s_waitcnt lgkmcnt(0)")
        e("s_sub_u32 s98, s98, s96")
        e("s_cmp_lt_u32 s98, 6000")
        e("s_cbranch_scc1 SPINL")
    if DIAG:
        e("s_mov_b64 exec, -1")
        e("s_waitcnt vmcnt(0)")
        stamp(14); stamp(31, True)
        e(f"v_writelane_b32 v255, s{S_NT}, 27")
        e("s_lshl_b32 s5, s2, 11")
        e(f"s_add_u32 s5, s5, {WS_STAMP}")
        e(f"v_lshlrev_b32 v1, 2, v{V_TID}")
        e(f"buffer_store_dword v255, v1, {sr(S_WS)}, s5 offen")
    lab("K_END")
    e("s_endpgm")
    if CPF: out.append(".set CODE_REST, K_END - CPF_PC")

hdr = open("standalone__edge_featured_mpnn_mpnn__graph.s.ref").read().split("; Override")[0]
out.append(hdr.rstrip())
out.append(f"; @launch grid=(256,1,1) block=(512,1,1) lds={L_END}")
out.append('.amdgcn_target "amdgcn-amd-amdhsa--gfx950"')
out.append(".text")
out.append(f".globl {KN}")
out.append(f".p2align {AL}")
out.append(f".type {KN},@function")
kernel()
out.append(f""".section .rodata,"a"
.p2align 6
.amdhsa_kernel {KN}
  .amdhsa_next_free_vgpr 256
  .amdhsa_next_free_sgpr 102
  .amdhsa_accum_offset 256
  .amdhsa_group_segment_fixed_size 0
  .amdhsa_kernarg_size 88
  .amdhsa_user_sgpr_count 2
  .amdhsa_user_sgpr_kernarg_segment_ptr 1
  .amdhsa_system_sgpr_workgroup_id_x 1
.end_amdhsa_kernel""")
dst = sys.argv[1] if len(sys.argv) > 1 else "standalone__edge_featured_mpnn_mpnn__graph.s"
open(dst, "w").write("\n".join(out) + "\n")
print("written", dst, "LDS", L_END)
```

```python
import struct, sys, os
import numpy as np
from align import align, isize

N, E = 12500, 800000
NPB, SPLIT = 49, 25
CH, CHS, GCS, DS = 3128, 25088, 25216, 2176
NQ, NQL = CH // 4, (E - 255 * CH) // 4
LOG2E = 1.4426950408889634
LN2 = 0.6931471805599453
KN = "standalone__edge_featured_mpnn_mpnn__graph_kernel"
DIAG = int(os.environ.get("DIAG", "0"))
PREF = int(os.environ.get("PREF", "0"))
X_NOP = int(os.environ.get("X_NOP", "0"))
STF = os.environ.get("STF", "sc1")
LDF = os.environ.get("LDF", "")
TRANS = int(os.environ.get("TRANS", "0"))
ELF = os.environ.get("ELF", "")
SLP = int(os.environ.get("SLP", "1"))
ORD = int(os.environ.get("ORD", "2"))
PFL = 0
PSF = os.environ.get("PSF", "sc1")
CL = int(os.environ.get("CL", "1"))
W5 = int(os.environ.get("W5", "0"))
OWN = int(os.environ.get("OWN", "1"))
POST = int(os.environ.get("POST", "16"))
LATEI = int(os.environ.get("LATEI", "1"))
AL = int(os.environ.get("AL", "12"))
CPF = int(os.environ.get("CPF", "1"))
CPF0 = int(os.environ.get("CPF0", "0"))
PEEL = int(os.environ.get("PEEL", "1"))
STOUCH = int(os.environ.get("STOUCH", "0"))
TOUCH = int(os.environ.get("TOUCH", "0"))

def f2u(x): return struct.unpack("<I", struct.pack("<f", x))[0]
def u2f(u): return struct.unpack("<f", struct.pack("<I", u))[0]

WS_EPOCH = 0
WSOFF = int(os.environ.get("WSOFF", "0")) << 20
WS_PT = WSOFF + 4096
WS_DESC = WS_PT + 12544 * 256
WS_FLAG = WS_DESC + 256 * DS
WS_PFLAG = WS_FLAG + 8 * DS
WS_ENT = WS_PFLAG + 8 * DS
WS_SIZE = WS_ENT + 256 * GCS
XT = os.environ.get("XT", "")
if XT: WS_SIZE += 256 * GCS
WS_STAMP = 12 << 20
if DIAG: WS_SIZE = 16 << 20

L_CNT1, L_BASE1 = 0, 1024
L_CNT2, L_FLAG, L_DEG, L_B2 = 2048, 2304, 2368, 2816
L_B1 = 0
L_EXT = 3072
L_TB = 4096
TBW = 8704
L_STG, L_W1S, L_XS = L_TB, L_TB + CHS, L_TB + CHS + 32768
PS = 272
assert L_XS + 8704 <= L_TB + 8 * TBW and L_W1S % 256 == 0
HT, GTH = 60, 72
L_SEL = L_TB + 8 * TBW
SELS, SELSZ = 200, 24576
assert 2 * HT * SELS + 56 <= SELSZ
L_GT = L_SEL + SELSZ
L_QT = L_GT + 2 * GTH * 16
QS = 328
L_PS = L_QT
assert L_PS % 16 == 0
L_W2 = (L_QT + NPB * QS + 255) // 256 * 256
L_LIST = L_W2 + 16384
LS, LCAP = 528, 128
LISTSZ = (NPB + 1) * LS
L_END = L_LIST + LISTSZ
assert L_END <= 163840, L_END
PADENT = 0x00007000
PSH = 3072
WSLOW = 6

out = []
def e(s): out.append("    " + s)
def lab(s): out.append(s + ":")
def c(s): out.append("    ; " + s)
def vr(a, n): return f"v[{a}:{a+n-1}]"
def sr(a, n=4): return f"s[{a}:{a+n-1}]"

SPIN = int(os.environ.get("SPIN", "-1"))
AMP = [int(x) for x in os.environ.get("AMP", "-1,-1,-1").split(",")]
def stamp(i, real=False):
    if AMP[0] >= 0:
        if i == 0: e("s_memrealtime s[96:97]")
        if i == AMP[0]:
            if i: e("s_waitcnt lgkmcnt(0)")
            e("s_memtime s[98:99]")
            if i: e("s_waitcnt lgkmcnt(0)")
        if i == AMP[1]:
            e("s_waitcnt lgkmcnt(0)")
            e("s_memtime s[100:101]")
            e("s_waitcnt lgkmcnt(0)")
    if SPIN == i:
        e("s_waitcnt lgkmcnt(0)")
        e("s_memrealtime s[96:97]")
        e("s_waitcnt lgkmcnt(0)")
    if not DIAG: return
    if DIAG in (2, 4) and i not in (0, 30, 28, 29, 31, 11, 12, 14, 9): return
    if DIAG == 3 and i in (0, 30, 15, 16): return
    e("s_waitcnt lgkmcnt(0)")
    e(f"{'s_memrealtime' if real else 's_memtime'} s[98:99]")
    e("s_waitcnt lgkmcnt(0)")
    e(f"v_writelane_b32 v255, s98, {i}")

lazy = []
def lstamp(i):
    if DIAG != 3: return
    r = 52 + 2 * len(lazy)
    e(f"s_memtime s[{r}:{r+1}]")
    lazy.append((i, r))
def lflush():
    for i, r in lazy: e(f"v_writelane_b32 v255, s{r}, {i}")

def scan64(v):
    for sh in (1, 2, 4, 8):
        e("s_nop 1")
        e(f"v_add_u32_dpp v{v}, v{v}, v{v} row_shr:{sh} row_mask:0xf bank_mask:0xf bound_ctrl:1")
    e("s_nop 1")
    e(f"v_add_u32_dpp v{v}, v{v}, v{v} row_bcast:15 row_mask:0xa bank_mask:0xf")
    e("s_nop 1")
    e(f"v_add_u32_dpp v{v}, v{v}, v{v} row_bcast:31 row_mask:0xc bank_mask:0xf")

H = 176
C = (144, 160)
D = (112, 128)
T = 96
P = 80
SL = 76
BX = (72, 74)
IDX, IDR = 64, 68
NN, DD, RR, AX, CX, V_M = 16, 18, 20, 22, 24, 26
V_CA, V_DMAC, V_LI, V_LM, V_GQA, V_SELA, V_PSEL, V_QMUL, V_QC, V_GQ, V_QA, V_DMAX, V_TID, V_LANE, V_GIA = range(1, 16)
V_GMA, V_LIO, V_LMO = 28, 29, 30
V_SAVE = 240
V_CHK, V_J0, V_W2A = 244, 245, 246
S_X, S_E, S_SRC, S_DST, S_W1, S_B1, S_W2, S_B2, S_OUT, S_WS, S_P = 8, 12, 16, 20, 24, 28, 92, 36, 40, 44, 48
S_MASK = 8
S_SOFF = 52
S_256, S_REM, S_M0, S_WN, S_RB, S_MORE, S_SAFE, S_NT, S_EARLY, S_TAGA, S_TAGB, S_SPIN = 60, 61, (62, 63), 64, 65, 66, 67, 68, 69, 72, 73, 70
S_B, S_W = 3, 4

def mf16(d, a, b, cc): return f"v_mfma_f32_32x32x16_bf16 {vr(d,16)}, {vr(a,4)}, {vr(b,4)}, {cc}"
def mfext(ct): return f"v_mfma_f32_32x32x8_bf16 {vr(D[ct&1],16)}, {vr(AX,2)}, {vr(BX[ct&1],2)}, {vr(C[ct&1],16)}"
def mfsel(ct): return mf16(H + 16 * ct, P + 4 * ct, SL, vr(H + 16 * ct, 16))
def dma(half):
    return [f"buffer_load_dwordx4 v{IDX+j}, {sr(S_P)}, s{S_SOFF+4*half+j} offen offset:{1024*j} lds" for j in range(4)]
def mads(src=IDR): return [f"v_mad_i32_i16 v{IDX+j}, v{src+j}, s{S_256}, v{V_DMAC}" for j in range(4)]
def c_reads(half):
    L = []
    for ctl in range(2):
        for r in range(16):
            mm = r >> 1
            L.append(f"ds_read_u16_d16_hi v{C[ctl]+r}, v{V_CA} offset:{half*4096 + (mm&3)*1024 + (2*(r&1) + (mm>>2))*128 + ctl*64}")
    return L
def tr_read(ct): return f"ds_read_b64_tr_b16 {vr(BX[ct&1],2)}, v{V_QA} offset:{64*ct}"
AXB = f"v_pk_mul_f32 {vr(AX,2)}, {vr(CX,2)}, {vr(V_M,2)} op_sel_hi:[1,0]"
QAB = f"v_mad_u32_u24 v{V_QA}, v{V_GQ}, v{V_QMUL}, v{V_QC}"
PERM = f"v_perm_b32 v{V_M}, v{V_M}, v{V_M}, v{V_PSEL}"

def block(tau, ct, safe, gate=False, last=False):
    cur = D[ct & 1]
    pc, pt = (ct - 1) & 3, (tau if ct > 0 else (tau - 1) & 3)
    tr = [f"v_exp_f32 v{T+i}, v{cur+i}" for i in range(16)] + [f"v_rcp_f32 v{RR}, v{DD}", f"v_rcp_f32 v{RR+1}, v{DD+1}"]
    mf = [] if last else [mfext((ct + 1) & 3)]
    if tau == 0: mf.append(mfsel(ct))
    fill = []
    if ct == 0: fill += [f"v_add_u32 v{V_LI}, v{V_LI}, v{V_LIO}", f"v_add_u32 v{V_LM}, v{V_LM}, v{V_LMO}"]
    if ct == 1: fill += mads() + [PERM]
    if ct == 2:
        fill += [QAB]
        if tau == 3:
            fill += [f"v_add_u32 v{V_GIA}, 256, v{V_GIA}", f"v_add_u32 v{V_GMA}, 256, v{V_GMA}",
                     f"v_add_u32 v{V_GQA}, 256, v{V_GQA}", f"v_add_u32 v{V_SELA}, {16*SELS}, v{V_SELA}"]
    fill.append(f"v_max3_f32 v{V_DMAX}, v{DD}, v{DD+1}, v{V_DMAX}")
    L = []
    k = 0
    if gate:
        L += [tr[0], "s_setprio 3"]; k = 1
    for m in mf:
        L.append(m); L += tr[k:k+4]; k += 4
    L += tr[k:] + fill
    L.append(f"v_pk_mul_f32 {vr(RR,2)}, {vr(NN,2)}, {vr(RR,2)}")
    cvt = f"v_cvt_pk_bf16_f32 v{P+4*pc+pt}, v{RR}, v{RR+1}"
    if not safe:
        L += [f"v_pk_add_f32 {vr(DD,2)}, {vr(T,2)}, 1.0 op_sel_hi:[1,0]", cvt]
        if ct == 2: L.append(AXB)
        for j in range(1, 8):
            n_in = vr(cur, 2) if j == 1 else vr(NN, 2)
            L += [f"v_pk_fma_f32 {vr(NN,2)}, {n_in}, {vr(T+2*j,2)}, {n_in}",
                  f"v_pk_fma_f32 {vr(NN,2)}, {vr(cur+2*j,2)}, {vr(DD,2)}, {vr(NN,2)}",
                  f"v_pk_fma_f32 {vr(DD,2)}, {vr(DD,2)}, {vr(T+2*j,2)}, {vr(DD,2)}"]
    else:
        L += [f"v_pk_add_f32 {vr(T+2*j,2)}, {vr(T+2*j,2)}, 1.0 op_sel_hi:[1,0]" for j in range(8)] + [cvt]
        if ct == 2: L.append(AXB)
        L += [f"v_rcp_f32 v{T+i}, v{T+i}" for i in range(16)]
        L.append(f"v_pk_mul_f32 {vr(NN,2)}, {vr(cur,2)}, {vr(T,2)}")
        L += [f"v_pk_fma_f32 {vr(NN,2)}, {vr(cur+2*j,2)}, {vr(T+2*j,2)}, {vr(NN,2)}" for j in range(1, 8)]
    return L

def memphase(tau, half):
    L = ["s_setprio 0", "s_waitcnt vmcnt(4)"]
    L += c_reads(half) + [tr_read(2 * half), tr_read(2 * half + 1)]
    if half == 0:
        L += [f"ds_read_u16 v{V_LI}, v{V_GIA} offset:{(tau+2)*64}",
              f"ds_read_u16 v{V_LM}, v{V_GMA} offset:{(tau+1)*64}"]
    if half == 1:
        L += [f"ds_read_b128 {vr(IDR,4)}, v{V_LI}",
              f"ds_read_b32 v{V_M}, v{V_LM}",
              f"ds_read_u16 v{V_GQ}, v{V_GQA} offset:{(tau+1)*64+2}"]
        if tau == 1: L.append(f"ds_read_b32 v{SL}, v{V_SELA}")
        if tau >= 1: L.append(f"ds_read_b32 v{SL+tau}, v{V_SELA} offset:{tau*4*SELS}")
    if DIAG == 4 and half == 1: L = ["s_memtime s[98:99]"] + L
    L += [f"s_mov_b32 m0, s{S_M0[half]}", "s_waitcnt lgkmcnt(0)"]
    L += dma(half)
    if DIAG == 4 and half == 1: L += [f"s_add_u32 m0, s{S_REM}, 32", "s_nop 0", "v_writelane_b32 v255, s98, m0"]
    return L

def w2f(ks, mt): return (32 if ks < 4 else 144) + 8 * (ks & 3) + 4 * mt
def w2_reads():
    return [f"ds_read_b64_tr_b16 {vr(w2f(ks,mt)+2*t,2)}, v{27 if mt else V_W2A} offset:{2048*ks+1024*t}"
            for ks in range(8) for mt in range(2) for t in range(2)]

def emit(L):
    L = align(L)
    assert sum(isize(x) for x in L) % 8 == 0
    for s in L: e(s)

def mainloop(safe):
    x = "S" if safe else "F"
    out.append(".p2align 6")
    lab(f"LOOP{x}")
    for tau in range(4):
        c(f"==== tile slot {tau}")
        emit(memphase(tau, 0))
        emit(block((tau - 1) & 3, 3, safe, gate=True))
        if tau == 0 and not PEEL: lab(f"ENTER{x}")
        emit(block(tau, 0, safe))
        if tau == 0 and PEEL: lab(f"ENTER{x}")
        emit(memphase(tau, 1))
        emit(block(tau, 1, safe, gate=True))
        emit(block(tau, 2, safe))
        e(f"s_sub_u32 s{S_REM}, s{S_REM}, 1")
        if tau < 3: e(f"s_cbranch_scc1 TAIL{x}{tau}")
        else: e(f"s_cbranch_scc0 LOOP{x}")
    for tau in (3, 0, 1, 2):
        lab(f"TAIL{x}{tau}")
        emit(["s_setprio 0", f"v_xor_b32 v27, 64, v{V_W2A}"] + w2_reads())
        emit(block(tau, 3, safe, gate=True, last=True))
        if tau == 0: e(f"ds_read_b32 v{SL}, v{V_SELA}")
        e(f"v_rcp_f32 v{RR}, v{DD}")
        e(f"v_rcp_f32 v{RR+1}, v{DD+1}")
        e(f"v_max3_f32 v{V_DMAX}, v{DD}, v{DD+1}, v{V_DMAX}")
        e(f"v_pk_mul_f32 {vr(RR,2)}, {vr(NN,2)}, {vr(RR,2)}")
        for t2 in range(tau + 1, 4): e(f"v_mov_b32_e64 v{SL+t2}, 0")
        e(f"v_cvt_pk_bf16_f32 v{P+12+tau}, v{RR}, v{RR+1}")
        e("s_nop 0")
        e("s_branch DRAIN")

def find_cx(target):
    m = np.float64(u2f(0x00FF0000))
    g = f2u(float(np.float32(np.float64(u2f(target)) / m)))
    for d in range(-3, 4):
        if f2u(float(np.float32(np.float64(u2f(g + d)) * m))) == target: return g + d
    raise SystemExit("no cx")

V_GV, V_GB, V_SB, V_L0, V_COL = 247, 248, 249, 250, 251

def fill_list(t):
    e(f"v_lshlrev_b32 v{t+8}, 4, v{V_TID}")
    e(f"v_add_u32 v{t+9}, {L_LIST}, v{t+8}")
    for i in range(4): e(f"v_mov_b32 v{t+i}, {hex(PADENT)}")
    for o in (0, 8192, 16384, LISTSZ - 8192): e(f"ds_write_b128 v{t+9}, {vr(t,4)} offset:{o}")

def init_tables(t):
    fill_list(t)
    for i in range(4): e(f"v_mov_b32 v{t+4+i}, 0")
    e(f"v_add_u32 v{t+8}, {L_SEL}, v{t+8}")
    for o in (0, 8192, 16384): e(f"ds_write_b128 v{t+8}, {vr(t+4,4)} offset:{o}")
    e(f"v_min_u32 v{t+8}, {GTH*4-1}, v{V_TID}")
    e(f"v_lshlrev_b32 v{t+8}, 3, v{t+8}")
    e(f"v_add_u32 v{t+8}, {L_GT}, v{t+8}")
    e(f"v_mov_b32 v{t+10}, {NPB*LS}")
    e(f"v_mov_b32 v{t+11}, {NPB*LS}")
    e(f"ds_write_b64 v{t+8}, {vr(t+10,2)}")

def static_writes(t, tag):
    e(f"s_cmp_eq_u32 s{S_W}, 1")
    e(f"s_cbranch_scc0 STW{tag}")
    e(f"v_lshlrev_b32 v{t}, 2, v{V_LANE}")
    e(f"v_mov_b32 v{t+1}, 0")
    e(f"ds_write_b32 v{t}, v{V_L0} offset:{L_CNT2}")
    e(f"ds_write_b32 v{t+1}, v{t+1} offset:{L_FLAG}")
    e(f"v_lshl_add_u32 v{t}, v{V_COL}, 2, v{V_GB}")
    e(f"v_lshrrev_b32 v{t+1}, 1, v{V_COL}")
    e(f"v_mul_u32_u24 v{t+1}, {SELS//2}, v{t+1}")
    e(f"v_and_b32 v{t+2}, 1, v{V_COL}")
    e(f"v_lshl_add_u32 v{t+1}, v{t+2}, 1, v{t+1}")
    e(f"v_add_u32 v{t+1}, v{t+1}, v{V_SB}")
    e(f"v_mov_b32 v{t+2}, 0x3f80")
    e(f"s_bfm_b64 exec, {NPB}, 0")
    e(f"ds_write_b32 v{t}, v{V_GV}")
    e(f"ds_write_b16 v{t+1}, v{t+2}")
    e("s_mov_b64 exec, -1")
    lab(f"STW{tag}")

def desc_soff():
    e(f"s_lshr_b32 s5, s{S_B}, 2")
    e(f"s_and_b32 s7, s{S_B}, 1")
    e("s_lshl1_add_u32 s5, s5, s7")
    e(f"s_and_b32 s7, s{S_B}, 2")
    e("s_lshl_b32 s7, s7, 6")
    e("s_add_u32 s5, s5, s7")
    e(f"s_lshl3_add_u32 s5, s5, {WS_DESC}")

def flag_load(first=False):
    if first:
        e(f"v_lshlrev_b32 v62, 3, v{V_CHK}")
        e("s_and_b32 s84, s2, 7")
        e(f"s_mul_i32 s84, s84, {DS}")
        e(f"s_add_u32 s84, s84, {WS_FLAG}")
    e(f"buffer_load_dwordx2 v[60:61], v62, {sr(S_WS)}, s84 offen sc1")

def wave_reset():
    e(f"v_mov_b32 v{V_GIA}, v{V_SAVE}")
    e(f"v_mov_b32 v{V_GMA}, v{V_SAVE+1}")
    e(f"v_mov_b32 v{V_GQA}, v{V_SAVE+2}")
    e(f"v_mov_b32 v{V_SELA}, v{V_SAVE+3}")
    e(f"ds_read_u16 v{V_LI}, v{V_GIA}")
    e(f"ds_read_u16 v{V_LM}, v{V_GMA}")
    e(f"ds_read_u16 v{V_GQ}, v{V_GQA} offset:2")
    for i in range(2):
        e(f"v_mov_b32 v{NN+i}, 0")
        e(f"v_mov_b32 v{DD+i}, 1.0")
    e(f"v_mov_b32 v{V_DMAX}, 0")
    for r in list(range(SL, SL + 20, 2)) + list(range(C[0], C[0] + 32, 2)):
        e(f"v_pk_mul_f32 {vr(r,2)}, {vr(NN,2)}, {vr(NN,2)}")
    e("s_waitcnt lgkmcnt(0)")
    e(f"v_add_u32 v{V_LI}, v{V_LI}, v{V_LIO}")
    e(f"v_add_u32 v{V_LM}, v{V_LM}, v{V_LMO}")
    e(QAB)

def first_tile(mid=None):
    e(f"ds_read_b128 {vr(IDX,4)}, v{V_LI}")
    e(f"ds_read_b32 v{V_M}, v{V_LM}")
    n = 1
    if mid: n += mid()
    e(f"s_mov_b32 m0, s{S_M0[0]}")
    e(f"s_waitcnt lgkmcnt({n})")
    for s in mads(IDX): e(s)
    for s in dma(0): e(s)

def kernel():
    lab(KN)
    e("s_cmpk_ge_u32 s2, 256")
    e("s_cbranch_scc1 K_END")
    if DIAG: e("v_mov_b32 v255, 0")
    stamp(30, True); stamp(0); lstamp(0)
    for s, off in ((S_DST, 24), (S_X, 0), (S_W1, 32), (S_WS, 80), (S_SRC, 16), (S_E, 8)):
        e(f"s_load_dwordx2 {sr(s,2)}, s[0:1], {off}")
    if CPF == 1:
        e("s_getpc_b64 s[90:91]")
        lab("CPF_PC")
        e("s_and_b32 s5, s2, -8")
        e("v_subrev_u32 v18, 504, v0")
        e("v_add_lshl_u32 v16, v18, s5, 7")
        e("v_add_u32 v16, 2048, v16")
        e("v_min_u32 v16, CODE_REST, v16")
        e("v_mov_b32 v17, s91")
        e("v_add_co_u32 v16, vcc, s90, v16")
        e("v_cmp_gt_u32 s[76:77], 8, v18")
        e("s_nop 0")
        e("v_addc_co_u32 v17, vcc, 0, v17, vcc")
        e("s_mov_b64 exec, s[76:77]")
        e("s_cbranch_execz CPF_E")
        e("global_load_dword v18, v[16:17], off")
        lab("CPF_E")
        e("s_mov_b64 exec, -1")
    e(f"v_readfirstlane_b32 s{S_W}, v0")
    e(f"v_and_b32 v{V_LANE}, 63, v0")
    e("v_mov_b32 v88, 0")
    e("v_mov_b32 v89, 0")
    e("v_lshlrev_b32 v92, 3, v0")
    e("ds_write_b64 v92, v[88:89]")
    e(f"s_mov_b32 s{S_DST+3}, 0x00020000")
    e(f"s_mov_b32 s{S_DST+2}, {E*4}")
    e(f"s_mov_b32 s{S_X+2}, {N*128}")
    e(f"s_mov_b32 s{S_X+3}, s{S_DST+3}")
    e(f"s_mov_b32 s{S_W1+2}, {129*256}")
    e(f"s_mov_b32 s{S_W1+3}, s{S_DST+3}")
    e(f"s_lshr_b32 s{S_W}, s{S_W}, 6")
    e(f"s_and_b32 s{S_B}, s2, 7")
    e(f"s_lshl_b32 s{S_B}, s{S_B}, 5")
    e("s_lshr_b32 s5, s2, 3")
    e(f"s_add_u32 s{S_B}, s{S_B}, s5")
    e(f"s_mul_i32 s5, s2, {CH*4}")
    e("v_lshl_add_u32 v32, v0, 4, s5")
    e("s_cmpk_eq_u32 s2, 255")
    e(f"s_movk_i32 s6, {NQ-512}")
    e(f"s_cmovk_i32 s6, {NQL-512}")
    e("v_cmp_gt_u32 s[74:75], s6, v0")
    e(f"v_lshrrev_b32 v37, 4, v{V_LANE}")
    e(f"v_lshrrev_b32 v47, 3, v{V_LANE}")
    e(f"v_and_b32 v48, 7, v{V_LANE}")
    e("v_and_b32 v45, 1, v37")
    e("v_and_b32 v58, 4, v47")
    e("v_and_b32 v59, 1, v47")
    e("v_lshl_add_u32 v58, v59, 1, v58")
    e("v_add_u32 v58, v58, v45")
    e("v_xor_b32 v59, v48, v37")
    e("v_lshlrev_b32 v59, 4, v59")
    e("v_lshl_add_u32 v58, v58, 15, v59")
    e(f"s_lshl_b32 s85, s{S_W}, 11")
    e(f"s_add_u32 s5, s85, s{S_B}")
    e("s_lshl_b32 s5, s5, 7")
    e("v_add_u32 v58, s5, v58")
    e("v_lshlrev_b32 v31, 2, v37")
    e(f"v_xor_b32 v31, v31, v{V_LANE}")
    e("v_lshlrev_b32 v31, 4, v31")
    e(f"s_mul_i32 s84, s{S_W}, 1088")
    e(f"s_add_u32 m0, s84, {L_XS}")
    e("s_movk_i32 s86, 8192")
    lstamp(21)
    e("s_waitcnt lgkmcnt(0)")
    lstamp(22)
    e(f"buffer_load_dwordx4 v[64:67], v32, {sr(S_DST)}, 0 offen {LDF}")
    e("s_mov_b64 exec, s[74:75]")
    e("s_cbranch_execz P0_ND")
    e(f"buffer_load_dwordx4 v[68:71], v32, {sr(S_DST)}, s86 offen {LDF}")
    lab("P0_ND")
    e("s_mov_b64 exec, -1")
    e("s_barrier")
    e(f"buffer_load_dwordx4 v58, {sr(S_X)}, 0 offen lds")
    e(f"s_add_u32 m0, s85, {L_W1S}")
    e(f"s_load_dwordx2 s[78:79], {sr(S_WS,2)}, {WS_EPOCH}")
    for k in range(2): e(f"buffer_load_dwordx4 v31, {sr(S_W1)}, s85 offen offset:{1024*k} lds")
    lab("P0_ISS")
    stamp(15); lstamp(15)
    for s, off in ((S_B1, 40), (S_W2, 48), (S_B2, 56), (S_OUT, 64)):
        e(f"s_load_dwordx2 {sr(s,2)}, s[0:1], {off}")
    e(f"v_mov_b32 v{V_TID}, v0")
    for s, sz in ((S_SRC, E*4), (S_E, E*2), (S_B1, 256), (S_W2, 16384), (S_B2, 128), (S_WS, WS_SIZE), (S_OUT, N*128), (S_P, 256*NPB*256 + PSH)):
        e(f"s_mov_b32 s{s+2}, {sz}")
        e(f"s_mov_b32 s{s+3}, s{S_DST+3}")
    e(f"s_mov_b32 s80, {hex(f2u(-LOG2E))}")
    e("s_mov_b32 s81, s80")
    e(f"v_lshrrev_b32 v38, 5, v{V_LANE}")
    e(f"v_and_b32 v39, 31, v{V_LANE}")
    e("v_bfe_u32 v40, v39, 2, 1")
    e("v_and_b32 v41, 1, v39")
    e("v_lshl_add_u32 v40, v40, 1, v41")
    e("v_lshrrev_b32 v42, 3, v39")
    e("v_bfe_u32 v43, v39, 1, 1")
    e(f"v_bfe_u32 v44, v{V_LANE}, 2, 2")
    e(f"v_and_b32 v46, 3, v{V_LANE}")
    e("v_lshlrev_b32 v46, 3, v46")
    e("v_lshl_add_u32 v46, v45, 5, v46")
    e(f"s_and_b32 s82, s{S_W}, 3")
    e(f"s_lshr_b32 s83, s{S_W}, 2")
    e("v_xor_b32 v50, s82, v44")
    e("v_lshl_add_u32 v50, v50, 6, v46")
    e("v_lshl_add_u32 v51, v38, 3, v44")
    e("v_lshl_add_u32 v50, v51, 8, v50")
    e("v_lshl_add_u32 v51, v40, 1, v43")
    e("v_mul_u32_u24 v52, 1088, v42")
    e("v_lshl_add_u32 v52, v51, 7, v52")
    e("s_mul_i32 s5, s83, 4352")
    e(f"s_add_u32 s5, s5, {L_XS}")
    e("v_add_u32 v52, s5, v52")
    e("v_xor_b32 v53, v38, v40")
    e("v_lshl_add_u32 v51, v53, 4, v52")
    e("v_xor_b32 v53, 2, v53")
    e("v_lshl_add_u32 v52, v53, 4, v52")
    e("s_lshl_b32 s5, s83, 5")
    e("v_add_u32 v55, s5, v39")
    e(f"v_cmp_gt_u32 s[88:89], {NPB}, v55")
    e("s_lshl_b32 s82, s82, 6")
    e("v_lshl_add_u32 v49, v38, 3, s82")
    e(f"v_add_u32 v56, {L_QT}, v49")
    e(f"v_mul_u32_u24 v53, {PS}, v55")
    e("v_add_u32 v53, v53, v56")
    e(f"v_mul_u32_u24 v54, {QS}, v55")
    e("v_add_u32 v54, v54, v56")
    assert PS == 272
    e(f"s_mov_b32 s7, {L_PS}")
    e("v_lshlrev_b32 v61, 4, v0")
    e("v_and_b32 v56, -16, v0")
    e("v_add3_u32 v62, v61, v56, s7")
    e(f"s_min_u32 s5, s{S_W}, 2")
    e(f"s_lshl2_add_u32 s5, s{S_W}, s5")
    e("s_add_u32 s5, s5, 64")
    e("s_lshl_b32 s5, s5, 3")
    e(f"v_add_u32 v55, s5, v{V_LANE}")
    e("v_lshlrev_b32 v63, 4, v55")
    e("v_and_b32 v56, -16, v55")
    e("v_add3_u32 v22, v63, v56, s7")
    e(f"s_cmp_lt_u32 s{S_W}, 2")
    e("s_cselect_b32 s71, 40, 32")
    lstamp(23)
    if not LATEI: init_tables(84)
    e(f"s_mul_i32 s6, s{S_B}, {NPB*256}")
    e(f"s_add_u32 s6, s6, {WS_PT}")
    e(f"s_mov_b32 s87, {128*256}")
    e("v_mov_b32 v55, 1")
    e(f"v_lshlrev_b32 v36, 2, v{V_LANE}")
    e("v_lshrrev_b32 v34, 1, v32")
    e("s_movk_i32 s84, 4096")
    stamp(16); lstamp(16)
    SD = "dst_sel:DWORD dst_unused:UNUSED_PAD src0_sel:DWORD"
    def binA(j):
        e(f"v_lshlrev_b32_sdwa v{112+j}, 2, v{64+j} {SD} src1_sel:BYTE_0")
        e(f"ds_add_rtn_u32 v{120+j}, v{112+j}, v55 offset:{L_CNT1}")
    def binB(j):
        e(f"v_lshlrev_b32_sdwa v{129+2*j}, 2, v{64+j} {SD} src1_sel:BYTE_1")
        if j % 2 == 0: e(f"v_lshlrev_b32 v56, 16, v{80+j//2}")
        else: e(f"v_and_b32 v56, 0xffff0000, v{80+j//2}")
        e(f"v_mul_u32_u24_sdwa v57, {NPB}, v{72+j} {SD} src1_sel:BYTE_0")
        e(f"v_add_u32_sdwa v57, v57, v{72+j} {SD} src1_sel:BYTE_1")
        e(f"v_or3_b32 v{128+2*j}, v56, v57, s87")
    def masked(tag, f):
        e("s_mov_b64 exec, s[74:75]")
        e(f"s_cbranch_execz {tag}")
        f()
        lab(tag)
        e("s_mov_b64 exec, -1")
    assert 128 * 256 == 0x8000
    e(f"v_lshlrev_b32 v58, 4, v{V_LANE}")
    e(f"v_lshlrev_b32 v23, 1, v{V_LANE}")
    e("s_waitcnt vmcnt(3)")
    stamp(3)
    def ldA():
        e(f"buffer_load_dwordx4 v[72:75], v32, {sr(S_SRC)}, 0 offen {LDF}")
        e(f"buffer_load_dwordx2 v[80:81], v34, {sr(S_E)}, 0 offen {LDF}")
    def ldB():
        e(f"buffer_load_dwordx4 v[76:79], v32, {sr(S_SRC)}, s86 offen {LDF}")
        e(f"buffer_load_dwordx2 v[82:83], v34, {sr(S_E)}, s84 offen {LDF}")
    if ORD == 1: ldA()
    for j in range(4): binA(j)
    if ORD == 2: ldA()
    e("s_mov_b64 exec, s[74:75]")
    e("s_cbranch_execz P1_A")
    if ORD == 1: ldB()
    for j in range(4, 8): binA(j)
    if ORD == 2: ldB()
    e("s_mov_b64 exec, -1")
    e("s_waitcnt vmcnt(4)")
    e("s_branch P1_A2")
    lab("P1_A")
    e("s_mov_b64 exec, -1")
    e("s_waitcnt vmcnt(2)")
    lab("P1_A2")
    e("s_add_u32 s86, s85, 16384")
    e(f"s_add_u32 m0, s86, {L_W1S}")
    e(f"s_cmp_eq_u32 s{S_W}, 7")
    e("s_waitcnt lgkmcnt(0)")
    e("s_barrier")
    stamp(4); lflush()
    if os.environ.get("PRES"):
        e(f"s_mov_b32 s90, {eval(os.environ.get('PRESA', 'WS_FLAG + 8 * 200'))}")
        e(f"s_load_dwordx2 s[98:99], {sr(S_WS,2)}, s90")
        e("s_waitcnt lgkmcnt(0)")
        mode = os.environ["PRES"]
        if mode == "1":
            e("s_xor_b32 s98, s98, s79")
            e("s_xor_b32 s99, s99, s78")
            e("s_or_b32 s98, s98, s99")
        elif mode == "2":
            e("s_xor_b32 s98, s78, s79")
        e("s_cmp_eq_u32 s98, 0")
        e("s_cselect_b32 s100, 10000, 0")
        e("s_mov_b32 s98, 0")
        e(f"s_cmp_eq_u32 s{S_W}, 7")
    if XT:
        reg, n, fl = XT.split(",")
        base, stride = {"fresh": (WS_SIZE - 256 * GCS, GCS), "pt": (WS_PT, NPB * 256), "ent": (WS_ENT, GCS), "ptf": (WS_SIZE - 256 * GCS, NPB * 256), "wpt": (WS_PT, NPB * 256), "wptf": (WS_SIZE - 256 * GCS, NPB * 256)}[reg]
        e("s_waitcnt vmcnt(0)")
        e("s_barrier")
        stamp(40)
        e(f"s_mul_i32 s90, s{S_B if reg[:2] == 'pt' else 2}, {stride}")
        e(f"s_add_u32 s90, s90, {base}")
        for k in range(int(n)):
            e(f"buffer_store_dwordx4 v[64:67], v61, {sr(S_WS)}, s90 offen {fl}")
            e("s_add_u32 s90, s90, 8192")
        e("s_waitcnt vmcnt(0)")
        e("s_barrier")
        stamp(41)
        e(f"s_cmp_eq_u32 s{S_W}, 7")
    def tags():
        e(f"s_mul_i32 s{S_TAGB}, s78, 1664525")
        e(f"s_add_u32 s{S_TAGB}, s{S_TAGB}, 1013904223")
        e(f"s_add_u32 s{S_TAGA}, s79, 0x01000000")
        e(f"s_and_b32 s{S_TAGA}, s{S_TAGA}, 0xff000000")
    def p_reads():
        for ks in range(4):
            e(f"ds_read_b64_tr_b16 {vr(88+4*ks,2)}, v50 offset:{L_W1S+4096*ks}")
            e(f"ds_read_b64_tr_b16 {vr(90+4*ks,2)}, v50 offset:{L_W1S+4096*ks+1024}")
            e(f"ds_read_b128 {vr(160+4*ks,4)}, v{51+(ks&1)} offset:{64*(ks>>1)}")
    def p_mfma(counted=False):
        for ks in range(4):
            if counted: e(f"s_waitcnt lgkmcnt({9-3*ks})")
            e(mf16(144, 88 + 4*ks, 160 + 4*ks, "0" if ks == 0 else vr(144, 16)))
    def p_fin():
        for i in range(8): e(f"v_pk_mul_f32 {vr(144+2*i,2)}, {vr(144+2*i,2)}, s[80:81]")
        for i in range(8): e(f"v_cvt_pk_bf16_f32 v{88+i}, v{144+2*i}, v{145+2*i}")
        e("s_mov_b64 exec, s[88:89]")
        for q in range(4): e(f"ds_write_b64 v53, {vr(88+2*q,2)} offset:{16*q}")
        e("s_mov_b64 exec, -1")
    def late():
        for k in range(2): e(f"buffer_load_dwordx4 v31, {sr(S_W1)}, s86 offen offset:{1024*k} lds")
    e("s_cbranch_scc1 P1_SCAN")
    p_reads()
    p_mfma(True)
    tags()
    e(f"s_cmp_eq_u32 s{S_W}, 6")
    e("s_cbranch_scc0 P1_H6")
    e(f"buffer_load_dword v20, v36, {sr(S_W1)}, s87 offen")
    e(f"buffer_load_ushort v21, v23, {sr(S_B2)}, 0 offen")
    e(f"buffer_load_dword v19, v36, {sr(S_B1)}, 0 offen")
    lab("P1_H6")
    e("s_nop 3")
    e("s_branch P1_HJ")
    lab("P1_SCAN")
    e("s_setprio 3")
    e(f"ds_read_b128 v[136:139], v58 offset:{L_CNT1}")
    p_reads()
    tags()
    e(f"s_mul_i32 s7, s2, {DS}")
    e(f"s_add_u32 s7, s7, {WS_DESC}")
    e("s_waitcnt lgkmcnt(0)")
    p_mfma()
    e("v_add_u32 v57, v136, v137")
    e("v_add_u32 v56, v57, v138")
    e("v_add_u32 v59, v56, v139")
    e("v_mov_b32 v60, v59")
    scan64(59)
    e("v_sub_u32 v140, v59, v60")
    e("v_add_u32 v141, v140, v136")
    e("v_add_u32 v142, v140, v57")
    e("v_add_u32 v143, v140, v56")
    e(f"ds_write_b128 v58, v[140:143] offset:{L_BASE1}")
    lab("P1_HJ")
    late()
    p_fin()
    e("s_waitcnt lgkmcnt(0)")
    e("s_barrier")
    e("s_setprio 0")
    stamp(5)
    e("ds_read_b128 v[104:107], v62")
    e("ds_read_b128 v[108:111], v22")
    for j in range(4): e(f"ds_read_b32 v{112+j}, v{112+j} offset:{L_BASE1}")
    e("s_waitcnt lgkmcnt(4)")
    e(f"buffer_store_dwordx4 v[104:107], v61, {sr(S_WS)}, s6 offen {PSF}")
    e("s_bfm_b64 exec, s71, 0")
    e(f"buffer_store_dwordx4 v[108:111], v63, {sr(S_WS)}, s6 offen {PSF}")
    def w(j):
        e(f"v_add_lshl_u32 v{112+j}, v{112+j}, v{120+j}, 3")
        e(f"ds_write_b64 v{112+j}, {vr(128+2*j,2)} offset:{L_STG}")
    def partA():
        for j in range(4): binB(j)
        e("s_waitcnt lgkmcnt(0)")
        for j in range(4): w(j)
    e("s_mov_b64 exec, s[74:75]")
    e("s_cbranch_execz P1_S1")
    for j in range(4, 8): e(f"ds_read_b32 v{112+j}, v{112+j} offset:{L_BASE1}")
    e("s_mov_b64 exec, -1")
    e("s_waitcnt vmcnt(6)")
    partA()
    e("s_mov_b64 exec, s[74:75]")
    e("s_waitcnt vmcnt(4)")
    for j in range(4, 8): binB(j)
    for j in range(4, 8): w(j)
    e("s_mov_b64 exec, -1")
    e("s_branch P1_JOIN")
    lab("P1_S1")
    e("s_mov_b64 exec, -1")
    e(f"s_cmp_eq_u32 s{S_W}, 7")
    e("s_cbranch_scc0 P1_S2")
    for j in range(4):
        e(f"v_lshl_or_b32 v{96+2*j}, v{136+j}, 12, v{140+j}")
        e(f"v_or_b32 v{96+2*j}, s{S_TAGA}, v{96+2*j}")
        e(f"v_mov_b32 v{97+2*j}, s{S_TAGB}")
    e(f"buffer_store_dwordx4 v[96:99], v58, {sr(S_WS)}, s7 offen sc1")
    e(f"buffer_store_dwordx4 v[100:103], v58, {sr(S_WS)}, s7 offen offset:1024 sc1")
    lab("P1_S2")
    e(f"s_cmp_ge_u32 s{S_W}, 6")
    e("s_waitcnt vmcnt(6)")
    e("s_cbranch_scc1 P1_S3")
    e("s_waitcnt vmcnt(4)")
    lab("P1_S3")
    partA()
    lab("P1_JOIN")
    e(f"s_mul_i32 s5, s2, {GCS}")
    e(f"s_add_u32 s5, s5, {WS_ENT}")
    e("s_waitcnt lgkmcnt(0)")
    e("s_barrier")
    stamp(6)
    for k in range(3): e(f"ds_read_b128 {vr(64+4*k,4)}, v61 offset:{L_STG+8192*k}")
    e(f"s_cmp_eq_u32 s{S_W}, 7")
    e("s_cbranch_scc0 P1_C")
    e(f"ds_read_b128 v[76:79], v58 offset:{L_STG+24576}")
    e("s_add_u32 s7, s5, 24576")
    e("s_bfm_b64 exec, 32, 0")
    e("s_waitcnt lgkmcnt(0)")
    e(f"buffer_store_dwordx4 v[76:79], v58, {sr(S_WS)}, s7 offen {STF}")
    e("s_mov_b64 exec, -1")
    lab("P1_C")
    for k in range(3):
        e(f"s_waitcnt lgkmcnt({2-k})")
        e(f"buffer_store_dwordx4 {vr(64+4*k,4)}, v61, {sr(S_WS)}, s5 offen {STF}")
        if k < 2: e("s_add_u32 s5, s5, 8192")
    def loop_consts():
        e("v_lshlrev_b32 v58, 1, v39")
        e("v_lshl_add_u32 v58, v38, 9, v58")
        e(f"v_add_u32 v{V_CA}, s{S_M0[0]}, v58")
        e("v_lshlrev_b32 v58, 4, v48")
        e(f"v_add_u32 v{V_DMAC}, 0x800000, v58")
        e("v_and_b32 v58, 1, v47")
        e("v_lshlrev_b32 v58, 4, v58")
        e(f"v_add_u32 v{V_LIO}, {L_LIST}, v58")
        e("v_lshl_add_u32 v58, v42, 1, v43")
        e("v_lshlrev_b32 v58, 2, v58")
        e(f"v_add_u32 v{V_LMO}, {L_LIST}, v58")
        e(f"s_sub_u32 s76, {GTH+7}, s{S_W}")
        e(f"s_sub_u32 s77, {HT+7}, s{S_W}")
        e(f"s_cmp_lt_u32 s{S_W}, 4")
        e(f"s_cselect_b32 s76, s{S_W}, s76")
        e(f"s_cselect_b32 s77, s{S_W}, s77")
        e("s_lshl_b32 s76, s76, 4")
        e(f"s_add_u32 s76, s76, {L_GT}")
        e(f"s_mul_i32 s77, s77, {SELS}")
        e(f"s_add_u32 s77, s77, {L_SEL}")
        e(f"v_lshl_add_u32 v{V_SAVE}, v37, 2, s76")
        e(f"v_lshl_add_u32 v{V_SAVE+1}, v40, 2, s76")
        e(f"v_lshl_add_u32 v{V_SAVE+2}, v44, 2, s76")
        e(f"v_mul_u32_u24 v58, {SELS//2}, v38")
        e("v_lshl_add_u32 v58, v39, 2, v58")
        e(f"v_add_u32 v{V_SAVE+3}, s77, v58")
        e("v_cmp_eq_u32 vcc, 0, v38")
        e("v_mov_b32 v59, 0x03020100")
        e("v_mov_b32 v58, 0x0c080c0c")
        e(f"v_cndmask_b32 v{V_PSEL}, v59, v58, vcc")
        e(f"v_cndmask_b32 v{V_QMUL}, 0, 1, vcc")
        e("v_add_u32 v58, 1, v44")
        e("v_lshrrev_b32 v58, 1, v58")
        e("v_and_b32 v59, 1, v44")
        e("v_mul_u32_u24 v58, v58, v59")
        e("v_mul_u32_u24 v58, 320, v58")
        e(f"v_add_u32 v58, {L_EXT}, v58")
        e(f"v_mov_b32 v59, {L_QT}")
        e("v_cndmask_b32 v58, v58, v59, vcc")
        e(f"v_add_u32 v{V_QC}, v46, v58")
        e(f"v_mov_b32 v58, {hex(find_cx(0x00803F80))}")
        e(f"v_mov_b32 v59, {hex(find_cx(0x3F800000))}")
        e("v_cmp_eq_u32 s[6:7], 1, v41")
        e("v_cmp_gt_u32 s[76:77], 2, v40")
        e("s_nop 0")
        e("v_cndmask_b32 v58, v58, v59, s[6:7]")
        e("v_cndmask_b32 v59, 0, v58, s[76:77]")
        e("v_cndmask_b32 v58, v58, 0, s[76:77]")
        e(f"v_cndmask_b32 v{CX}, 1.0, v59, vcc")
        e(f"v_cndmask_b32 v{CX+1}, 1.0, v58, vcc")
        e("v_lshl_add_u32 v58, v38, 2, v44")
        e("v_lshl_add_u32 v58, v58, 7, v46")
        e("v_lshrrev_b32 v59, 1, v44")
        e("v_lshl_add_u32 v58, v59, 6, v58")
        e(f"v_add_u32 v{V_W2A}, {L_W2}, v58")
    if PFL == 1:
        e(f"s_lshl_b32 s5, s{S_W}, 5")
        e("s_lshr_b32 s6, s2, 3")
        e("s_add_u32 s90, s5, s6")
        e("s_and_b32 s6, s2, 7")
        e(f"s_mul_i32 s6, s6, {DS}")
        e("s_lshl_b32 s5, s90, 3")
        e("s_add_u32 s5, s5, s6")
        e(f"s_add_u32 s91, s5, {WS_PFLAG}")
    if LATEI: init_tables(120)
    e("v_lshlrev_b32 v31, 2, v45")
    e(f"v_xor_b32 v31, v31, v{V_LANE}")
    e("v_lshlrev_b32 v31, 4, v31")
    e(f"s_mov_b32 s{S_EARLY}, 2")
    e(f"s_cmp_eq_u32 s{S_W}, 6")
    e("s_cbranch_scc0 P0_NOEXT")
    e("s_waitcnt vmcnt(5)")
    e("v_lshlrev_b32 v118, 16, v19")
    e("v_and_b32 v119, 0xffff0000, v19")
    e("v_lshlrev_b32 v117, 1, v36")
    e(f"ds_write_b64 v117, v[118:119] offset:{L_B1}")
    e("v_lshlrev_b32 v112, 16, v20")
    e("v_and_b32 v113, 0xffff0000, v20")
    e("v_mul_f32 v112, s80, v112")
    e("v_mul_f32 v113, s80, v113")
    e("v_cvt_pk_bf16_f32 v114, v112, v113")
    e("v_lshlrev_b32 v115, 16, v114")
    e("v_and_b32 v116, 0xffff0000, v114")
    e("v_sub_f32 v115, v112, v115")
    e("v_sub_f32 v116, v113, v116")
    e("v_cvt_pk_bf16_f32 v115, v115, v116")
    e("v_lshlrev_b32 v116, 16, v21")
    e(f"ds_write_b32 v36, v114 offset:{L_EXT+320}")
    e(f"ds_write_b32 v36, v115 offset:{L_EXT+640}")
    e(f"ds_write_b32 v36, v116 offset:{L_B2}")
    lab("P0_NOEXT")
    e(f"s_add_u32 s{S_P}, s{S_WS}, {WS_PT - PSH}")
    e(f"s_addc_u32 s{S_P+1}, s{S_WS+1}, 0")
    e(f"v_mov_b32 v252, s{S_TAGA}")
    e(f"v_mov_b32 v253, s{S_TAGB}")
    e(f"v_mul_u32_u24 v254, {DS}, v{V_LANE}")
    e("v_lshlrev_b32 v49, 1, v49")
    for j in range(8): e(f"s_movk_i32 s{S_SOFF+j}, {PSH - 1024*(j&3) + 128*(j>>2)}")
    e(f"s_movk_i32 s{S_256}, 256")
    e(f"s_mul_i32 s{S_M0[0]}, s{S_W}, {TBW}")
    e(f"s_add_u32 s{S_M0[0]}, s{S_M0[0]}, {L_TB}")
    e(f"s_add_u32 s{S_M0[1]}, s{S_M0[0]}, 4096")
    e(f"s_mov_b32 s{S_WN}, 32")
    e(f"s_mov_b32 s{S_RB}, 0")
    e(f"s_mov_b32 s{S_SAFE}, 0")
    e(f"s_mov_b32 s{S_SPIN}, 0x40000")
    e(f"v_cmp_le_u32 vcc, {SPLIT}, v{V_LANE}")
    e(f"v_mul_u32_u24 v56, {LS}, v{V_LANE}")
    e(f"v_mul_u32_u24 v57, {QS}, v{V_LANE}")
    e(f"v_add_u32 v{V_L0}, {L_LIST}, v56")
    e(f"v_lshl_or_b32 v{V_GV}, v57, 16, v56")
    e("v_cndmask_b32 v56, 0, 1, vcc")
    e(f"v_mul_u32_u24 v57, {SPLIT}, v56")
    e(f"v_sub_u32 v{V_COL}, v{V_LANE}, v57")
    e(f"v_mul_u32_u24 v57, {GTH*16}, v56")
    e(f"v_add_u32 v{V_GB}, {L_GT}, v57")
    e(f"v_mul_u32_u24 v57, {HT*SELS}, v56")
    e(f"v_lshl_add_u32 v57, v{V_COL}, 2, v57")
    e(f"v_add_u32 v{V_SB}, {L_SEL}, v57")
    if PFL == 1:
        e(f"s_load_dwordx2 s[92:93], {sr(S_WS,2)}, s91 glc")
    if not CL: loop_consts()
    if LATEI:
        e("s_waitcnt lgkmcnt(0)")
        e("s_barrier")
    static_writes(56, "A")
    e("v_lshl_add_u32 v56, v37, 3, v48")
    e(f"s_lshl_b32 s5, s{S_W}, 5")
    e(f"v_add_u32 v{V_CHK}, s5, v56")
    e(f"v_and_b32 v{V_J0}, 15, v{V_LANE}")
    e(f"v_mul_u32_u24 v33, {DS}, v{V_CHK}")
    desc_soff()
    e(f"buffer_load_dwordx2 v[34:35], v33, {sr(S_WS)}, s5 offen sc1")
    nyoung = 1
    if PFL == 1:
        e("s_and_b32 s6, s90, 7")
        e("s_lshl_b32 s6, s6, 5")
        e("s_lshr_b32 s7, s90, 3")
        e("s_add_u32 s6, s6, s7")
        e(f"s_mul_i32 s6, s6, {NPB*256}")
        e(f"s_add_u32 s6, s6, {PSH}")
        e(f"v_min_u32 v56, {NPB-1}, v{V_LANE}")
        e("v_lshlrev_b32 v56, 8, v56")
        e("s_waitcnt lgkmcnt(0)")
        e(f"s_cmp_eq_u64 s[92:93], s[{S_TAGA}:{S_TAGB}]")
        e("s_cselect_b32 s6, s6, 0x7f000000")
        e("v_add_u32 v56, s6, v56")
        e(f"buffer_load_dword v57, v56, {sr(S_P)}, 0 offen")
        e(f"buffer_load_dword v58, v56, {sr(S_P)}, 0 offen offset:128")
        nyoung = 3
    e("s_lshl_b32 s6, s2, 3")
    e(f"s_add_u32 s6, s6, {WS_FLAG}")
    stamp(18)
    e(f"s_waitcnt vmcnt({nyoung}) lgkmcnt(0)")
    e("s_barrier")
    stamp(7)
    e(f"s_cmp_eq_u32 s{S_W}, 0")
    e("s_cbranch_scc0 P1_NF")
    e("s_mov_b64 exec, 0xff")
    e(f"buffer_store_dwordx2 v[252:253], v254, {sr(S_WS)}, s6 offen sc1")
    e("s_mov_b64 exec, -1")
    lab("P1_NF")
    if OWN:
        e(f"s_mul_i32 s6, s{S_B}, {NPB*256}")
        e(f"s_mul_i32 s7, s{S_W}, 13")
        e(f"v_add_u32 v56, s7, v{V_LANE}")
        e(f"v_min_u32 v56, {2*NPB-1}, v56")
        e("v_lshl_add_u32 v56, v56, 7, s6")
        e("s_bfm_b64 exec, 13, 0")
        e(f"buffer_load_dword v57, v56, {sr(S_P)}, s{S_SOFF} offen")
        e("s_mov_b64 exec, -1")
    for q in range(4): e(f"ds_read_b128 {vr(144+4*q,4)}, v49 offset:{L_B1+32*q}")
    for ks in range(4):
        e(f"ds_read_b64_tr_b16 {vr(80+4*ks,2)}, v50 offset:{L_W1S+16384+4096*ks}")
        e(f"ds_read_b64_tr_b16 {vr(82+4*ks,2)}, v50 offset:{L_W1S+16384+4096*ks+1024}")
    for ks in range(4):
        e(f"s_waitcnt lgkmcnt({6-2*ks})")
        e(mf16(144, 80 + 4*ks, 160 + 4*ks, vr(144, 16)))
    e("s_nop 7")
    e("s_nop 3")
    for i in range(8): e(f"v_pk_mul_f32 {vr(144+2*i,2)}, {vr(144+2*i,2)}, s[80:81]")
    for i in range(8): e(f"v_cvt_pk_bf16_f32 v{64+i}, v{144+2*i}, v{145+2*i}")
    e("s_mov_b64 exec, s[88:89]")
    for q in range(4): e(f"ds_write_b64 v54, {vr(64+2*q,2)} offset:{16*q}")
    e("s_mov_b64 exec, -1")
    stamp(19)
    if CL: loop_consts()

    lab("POLL1")
    e(f"v_mul_u32_u24 v32, {GCS}, v{V_CHK}")
    e(f"v_add_u32 v37, 16, v{V_J0}")
    e("v_bfrev_b32 v43, -2")
    e(f"v_cmp_gt_u32 vcc, s{S_WN}, v{V_J0}")
    e(f"v_add_u32 v38, s{S_RB}, v{V_J0}")
    e(f"v_add_u32 v39, s{S_RB}, v37")
    e("v_lshlrev_b32 v36, 3, v38")
    e("v_cndmask_b32 v38, v43, v38, vcc")
    e(f"v_cmp_gt_u32 vcc, s{S_WN}, v37")
    e(f"s_mov_b32 s7, {WS_ENT}")
    e("v_mov_b32 v55, 4")
    e("v_cndmask_b32 v39, v43, v39, vcc")
    e(f"s_waitcnt vmcnt({OWN})")
    lab("POLL")
    e(f"v_xor_b32 v34, s{S_TAGA}, v34")
    e(f"v_cmp_ne_u32 s[76:77], s{S_TAGB}, v35")
    e("v_cmp_le_u32 vcc, 0x1000000, v34")
    e("s_or_b64 vcc, vcc, s[76:77]")
    e("s_cbranch_scc0 POLLED")
    e(f"s_sub_u32 s{S_SPIN}, s{S_SPIN}, 1")
    e("s_cbranch_scc1 K_END")
    e(f"s_sleep {SLP}")
    e(f"buffer_load_dwordx2 v[34:35], v33, {sr(S_WS)}, s5 offen sc1")
    e("s_waitcnt vmcnt(0)")
    e("s_branch POLL")
    lab("POLLED")
    stamp(8)
    e("v_and_b32 v35, 0xfff, v34")
    e("v_lshrrev_b32 v34, 12, v34")
    e("v_lshl_add_u32 v35, v35, 3, v32")
    e(f"s_add_u32 s5, s{S_RB}, s{S_WN}")
    e("v_cmp_lt_u32 s[74:75], s5, v34")
    DP = "row_mask:0xf bank_mask:0xf"
    for i in range(8):
        e(f"v_mov_b32_dpp v43, v34 row_newbcast:{i} {DP}")
        e(f"v_add_u32_dpp v{44+i}, v35, v36 row_newbcast:{i} {DP}")
        e(f"v_cmp_lt_u32 {sr(S_MASK+2*i,2)}, v38, v43")
        e(f"v_cmp_lt_u32 {sr(S_MASK+16+2*i,2)}, v39, v43")
    e(f"v_lshlrev_b32 v54, 2, v{V_LANE}")
    e("v_mov_b32 v53, 0")
    e("s_mov_b64 exec, s[74:75]")
    e(f"ds_write_b32 v53, v55 offset:{L_FLAG}")
    e("s_mov_b64 exec, -1")
    if not W5: wave_reset()
    flag_load(True)
    lab("FPOLL")
    e("s_waitcnt vmcnt(0)")
    e(f"v_cmp_ne_u32 s[76:77], s{S_TAGB}, v61")
    e(f"v_cmp_ne_u32 vcc, s{S_TAGA}, v60")
    e("s_or_b64 vcc, vcc, s[76:77]")
    e("s_cbranch_scc0 FPOLLED")
    e(f"s_sub_u32 s{S_SPIN}, s{S_SPIN}, 1")
    e("s_cbranch_scc1 K_END")
    e(f"s_sleep {SLP}")
    flag_load()
    e("s_branch FPOLL")
    lab("FPOLLED")
    stamp(17)
    for k in range(8, 16):
        e(f"s_mov_b64 exec, {sr(S_MASK+2*k,2)}")
        e(f"s_cbranch_execz R_L{k}")
        e(f"buffer_load_dwordx2 {vr(112+2*k,2)}, v{44+(k&7)}, {sr(S_WS)}, s7 offen offset:128 {ELF}")
        lab(f"R_L{k}")
    for k in range(8):
        e(f"s_or_b64 exec, {sr(S_MASK+2*k,2)}, 1")
        e(f"buffer_load_dwordx2 {vr(112+2*k,2)}, v{44+k}, {sr(S_WS)}, s7 offen {ELF}")
    e("s_mov_b64 exec, -1")
    if W5: wave_reset()
    e(f"s_cmp_eq_u32 s{S_EARLY}, 2")
    e("s_cbranch_scc0 R_NH")
    for i in range(32): e(f"v_pk_mul_f32 {vr(H+2*i,2)}, {vr(NN,2)}, {vr(NN,2)}")
    lab("R_NH")
    e("s_waitcnt vmcnt(8)")
    for k in list(range(8, 16)) + list(range(8)):
        e(f"s_mov_b64 exec, {sr(S_MASK+2*k,2)}")
        if k >= 8: e(f"s_cbranch_execz R_A{k}")
        else: e(f"s_waitcnt vmcnt({7-k})")
        e(f"ds_add_rtn_u32 v{T+k}, v{113+2*k}, v55 offset:{L_CNT2}")
        if k >= 8: lab(f"R_A{k}")
    def list_writes(tag):
        for k in list(range(8, 16)) + list(range(8)):
            e(f"s_mov_b64 exec, {sr(S_MASK+2*k,2)}")
            if k >= 8: e(f"s_cbranch_execz {tag}{k}")
            e(f"ds_write_b32 v{T+k}, v{112+2*k}")
            if k >= 8: lab(f"{tag}{k}")
        e("s_mov_b64 exec, -1")
    e("s_mov_b64 exec, -1")
    e(f"s_cmp_eq_u32 s{S_EARLY}, 2")
    e("s_cbranch_scc0 R_NW2")
    e(f"s_add_u32 m0, s85, {L_W2}")
    e(f"s_mov_b32 s{S_EARLY}, 0")
    for k in range(2): e(f"buffer_load_dwordx4 v31, {sr(S_W2)}, s85 offen offset:{1024*k} lds")
    if POST:
        e("s_lshr_b32 s6, s2, 3")
        e("s_and_b32 s7, s6, 7")
        e("s_lshl_b32 s7, s7, 5")
        e("s_lshr_b32 s6, s6, 3")
        e(f"s_lshl2_add_u32 s6, s{S_W}, s6")
        e("s_add_u32 s6, s6, s7")
        e(f"s_mul_i32 s6, s6, {NPB*256}")
        e(f"v_lshl_add_u32 v56, v{V_LANE}, 7, s6")
        e(f"s_bfm_b64 exec, {POST}, 0")
        e(f"buffer_load_dword v57, v56, {sr(S_P)}, s{S_SOFF} offen")
        e("s_mov_b64 exec, -1")
    lab("R_NW2")
    e("s_waitcnt lgkmcnt(0)")
    stamp(20)
    list_writes("R_C")
    e("s_waitcnt lgkmcnt(0)")
    e("s_barrier")
    stamp(9)
    def mid():
        e(f"ds_read_b32 v32, v54 offset:{L_CNT2}")
        e(f"ds_read_b32 v33, v53 offset:{L_FLAG}")
        e(f"ds_read_b32 v34, v54 offset:{L_DEG}")
        return 3
    first_tile(mid)
    e("s_waitcnt lgkmcnt(0)")
    e(f"v_sub_u32 v32, v32, v{V_L0}")
    e("v_max_u32 v35, 4, v32")
    e("v_subrev_u32 v35, 4, v35")
    e("v_lshrrev_b32 v35, 5, v35")
    e("v_mov_b32 v36, v35")
    e(f"v_cmp_lt_u32 s[76:77], {LCAP//8-1}, v35")
    scan64(36)
    e(f"v_readfirstlane_b32 s{S_MORE}, v33")
    e(f"v_readlane_b32 s6, v36, {SPLIT-1}")
    e("v_readlane_b32 s7, v36, 63")
    e(f"v_cmp_le_u32 vcc, {SPLIT}, v{V_LANE}")
    e("v_sub_u32 v36, v36, v35")
    e("v_lshrrev_b32 v32, 2, v32")
    e("s_sub_u32 s7, s7, s6")
    e(f"s_add_u32 s82, s6, {SPLIT+3}")
    e(f"s_add_u32 s83, s7, {NPB-SPLIT+3}")
    e("s_max_u32 s5, s82, s83")
    e(f"s_cmp_ge_u32 s5, {4*HT+4}")
    e("s_cbranch_scc0 R_FITS")
    e(f"s_mov_b32 s{S_WN}, {WSLOW}")
    e("s_branch NEXT_ROUND")
    lab("R_FITS")
    e(f"s_sub_u32 s6, {NPB-SPLIT-1}, s6")
    e(f"v_add_u32 v37, {SPLIT-1}, v36")
    e("v_add_u32 v38, s6, v36")
    e("v_cndmask_b32 v37, v37, v38, vcc")
    e(f"v_mov_b32 v39, v{V_GV}")
    e(f"s_mov_b32 s{S_EARLY}, 1")
    e("s_cmp_eq_u64 s[76:77], 0")
    e("s_cbranch_scc0 R_COMPACT")
    lab("R_TABLE")
    e("v_mov_b32 v41, 0x3f80")
    e(f"s_add_u32 s6, s{S_W}, 1")
    lab("R_GT")
    e("v_cmp_le_u32 vcc, s6, v35")
    e("s_and_b64 exec, exec, vcc")
    e("s_cbranch_execz R_GTE")
    e("v_add_u32 v44, s6, v37")
    e("s_lshl_b32 s7, s6, 5")
    e(f"v_lshl_add_u32 v45, v44, 2, v{V_GB}")
    e("v_add_u32 v47, s7, v39")
    e("ds_write_b32 v45, v47")
    e("v_lshrrev_b32 v46, 1, v44")
    e(f"v_mul_u32_u24 v46, {SELS//2}, v46")
    e("v_and_b32 v44, 1, v44")
    e("v_lshl_add_u32 v46, v44, 1, v46")
    e(f"v_add_u32 v46, v46, v{V_SB}")
    e("ds_write_b16 v46, v41")
    e("s_add_u32 s6, s6, 8")
    e("s_branch R_GT")
    lab("R_GTE")
    e("s_mov_b64 exec, -1")
    e("s_waitcnt vmcnt(4) lgkmcnt(0)")
    e("s_barrier")
    stamp(10)
    e(f"s_cmp_eq_u32 s{S_W}, 0")
    e("s_cbranch_scc0 R_ND")
    e("v_add_u32 v34, v34, v32")
    e(f"ds_write_b32 v54, v34 offset:{L_DEG}")
    lab("R_ND")
    e(f"s_sub_u32 s5, 7, s{S_W}")
    e(f"s_cmp_lt_u32 s{S_W}, 4")
    e(f"s_cselect_b32 s5, s{S_W}, s5")
    e("s_cselect_b32 s6, s82, s83")
    e("s_lshr_b32 s6, s6, 2")
    e("s_sub_u32 s6, s6, s5")
    e("s_add_u32 s6, s6, 3")
    e(f"s_lshr_b32 s{S_NT}, s6, 2")
    e(f"s_or_b32 s6, s{S_MORE}, s{S_RB}")
    e(f"s_or_b32 s{S_SAFE}, s{S_SAFE}, s6")
    e(f"s_cmp_eq_u32 s{S_EARLY}, 0")
    e("s_cbranch_scc1 WAVE_REDO")
    lab("WAVE_GO")
    e(f"ds_read_u16 v{V_LI}, v{V_GIA} offset:64")
    e(f"s_mov_b32 m0, s{S_M0[1]}")
    e(f"s_sub_u32 s{S_REM}, s{S_NT}, 1")
    e("s_waitcnt lgkmcnt(0)")
    e(f"v_add_u32 v{V_LI}, v{V_LI}, v{V_LIO}")
    e(f"ds_read_b128 {vr(IDR,4)}, v{V_LI}")
    e(PERM)
    e(AXB)
    if PEEL:
        e("s_waitcnt vmcnt(0)")
        for s in c_reads(0)[:16] + [tr_read(0)]: e(s)
        for s in dma(1): e(s)
        for s in memphase(0, 0)[2+16:-4]:
            if s != tr_read(0): e(s)
        e(mfext(0))
        for s in mads(): e(s)
        e("s_nop 5")
        stamp(11); stamp(28, True)
        e(f"s_cmp_lg_u32 s{S_SAFE}, 0")
        e("s_cbranch_scc1 PEELS")
        for safe in (False, True):
            out.append(".p2align 3")
            if safe: lab("PEELS")
            emit(block(0, 0, safe))
            for s in dma(0): e(s)
            e(f"s_branch ENTER{'S' if safe else 'F'}")
    else:
        for s in dma(1): e(s)
        e("s_waitcnt lgkmcnt(0)")
        for s in mads(): e(s)
        for s in memphase(0, 0): e(s)
        e(mfext(0))
        e("s_nop 7")
        e("s_nop 1")
        stamp(11); stamp(28, True)
        e(f"s_cmp_lg_u32 s{S_SAFE}, 0")
        e("s_cbranch_scc1 ENTERS")
        e("s_branch ENTERF")

    lab("R_COMPACT")
    e("s_barrier")
    fill_list(40)
    e(f"v_add_lshl_u32 v38, v36, v{V_LANE}, 5")
    e(f"v_add_u32 v38, {L_LIST}, v38")
    e(f"v_sub_u32 v38, v38, v{V_L0}")
    e("v_add_u32 v39, v39, v38")
    for k in range(16): e(f"ds_bpermute_b32 v{113+2*k}, v{113+2*k}, v38")
    e(f"v_lshl_add_u32 v45, v{V_COL}, 2, v{V_GB}")
    e(f"s_bfm_b64 exec, {NPB}, 0")
    e("ds_write_b32 v45, v39")
    e("s_mov_b64 exec, -1")
    e("s_waitcnt lgkmcnt(0)")
    e("s_barrier")
    for k in range(16): e(f"v_add_u32 v{T+k}, v{T+k}, v{113+2*k}")
    list_writes("R_D")
    e(f"s_mov_b32 s{S_EARLY}, 0")
    e("s_branch R_TABLE")
    lab("WAVE_REDO")
    e("s_waitcnt vmcnt(0)")
    wave_reset()
    first_tile()
    e("s_branch WAVE_GO")

    mainloop(False)
    mainloop(True)

    lab("NEXTR")
    e(f"s_add_u32 s{S_RB}, s{S_RB}, s{S_WN}")
    lab("NEXT_ROUND")
    e("s_setprio 0")
    e("s_waitcnt vmcnt(0) lgkmcnt(0)")
    e("s_barrier")
    init_tables(32)
    e("s_waitcnt lgkmcnt(0)")
    e("s_barrier")
    static_writes(32, "B")
    e(f"v_mul_u32_u24 v33, {DS}, v{V_CHK}")
    desc_soff()
    e(f"buffer_load_dwordx2 v[34:35], v33, {sr(S_WS)}, s5 offen sc1")
    e("s_waitcnt vmcnt(0) lgkmcnt(0)")
    e("s_barrier")
    e("s_branch POLL1")

    out.append(".p2align 3")
    lab("DRAIN")
    e("s_waitcnt lgkmcnt(0)")
    e(f"s_cmp_lg_u32 s{S_MORE}, 0")
    for ct in range(4): e(mfsel(ct))
    stamp(12); stamp(29, True)
    e("s_cbranch_scc1 NEXTR")
    e(f"v_lshrrev_b32 v96, 5, v{V_LANE}")
    e(f"v_and_b32 v97, 31, v{V_LANE}")
    e("v_mul_u32_u24 v97, 272, v97")
    e("v_lshl_add_u32 v97, v96, 4, v97")
    e(f"v_add_u32 v97, s{S_M0[0]}, v97")
    e(f"s_mov_b32 s6, {hex(f2u(2.0**120))}")
    e(f"v_cmp_nge_f32 s[76:77], s6, v{V_DMAX}")
    e(f"v_lshrrev_b32 v98, 3, v{V_TID}")
    e(f"v_and_b32 v99, 7, v{V_TID}")
    O = D
    cv = lambda ct: [f"v_cvt_pk_bf16_f32 v{64+8*ct+i}, v{H+16*ct+2*i}, v{H+16*ct+2*i+1}" for i in range(8)]
    for s in cv(0): e(s)
    rest = [f"v_cmp_le_u32 vcc, {SPLIT}, v98", "v_mul_u32_u24 v100, 272, v98", "v_lshl_add_u32 v100, v99, 5, v100",
            f"v_add_u32 v101, {4*TBW - SPLIT*272}, v100", "v_cndmask_b32 v100, v100, v101, vcc",
            "v_lshlrev_b32 v101, 2, v98", "v_lshlrev_b32 v102, 5, v99", "v_lshlrev_b32 v103, 15, v98"]
    for ct in range(4):
        nxt = cv(ct + 1) if ct < 3 else rest
        for s in range(2):
            for mt in range(2):
                ks = 2 * ct + s
                for x in nxt[4*s + 2*mt: 4*s + 2*mt + 2]: e(x)
                e(mf16(O[mt], w2f(ks, mt), 64 + 4*ks, "0" if ks == 0 else vr(O[mt], 16)))
    e("v_lshl_add_u32 v103, v99, 4, v103")
    e(f"s_lshl_b32 s5, s{S_B}, 7")
    e("v_add_u32 v103, s5, v103")
    e("s_movk_i32 s7, 0x207")
    e("s_waitcnt vmcnt(0)")
    e("s_nop 5")
    e(f"v_cmp_class_f32 vcc, v{O[0]}, s7")
    e("s_or_b64 s[76:77], s[76:77], vcc")
    e("s_cbranch_scc0 EPI_OK")
    e(f"s_cmp_lg_u32 s{S_SAFE}, 0")
    e("s_cbranch_scc1 EPI_OK")
    e(f"s_mov_b32 s{S_SAFE}, 1")
    for i in range(64): e(f"v_mov_b32 v{H+i}, 0")
    e("s_branch WAVE_REDO")
    lab("EPI_OK")
    for mt in range(2):
        for q in range(4):
            e(f"ds_write_b128 v97, {vr(O[mt]+4*q,4)} offset:{128*mt+32*q}")
    e(f"ds_read_b128 v[32:35], v102 offset:{L_B2}")
    e(f"ds_read_b128 v[36:39], v102 offset:{L_B2+16}")
    e(f"v_cmp_gt_u32 vcc, {NPB}, v98")
    e(f"s_or_b32 s6, s2, s{S_W}")
    e("s_cbranch_scc1 EPI_NE")
    e(f"v_mov_b32 v42, s{S_TAGB}")
    e(f"v_mov_b32 v43, s{S_TAGA}")
    e("v_mov_b32 v44, 0")
    e("s_mov_b64 exec, 1")
    e(f"buffer_store_dwordx2 v[42:43], v44, {sr(S_WS)}, 0 offen offset:{WS_EPOCH}")
    e("s_mov_b64 exec, -1")
    lab("EPI_NE")
    e("s_waitcnt lgkmcnt(0)")
    e("s_barrier")
    stamp(13)
    e("s_and_b64 exec, exec, vcc")
    e("s_cbranch_execz K_FIN")
    e(f"ds_read_b32 v40, v101 offset:{L_DEG}")
    for s in range(4):
        e(f"ds_read_b128 {vr(64+8*s,4)}, v100 offset:{L_TB+s*TBW}")
        e(f"ds_read_b128 {vr(68+8*s,4)}, v100 offset:{L_TB+s*TBW+16}")
    e(f"s_mov_b32 s6, {hex(f2u(-LN2))}")
    e("s_mov_b32 s7, s6")
    e("s_waitcnt lgkmcnt(8)")
    e("v_cvt_f32_u32 v40, v40")
    for i in range(4): e(f"v_pk_mul_f32 {vr(32+2*i,2)}, {vr(32+2*i,2)}, v[40:41] op_sel_hi:[1,0]")
    for s in range(4):
        e(f"s_waitcnt lgkmcnt({6-2*s})")
        for i in range(4): e(f"v_pk_fma_f32 {vr(32+2*i,2)}, {vr(64+8*s+2*i,2)}, s[6:7], {vr(32+2*i,2)}")
    for i in range(4): e(f"v_cvt_pk_bf16_f32 v{44+i}, v{32+2*i}, v{33+2*i}")
    e(f"buffer_store_dwordx4 v[44:47], v103, {sr(S_OUT)}, 0 offen")
    lab("K_FIN")
    if AMP[0] >= 0:
        if AMP[1] == 14:
            e("s_waitcnt vmcnt(0)")
            stamp(14)
        e("s_sub_u32 s100, s100, s98")
        if AMP[2] >= 0:
            e(f"s_cmp_eq_u32 s2, {AMP[2]}")
            e("s_cselect_b32 s100, s100, 0")
        e("s_add_u32 s100, s100, 6000")
        lab("AMPL")
        e("s_memrealtime s[98:99]")
        e("s_waitcnt lgkmcnt(0)")
        e("s_sub_u32 s98, s98, s96")
        e("s_cmp_lt_u32 s98, s100")
        e("s_cbranch_scc1 AMPL")
    if SPIN >= 0:
        lab("SPINL")
        e("s_memrealtime s[98:99]")
        e("s_waitcnt lgkmcnt(0)")
        e("s_sub_u32 s98, s98, s96")
        e("s_cmp_lt_u32 s98, 6000")
        e("s_cbranch_scc1 SPINL")
    if DIAG:
        e("s_mov_b64 exec, -1")
        e("s_waitcnt vmcnt(0)")
        stamp(14); stamp(31, True)
        e(f"v_writelane_b32 v255, s{S_NT}, 27")
        e("s_lshl_b32 s5, s2, 11")
        e(f"s_add_u32 s5, s5, {WS_STAMP}")
        e(f"v_lshlrev_b32 v1, 2, v{V_TID}")
        e(f"buffer_store_dword v255, v1, {sr(S_WS)}, s5 offen")
    lab("K_END")
    e("s_endpgm")
    if CPF: out.append(".set CODE_REST, K_END - CPF_PC")

hdr = open("standalone__edge_featured_mpnn_mpnn__graph.s.ref").read().split("; Override")[0]
out.append(hdr.rstrip())
out.append(f"; @launch grid=(256,1,1) block=(512,1,1) lds={L_END}")
out.append('.amdgcn_target "amdgcn-amd-amdhsa--gfx950"')
out.append(".text")
out.append(f".globl {KN}")
out.append(f".p2align {AL}")
out.append(f".type {KN},@function")
kernel()
out.append(f""".section .rodata,"a"
.p2align 6
.amdhsa_kernel {KN}
  .amdhsa_next_free_vgpr 256
  .amdhsa_next_free_sgpr 102
  .amdhsa_accum_offset 256
  .amdhsa_group_segment_fixed_size 0
  .amdhsa_kernarg_size 88
  .amdhsa_user_sgpr_count 2
  .amdhsa_user_sgpr_kernarg_segment_ptr 1
  .amdhsa_system_sgpr_workgroup_id_x 1
.end_amdhsa_kernel""")
dst = sys.argv[1] if len(sys.argv) > 1 else "standalone__edge_featured_mpnn_mpnn__graph.s"
open(dst, "w").write("\n".join(out) + "\n")
print("written", dst, "LDS", L_END)
```

```python
import struct, sys, os
import numpy as np
from align import align, isize

N, E = 12500, 800000
NPB, SPLIT = 49, 25
CH, CHS, GCS, DS = 3128, 25088, 25216, 2176
NQ, NQL = CH // 4, (E - 255 * CH) // 4
LOG2E = 1.4426950408889634
LN2 = 0.6931471805599453
KN = "standalone__edge_featured_mpnn_mpnn__graph_kernel"
DIAG = int(os.environ.get("DIAG", "0"))
PREF = int(os.environ.get("PREF", "0"))
X_NOP = int(os.environ.get("X_NOP", "0"))
STF = os.environ.get("STF", "sc1")
LDF = os.environ.get("LDF", "")
TRANS = int(os.environ.get("TRANS", "0"))
ELF = os.environ.get("ELF", "")
SLP = int(os.environ.get("SLP", "1"))
ORD = int(os.environ.get("ORD", "2"))
PFL = 0
PSF = os.environ.get("PSF", "sc1")
CL = int(os.environ.get("CL", "1"))
W5 = int(os.environ.get("W5", "0"))
OWN = int(os.environ.get("OWN", "1"))
POST = int(os.environ.get("POST", "16"))
LATEI = int(os.environ.get("LATEI", "1"))
AL = int(os.environ.get("AL", "12"))
CPF = int(os.environ.get("CPF", "1"))
CPF0 = int(os.environ.get("CPF0", "0"))
PEEL = int(os.environ.get("PEEL", "1"))
STOUCH = int(os.environ.get("STOUCH", "0"))
TOUCH = int(os.environ.get("TOUCH", "0"))

def f2u(x): return struct.unpack("<I", struct.pack("<f", x))[0]
def u2f(u): return struct.unpack("<f", struct.pack("<I", u))[0]

WS_EPOCH = 0
WSOFF = int(os.environ.get("WSOFF", "0")) << 20
WS_PT = WSOFF + 4096
WS_DESC = WS_PT + 12544 * 256
WS_FLAG = WS_DESC + 256 * DS
WS_PFLAG = WS_FLAG + 8 * DS
WS_ENT = WS_PFLAG + 8 * DS
WS_SIZE = WS_ENT + 256 * GCS
XT = os.environ.get("XT", "")
if XT: WS_SIZE += 256 * GCS
WS_STAMP = 12 << 20
if DIAG: WS_SIZE = 16 << 20

L_CNT1, L_BASE1 = 0, 1024
L_CNT2, L_FLAG, L_DEG, L_B2 = 2048, 2304, 2368, 2816
L_B1 = 0
L_EXT = 3072
L_TB = 4096
TBW = 8704
L_STG, L_W1S, L_XS = L_TB, L_TB + CHS, L_TB + CHS + 32768
PS = 272
assert L_XS + 8704 <= L_TB + 8 * TBW and L_W1S % 256 == 0
HT, GTH = 60, 72
L_SEL = L_TB + 8 * TBW
SELS, SELSZ = 200, 24576
assert 2 * HT * SELS + 56 <= SELSZ
L_GT = L_SEL + SELSZ
L_QT = L_GT + 2 * GTH * 16
QS = 328
L_PS = L_QT
assert L_PS % 16 == 0
L_W2 = (L_QT + NPB * QS + 255) // 256 * 256
L_LIST = L_W2 + 16384
LS, LCAP = 528, 128
LISTSZ = (NPB + 1) * LS
L_END = L_LIST + LISTSZ
assert L_END <= 163840, L_END
PADENT = 0x00007000
PSH = 3072
WSLOW = 6

out = []
def e(s): out.append("    " + s)
def lab(s): out.append(s + ":")
def c(s): out.append("    ; " + s)
def vr(a, n): return f"v[{a}:{a+n-1}]"
def sr(a, n=4): return f"s[{a}:{a+n-1}]"

SPIN = int(os.environ.get("SPIN", "-1"))
AMP = [int(x) for x in os.environ.get("AMP", "-1,-1,-1").split(",")]
def stamp(i, real=False):
    if AMP[0] >= 0:
        if i == 0: e("s_memrealtime s[96:97]")
        if i == AMP[0]:
            if i: e("s_waitcnt lgkmcnt(0)")
            e("s_memtime s[98:99]")
            if i: e("s_waitcnt lgkmcnt(0)")
        if i == AMP[1]:
            e("s_waitcnt lgkmcnt(0)")
            e("s_memtime s[100:101]")
            e("s_waitcnt lgkmcnt(0)")
    if SPIN == i:
        e("s_waitcnt lgkmcnt(0)")
        e("s_memrealtime s[96:97]")
        e("s_waitcnt lgkmcnt(0)")
    if not DIAG: return
    if DIAG in (2, 4) and i not in (0, 30, 28, 29, 31, 11, 12, 14, 9): return
    if DIAG == 3 and i in (0, 30, 15, 16): return
    e("s_waitcnt lgkmcnt(0)")
    e(f"{'s_memrealtime' if real else 's_memtime'} s[98:99]")
    e("s_waitcnt lgkmcnt(0)")
    e(f"v_writelane_b32 v255, s98, {i}")

lazy = []
def lstamp(i):
    if DIAG != 3: return
    r = 52 + 2 * len(lazy)
    e(f"s_memtime s[{r}:{r+1}]")
    lazy.append((i, r))
def lflush():
    for i, r in lazy: e(f"v_writelane_b32 v255, s{r}, {i}")

def scan64(v):
    for sh in (1, 2, 4, 8):
        e("s_nop 1")
        e(f"v_add_u32_dpp v{v}, v{v}, v{v} row_shr:{sh} row_mask:0xf bank_mask:0xf bound_ctrl:1")
    e("s_nop 1")
    e(f"v_add_u32_dpp v{v}, v{v}, v{v} row_bcast:15 row_mask:0xa bank_mask:0xf")
    e("s_nop 1")
    e(f"v_add_u32_dpp v{v}, v{v}, v{v} row_bcast:31 row_mask:0xc bank_mask:0xf")

H = 176
C = (144, 160)
D = (112, 128)
T = 96
P = 80
SL = 76
BX = (72, 74)
IDX, IDR = 64, 68
NN, DD, RR, AX, CX, V_M = 16, 18, 20, 22, 24, 26
V_CA, V_DMAC, V_LI, V_LM, V_GQA, V_SELA, V_PSEL, V_QMUL, V_QC, V_GQ, V_QA, V_DMAX, V_TID, V_LANE, V_GIA = range(1, 16)
V_GMA, V_LIO, V_LMO = 28, 29, 30
V_SAVE = 240
V_CHK, V_J0, V_W2A = 244, 245, 246
S_X, S_E, S_SRC, S_DST, S_W1, S_B1, S_W2, S_B2, S_OUT, S_WS, S_P = 8, 12, 16, 20, 24, 28, 92, 36, 40, 44, 48
S_MASK = 8
S_SOFF = 52
S_256, S_REM, S_M0, S_WN, S_RB, S_MORE, S_SAFE, S_NT, S_EARLY, S_TAGA, S_TAGB, S_SPIN = 60, 61, (62, 63), 64, 65, 66, 67, 68, 69, 72, 73, 70
S_B, S_W = 3, 4

def mf16(d, a, b, cc): return f"v_mfma_f32_32x32x16_bf16 {vr(d,16)}, {vr(a,4)}, {vr(b,4)}, {cc}"
def mfext(ct): return f"v_mfma_f32_32x32x8_bf16 {vr(D[ct&1],16)}, {vr(AX,2)}, {vr(BX[ct&1],2)}, {vr(C[ct&1],16)}"
def mfsel(ct): return mf16(H + 16 * ct, P + 4 * ct, SL, vr(H + 16 * ct, 16))
def dma(half):
    return [f"buffer_load_dwordx4 v{IDX+j}, {sr(S_P)}, s{S_SOFF+4*half+j} offen offset:{1024*j} lds" for j in range(4)]
def mads(src=IDR): return [f"v_mad_i32_i16 v{IDX+j}, v{src+j}, s{S_256}, v{V_DMAC}" for j in range(4)]
def c_reads(half):
    L = []
    for ctl in range(2):
        for r in range(16):
            mm = r >> 1
            L.append(f"ds_read_u16_d16_hi v{C[ctl]+r}, v{V_CA} offset:{half*4096 + (mm&3)*1024 + (2*(r&1) + (mm>>2))*128 + ctl*64}")
    return L
def tr_read(ct): return f"ds_read_b64_tr_b16 {vr(BX[ct&1],2)}, v{V_QA} offset:{64*ct}"
AXB = f"v_pk_mul_f32 {vr(AX,2)}, {vr(CX,2)}, {vr(V_M,2)} op_sel_hi:[1,0]"
QAB = f"v_mad_u32_u24 v{V_QA}, v{V_GQ}, v{V_QMUL}, v{V_QC}"
PERM = f"v_perm_b32 v{V_M}, v{V_M}, v{V_M}, v{V_PSEL}"

def block(tau, ct, safe, gate=False, last=False):
    cur = D[ct & 1]
    pc, pt = (ct - 1) & 3, (tau if ct > 0 else (tau - 1) & 3)
    tr = [f"v_exp_f32 v{T+i}, v{cur+i}" for i in range(16)] + [f"v_rcp_f32 v{RR}, v{DD}", f"v_rcp_f32 v{RR+1}, v{DD+1}"]
    mf = [] if last else [mfext((ct + 1) & 3)]
    if tau == 0: mf.append(mfsel(ct))
    fill = []
    if ct == 0: fill += [f"v_add_u32 v{V_LI}, v{V_LI}, v{V_LIO}", f"v_add_u32 v{V_LM}, v{V_LM}, v{V_LMO}"]
    if ct == 1: fill += mads() + [PERM]
    if ct == 2:
        fill += [QAB]
        if tau == 3:
            fill += [f"v_add_u32 v{V_GIA}, 256, v{V_GIA}", f"v_add_u32 v{V_GMA}, 256, v{V_GMA}",
                     f"v_add_u32 v{V_GQA}, 256, v{V_GQA}", f"v_add_u32 v{V_SELA}, {16*SELS}, v{V_SELA}"]
    fill.append(f"v_max3_f32 v{V_DMAX}, v{DD}, v{DD+1}, v{V_DMAX}")
    L = []
    k = 0
    if gate:
        L += [tr[0], "s_setprio 3"]; k = 1
    for m in mf:
        L.append(m); L += tr[k:k+4]; k += 4
    L += tr[k:] + fill
    L.append(f"v_pk_mul_f32 {vr(RR,2)}, {vr(NN,2)}, {vr(RR,2)}")
    cvt = f"v_cvt_pk_bf16_f32 v{P+4*pc+pt}, v{RR}, v{RR+1}"
    if not safe:
        L += [f"v_pk_add_f32 {vr(DD,2)}, {vr(T,2)}, 1.0 op_sel_hi:[1,0]", cvt]
        if ct == 2: L.append(AXB)
        for j in range(1, 8):
            n_in = vr(cur, 2) if j == 1 else vr(NN, 2)
            L += [f"v_pk_fma_f32 {vr(NN,2)}, {n_in}, {vr(T+2*j,2)}, {n_in}",
                  f"v_pk_fma_f32 {vr(NN,2)}, {vr(cur+2*j,2)}, {vr(DD,2)}, {vr(NN,2)}",
                  f"v_pk_fma_f32 {vr(DD,2)}, {vr(DD,2)}, {vr(T+2*j,2)}, {vr(DD,2)}"]
    else:
        L += [f"v_pk_add_f32 {vr(T+2*j,2)}, {vr(T+2*j,2)}, 1.0 op_sel_hi:[1,0]" for j in range(8)] + [cvt]
        if ct == 2: L.append(AXB)
        L += [f"v_rcp_f32 v{T+i}, v{T+i}" for i in range(16)]
        L.append(f"v_pk_mul_f32 {vr(NN,2)}, {vr(cur,2)}, {vr(T,2)}")
        L += [f"v_pk_fma_f32 {vr(NN,2)}, {vr(cur+2*j,2)}, {vr(T+2*j,2)}, {vr(NN,2)}" for j in range(1, 8)]
    return L

def memphase(tau, half):
    L = ["s_setprio 0", "s_waitcnt vmcnt(4)"]
    L += c_reads(half) + [tr_read(2 * half), tr_read(2 * half + 1)]
    if half == 0:
        L += [f"ds_read_u16 v{V_LI}, v{V_GIA} offset:{(tau+2)*64}",
              f"ds_read_u16 v{V_LM}, v{V_GMA} offset:{(tau+1)*64}"]
    if half == 1:
        L += [f"ds_read_b128 {vr(IDR,4)}, v{V_LI}",
              f"ds_read_b32 v{V_M}, v{V_LM}",
              f"ds_read_u16 v{V_GQ}, v{V_GQA} offset:{(tau+1)*64+2}"]
        if tau == 1: L.append(f"ds_read_b32 v{SL}, v{V_SELA}")
        if tau >= 1: L.append(f"ds_read_b32 v{SL+tau}, v{V_SELA} offset:{tau*4*SELS}")
    if DIAG == 4 and half == 1: L = ["s_memtime s[98:99]"] + L
    L += [f"s_mov_b32 m0, s{S_M0[half]}", "s_waitcnt lgkmcnt(0)"]
    L += dma(half)
    if DIAG == 4 and half == 1: L += [f"s_add_u32 m0, s{S_REM}, 32", "s_nop 0", "v_writelane_b32 v255, s98, m0"]
    return L

def w2f(ks, mt): return (32 if ks < 4 else 144) + 8 * (ks & 3) + 4 * mt
def w2_reads():
    return [f"ds_read_b64_tr_b16 {vr(w2f(ks,mt)+2*t,2)}, v{27 if mt else V_W2A} offset:{2048*ks+1024*t}"
            for ks in range(8) for mt in range(2) for t in range(2)]

def emit(L):
    L = align(L)
    assert sum(isize(x) for x in L) % 8 == 0
    for s in L: e(s)

def mainloop(safe):
    x = "S" if safe else "F"
    out.append(".p2align 6")
    lab(f"LOOP{x}")
    for tau in range(4):
        c(f"==== tile slot {tau}")
        emit(memphase(tau, 0))
        emit(block((tau - 1) & 3, 3, safe, gate=True))
        if tau == 0 and not PEEL: lab(f"ENTER{x}")
        emit(block(tau, 0, safe))
        if tau == 0 and PEEL: lab(f"ENTER{x}")
        emit(memphase(tau, 1))
        emit(block(tau, 1, safe, gate=True))
        emit(block(tau, 2, safe))
        e(f"s_sub_u32 s{S_REM}, s{S_REM}, 1")
        if tau < 3: e(f"s_cbranch_scc1 TAIL{x}{tau}")
        else: e(f"s_cbranch_scc0 LOOP{x}")
    for tau in (3, 0, 1, 2):
        lab(f"TAIL{x}{tau}")
        emit(["s_setprio 0", f"v_xor_b32 v27, 64, v{V_W2A}"] + w2_reads())
        emit(block(tau, 3, safe, gate=True, last=True))
        if tau == 0: e(f"ds_read_b32 v{SL}, v{V_SELA}")
        e(f"v_rcp_f32 v{RR}, v{DD}")
        e(f"v_rcp_f32 v{RR+1}, v{DD+1}")
        e(f"v_max3_f32 v{V_DMAX}, v{DD}, v{DD+1}, v{V_DMAX}")
        e(f"v_pk_mul_f32 {vr(RR,2)}, {vr(NN,2)}, {vr(RR,2)}")
        for t2 in range(tau + 1, 4): e(f"v_mov_b32_e64 v{SL+t2}, 0")
        e(f"v_cvt_pk_bf16_f32 v{P+12+tau}, v{RR}, v{RR+1}")
        e("s_nop 0")
        e("s_branch DRAIN")

def find_cx(target):
    m = np.float64(u2f(0x00FF0000))
    g = f2u(float(np.float32(np.float64(u2f(target)) / m)))
    for d in range(-3, 4):
        if f2u(float(np.float32(np.float64(u2f(g + d)) * m))) == target: return g + d
    raise SystemExit("no cx")

V_GV, V_GB, V_SB, V_L0, V_COL = 247, 248, 249, 250, 251

def fill_list(t):
    e(f"v_lshlrev_b32 v{t+8}, 4, v{V_TID}")
    e(f"v_add_u32 v{t+9}, {L_LIST}, v{t+8}")
    for i in range(4): e(f"v_mov_b32 v{t+i}, {hex(PADENT)}")
    for o in (0, 8192, 16384, LISTSZ - 8192): e(f"ds_write_b128 v{t+9}, {vr(t,4)} offset:{o}")

def init_tables(t):
    fill_list(t)
    for i in range(4): e(f"v_mov_b32 v{t+4+i}, 0")
    e(f"v_add_u32 v{t+8}, {L_SEL}, v{t+8}")
    for o in (0, 8192, 16384): e(f"ds_write_b128 v{t+8}, {vr(t+4,4)} offset:{o}")
    e(f"v_min_u32 v{t+8}, {GTH*4-1}, v{V_TID}")
    e(f"v_lshlrev_b32 v{t+8}, 3, v{t+8}")
    e(f"v_add_u32 v{t+8}, {L_GT}, v{t+8}")
    e(f"v_mov_b32 v{t+10}, {NPB*LS}")
    e(f"v_mov_b32 v{t+11}, {NPB*LS}")
    e(f"ds_write_b64 v{t+8}, {vr(t+10,2)}")

def static_writes(t, tag):
    e(f"s_cmp_eq_u32 s{S_W}, 1")
    e(f"s_cbranch_scc0 STW{tag}")
    e(f"v_lshlrev_b32 v{t}, 2, v{V_LANE}")
    e(f"v_mov_b32 v{t+1}, 0")
    e(f"ds_write_b32 v{t}, v{V_L0} offset:{L_CNT2}")
    e(f"ds_write_b32 v{t+1}, v{t+1} offset:{L_FLAG}")
    e(f"v_lshl_add_u32 v{t}, v{V_COL}, 2, v{V_GB}")
    e(f"v_lshrrev_b32 v{t+1}, 1, v{V_COL}")
    e(f"v_mul_u32_u24 v{t+1}, {SELS//2}, v{t+1}")
    e(f"v_and_b32 v{t+2}, 1, v{V_COL}")
    e(f"v_lshl_add_u32 v{t+1}, v{t+2}, 1, v{t+1}")
    e(f"v_add_u32 v{t+1}, v{t+1}, v{V_SB}")
    e(f"v_mov_b32 v{t+2}, 0x3f80")
    e(f"s_bfm_b64 exec, {NPB}, 0")
    e(f"ds_write_b32 v{t}, v{V_GV}")
    e(f"ds_write_b16 v{t+1}, v{t+2}")
    e("s_mov_b64 exec, -1")
    lab(f"STW{tag}")

def desc_soff():
    e(f"s_lshr_b32 s5, s{S_B}, 2")
    e(f"s_and_b32 s7, s{S_B}, 1")
    e("s_lshl1_add_u32 s5, s5, s7")
    e(f"s_and_b32 s7, s{S_B}, 2")
    e("s_lshl_b32 s7, s7, 6")
    e("s_add_u32 s5, s5, s7")
    e(f"s_lshl3_add_u32 s5, s5, {WS_DESC}")

def flag_load(first=False):
    if first:
        e(f"v_lshlrev_b32 v62, 3, v{V_CHK}")
        e("s_and_b32 s84, s2, 7")
        e(f"s_mul_i32 s84, s84, {DS}")
        e(f"s_add_u32 s84, s84, {WS_FLAG}")
    e(f"buffer_load_dwordx2 v[60:61], v62, {sr(S_WS)}, s84 offen sc1")

def wave_reset():
    e(f"v_mov_b32 v{V_GIA}, v{V_SAVE}")
    e(f"v_mov_b32 v{V_GMA}, v{V_SAVE+1}")
    e(f"v_mov_b32 v{V_GQA}, v{V_SAVE+2}")
    e(f"v_mov_b32 v{V_SELA}, v{V_SAVE+3}")
    e(f"ds_read_u16 v{V_LI}, v{V_GIA}")
    e(f"ds_read_u16 v{V_LM}, v{V_GMA}")
    e(f"ds_read_u16 v{V_GQ}, v{V_GQA} offset:2")
    for i in range(2):
        e(f"v_mov_b32 v{NN+i}, 0")
        e(f"v_mov_b32 v{DD+i}, 1.0")
    e(f"v_mov_b32 v{V_DMAX}, 0")
    for r in list(range(SL, SL + 20, 2)) + list(range(C[0], C[0] + 32, 2)):
        e(f"v_pk_mul_f32 {vr(r,2)}, {vr(NN,2)}, {vr(NN,2)}")
    e("s_waitcnt lgkmcnt(0)")
    e(f"v_add_u32 v{V_LI}, v{V_LI}, v{V_LIO}")
    e(f"v_add_u32 v{V_LM}, v{V_LM}, v{V_LMO}")
    e(QAB)

def first_tile(mid=None):
    e(f"ds_read_b128 {vr(IDX,4)}, v{V_LI}")
    e(f"ds_read_b32 v{V_M}, v{V_LM}")
    n = 1
    if mid: n += mid()
    e(f"s_mov_b32 m0, s{S_M0[0]}")
    e(f"s_waitcnt lgkmcnt({n})")
    for s in mads(IDX): e(s)
    for s in dma(0): e(s)

def kernel():
    lab(KN)
    e("s_cmpk_ge_u32 s2, 256")
    e("s_cbranch_scc1 K_END")
    if DIAG: e("v_mov_b32 v255, 0")
    stamp(30, True); stamp(0); lstamp(0)
    for s, off in ((S_DST, 24), (S_X, 0), (S_W1, 32), (S_WS, 80), (S_SRC, 16), (S_E, 8)):
        e(f"s_load_dwordx2 {sr(s,2)}, s[0:1], {off}")
    if CPF == 1:
        e("s_getpc_b64 s[90:91]")
        lab("CPF_PC")
        e("s_and_b32 s5, s2, -8")
        e("v_subrev_u32 v18, 504, v0")
        e("v_add_lshl_u32 v16, v18, s5, 7")
        e("v_add_u32 v16, 2048, v16")
        e("v_min_u32 v16, CODE_REST, v16")
        e("v_mov_b32 v17, s91")
        e("v_add_co_u32 v16, vcc, s90, v16")
        e("v_cmp_gt_u32 s[76:77], 8, v18")
        e("s_nop 0")
        e("v_addc_co_u32 v17, vcc, 0, v17, vcc")
        e("s_mov_b64 exec, s[76:77]")
        e("s_cbranch_execz CPF_E")
        e("global_load_dword v18, v[16:17], off")
        lab("CPF_E")
        e("s_mov_b64 exec, -1")
    e(f"v_readfirstlane_b32 s{S_W}, v0")
    e(f"v_and_b32 v{V_LANE}, 63, v0")
    e("v_mov_b32 v88, 0")
    e("v_mov_b32 v89, 0")
    e("v_lshlrev_b32 v92, 3, v0")
    e("ds_write_b64 v92, v[88:89]")
    e(f"s_mov_b32 s{S_DST+3}, 0x00020000")
    e(f"s_mov_b32 s{S_DST+2}, {E*4}")
    e(f"s_mov_b32 s{S_X+2}, {N*128}")
    e(f"s_mov_b32 s{S_X+3}, s{S_DST+3}")
    e(f"s_mov_b32 s{S_W1+2}, {129*256}")
    e(f"s_mov_b32 s{S_W1+3}, s{S_DST+3}")
    e(f"s_lshr_b32 s{S_W}, s{S_W}, 6")
    e(f"s_and_b32 s{S_B}, s2, 7")
    e(f"s_lshl_b32 s{S_B}, s{S_B}, 5")
    e("s_lshr_b32 s5, s2, 3")
    e(f"s_add_u32 s{S_B}, s{S_B}, s5")
    e(f"s_mul_i32 s5, s2, {CH*4}")
    e("v_lshl_add_u32 v32, v0, 4, s5")
    e("s_cmpk_eq_u32 s2, 255")
    e(f"s_movk_i32 s6, {NQ-512}")
    e(f"s_cmovk_i32 s6, {NQL-512}")
    e("v_cmp_gt_u32 s[74:75], s6, v0")
    e(f"v_lshrrev_b32 v37, 4, v{V_LANE}")
    e(f"v_lshrrev_b32 v47, 3, v{V_LANE}")
    e(f"v_and_b32 v48, 7, v{V_LANE}")
    e("v_and_b32 v45, 1, v37")
    e("v_and_b32 v58, 4, v47")
    e("v_and_b32 v59, 1, v47")
    e("v_lshl_add_u32 v58, v59, 1, v58")
    e("v_add_u32 v58, v58, v45")
    e("v_xor_b32 v59, v48, v37")
    e("v_lshlrev_b32 v59, 4, v59")
    e("v_lshl_add_u32 v58, v58, 15, v59")
    e(f"s_lshl_b32 s85, s{S_W}, 11")
    e(f"s_add_u32 s5, s85, s{S_B}")
    e("s_lshl_b32 s5, s5, 7")
    e("v_add_u32 v58, s5, v58")
    e("v_lshlrev_b32 v31, 2, v37")
    e(f"v_xor_b32 v31, v31, v{V_LANE}")
    e("v_lshlrev_b32 v31, 4, v31")
    e(f"s_mul_i32 s84, s{S_W}, 1088")
    e(f"s_add_u32 m0, s84, {L_XS}")
    e("s_movk_i32 s86, 8192")
    lstamp(21)
    e("s_waitcnt lgkmcnt(0)")
    lstamp(22)
    e(f"buffer_load_dwordx4 v[64:67], v32, {sr(S_DST)}, 0 offen {LDF}")
    e("s_mov_b64 exec, s[74:75]")
    e("s_cbranch_execz P0_ND")
    e(f"buffer_load_dwordx4 v[68:71], v32, {sr(S_DST)}, s86 offen {LDF}")
    lab("P0_ND")
    e("s_mov_b64 exec, -1")
    e("s_barrier")
    e(f"buffer_load_dwordx4 v58, {sr(S_X)}, 0 offen lds")
    e(f"s_add_u32 m0, s85, {L_W1S}")
    e(f"s_load_dwordx2 s[78:79], {sr(S_WS,2)}, {WS_EPOCH}")
    for k in range(2): e(f"buffer_load_dwordx4 v31, {sr(S_W1)}, s85 offen offset:{1024*k} lds")
    lab("P0_ISS")
    stamp(15); lstamp(15)
    for s, off in ((S_B1, 40), (S_W2, 48), (S_B2, 56), (S_OUT, 64)):
        e(f"s_load_dwordx2 {sr(s,2)}, s[0:1], {off}")
    e(f"v_mov_b32 v{V_TID}, v0")
    for s, sz in ((S_SRC, E*4), (S_E, E*2), (S_B1, 256), (S_W2, 16384), (S_B2, 128), (S_WS, WS_SIZE), (S_OUT, N*128), (S_P, 256*NPB*256 + PSH)):
        e(f"s_mov_b32 s{s+2}, {sz}")
        e(f"s_mov_b32 s{s+3}, s{S_DST+3}")
    e(f"s_mov_b32 s80, {hex(f2u(-LOG2E))}")
    e("s_mov_b32 s81, s80")
    e(f"v_lshrrev_b32 v38, 5, v{V_LANE}")
    e(f"v_and_b32 v39, 31, v{V_LANE}")
    e("v_bfe_u32 v40, v39, 2, 1")
    e("v_and_b32 v41, 1, v39")
    e("v_lshl_add_u32 v40, v40, 1, v41")
    e("v_lshrrev_b32 v42, 3, v39")
    e("v_bfe_u32 v43, v39, 1, 1")
    e(f"v_bfe_u32 v44, v{V_LANE}, 2, 2")
    e(f"v_and_b32 v46, 3, v{V_LANE}")
    e("v_lshlrev_b32 v46, 3, v46")
    e("v_lshl_add_u32 v46, v45, 5, v46")
    e(f"s_and_b32 s82, s{S_W}, 3")
    e(f"s_lshr_b32 s83, s{S_W}, 2")
    e("v_xor_b32 v50, s82, v44")
    e("v_lshl_add_u32 v50, v50, 6, v46")
    e("v_lshl_add_u32 v51, v38, 3, v44")
    e("v_lshl_add_u32 v50, v51, 8, v50")
    e("v_lshl_add_u32 v51, v40, 1, v43")
    e("v_mul_u32_u24 v52, 1088, v42")
    e("v_lshl_add_u32 v52, v51, 7, v52")
    e("s_mul_i32 s5, s83, 4352")
    e(f"s_add_u32 s5, s5, {L_XS}")
    e("v_add_u32 v52, s5, v52")
    e("v_xor_b32 v53, v38, v40")
    e("v_lshl_add_u32 v51, v53, 4, v52")
    e("v_xor_b32 v53, 2, v53")
    e("v_lshl_add_u32 v52, v53, 4, v52")
    e("s_lshl_b32 s5, s83, 5")
    e("v_add_u32 v55, s5, v39")
    e(f"v_cmp_gt_u32 s[88:89], {NPB}, v55")
    e("s_lshl_b32 s82, s82, 6")
    e("v_lshl_add_u32 v49, v38, 3, s82")
    e(f"v_add_u32 v56, {L_QT}, v49")
    e(f"v_mul_u32_u24 v53, {PS}, v55")
    e("v_add_u32 v53, v53, v56")
    e(f"v_mul_u32_u24 v54, {QS}, v55")
    e("v_add_u32 v54, v54, v56")
    assert PS == 272
    e(f"s_mov_b32 s7, {L_PS}")
    e("v_lshlrev_b32 v61, 4, v0")
    e("v_and_b32 v56, -16, v0")
    e("v_add3_u32 v62, v61, v56, s7")
    e(f"s_min_u32 s5, s{S_W}, 2")
    e(f"s_lshl2_add_u32 s5, s{S_W}, s5")
    e("s_add_u32 s5, s5, 64")
    e("s_lshl_b32 s5, s5, 3")
    e(f"v_add_u32 v55, s5, v{V_LANE}")
    e("v_lshlrev_b32 v63, 4, v55")
    e("v_and_b32 v56, -16, v55")
    e("v_add3_u32 v22, v63, v56, s7")
    e(f"s_cmp_lt_u32 s{S_W}, 2")
    e("s_cselect_b32 s71, 40, 32")
    lstamp(23)
    if not LATEI: init_tables(84)
    e(f"s_mul_i32 s6, s{S_B}, {NPB*256}")
    e(f"s_add_u32 s6, s6, {WS_PT}")
    e(f"s_mov_b32 s87, {128*256}")
    e("v_mov_b32 v55, 1")
    e(f"v_lshlrev_b32 v36, 2, v{V_LANE}")
    e("v_lshrrev_b32 v34, 1, v32")
    e("s_movk_i32 s84, 4096")
    stamp(16); lstamp(16)
    SD = "dst_sel:DWORD dst_unused:UNUSED_PAD src0_sel:DWORD"
    def binA(j):
        e(f"v_lshlrev_b32_sdwa v{112+j}, 2, v{64+j} {SD} src1_sel:BYTE_0")
        e(f"ds_add_rtn_u32 v{120+j}, v{112+j}, v55 offset:{L_CNT1}")
    def binB(j):
        e(f"v_lshlrev_b32_sdwa v{129+2*j}, 2, v{64+j} {SD} src1_sel:BYTE_1")
        if j % 2 == 0: e(f"v_lshlrev_b32 v56, 16, v{80+j//2}")
        else: e(f"v_and_b32 v56, 0xffff0000, v{80+j//2}")
        e(f"v_mul_u32_u24_sdwa v57, {NPB}, v{72+j} {SD} src1_sel:BYTE_0")
        e(f"v_add_u32_sdwa v57, v57, v{72+j} {SD} src1_sel:BYTE_1")
        e(f"v_or3_b32 v{128+2*j}, v56, v57, s87")
    def masked(tag, f):
        e("s_mov_b64 exec, s[74:75]")
        e(f"s_cbranch_execz {tag}")
        f()
        lab(tag)
        e("s_mov_b64 exec, -1")
    assert 128 * 256 == 0x8000
    e(f"v_lshlrev_b32 v58, 4, v{V_LANE}")
    e(f"v_lshlrev_b32 v23, 1, v{V_LANE}")
    e("s_waitcnt vmcnt(3)")
    stamp(3)
    def ldA():
        e(f"buffer_load_dwordx4 v[72:75], v32, {sr(S_SRC)}, 0 offen {LDF}")
        e(f"buffer_load_dwordx2 v[80:81], v34, {sr(S_E)}, 0 offen {LDF}")
    def ldB():
        e(f"buffer_load_dwordx4 v[76:79], v32, {sr(S_SRC)}, s86 offen {LDF}")
        e(f"buffer_load_dwordx2 v[82:83], v34, {sr(S_E)}, s84 offen {LDF}")
    if ORD == 1: ldA()
    for j in range(4): binA(j)
    if ORD == 2: ldA()
    e("s_mov_b64 exec, s[74:75]")
    e("s_cbranch_execz P1_A")
    if ORD == 1: ldB()
    for j in range(4, 8): binA(j)
    if ORD == 2: ldB()
    e("s_mov_b64 exec, -1")
    e("s_waitcnt vmcnt(4)")
    e("s_branch P1_A2")
    lab("P1_A")
    e("s_mov_b64 exec, -1")
    e("s_waitcnt vmcnt(2)")
    lab("P1_A2")
    e("s_add_u32 s86, s85, 16384")
    e(f"s_add_u32 m0, s86, {L_W1S}")
    e(f"s_cmp_eq_u32 s{S_W}, 7")
    e("s_waitcnt lgkmcnt(0)")
    e("s_barrier")
    stamp(4); lflush()
    if os.environ.get("PRES"):
        e(f"s_mov_b32 s90, {eval(os.environ.get('PRESA', 'WS_FLAG + 8 * 200'))}")
        e(f"s_load_dwordx2 s[98:99], {sr(S_WS,2)}, s90")
        e("s_waitcnt lgkmcnt(0)")
        mode = os.environ["PRES"]
        if mode == "1":
            e("s_xor_b32 s98, s98, s79")
            e("s_xor_b32 s99, s99, s78")
            e("s_or_b32 s98, s98, s99")
        elif mode == "3":
            e("s_xor_b32 s98, s98, s79")
            e("s_xor_b32 s99, s99, s78")
            e("s_or_b32 s98, s98, s99")
            e("s_cmp_eq_u32 s78, s79")
            e("s_cselect_b32 s98, 1, s98")
        elif mode == "4":
            e("s_xor_b32 s98, s98, s79")
            e("s_xor_b32 s99, s99, s78")
            e("s_or_b32 s98, s98, s99")
            e("s_cmp_eq_u32 s98, 0")
            e("s_cselect_b32 s98, 1, 0")
        elif mode == "2":
            e("s_xor_b32 s98, s78, s79")
        e("s_cmp_eq_u32 s98, 0")
        e("s_cselect_b32 s100, 10000, 0")
        e("s_mov_b32 s98, 0")
        e(f"s_cmp_eq_u32 s{S_W}, 7")
    if XT:
        reg, n, fl = XT.split(",")
        base, stride = {"fresh": (WS_SIZE - 256 * GCS, GCS), "pt": (WS_PT, NPB * 256), "ent": (WS_ENT, GCS), "ptf": (WS_SIZE - 256 * GCS, NPB * 256), "wpt": (WS_PT, NPB * 256), "wptf": (WS_SIZE - 256 * GCS, NPB * 256)}[reg]
        e("s_waitcnt vmcnt(0)")
        e("s_barrier")
        stamp(40)
        e(f"s_mul_i32 s90, s{S_B if reg[:2] == 'pt' else 2}, {stride}")
        e(f"s_add_u32 s90, s90, {base}")
        for k in range(int(n)):
            e(f"buffer_store_dwordx4 v[64:67], v61, {sr(S_WS)}, s90 offen {fl}")
            e("s_add_u32 s90, s90, 8192")
        e("s_waitcnt vmcnt(0)")
        e("s_barrier")
        stamp(41)
        e(f"s_cmp_eq_u32 s{S_W}, 7")
    def tags():
        e(f"s_mul_i32 s{S_TAGB}, s78, 1664525")
        e(f"s_add_u32 s{S_TAGB}, s{S_TAGB}, 1013904223")
        e(f"s_add_u32 s{S_TAGA}, s79, 0x01000000")
        e(f"s_and_b32 s{S_TAGA}, s{S_TAGA}, 0xff000000")
    def p_reads():
        for ks in range(4):
            e(f"ds_read_b64_tr_b16 {vr(88+4*ks,2)}, v50 offset:{L_W1S+4096*ks}")
            e(f"ds_read_b64_tr_b16 {vr(90+4*ks,2)}, v50 offset:{L_W1S+4096*ks+1024}")
            e(f"ds_read_b128 {vr(160+4*ks,4)}, v{51+(ks&1)} offset:{64*(ks>>1)}")
    def p_mfma(counted=False):
        for ks in range(4):
            if counted: e(f"s_waitcnt lgkmcnt({9-3*ks})")
            e(mf16(144, 88 + 4*ks, 160 + 4*ks, "0" if ks == 0 else vr(144, 16)))
    def p_fin():
        for i in range(8): e(f"v_pk_mul_f32 {vr(144+2*i,2)}, {vr(144+2*i,2)}, s[80:81]")
        for i in range(8): e(f"v_cvt_pk_bf16_f32 v{88+i}, v{144+2*i}, v{145+2*i}")
        e("s_mov_b64 exec, s[88:89]")
        for q in range(4): e(f"ds_write_b64 v53, {vr(88+2*q,2)} offset:{16*q}")
        e("s_mov_b64 exec, -1")
    def late():
        for k in range(2): e(f"buffer_load_dwordx4 v31, {sr(S_W1)}, s86 offen offset:{1024*k} lds")
    e("s_cbranch_scc1 P1_SCAN")
    p_reads()
    p_mfma(True)
    tags()
    e(f"s_cmp_eq_u32 s{S_W}, 6")
    e("s_cbranch_scc0 P1_H6")
    e(f"buffer_load_dword v20, v36, {sr(S_W1)}, s87 offen")
    e(f"buffer_load_ushort v21, v23, {sr(S_B2)}, 0 offen")
    e(f"buffer_load_dword v19, v36, {sr(S_B1)}, 0 offen")
    lab("P1_H6")
    e("s_nop 3")
    e("s_branch P1_HJ")
    lab("P1_SCAN")
    e("s_setprio 3")
    e(f"ds_read_b128 v[136:139], v58 offset:{L_CNT1}")
    p_reads()
    tags()
    e(f"s_mul_i32 s7, s2, {DS}")
    e(f"s_add_u32 s7, s7, {WS_DESC}")
    e("s_waitcnt lgkmcnt(0)")
    p_mfma()
    e("v_add_u32 v57, v136, v137")
    e("v_add_u32 v56, v57, v138")
    e("v_add_u32 v59, v56, v139")
    e("v_mov_b32 v60, v59")
    scan64(59)
    e("v_sub_u32 v140, v59, v60")
    e("v_add_u32 v141, v140, v136")
    e("v_add_u32 v142, v140, v57")
    e("v_add_u32 v143, v140, v56")
    e(f"ds_write_b128 v58, v[140:143] offset:{L_BASE1}")
    lab("P1_HJ")
    late()
    p_fin()
    e("s_waitcnt lgkmcnt(0)")
    e("s_barrier")
    e("s_setprio 0")
    stamp(5)
    e("ds_read_b128 v[104:107], v62")
    e("ds_read_b128 v[108:111], v22")
    for j in range(4): e(f"ds_read_b32 v{112+j}, v{112+j} offset:{L_BASE1}")
    e("s_waitcnt lgkmcnt(4)")
    e(f"buffer_store_dwordx4 v[104:107], v61, {sr(S_WS)}, s6 offen {PSF}")
    e("s_bfm_b64 exec, s71, 0")
    e(f"buffer_store_dwordx4 v[108:111], v63, {sr(S_WS)}, s6 offen {PSF}")
    def w(j):
        e(f"v_add_lshl_u32 v{112+j}, v{112+j}, v{120+j}, 3")
        e(f"ds_write_b64 v{112+j}, {vr(128+2*j,2)} offset:{L_STG}")
    def partA():
        for j in range(4): binB(j)
        e("s_waitcnt lgkmcnt(0)")
        for j in range(4): w(j)
    e("s_mov_b64 exec, s[74:75]")
    e("s_cbranch_execz P1_S1")
    for j in range(4, 8): e(f"ds_read_b32 v{112+j}, v{112+j} offset:{L_BASE1}")
    e("s_mov_b64 exec, -1")
    e("s_waitcnt vmcnt(6)")
    partA()
    e("s_mov_b64 exec, s[74:75]")
    e("s_waitcnt vmcnt(4)")
    for j in range(4, 8): binB(j)
    for j in range(4, 8): w(j)
    e("s_mov_b64 exec, -1")
    e("s_branch P1_JOIN")
    lab("P1_S1")
    e("s_mov_b64 exec, -1")
    e(f"s_cmp_eq_u32 s{S_W}, 7")
    e("s_cbranch_scc0 P1_S2")
    for j in range(4):
        e(f"v_lshl_or_b32 v{96+2*j}, v{136+j}, 12, v{140+j}")
        e(f"v_or_b32 v{96+2*j}, s{S_TAGA}, v{96+2*j}")
        e(f"v_mov_b32 v{97+2*j}, s{S_TAGB}")
    e(f"buffer_store_dwordx4 v[96:99], v58, {sr(S_WS)}, s7 offen sc1")
    e(f"buffer_store_dwordx4 v[100:103], v58, {sr(S_WS)}, s7 offen offset:1024 sc1")
    lab("P1_S2")
    e(f"s_cmp_ge_u32 s{S_W}, 6")
    e("s_waitcnt vmcnt(6)")
    e("s_cbranch_scc1 P1_S3")
    e("s_waitcnt vmcnt(4)")
    lab("P1_S3")
    partA()
    lab("P1_JOIN")
    e(f"s_mul_i32 s5, s2, {GCS}")
    e(f"s_add_u32 s5, s5, {WS_ENT}")
    e("s_waitcnt lgkmcnt(0)")
    e("s_barrier")
    stamp(6)
    for k in range(3): e(f"ds_read_b128 {vr(64+4*k,4)}, v61 offset:{L_STG+8192*k}")
    e(f"s_cmp_eq_u32 s{S_W}, 7")
    e("s_cbranch_scc0 P1_C")
    e(f"ds_read_b128 v[76:79], v58 offset:{L_STG+24576}")
    e("s_add_u32 s7, s5, 24576")
    e("s_bfm_b64 exec, 32, 0")
    e("s_waitcnt lgkmcnt(0)")
    e(f"buffer_store_dwordx4 v[76:79], v58, {sr(S_WS)}, s7 offen {STF}")
    e("s_mov_b64 exec, -1")
    lab("P1_C")
    for k in range(3):
        e(f"s_waitcnt lgkmcnt({2-k})")
        e(f"buffer_store_dwordx4 {vr(64+4*k,4)}, v61, {sr(S_WS)}, s5 offen {STF}")
        if k < 2: e("s_add_u32 s5, s5, 8192")
    def loop_consts():
        e("v_lshlrev_b32 v58, 1, v39")
        e("v_lshl_add_u32 v58, v38, 9, v58")
        e(f"v_add_u32 v{V_CA}, s{S_M0[0]}, v58")
        e("v_lshlrev_b32 v58, 4, v48")
        e(f"v_add_u32 v{V_DMAC}, 0x800000, v58")
        e("v_and_b32 v58, 1, v47")
        e("v_lshlrev_b32 v58, 4, v58")
        e(f"v_add_u32 v{V_LIO}, {L_LIST}, v58")
        e("v_lshl_add_u32 v58, v42, 1, v43")
        e("v_lshlrev_b32 v58, 2, v58")
        e(f"v_add_u32 v{V_LMO}, {L_LIST}, v58")
        e(f"s_sub_u32 s76, {GTH+7}, s{S_W}")
        e(f"s_sub_u32 s77, {HT+7}, s{S_W}")
        e(f"s_cmp_lt_u32 s{S_W}, 4")
        e(f"s_cselect_b32 s76, s{S_W}, s76")
        e(f"s_cselect_b32 s77, s{S_W}, s77")
        e("s_lshl_b32 s76, s76, 4")
        e(f"s_add_u32 s76, s76, {L_GT}")
        e(f"s_mul_i32 s77, s77, {SELS}")
        e(f"s_add_u32 s77, s77, {L_SEL}")
        e(f"v_lshl_add_u32 v{V_SAVE}, v37, 2, s76")
        e(f"v_lshl_add_u32 v{V_SAVE+1}, v40, 2, s76")
        e(f"v_lshl_add_u32 v{V_SAVE+2}, v44, 2, s76")
        e(f"v_mul_u32_u24 v58, {SELS//2}, v38")
        e("v_lshl_add_u32 v58, v39, 2, v58")
        e(f"v_add_u32 v{V_SAVE+3}, s77, v58")
        e("v_cmp_eq_u32 vcc, 0, v38")
        e("v_mov_b32 v59, 0x03020100")
        e("v_mov_b32 v58, 0x0c080c0c")
        e(f"v_cndmask_b32 v{V_PSEL}, v59, v58, vcc")
        e(f"v_cndmask_b32 v{V_QMUL}, 0, 1, vcc")
        e("v_add_u32 v58, 1, v44")
        e("v_lshrrev_b32 v58, 1, v58")
        e("v_and_b32 v59, 1, v44")
        e("v_mul_u32_u24 v58, v58, v59")
        e("v_mul_u32_u24 v58, 320, v58")
        e(f"v_add_u32 v58, {L_EXT}, v58")
        e(f"v_mov_b32 v59, {L_QT}")
        e("v_cndmask_b32 v58, v58, v59, vcc")
        e(f"v_add_u32 v{V_QC}, v46, v58")
        e(f"v_mov_b32 v58, {hex(find_cx(0x00803F80))}")
        e(f"v_mov_b32 v59, {hex(find_cx(0x3F800000))}")
        e("v_cmp_eq_u32 s[6:7], 1, v41")
        e("v_cmp_gt_u32 s[76:77], 2, v40")
        e("s_nop 0")
        e("v_cndmask_b32 v58, v58, v59, s[6:7]")
        e("v_cndmask_b32 v59, 0, v58, s[76:77]")
        e("v_cndmask_b32 v58, v58, 0, s[76:77]")
        e(f"v_cndmask_b32 v{CX}, 1.0, v59, vcc")
        e(f"v_cndmask_b32 v{CX+1}, 1.0, v58, vcc")
        e("v_lshl_add_u32 v58, v38, 2, v44")
        e("v_lshl_add_u32 v58, v58, 7, v46")
        e("v_lshrrev_b32 v59, 1, v44")
        e("v_lshl_add_u32 v58, v59, 6, v58")
        e(f"v_add_u32 v{V_W2A}, {L_W2}, v58")
    if PFL == 1:
        e(f"s_lshl_b32 s5, s{S_W}, 5")
        e("s_lshr_b32 s6, s2, 3")
        e("s_add_u32 s90, s5, s6")
        e("s_and_b32 s6, s2, 7")
        e(f"s_mul_i32 s6, s6, {DS}")
        e("s_lshl_b32 s5, s90, 3")
        e("s_add_u32 s5, s5, s6")
        e(f"s_add_u32 s91, s5, {WS_PFLAG}")
    if LATEI: init_tables(120)
    e("v_lshlrev_b32 v31, 2, v45")
    e(f"v_xor_b32 v31, v31, v{V_LANE}")
    e("v_lshlrev_b32 v31, 4, v31")
    e(f"s_mov_b32 s{S_EARLY}, 2")
    e(f"s_cmp_eq_u32 s{S_W}, 6")
    e("s_cbranch_scc0 P0_NOEXT")
    e("s_waitcnt vmcnt(5)")
    e("v_lshlrev_b32 v118, 16, v19")
    e("v_and_b32 v119, 0xffff0000, v19")
    e("v_lshlrev_b32 v117, 1, v36")
    e(f"ds_write_b64 v117, v[118:119] offset:{L_B1}")
    e("v_lshlrev_b32 v112, 16, v20")
    e("v_and_b32 v113, 0xffff0000, v20")
    e("v_mul_f32 v112, s80, v112")
    e("v_mul_f32 v113, s80, v113")
    e("v_cvt_pk_bf16_f32 v114, v112, v113")
    e("v_lshlrev_b32 v115, 16, v114")
    e("v_and_b32 v116, 0xffff0000, v114")
    e("v_sub_f32 v115, v112, v115")
    e("v_sub_f32 v116, v113, v116")
    e("v_cvt_pk_bf16_f32 v115, v115, v116")
    e("v_lshlrev_b32 v116, 16, v21")
    e(f"ds_write_b32 v36, v114 offset:{L_EXT+320}")
    e(f"ds_write_b32 v36, v115 offset:{L_EXT+640}")
    e(f"ds_write_b32 v36, v116 offset:{L_B2}")
    lab("P0_NOEXT")
    e(f"s_add_u32 s{S_P}, s{S_WS}, {WS_PT - PSH}")
    e(f"s_addc_u32 s{S_P+1}, s{S_WS+1}, 0")
    e(f"v_mov_b32 v252, s{S_TAGA}")
    e(f"v_mov_b32 v253, s{S_TAGB}")
    e(f"v_mul_u32_u24 v254, {DS}, v{V_LANE}")
    e("v_lshlrev_b32 v49, 1, v49")
    for j in range(8): e(f"s_movk_i32 s{S_SOFF+j}, {PSH - 1024*(j&3) + 128*(j>>2)}")
    e(f"s_movk_i32 s{S_256}, 256")
    e(f"s_mul_i32 s{S_M0[0]}, s{S_W}, {TBW}")
    e(f"s_add_u32 s{S_M0[0]}, s{S_M0[0]}, {L_TB}")
    e(f"s_add_u32 s{S_M0[1]}, s{S_M0[0]}, 4096")
    e(f"s_mov_b32 s{S_WN}, 32")
    e(f"s_mov_b32 s{S_RB}, 0")
    e(f"s_mov_b32 s{S_SAFE}, 0")
    e(f"s_mov_b32 s{S_SPIN}, 0x40000")
    e(f"v_cmp_le_u32 vcc, {SPLIT}, v{V_LANE}")
    e(f"v_mul_u32_u24 v56, {LS}, v{V_LANE}")
    e(f"v_mul_u32_u24 v57, {QS}, v{V_LANE}")
    e(f"v_add_u32 v{V_L0}, {L_LIST}, v56")
    e(f"v_lshl_or_b32 v{V_GV}, v57, 16, v56")
    e("v_cndmask_b32 v56, 0, 1, vcc")
    e(f"v_mul_u32_u24 v57, {SPLIT}, v56")
    e(f"v_sub_u32 v{V_COL}, v{V_LANE}, v57")
    e(f"v_mul_u32_u24 v57, {GTH*16}, v56")
    e(f"v_add_u32 v{V_GB}, {L_GT}, v57")
    e(f"v_mul_u32_u24 v57, {HT*SELS}, v56")
    e(f"v_lshl_add_u32 v57, v{V_COL}, 2, v57")
    e(f"v_add_u32 v{V_SB}, {L_SEL}, v57")
    if PFL == 1:
        e(f"s_load_dwordx2 s[92:93], {sr(S_WS,2)}, s91 glc")
    if not CL: loop_consts()
    if LATEI:
        e("s_waitcnt lgkmcnt(0)")
        e("s_barrier")
    static_writes(56, "A")
    e("v_lshl_add_u32 v56, v37, 3, v48")
    e(f"s_lshl_b32 s5, s{S_W}, 5")
    e(f"v_add_u32 v{V_CHK}, s5, v56")
    e(f"v_and_b32 v{V_J0}, 15, v{V_LANE}")
    e(f"v_mul_u32_u24 v33, {DS}, v{V_CHK}")
    desc_soff()
    e(f"buffer_load_dwordx2 v[34:35], v33, {sr(S_WS)}, s5 offen sc1")
    nyoung = 1
    if PFL == 1:
        e("s_and_b32 s6, s90, 7")
        e("s_lshl_b32 s6, s6, 5")
        e("s_lshr_b32 s7, s90, 3")
        e("s_add_u32 s6, s6, s7")
        e(f"s_mul_i32 s6, s6, {NPB*256}")
        e(f"s_add_u32 s6, s6, {PSH}")
        e(f"v_min_u32 v56, {NPB-1}, v{V_LANE}")
        e("v_lshlrev_b32 v56, 8, v56")
        e("s_waitcnt lgkmcnt(0)")
        e(f"s_cmp_eq_u64 s[92:93], s[{S_TAGA}:{S_TAGB}]")
        e("s_cselect_b32 s6, s6, 0x7f000000")
        e("v_add_u32 v56, s6, v56")
        e(f"buffer_load_dword v57, v56, {sr(S_P)}, 0 offen")
        e(f"buffer_load_dword v58, v56, {sr(S_P)}, 0 offen offset:128")
        nyoung = 3
    e("s_lshl_b32 s6, s2, 3")
    e(f"s_add_u32 s6, s6, {WS_FLAG}")
    stamp(18)
    e(f"s_waitcnt vmcnt({nyoung}) lgkmcnt(0)")
    e("s_barrier")
    stamp(7)
    e(f"s_cmp_eq_u32 s{S_W}, 0")
    e("s_cbranch_scc0 P1_NF")
    e("s_mov_b64 exec, 0xff")
    e(f"buffer_store_dwordx2 v[252:253], v254, {sr(S_WS)}, s6 offen sc1")
    e("s_mov_b64 exec, -1")
    lab("P1_NF")
    if OWN:
        e(f"s_mul_i32 s6, s{S_B}, {NPB*256}")
        e(f"s_mul_i32 s7, s{S_W}, 13")
        e(f"v_add_u32 v56, s7, v{V_LANE}")
        e(f"v_min_u32 v56, {2*NPB-1}, v56")
        e("v_lshl_add_u32 v56, v56, 7, s6")
        e("s_bfm_b64 exec, 13, 0")
        e(f"buffer_load_dword v57, v56, {sr(S_P)}, s{S_SOFF} offen")
        e("s_mov_b64 exec, -1")
    for q in range(4): e(f"ds_read_b128 {vr(144+4*q,4)}, v49 offset:{L_B1+32*q}")
    for ks in range(4):
        e(f"ds_read_b64_tr_b16 {vr(80+4*ks,2)}, v50 offset:{L_W1S+16384+4096*ks}")
        e(f"ds_read_b64_tr_b16 {vr(82+4*ks,2)}, v50 offset:{L_W1S+16384+4096*ks+1024}")
    for ks in range(4):
        e(f"s_waitcnt lgkmcnt({6-2*ks})")
        e(mf16(144, 80 + 4*ks, 160 + 4*ks, vr(144, 16)))
    e("s_nop 7")
    e("s_nop 3")
    for i in range(8): e(f"v_pk_mul_f32 {vr(144+2*i,2)}, {vr(144+2*i,2)}, s[80:81]")
    for i in range(8): e(f"v_cvt_pk_bf16_f32 v{64+i}, v{144+2*i}, v{145+2*i}")
    e("s_mov_b64 exec, s[88:89]")
    for q in range(4): e(f"ds_write_b64 v54, {vr(64+2*q,2)} offset:{16*q}")
    e("s_mov_b64 exec, -1")
    stamp(19)
    if CL: loop_consts()

    lab("POLL1")
    e(f"v_mul_u32_u24 v32, {GCS}, v{V_CHK}")
    e(f"v_add_u32 v37, 16, v{V_J0}")
    e("v_bfrev_b32 v43, -2")
    e(f"v_cmp_gt_u32 vcc, s{S_WN}, v{V_J0}")
    e(f"v_add_u32 v38, s{S_RB}, v{V_J0}")
    e(f"v_add_u32 v39, s{S_RB}, v37")
    e("v_lshlrev_b32 v36, 3, v38")
    e("v_cndmask_b32 v38, v43, v38, vcc")
    e(f"v_cmp_gt_u32 vcc, s{S_WN}, v37")
    e(f"s_mov_b32 s7, {WS_ENT}")
    e("v_mov_b32 v55, 4")
    e("v_cndmask_b32 v39, v43, v39, vcc")
    e(f"s_waitcnt vmcnt({OWN})")
    lab("POLL")
    e(f"v_xor_b32 v34, s{S_TAGA}, v34")
    e(f"v_cmp_ne_u32 s[76:77], s{S_TAGB}, v35")
    e("v_cmp_le_u32 vcc, 0x1000000, v34")
    e("s_or_b64 vcc, vcc, s[76:77]")
    e("s_cbranch_scc0 POLLED")
    e(f"s_sub_u32 s{S_SPIN}, s{S_SPIN}, 1")
    e("s_cbranch_scc1 K_END")
    e(f"s_sleep {SLP}")
    e(f"buffer_load_dwordx2 v[34:35], v33, {sr(S_WS)}, s5 offen sc1")
    e("s_waitcnt vmcnt(0)")
    e("s_branch POLL")
    lab("POLLED")
    stamp(8)
    e("v_and_b32 v35, 0xfff, v34")
    e("v_lshrrev_b32 v34, 12, v34")
    e("v_lshl_add_u32 v35, v35, 3, v32")
    e(f"s_add_u32 s5, s{S_RB}, s{S_WN}")
    e("v_cmp_lt_u32 s[74:75], s5, v34")
    DP = "row_mask:0xf bank_mask:0xf"
    for i in range(8):
        e(f"v_mov_b32_dpp v43, v34 row_newbcast:{i} {DP}")
        e(f"v_add_u32_dpp v{44+i}, v35, v36 row_newbcast:{i} {DP}")
        e(f"v_cmp_lt_u32 {sr(S_MASK+2*i,2)}, v38, v43")
        e(f"v_cmp_lt_u32 {sr(S_MASK+16+2*i,2)}, v39, v43")
    e(f"v_lshlrev_b32 v54, 2, v{V_LANE}")
    e("v_mov_b32 v53, 0")
    e("s_mov_b64 exec, s[74:75]")
    e(f"ds_write_b32 v53, v55 offset:{L_FLAG}")
    e("s_mov_b64 exec, -1")
    if not W5: wave_reset()
    flag_load(True)
    lab("FPOLL")
    e("s_waitcnt vmcnt(0)")
    e(f"v_cmp_ne_u32 s[76:77], s{S_TAGB}, v61")
    e(f"v_cmp_ne_u32 vcc, s{S_TAGA}, v60")
    e("s_or_b64 vcc, vcc, s[76:77]")
    e("s_cbranch_scc0 FPOLLED")
    e(f"s_sub_u32 s{S_SPIN}, s{S_SPIN}, 1")
    e("s_cbranch_scc1 K_END")
    e(f"s_sleep {SLP}")
    flag_load()
    e("s_branch FPOLL")
    lab("FPOLLED")
    stamp(17)
    for k in range(8, 16):
        e(f"s_mov_b64 exec, {sr(S_MASK+2*k,2)}")
        e(f"s_cbranch_execz R_L{k}")
        e(f"buffer_load_dwordx2 {vr(112+2*k,2)}, v{44+(k&7)}, {sr(S_WS)}, s7 offen offset:128 {ELF}")
        lab(f"R_L{k}")
    for k in range(8):
        e(f"s_or_b64 exec, {sr(S_MASK+2*k,2)}, 1")
        e(f"buffer_load_dwordx2 {vr(112+2*k,2)}, v{44+k}, {sr(S_WS)}, s7 offen {ELF}")
    e("s_mov_b64 exec, -1")
    if W5: wave_reset()
    e(f"s_cmp_eq_u32 s{S_EARLY}, 2")
    e("s_cbranch_scc0 R_NH")
    for i in range(32): e(f"v_pk_mul_f32 {vr(H+2*i,2)}, {vr(NN,2)}, {vr(NN,2)}")
    lab("R_NH")
    e("s_waitcnt vmcnt(8)")
    for k in list(range(8, 16)) + list(range(8)):
        e(f"s_mov_b64 exec, {sr(S_MASK+2*k,2)}")
        if k >= 8: e(f"s_cbranch_execz R_A{k}")
        else: e(f"s_waitcnt vmcnt({7-k})")
        e(f"ds_add_rtn_u32 v{T+k}, v{113+2*k}, v55 offset:{L_CNT2}")
        if k >= 8: lab(f"R_A{k}")
    def list_writes(tag):
        for k in list(range(8, 16)) + list(range(8)):
            e(f"s_mov_b64 exec, {sr(S_MASK+2*k,2)}")
            if k >= 8: e(f"s_cbranch_execz {tag}{k}")
            e(f"ds_write_b32 v{T+k}, v{112+2*k}")
            if k >= 8: lab(f"{tag}{k}")
        e("s_mov_b64 exec, -1")
    e("s_mov_b64 exec, -1")
    e(f"s_cmp_eq_u32 s{S_EARLY}, 2")
    e("s_cbranch_scc0 R_NW2")
    e(f"s_add_u32 m0, s85, {L_W2}")
    e(f"s_mov_b32 s{S_EARLY}, 0")
    for k in range(2): e(f"buffer_load_dwordx4 v31, {sr(S_W2)}, s85 offen offset:{1024*k} lds")
    if POST:
        e("s_lshr_b32 s6, s2, 3")
        e("s_and_b32 s7, s6, 7")
        e("s_lshl_b32 s7, s7, 5")
        e("s_lshr_b32 s6, s6, 3")
        e(f"s_lshl2_add_u32 s6, s{S_W}, s6")
        e("s_add_u32 s6, s6, s7")
        e(f"s_mul_i32 s6, s6, {NPB*256}")
        e(f"v_lshl_add_u32 v56, v{V_LANE}, 7, s6")
        e(f"s_bfm_b64 exec, {POST}, 0")
        e(f"buffer_load_dword v57, v56, {sr(S_P)}, s{S_SOFF} offen")
        e("s_mov_b64 exec, -1")
    lab("R_NW2")
    e("s_waitcnt lgkmcnt(0)")
    stamp(20)
    list_writes("R_C")
    e("s_waitcnt lgkmcnt(0)")
    e("s_barrier")
    stamp(9)
    def mid():
        e(f"ds_read_b32 v32, v54 offset:{L_CNT2}")
        e(f"ds_read_b32 v33, v53 offset:{L_FLAG}")
        e(f"ds_read_b32 v34, v54 offset:{L_DEG}")
        return 3
    first_tile(mid)
    e("s_waitcnt lgkmcnt(0)")
    e(f"v_sub_u32 v32, v32, v{V_L0}")
    e("v_max_u32 v35, 4, v32")
    e("v_subrev_u32 v35, 4, v35")
    e("v_lshrrev_b32 v35, 5, v35")
    e("v_mov_b32 v36, v35")
    e(f"v_cmp_lt_u32 s[76:77], {LCAP//8-1}, v35")
    scan64(36)
    e(f"v_readfirstlane_b32 s{S_MORE}, v33")
    e(f"v_readlane_b32 s6, v36, {SPLIT-1}")
    e("v_readlane_b32 s7, v36, 63")
    e(f"v_cmp_le_u32 vcc, {SPLIT}, v{V_LANE}")
    e("v_sub_u32 v36, v36, v35")
    e("v_lshrrev_b32 v32, 2, v32")
    e("s_sub_u32 s7, s7, s6")
    e(f"s_add_u32 s82, s6, {SPLIT+3}")
    e(f"s_add_u32 s83, s7, {NPB-SPLIT+3}")
    e("s_max_u32 s5, s82, s83")
    e(f"s_cmp_ge_u32 s5, {4*HT+4}")
    e("s_cbranch_scc0 R_FITS")
    e(f"s_mov_b32 s{S_WN}, {WSLOW}")
    e("s_branch NEXT_ROUND")
    lab("R_FITS")
    e(f"s_sub_u32 s6, {NPB-SPLIT-1}, s6")
    e(f"v_add_u32 v37, {SPLIT-1}, v36")
    e("v_add_u32 v38, s6, v36")
    e("v_cndmask_b32 v37, v37, v38, vcc")
    e(f"v_mov_b32 v39, v{V_GV}")
    e(f"s_mov_b32 s{S_EARLY}, 1")
    e("s_cmp_eq_u64 s[76:77], 0")
    e("s_cbranch_scc0 R_COMPACT")
    lab("R_TABLE")
    e("v_mov_b32 v41, 0x3f80")
    e(f"s_add_u32 s6, s{S_W}, 1")
    lab("R_GT")
    e("v_cmp_le_u32 vcc, s6, v35")
    e("s_and_b64 exec, exec, vcc")
    e("s_cbranch_execz R_GTE")
    e("v_add_u32 v44, s6, v37")
    e("s_lshl_b32 s7, s6, 5")
    e(f"v_lshl_add_u32 v45, v44, 2, v{V_GB}")
    e("v_add_u32 v47, s7, v39")
    e("ds_write_b32 v45, v47")
    e("v_lshrrev_b32 v46, 1, v44")
    e(f"v_mul_u32_u24 v46, {SELS//2}, v46")
    e("v_and_b32 v44, 1, v44")
    e("v_lshl_add_u32 v46, v44, 1, v46")
    e(f"v_add_u32 v46, v46, v{V_SB}")
    e("ds_write_b16 v46, v41")
    e("s_add_u32 s6, s6, 8")
    e("s_branch R_GT")
    lab("R_GTE")
    e("s_mov_b64 exec, -1")
    e("s_waitcnt vmcnt(4) lgkmcnt(0)")
    e("s_barrier")
    stamp(10)
    e(f"s_cmp_eq_u32 s{S_W}, 0")
    e("s_cbranch_scc0 R_ND")
    e("v_add_u32 v34, v34, v32")
    e(f"ds_write_b32 v54, v34 offset:{L_DEG}")
    lab("R_ND")
    e(f"s_sub_u32 s5, 7, s{S_W}")
    e(f"s_cmp_lt_u32 s{S_W}, 4")
    e(f"s_cselect_b32 s5, s{S_W}, s5")
    e("s_cselect_b32 s6, s82, s83")
    e("s_lshr_b32 s6, s6, 2")
    e("s_sub_u32 s6, s6, s5")
    e("s_add_u32 s6, s6, 3")
    e(f"s_lshr_b32 s{S_NT}, s6, 2")
    e(f"s_or_b32 s6, s{S_MORE}, s{S_RB}")
    e(f"s_or_b32 s{S_SAFE}, s{S_SAFE}, s6")
    e(f"s_cmp_eq_u32 s{S_EARLY}, 0")
    e("s_cbranch_scc1 WAVE_REDO")
    lab("WAVE_GO")
    e(f"ds_read_u16 v{V_LI}, v{V_GIA} offset:64")
    e(f"s_mov_b32 m0, s{S_M0[1]}")
    e(f"s_sub_u32 s{S_REM}, s{S_NT}, 1")
    e("s_waitcnt lgkmcnt(0)")
    e(f"v_add_u32 v{V_LI}, v{V_LI}, v{V_LIO}")
    e(f"ds_read_b128 {vr(IDR,4)}, v{V_LI}")
    e(PERM)
    e(AXB)
    if PEEL:
        e("s_waitcnt vmcnt(0)")
        for s in c_reads(0)[:16] + [tr_read(0)]: e(s)
        for s in dma(1): e(s)
        for s in memphase(0, 0)[2+16:-4]:
            if s != tr_read(0): e(s)
        e(mfext(0))
        for s in mads(): e(s)
        e("s_nop 5")
        stamp(11); stamp(28, True)
        e(f"s_cmp_lg_u32 s{S_SAFE}, 0")
        e("s_cbranch_scc1 PEELS")
        for safe in (False, True):
            out.append(".p2align 3")
            if safe: lab("PEELS")
            emit(block(0, 0, safe))
            for s in dma(0): e(s)
            e(f"s_branch ENTER{'S' if safe else 'F'}")
    else:
        for s in dma(1): e(s)
        e("s_waitcnt lgkmcnt(0)")
        for s in mads(): e(s)
        for s in memphase(0, 0): e(s)
        e(mfext(0))
        e("s_nop 7")
        e("s_nop 1")
        stamp(11); stamp(28, True)
        e(f"s_cmp_lg_u32 s{S_SAFE}, 0")
        e("s_cbranch_scc1 ENTERS")
        e("s_branch ENTERF")

    lab("R_COMPACT")
    e("s_barrier")
    fill_list(40)
    e(f"v_add_lshl_u32 v38, v36, v{V_LANE}, 5")
    e(f"v_add_u32 v38, {L_LIST}, v38")
    e(f"v_sub_u32 v38, v38, v{V_L0}")
    e("v_add_u32 v39, v39, v38")
    for k in range(16): e(f"ds_bpermute_b32 v{113+2*k}, v{113+2*k}, v38")
    e(f"v_lshl_add_u32 v45, v{V_COL}, 2, v{V_GB}")
    e(f"s_bfm_b64 exec, {NPB}, 0")
    e("ds_write_b32 v45, v39")
    e("s_mov_b64 exec, -1")
    e("s_waitcnt lgkmcnt(0)")
    e("s_barrier")
    for k in range(16): e(f"v_add_u32 v{T+k}, v{T+k}, v{113+2*k}")
    list_writes("R_D")
    e(f"s_mov_b32 s{S_EARLY}, 0")
    e("s_branch R_TABLE")
    lab("WAVE_REDO")
    e("s_waitcnt vmcnt(0)")
    wave_reset()
    first_tile()
    e("s_branch WAVE_GO")

    mainloop(False)
    mainloop(True)

    lab("NEXTR")
    e(f"s_add_u32 s{S_RB}, s{S_RB}, s{S_WN}")
    lab("NEXT_ROUND")
    e("s_setprio 0")
    e("s_waitcnt vmcnt(0) lgkmcnt(0)")
    e("s_barrier")
    init_tables(32)
    e("s_waitcnt lgkmcnt(0)")
    e("s_barrier")
    static_writes(32, "B")
    e(f"v_mul_u32_u24 v33, {DS}, v{V_CHK}")
    desc_soff()
    e(f"buffer_load_dwordx2 v[34:35], v33, {sr(S_WS)}, s5 offen sc1")
    e("s_waitcnt vmcnt(0) lgkmcnt(0)")
    e("s_barrier")
    e("s_branch POLL1")

    out.append(".p2align 3")
    lab("DRAIN")
    e("s_waitcnt lgkmcnt(0)")
    e(f"s_cmp_lg_u32 s{S_MORE}, 0")
    for ct in range(4): e(mfsel(ct))
    stamp(12); stamp(29, True)
    e("s_cbranch_scc1 NEXTR")
    e(f"v_lshrrev_b32 v96, 5, v{V_LANE}")
    e(f"v_and_b32 v97, 31, v{V_LANE}")
    e("v_mul_u32_u24 v97, 272, v97")
    e("v_lshl_add_u32 v97, v96, 4, v97")
    e(f"v_add_u32 v97, s{S_M0[0]}, v97")
    e(f"s_mov_b32 s6, {hex(f2u(2.0**120))}")
    e(f"v_cmp_nge_f32 s[76:77], s6, v{V_DMAX}")
    e(f"v_lshrrev_b32 v98, 3, v{V_TID}")
    e(f"v_and_b32 v99, 7, v{V_TID}")
    O = D
    cv = lambda ct: [f"v_cvt_pk_bf16_f32 v{64+8*ct+i}, v{H+16*ct+2*i}, v{H+16*ct+2*i+1}" for i in range(8)]
    for s in cv(0): e(s)
    rest = [f"v_cmp_le_u32 vcc, {SPLIT}, v98", "v_mul_u32_u24 v100, 272, v98", "v_lshl_add_u32 v100, v99, 5, v100",
            f"v_add_u32 v101, {4*TBW - SPLIT*272}, v100", "v_cndmask_b32 v100, v100, v101, vcc",
            "v_lshlrev_b32 v101, 2, v98", "v_lshlrev_b32 v102, 5, v99", "v_lshlrev_b32 v103, 15, v98"]
    for ct in range(4):
        nxt = cv(ct + 1) if ct < 3 else rest
        for s in range(2):
            for mt in range(2):
                ks = 2 * ct + s
                for x in nxt[4*s + 2*mt: 4*s + 2*mt + 2]: e(x)
                e(mf16(O[mt], w2f(ks, mt), 64 + 4*ks, "0" if ks == 0 else vr(O[mt], 16)))
    e("v_lshl_add_u32 v103, v99, 4, v103")
    e(f"s_lshl_b32 s5, s{S_B}, 7")
    e("v_add_u32 v103, s5, v103")
    e("s_movk_i32 s7, 0x207")
    e("s_waitcnt vmcnt(0)")
    e("s_nop 5")
    e(f"v_cmp_class_f32 vcc, v{O[0]}, s7")
    e("s_or_b64 s[76:77], s[76:77], vcc")
    e("s_cbranch_scc0 EPI_OK")
    e(f"s_cmp_lg_u32 s{S_SAFE}, 0")
    e("s_cbranch_scc1 EPI_OK")
    e(f"s_mov_b32 s{S_SAFE}, 1")
    for i in range(64): e(f"v_mov_b32 v{H+i}, 0")
    e("s_branch WAVE_REDO")
    lab("EPI_OK")
    for mt in range(2):
        for q in range(4):
            e(f"ds_write_b128 v97, {vr(O[mt]+4*q,4)} offset:{128*mt+32*q}")
    e(f"ds_read_b128 v[32:35], v102 offset:{L_B2}")
    e(f"ds_read_b128 v[36:39], v102 offset:{L_B2+16}")
    e(f"v_cmp_gt_u32 vcc, {NPB}, v98")
    e(f"s_or_b32 s6, s2, s{S_W}")
    e("s_cbranch_scc1 EPI_NE")
    e(f"v_mov_b32 v42, s{S_TAGB}")
    e(f"v_mov_b32 v43, s{S_TAGA}")
    e("v_mov_b32 v44, 0")
    e("s_mov_b64 exec, 1")
    e(f"buffer_store_dwordx2 v[42:43], v44, {sr(S_WS)}, 0 offen offset:{WS_EPOCH}")
    e("s_mov_b64 exec, -1")
    lab("EPI_NE")
    e("s_waitcnt lgkmcnt(0)")
    e("s_barrier")
    stamp(13)
    e("s_and_b64 exec, exec, vcc")
    e("s_cbranch_execz K_FIN")
    e(f"ds_read_b32 v40, v101 offset:{L_DEG}")
    for s in range(4):
        e(f"ds_read_b128 {vr(64+8*s,4)}, v100 offset:{L_TB+s*TBW}")
        e(f"ds_read_b128 {vr(68+8*s,4)}, v100 offset:{L_TB+s*TBW+16}")
    e(f"s_mov_b32 s6, {hex(f2u(-LN2))}")
    e("s_mov_b32 s7, s6")
    e("s_waitcnt lgkmcnt(8)")
    e("v_cvt_f32_u32 v40, v40")
    for i in range(4): e(f"v_pk_mul_f32 {vr(32+2*i,2)}, {vr(32+2*i,2)}, v[40:41] op_sel_hi:[1,0]")
    for s in range(4):
        e(f"s_waitcnt lgkmcnt({6-2*s})")
        for i in range(4): e(f"v_pk_fma_f32 {vr(32+2*i,2)}, {vr(64+8*s+2*i,2)}, s[6:7], {vr(32+2*i,2)}")
    for i in range(4): e(f"v_cvt_pk_bf16_f32 v{44+i}, v{32+2*i}, v{33+2*i}")
    e(f"buffer_store_dwordx4 v[44:47], v103, {sr(S_OUT)}, 0 offen")
    lab("K_FIN")
    if AMP[0] >= 0:
        if AMP[1] == 14:
            e("s_waitcnt vmcnt(0)")
            stamp(14)
        e("s_sub_u32 s100, s100, s98")
        if AMP[2] >= 0:
            e(f"s_cmp_eq_u32 s2, {AMP[2]}")
            e("s_cselect_b32 s100, s100, 0")
        e("s_add_u32 s100, s100, 6000")
        lab("AMPL")
        e("s_memrealtime s[98:99]")
        e("s_waitcnt lgkmcnt(0)")
        e("s_sub_u32 s98, s98, s96")
        e("s_cmp_lt_u32 s98, s100")
        e("s_cbranch_scc1 AMPL")
    if SPIN >= 0:
        lab("SPINL")
        e("s_memrealtime s[98:99]")
        e("s_waitcnt lgkmcnt(0)")
        e("s_sub_u32 s98, s98, s96")
        e("s_cmp_lt_u32 s98, 6000")
        e("s_cbranch_scc1 SPINL")
    if DIAG:
        e("s_mov_b64 exec, -1")
        e("s_waitcnt vmcnt(0)")
        stamp(14); stamp(31, True)
        e(f"v_writelane_b32 v255, s{S_NT}, 27")
        e("s_lshl_b32 s5, s2, 11")
        e(f"s_add_u32 s5, s5, {WS_STAMP}")
        e(f"v_lshlrev_b32 v1, 2, v{V_TID}")
        e(f"buffer_store_dword v255, v1, {sr(S_WS)}, s5 offen")
    lab("K_END")
    e("s_endpgm")
    if CPF: out.append(".set CODE_REST, K_END - CPF_PC")

hdr = open("standalone__edge_featured_mpnn_mpnn__graph.s.ref").read().split("; Override")[0]
out.append(hdr.rstrip())
out.append(f"; @launch grid=(256,1,1) block=(512,1,1) lds={L_END}")
out.append('.amdgcn_target "amdgcn-amd-amdhsa--gfx950"')
out.append(".text")
out.append(f".globl {KN}")
out.append(f".p2align {AL}")
out.append(f".type {KN},@function")
kernel()
out.append(f""".section .rodata,"a"
.p2align 6
.amdhsa_kernel {KN}
  .amdhsa_next_free_vgpr 256
  .amdhsa_next_free_sgpr 102
  .amdhsa_accum_offset 256
  .amdhsa_group_segment_fixed_size 0
  .amdhsa_kernarg_size 88
  .amdhsa_user_sgpr_count 2
  .amdhsa_user_sgpr_kernarg_segment_ptr 1
  .amdhsa_system_sgpr_workgroup_id_x 1
.end_amdhsa_kernel""")
dst = sys.argv[1] if len(sys.argv) > 1 else "standalone__edge_featured_mpnn_mpnn__graph.s"
open(dst, "w").write("\n".join(out) + "\n")
print("written", dst, "LDS", L_END)
```

```python
import struct, sys, os
import numpy as np
from align import align, isize

N, E = 12500, 800000
NPB, SPLIT = 49, 25
CH, CHS, GCS, DS = 3128, 25088, 25216, 2176
NQ, NQL = CH // 4, (E - 255 * CH) // 4
LOG2E = 1.4426950408889634
LN2 = 0.6931471805599453
KN = "standalone__edge_featured_mpnn_mpnn__graph_kernel"
DIAG = int(os.environ.get("DIAG", "0"))
PREF = int(os.environ.get("PREF", "0"))
X_NOP = int(os.environ.get("X_NOP", "0"))
STF = os.environ.get("STF", "sc1")
LDF = os.environ.get("LDF", "")
TRANS = int(os.environ.get("TRANS", "0"))
ELF = os.environ.get("ELF", "")
SLP = int(os.environ.get("SLP", "1"))
ORD = int(os.environ.get("ORD", "2"))
PFL = 0
AMPM = int(os.environ.get("AMPM", "0"))
MODE = int(os.environ.get("MODE", "0"))
PSF = os.environ.get("PSF", "sc1")
CL = int(os.environ.get("CL", "1"))
W5 = int(os.environ.get("W5", "0"))
OWN = int(os.environ.get("OWN", "1"))
POST = int(os.environ.get("POST", "16"))
LATEI = int(os.environ.get("LATEI", "1"))
AL = int(os.environ.get("AL", "12"))
CPF = int(os.environ.get("CPF", "1"))
CPF0 = int(os.environ.get("CPF0", "0"))
PEEL = int(os.environ.get("PEEL", "1"))
STOUCH = int(os.environ.get("STOUCH", "0"))
TOUCH = int(os.environ.get("TOUCH", "0"))

def f2u(x): return struct.unpack("<I", struct.pack("<f", x))[0]
def u2f(u): return struct.unpack("<f", struct.pack("<I", u))[0]

WS_EPOCH = 0
WSOFF = int(os.environ.get("WSOFF", "0")) << 20
WS_PT = WSOFF + 4096
WS_DESC = WS_PT + 12544 * 256
WS_FLAG = WS_DESC + 256 * DS
WS_PFLAG = WS_FLAG + 8 * DS
WS_ENT = WS_PFLAG + 8 * DS
WS_SIZE = WS_ENT + 256 * GCS
XT = os.environ.get("XT", "")
if XT: WS_SIZE += 256 * GCS
WS_STAMP = 12 << 20
if DIAG: WS_SIZE = 16 << 20

L_CNT1, L_BASE1 = 0, 1024
L_CNT2, L_FLAG, L_DEG, L_B2 = 2048, 2304, 2368, 2816
L_B1 = 0
L_EXT = 3072
L_TB = 4096
TBW = 8704
L_STG, L_W1S, L_XS = L_TB, L_TB + CHS, L_TB + CHS + 32768
PS = 272
assert L_XS + 8704 <= L_TB + 8 * TBW and L_W1S % 256 == 0
HT, GTH = 60, 72
L_SEL = L_TB + 8 * TBW
SELS, SELSZ = 200, 24576
assert 2 * HT * SELS + 56 <= SELSZ
L_GT = L_SEL + SELSZ
L_QT = L_GT + 2 * GTH * 16
QS = 328
L_PS = L_QT
assert L_PS % 16 == 0
L_W2 = (L_QT + NPB * QS + 255) // 256 * 256
L_LIST = L_W2 + 16384
LS, LCAP = 528, 128
LISTSZ = (NPB + 1) * LS
L_END = L_LIST + LISTSZ
assert L_END <= 163840, L_END
PADENT = 0x00007000
PSH = 3072
WSLOW = 6

out = []
def e(s): out.append("    " + s)
def lab(s): out.append(s + ":")
def c(s): out.append("    ; " + s)
def vr(a, n): return f"v[{a}:{a+n-1}]"
def sr(a, n=4): return f"s[{a}:{a+n-1}]"

SPIN = int(os.environ.get("SPIN", "-1"))
AMP = [int(x) for x in os.environ.get("AMP", "-1,-1,-1").split(",")]
def stamp(i, real=False):
    if AMP[0] >= 0:
        if i == 0: e("s_memrealtime s[96:97]")
        if i == AMP[0]:
            if i: e("s_waitcnt lgkmcnt(0)")
            e("s_memtime s[98:99]")
            if i: e("s_waitcnt lgkmcnt(0)")
        if i == AMP[1]:
            e("s_waitcnt lgkmcnt(0)")
            e("s_memtime s[100:101]")
            e("s_waitcnt lgkmcnt(0)")
    if SPIN == i:
        e("s_waitcnt lgkmcnt(0)")
        e("s_memrealtime s[96:97]")
        e("s_waitcnt lgkmcnt(0)")
    if not DIAG: return
    if DIAG in (2, 4) and i not in (0, 30, 28, 29, 31, 11, 12, 14, 9): return
    if DIAG == 3 and i in (0, 30, 15, 16): return
    e("s_waitcnt lgkmcnt(0)")
    e(f"{'s_memrealtime' if real else 's_memtime'} s[98:99]")
    e("s_waitcnt lgkmcnt(0)")
    e(f"v_writelane_b32 v255, s98, {i}")

lazy = []
def lstamp(i):
    if DIAG != 3: return
    r = 52 + 2 * len(lazy)
    e(f"s_memtime s[{r}:{r+1}]")
    lazy.append((i, r))
def lflush():
    for i, r in lazy: e(f"v_writelane_b32 v255, s{r}, {i}")

def scan64(v):
    for sh in (1, 2, 4, 8):
        e("s_nop 1")
        e(f"v_add_u32_dpp v{v}, v{v}, v{v} row_shr:{sh} row_mask:0xf bank_mask:0xf bound_ctrl:1")
    e("s_nop 1")
    e(f"v_add_u32_dpp v{v}, v{v}, v{v} row_bcast:15 row_mask:0xa bank_mask:0xf")
    e("s_nop 1")
    e(f"v_add_u32_dpp v{v}, v{v}, v{v} row_bcast:31 row_mask:0xc bank_mask:0xf")

H = 176
C = (144, 160)
D = (112, 128)
T = 96
P = 80
SL = 76
BX = (72, 74)
IDX, IDR = 64, 68
NN, DD, RR, AX, CX, V_M = 16, 18, 20, 22, 24, 26
V_CA, V_DMAC, V_LI, V_LM, V_GQA, V_SELA, V_PSEL, V_QMUL, V_QC, V_GQ, V_QA, V_DMAX, V_TID, V_LANE, V_GIA = range(1, 16)
V_GMA, V_LIO, V_LMO = 28, 29, 30
V_SAVE = 240
V_CHK, V_J0, V_W2A = 244, 245, 246
S_X, S_E, S_SRC, S_DST, S_W1, S_B1, S_W2, S_B2, S_OUT, S_WS, S_P = 8, 12, 16, 20, 24, 28, 92, 36, 40, 44, 48
S_MASK = 8
S_SOFF = 52
S_256, S_REM, S_M0, S_WN, S_RB, S_MORE, S_SAFE, S_NT, S_EARLY, S_TAGA, S_TAGB, S_SPIN = 60, 61, (62, 63), 64, 65, 66, 67, 68, 69, 72, 73, 70
S_B, S_W = 3, 4

def mf16(d, a, b, cc): return f"v_mfma_f32_32x32x16_bf16 {vr(d,16)}, {vr(a,4)}, {vr(b,4)}, {cc}"
def mfext(ct): return f"v_mfma_f32_32x32x8_bf16 {vr(D[ct&1],16)}, {vr(AX,2)}, {vr(BX[ct&1],2)}, {vr(C[ct&1],16)}"
def mfsel(ct): return mf16(H + 16 * ct, P + 4 * ct, SL, vr(H + 16 * ct, 16))
def dma(half):
    return [f"buffer_load_dwordx4 v{IDX+j}, {sr(S_P)}, s{S_SOFF+4*half+j} offen offset:{1024*j} lds" for j in range(4)]
def mads(src=IDR): return [f"v_mad_i32_i16 v{IDX+j}, v{src+j}, s{S_256}, v{V_DMAC}" for j in range(4)]
def c_reads(half):
    L = []
    for ctl in range(2):
        for r in range(16):
            mm = r >> 1
            L.append(f"ds_read_u16_d16_hi v{C[ctl]+r}, v{V_CA} offset:{half*4096 + (mm&3)*1024 + (2*(r&1) + (mm>>2))*128 + ctl*64}")
    return L
def tr_read(ct): return f"ds_read_b64_tr_b16 {vr(BX[ct&1],2)}, v{V_QA} offset:{64*ct}"
AXB = f"v_pk_mul_f32 {vr(AX,2)}, {vr(CX,2)}, {vr(V_M,2)} op_sel_hi:[1,0]"
QAB = f"v_mad_u32_u24 v{V_QA}, v{V_GQ}, v{V_QMUL}, v{V_QC}"
PERM = f"v_perm_b32 v{V_M}, v{V_M}, v{V_M}, v{V_PSEL}"

def block(tau, ct, safe, gate=False, last=False):
    cur = D[ct & 1]
    pc, pt = (ct - 1) & 3, (tau if ct > 0 else (tau - 1) & 3)
    tr = [f"v_exp_f32 v{T+i}, v{cur+i}" for i in range(16)] + [f"v_rcp_f32 v{RR}, v{DD}", f"v_rcp_f32 v{RR+1}, v{DD+1}"]
    mf = [] if last else [mfext((ct + 1) & 3)]
    if tau == 0: mf.append(mfsel(ct))
    fill = []
    if ct == 0: fill += [f"v_add_u32 v{V_LI}, v{V_LI}, v{V_LIO}", f"v_add_u32 v{V_LM}, v{V_LM}, v{V_LMO}"]
    if ct == 1: fill += mads() + [PERM]
    if ct == 2:
        fill += [QAB]
        if tau == 3:
            fill += [f"v_add_u32 v{V_GIA}, 256, v{V_GIA}", f"v_add_u32 v{V_GMA}, 256, v{V_GMA}",
                     f"v_add_u32 v{V_GQA}, 256, v{V_GQA}", f"v_add_u32 v{V_SELA}, {16*SELS}, v{V_SELA}"]
    fill.append(f"v_max3_f32 v{V_DMAX}, v{DD}, v{DD+1}, v{V_DMAX}")
    L = []
    k = 0
    if gate:
        L += [tr[0], "s_setprio 3"]; k = 1
    for m in mf:
        L.append(m); L += tr[k:k+4]; k += 4
    L += tr[k:] + fill
    L.append(f"v_pk_mul_f32 {vr(RR,2)}, {vr(NN,2)}, {vr(RR,2)}")
    cvt = f"v_cvt_pk_bf16_f32 v{P+4*pc+pt}, v{RR}, v{RR+1}"
    if not safe:
        L += [f"v_pk_add_f32 {vr(DD,2)}, {vr(T,2)}, 1.0 op_sel_hi:[1,0]", cvt]
        if ct == 2: L.append(AXB)
        for j in range(1, 8):
            n_in = vr(cur, 2) if j == 1 else vr(NN, 2)
            L += [f"v_pk_fma_f32 {vr(NN,2)}, {n_in}, {vr(T+2*j,2)}, {n_in}",
                  f"v_pk_fma_f32 {vr(NN,2)}, {vr(cur+2*j,2)}, {vr(DD,2)}, {vr(NN,2)}",
                  f"v_pk_fma_f32 {vr(DD,2)}, {vr(DD,2)}, {vr(T+2*j,2)}, {vr(DD,2)}"]
    else:
        L += [f"v_pk_add_f32 {vr(T+2*j,2)}, {vr(T+2*j,2)}, 1.0 op_sel_hi:[1,0]" for j in range(8)] + [cvt]
        if ct == 2: L.append(AXB)
        L += [f"v_rcp_f32 v{T+i}, v{T+i}" for i in range(16)]
        L.append(f"v_pk_mul_f32 {vr(NN,2)}, {vr(cur,2)}, {vr(T,2)}")
        L += [f"v_pk_fma_f32 {vr(NN,2)}, {vr(cur+2*j,2)}, {vr(T+2*j,2)}, {vr(NN,2)}" for j in range(1, 8)]
    return L

def memphase(tau, half):
    L = ["s_setprio 0", "s_waitcnt vmcnt(4)"]
    L += c_reads(half) + [tr_read(2 * half), tr_read(2 * half + 1)]
    if half == 0:
        L += [f"ds_read_u16 v{V_LI}, v{V_GIA} offset:{(tau+2)*64}",
              f"ds_read_u16 v{V_LM}, v{V_GMA} offset:{(tau+1)*64}"]
    if half == 1:
        L += [f"ds_read_b128 {vr(IDR,4)}, v{V_LI}",
              f"ds_read_b32 v{V_M}, v{V_LM}",
              f"ds_read_u16 v{V_GQ}, v{V_GQA} offset:{(tau+1)*64+2}"]
        if tau == 1: L.append(f"ds_read_b32 v{SL}, v{V_SELA}")
        if tau >= 1: L.append(f"ds_read_b32 v{SL+tau}, v{V_SELA} offset:{tau*4*SELS}")
    if DIAG == 4 and half == 1: L = ["s_memtime s[98:99]"] + L
    L += [f"s_mov_b32 m0, s{S_M0[half]}", "s_waitcnt lgkmcnt(0)"]
    L += dma(half)
    if DIAG == 4 and half == 1: L += [f"s_add_u32 m0, s{S_REM}, 32", "s_nop 0", "v_writelane_b32 v255, s98, m0"]
    return L

def w2f(ks, mt): return (32 if ks < 4 else 144) + 8 * (ks & 3) + 4 * mt
def w2_reads():
    return [f"ds_read_b64_tr_b16 {vr(w2f(ks,mt)+2*t,2)}, v{27 if mt else V_W2A} offset:{2048*ks+1024*t}"
            for ks in range(8) for mt in range(2) for t in range(2)]

def emit(L):
    L = align(L)
    assert sum(isize(x) for x in L) % 8 == 0
    for s in L: e(s)

def mainloop(safe):
    x = "S" if safe else "F"
    out.append(".p2align 6")
    lab(f"LOOP{x}")
    for tau in range(4):
        c(f"==== tile slot {tau}")
        emit(memphase(tau, 0))
        emit(block((tau - 1) & 3, 3, safe, gate=True))
        if tau == 0 and not PEEL: lab(f"ENTER{x}")
        emit(block(tau, 0, safe))
        if tau == 0 and PEEL: lab(f"ENTER{x}")
        emit(memphase(tau, 1))
        emit(block(tau, 1, safe, gate=True))
        emit(block(tau, 2, safe))
        e(f"s_sub_u32 s{S_REM}, s{S_REM}, 1")
        if tau < 3: e(f"s_cbranch_scc1 TAIL{x}{tau}")
        else: e(f"s_cbranch_scc0 LOOP{x}")
    for tau in (3, 0, 1, 2):
        lab(f"TAIL{x}{tau}")
        emit(["s_setprio 0", f"v_xor_b32 v27, 64, v{V_W2A}"] + w2_reads())
        emit(block(tau, 3, safe, gate=True, last=True))
        if tau == 0: e(f"ds_read_b32 v{SL}, v{V_SELA}")
        e(f"v_rcp_f32 v{RR}, v{DD}")
        e(f"v_rcp_f32 v{RR+1}, v{DD+1}")
        e(f"v_max3_f32 v{V_DMAX}, v{DD}, v{DD+1}, v{V_DMAX}")
        e(f"v_pk_mul_f32 {vr(RR,2)}, {vr(NN,2)}, {vr(RR,2)}")
        for t2 in range(tau + 1, 4): e(f"v_mov_b32_e64 v{SL+t2}, 0")
        e(f"v_cvt_pk_bf16_f32 v{P+12+tau}, v{RR}, v{RR+1}")
        e("s_nop 0")
        e("s_branch DRAIN")

def find_cx(target):
    m = np.float64(u2f(0x00FF0000))
    g = f2u(float(np.float32(np.float64(u2f(target)) / m)))
    for d in range(-3, 4):
        if f2u(float(np.float32(np.float64(u2f(g + d)) * m))) == target: return g + d
    raise SystemExit("no cx")

V_GV, V_GB, V_SB, V_L0, V_COL = 247, 248, 249, 250, 251

def fill_list(t):
    e(f"v_lshlrev_b32 v{t+8}, 4, v{V_TID}")
    e(f"v_add_u32 v{t+9}, {L_LIST}, v{t+8}")
    for i in range(4): e(f"v_mov_b32 v{t+i}, {hex(PADENT)}")
    for o in (0, 8192, 16384, LISTSZ - 8192): e(f"ds_write_b128 v{t+9}, {vr(t,4)} offset:{o}")

def init_tables(t):
    fill_list(t)
    for i in range(4): e(f"v_mov_b32 v{t+4+i}, 0")
    e(f"v_add_u32 v{t+8}, {L_SEL}, v{t+8}")
    for o in (0, 8192, 16384): e(f"ds_write_b128 v{t+8}, {vr(t+4,4)} offset:{o}")
    e(f"v_min_u32 v{t+8}, {GTH*4-1}, v{V_TID}")
    e(f"v_lshlrev_b32 v{t+8}, 3, v{t+8}")
    e(f"v_add_u32 v{t+8}, {L_GT}, v{t+8}")
    e(f"v_mov_b32 v{t+10}, {NPB*LS}")
    e(f"v_mov_b32 v{t+11}, {NPB*LS}")
    e(f"ds_write_b64 v{t+8}, {vr(t+10,2)}")

def static_writes(t, tag):
    e(f"s_cmp_eq_u32 s{S_W}, 1")
    e(f"s_cbranch_scc0 STW{tag}")
    e(f"v_lshlrev_b32 v{t}, 2, v{V_LANE}")
    e(f"v_mov_b32 v{t+1}, 0")
    e(f"ds_write_b32 v{t}, v{V_L0} offset:{L_CNT2}")
    e(f"ds_write_b32 v{t+1}, v{t+1} offset:{L_FLAG}")
    e(f"v_lshl_add_u32 v{t}, v{V_COL}, 2, v{V_GB}")
    e(f"v_lshrrev_b32 v{t+1}, 1, v{V_COL}")
    e(f"v_mul_u32_u24 v{t+1}, {SELS//2}, v{t+1}")
    e(f"v_and_b32 v{t+2}, 1, v{V_COL}")
    e(f"v_lshl_add_u32 v{t+1}, v{t+2}, 1, v{t+1}")
    e(f"v_add_u32 v{t+1}, v{t+1}, v{V_SB}")
    e(f"v_mov_b32 v{t+2}, 0x3f80")
    e(f"s_bfm_b64 exec, {NPB}, 0")
    e(f"ds_write_b32 v{t}, v{V_GV}")
    e(f"ds_write_b16 v{t+1}, v{t+2}")
    e("s_mov_b64 exec, -1")
    lab(f"STW{tag}")

def desc_soff():
    e(f"s_lshr_b32 s5, s{S_B}, 2")
    e(f"s_and_b32 s7, s{S_B}, 1")
    e("s_lshl1_add_u32 s5, s5, s7")
    e(f"s_and_b32 s7, s{S_B}, 2")
    e("s_lshl_b32 s7, s7, 6")
    e("s_add_u32 s5, s5, s7")
    e(f"s_lshl3_add_u32 s5, s5, {WS_DESC}")

def flag_load(first=False):
    if first:
        e(f"v_lshlrev_b32 v62, 3, v{V_CHK}")
        e("s_and_b32 s84, s2, 7")
        e(f"s_mul_i32 s84, s84, {DS}")
        e(f"s_add_u32 s84, s84, {WS_FLAG}")
    e(f"buffer_load_dwordx2 v[60:61], v62, {sr(S_WS)}, s84 offen sc1")

def wave_reset():
    e(f"v_mov_b32 v{V_GIA}, v{V_SAVE}")
    e(f"v_mov_b32 v{V_GMA}, v{V_SAVE+1}")
    e(f"v_mov_b32 v{V_GQA}, v{V_SAVE+2}")
    e(f"v_mov_b32 v{V_SELA}, v{V_SAVE+3}")
    e(f"ds_read_u16 v{V_LI}, v{V_GIA}")
    e(f"ds_read_u16 v{V_LM}, v{V_GMA}")
    e(f"ds_read_u16 v{V_GQ}, v{V_GQA} offset:2")
    for i in range(2):
        e(f"v_mov_b32 v{NN+i}, 0")
        e(f"v_mov_b32 v{DD+i}, 1.0")
    e(f"v_mov_b32 v{V_DMAX}, 0")
    for r in list(range(SL, SL + 20, 2)) + list(range(C[0], C[0] + 32, 2)):
        e(f"v_pk_mul_f32 {vr(r,2)}, {vr(NN,2)}, {vr(NN,2)}")
    e("s_waitcnt lgkmcnt(0)")
    e(f"v_add_u32 v{V_LI}, v{V_LI}, v{V_LIO}")
    e(f"v_add_u32 v{V_LM}, v{V_LM}, v{V_LMO}")
    e(QAB)

def first_tile(mid=None):
    e(f"ds_read_b128 {vr(IDX,4)}, v{V_LI}")
    e(f"ds_read_b32 v{V_M}, v{V_LM}")
    n = 1
    if mid: n += mid()
    e(f"s_mov_b32 m0, s{S_M0[0]}")
    e(f"s_waitcnt lgkmcnt({n})")
    for s in mads(IDX): e(s)
    for s in dma(0): e(s)

def kernel():
    lab(KN)
    e("s_cmpk_ge_u32 s2, 256")
    e("s_cbranch_scc1 K_END")
    if DIAG: e("v_mov_b32 v255, 0")
    stamp(30, True); stamp(0); lstamp(0)
    for s, off in ((S_DST, 24), (S_X, 0), (S_W1, 32), (S_WS, 80), (S_SRC, 16), (S_E, 8)):
        e(f"s_load_dwordx2 {sr(s,2)}, s[0:1], {off}")
    if CPF == 1:
        e("s_getpc_b64 s[90:91]")
        lab("CPF_PC")
        e("s_and_b32 s5, s2, -8")
        e("v_subrev_u32 v18, 504, v0")
        e("v_add_lshl_u32 v16, v18, s5, 7")
        e("v_add_u32 v16, 2048, v16")
        e("v_min_u32 v16, CODE_REST, v16")
        e("v_mov_b32 v17, s91")
        e("v_add_co_u32 v16, vcc, s90, v16")
        e("v_cmp_gt_u32 s[76:77], 8, v18")
        e("s_nop 0")
        e("v_addc_co_u32 v17, vcc, 0, v17, vcc")
        e("s_mov_b64 exec, s[76:77]")
        e("s_cbranch_execz CPF_E")
        e("global_load_dword v18, v[16:17], off")
        lab("CPF_E")
        e("s_mov_b64 exec, -1")
    e(f"v_readfirstlane_b32 s{S_W}, v0")
    e(f"v_and_b32 v{V_LANE}, 63, v0")
    e("v_mov_b32 v88, 0")
    e("v_mov_b32 v89, 0")
    e("v_lshlrev_b32 v92, 3, v0")
    e("ds_write_b64 v92, v[88:89]")
    e(f"s_mov_b32 s{S_DST+3}, 0x00020000")
    e(f"s_mov_b32 s{S_DST+2}, {E*4}")
    e(f"s_mov_b32 s{S_X+2}, {N*128}")
    e(f"s_mov_b32 s{S_X+3}, s{S_DST+3}")
    e(f"s_mov_b32 s{S_W1+2}, {129*256}")
    e(f"s_mov_b32 s{S_W1+3}, s{S_DST+3}")
    e(f"s_lshr_b32 s{S_W}, s{S_W}, 6")
    e(f"s_and_b32 s{S_B}, s2, 7")
    e(f"s_lshl_b32 s{S_B}, s{S_B}, 5")
    e("s_lshr_b32 s5, s2, 3")
    e(f"s_add_u32 s{S_B}, s{S_B}, s5")
    e(f"s_mul_i32 s5, s2, {CH*4}")
    e("v_lshl_add_u32 v32, v0, 4, s5")
    e("s_cmpk_eq_u32 s2, 255")
    e(f"s_movk_i32 s6, {NQ-512}")
    e(f"s_cmovk_i32 s6, {NQL-512}")
    e("v_cmp_gt_u32 s[74:75], s6, v0")
    e(f"v_lshrrev_b32 v37, 4, v{V_LANE}")
    e(f"v_lshrrev_b32 v47, 3, v{V_LANE}")
    e(f"v_and_b32 v48, 7, v{V_LANE}")
    e("v_and_b32 v45, 1, v37")
    e("v_and_b32 v58, 4, v47")
    e("v_and_b32 v59, 1, v47")
    e("v_lshl_add_u32 v58, v59, 1, v58")
    e("v_add_u32 v58, v58, v45")
    e("v_xor_b32 v59, v48, v37")
    e("v_lshlrev_b32 v59, 4, v59")
    e("v_lshl_add_u32 v58, v58, 15, v59")
    e(f"s_lshl_b32 s85, s{S_W}, 11")
    e(f"s_add_u32 s5, s85, s{S_B}")
    e("s_lshl_b32 s5, s5, 7")
    e("v_add_u32 v58, s5, v58")
    e("v_lshlrev_b32 v31, 2, v37")
    e(f"v_xor_b32 v31, v31, v{V_LANE}")
    e("v_lshlrev_b32 v31, 4, v31")
    e(f"s_mul_i32 s84, s{S_W}, 1088")
    e(f"s_add_u32 m0, s84, {L_XS}")
    e("s_movk_i32 s86, 8192")
    lstamp(21)
    e("s_waitcnt lgkmcnt(0)")
    lstamp(22)
    e(f"buffer_load_dwordx4 v[64:67], v32, {sr(S_DST)}, 0 offen {LDF}")
    e("s_mov_b64 exec, s[74:75]")
    e("s_cbranch_execz P0_ND")
    e(f"buffer_load_dwordx4 v[68:71], v32, {sr(S_DST)}, s86 offen {LDF}")
    lab("P0_ND")
    e("s_mov_b64 exec, -1")
    e("s_barrier")
    e(f"buffer_load_dwordx4 v58, {sr(S_X)}, 0 offen lds")
    e(f"s_add_u32 m0, s85, {L_W1S}")
    e(f"s_load_dwordx2 s[78:79], {sr(S_WS,2)}, {WS_EPOCH}")
    for k in range(2): e(f"buffer_load_dwordx4 v31, {sr(S_W1)}, s85 offen offset:{1024*k} lds")
    if MODE:
        e("s_lshl_b32 s96, s2, 3")
        e(f"s_add_u32 s96, s96, {WS_FLAG}")
        e(f"s_load_dwordx2 s[100:101], {sr(S_WS,2)}, s96")
    if AMPM:
        e("s_lshl_b32 s5, s2, 3")
        e(f"s_add_u32 s5, s5, {WS_FLAG}")
        e(f"s_load_dwordx2 s[90:91], {sr(S_WS,2)}, s5")
    lab("P0_ISS")
    stamp(15); lstamp(15)
    for s, off in ((S_B1, 40), (S_W2, 48), (S_B2, 56), (S_OUT, 64)):
        e(f"s_load_dwordx2 {sr(s,2)}, s[0:1], {off}")
    e(f"v_mov_b32 v{V_TID}, v0")
    for s, sz in ((S_SRC, E*4), (S_E, E*2), (S_B1, 256), (S_W2, 16384), (S_B2, 128), (S_WS, WS_SIZE), (S_OUT, N*128), (S_P, 256*NPB*256 + PSH)):
        e(f"s_mov_b32 s{s+2}, {sz}")
        e(f"s_mov_b32 s{s+3}, s{S_DST+3}")
    e(f"s_mov_b32 s80, {hex(f2u(-LOG2E))}")
    e("s_mov_b32 s81, s80")
    e(f"v_lshrrev_b32 v38, 5, v{V_LANE}")
    e(f"v_and_b32 v39, 31, v{V_LANE}")
    e("v_bfe_u32 v40, v39, 2, 1")
    e("v_and_b32 v41, 1, v39")
    e("v_lshl_add_u32 v40, v40, 1, v41")
    e("v_lshrrev_b32 v42, 3, v39")
    e("v_bfe_u32 v43, v39, 1, 1")
    e(f"v_bfe_u32 v44, v{V_LANE}, 2, 2")
    e(f"v_and_b32 v46, 3, v{V_LANE}")
    e("v_lshlrev_b32 v46, 3, v46")
    e("v_lshl_add_u32 v46, v45, 5, v46")
    e(f"s_and_b32 s82, s{S_W}, 3")
    e(f"s_lshr_b32 s83, s{S_W}, 2")
    e("v_xor_b32 v50, s82, v44")
    e("v_lshl_add_u32 v50, v50, 6, v46")
    e("v_lshl_add_u32 v51, v38, 3, v44")
    e("v_lshl_add_u32 v50, v51, 8, v50")
    e("v_lshl_add_u32 v51, v40, 1, v43")
    e("v_mul_u32_u24 v52, 1088, v42")
    e("v_lshl_add_u32 v52, v51, 7, v52")
    e("s_mul_i32 s5, s83, 4352")
    e(f"s_add_u32 s5, s5, {L_XS}")
    e("v_add_u32 v52, s5, v52")
    e("v_xor_b32 v53, v38, v40")
    e("v_lshl_add_u32 v51, v53, 4, v52")
    e("v_xor_b32 v53, 2, v53")
    e("v_lshl_add_u32 v52, v53, 4, v52")
    e("s_lshl_b32 s5, s83, 5")
    e("v_add_u32 v55, s5, v39")
    e(f"v_cmp_gt_u32 s[88:89], {NPB}, v55")
    e("s_lshl_b32 s82, s82, 6")
    e("v_lshl_add_u32 v49, v38, 3, s82")
    e(f"v_add_u32 v56, {L_QT}, v49")
    e(f"v_mul_u32_u24 v53, {PS}, v55")
    e("v_add_u32 v53, v53, v56")
    e(f"v_mul_u32_u24 v54, {QS}, v55")
    e("v_add_u32 v54, v54, v56")
    assert PS == 272
    e(f"s_mov_b32 s7, {L_PS}")
    e("v_lshlrev_b32 v61, 4, v0")
    e("v_and_b32 v56, -16, v0")
    e("v_add3_u32 v62, v61, v56, s7")
    e(f"s_min_u32 s5, s{S_W}, 2")
    e(f"s_lshl2_add_u32 s5, s{S_W}, s5")
    e("s_add_u32 s5, s5, 64")
    e("s_lshl_b32 s5, s5, 3")
    e(f"v_add_u32 v55, s5, v{V_LANE}")
    e("v_lshlrev_b32 v63, 4, v55")
    e("v_and_b32 v56, -16, v55")
    e("v_add3_u32 v22, v63, v56, s7")
    e(f"s_cmp_lt_u32 s{S_W}, 2")
    e("s_cselect_b32 s71, 40, 32")
    lstamp(23)
    if not LATEI: init_tables(84)
    e(f"s_mul_i32 s6, s{S_B}, {NPB*256}")
    e(f"s_add_u32 s6, s6, {WS_PT}")
    e(f"s_mov_b32 s87, {128*256}")
    e("v_mov_b32 v55, 1")
    e(f"v_lshlrev_b32 v36, 2, v{V_LANE}")
    e("v_lshrrev_b32 v34, 1, v32")
    e("s_movk_i32 s84, 4096")
    stamp(16); lstamp(16)
    SD = "dst_sel:DWORD dst_unused:UNUSED_PAD src0_sel:DWORD"
    def binA(j):
        e(f"v_lshlrev_b32_sdwa v{112+j}, 2, v{64+j} {SD} src1_sel:BYTE_0")
        e(f"ds_add_rtn_u32 v{120+j}, v{112+j}, v55 offset:{L_CNT1}")
    def binB(j):
        e(f"v_lshlrev_b32_sdwa v{129+2*j}, 2, v{64+j} {SD} src1_sel:BYTE_1")
        if j % 2 == 0: e(f"v_lshlrev_b32 v56, 16, v{80+j//2}")
        else: e(f"v_and_b32 v56, 0xffff0000, v{80+j//2}")
        e(f"v_mul_u32_u24_sdwa v57, {NPB}, v{72+j} {SD} src1_sel:BYTE_0")
        e(f"v_add_u32_sdwa v57, v57, v{72+j} {SD} src1_sel:BYTE_1")
        e(f"v_or3_b32 v{128+2*j}, v56, v57, s87")
    def masked(tag, f):
        e("s_mov_b64 exec, s[74:75]")
        e(f"s_cbranch_execz {tag}")
        f()
        lab(tag)
        e("s_mov_b64 exec, -1")
    assert 128 * 256 == 0x8000
    e(f"v_lshlrev_b32 v58, 4, v{V_LANE}")
    e(f"v_lshlrev_b32 v23, 1, v{V_LANE}")
    e("s_waitcnt vmcnt(3)")
    stamp(3)
    def ldA():
        e(f"buffer_load_dwordx4 v[72:75], v32, {sr(S_SRC)}, 0 offen {LDF}")
        e(f"buffer_load_dwordx2 v[80:81], v34, {sr(S_E)}, 0 offen {LDF}")
    def ldB():
        e(f"buffer_load_dwordx4 v[76:79], v32, {sr(S_SRC)}, s86 offen {LDF}")
        e(f"buffer_load_dwordx2 v[82:83], v34, {sr(S_E)}, s84 offen {LDF}")
    if ORD == 1: ldA()
    for j in range(4): binA(j)
    if ORD == 2: ldA()
    e("s_mov_b64 exec, s[74:75]")
    e("s_cbranch_execz P1_A")
    if ORD == 1: ldB()
    for j in range(4, 8): binA(j)
    if ORD == 2: ldB()
    e("s_mov_b64 exec, -1")
    e("s_waitcnt vmcnt(4)")
    e("s_branch P1_A2")
    lab("P1_A")
    e("s_mov_b64 exec, -1")
    e("s_waitcnt vmcnt(2)")
    lab("P1_A2")
    e("s_add_u32 s86, s85, 16384")
    e(f"s_add_u32 m0, s86, {L_W1S}")
    e(f"s_cmp_eq_u32 s{S_W}, 7")
    e("s_waitcnt lgkmcnt(0)")
    e("s_barrier")
    stamp(4); lflush()
    if os.environ.get("PRES"):
        e(f"s_mov_b32 s90, {eval(os.environ.get('PRESA', 'WS_FLAG + 8 * 200'))}")
        e(f"s_load_dwordx2 s[98:99], {sr(S_WS,2)}, s90")
        e("s_waitcnt lgkmcnt(0)")
        mode = os.environ["PRES"]
        if mode == "1":
            e("s_xor_b32 s98, s98, s79")
            e("s_xor_b32 s99, s99, s78")
            e("s_or_b32 s98, s98, s99")
        elif mode == "3":
            e("s_xor_b32 s98, s98, s79")
            e("s_xor_b32 s99, s99, s78")
            e("s_or_b32 s98, s98, s99")
            e("s_cmp_eq_u32 s78, s79")
            e("s_cselect_b32 s98, 1, s98")
        elif mode == "4":
            e("s_xor_b32 s98, s98, s79")
            e("s_xor_b32 s99, s99, s78")
            e("s_or_b32 s98, s98, s99")
            e("s_cmp_eq_u32 s98, 0")
            e("s_cselect_b32 s98, 1, 0")
        elif mode == "2":
            e("s_xor_b32 s98, s78, s79")
        e("s_cmp_eq_u32 s98, 0")
        e("s_cselect_b32 s100, 10000, 0")
        e("s_mov_b32 s98, 0")
        e(f"s_cmp_eq_u32 s{S_W}, 7")
    if XT:
        reg, n, fl = XT.split(",")
        base, stride = {"fresh": (WS_SIZE - 256 * GCS, GCS), "pt": (WS_PT, NPB * 256), "ent": (WS_ENT, GCS), "ptf": (WS_SIZE - 256 * GCS, NPB * 256), "wpt": (WS_PT, NPB * 256), "wptf": (WS_SIZE - 256 * GCS, NPB * 256)}[reg]
        e("s_waitcnt vmcnt(0)")
        e("s_barrier")
        stamp(40)
        e(f"s_mul_i32 s90, s{S_B if reg[:2] == 'pt' else 2}, {stride}")
        e(f"s_add_u32 s90, s90, {base}")
        for k in range(int(n)):
            e(f"buffer_store_dwordx4 v[64:67], v61, {sr(S_WS)}, s90 offen {fl}")
            e("s_add_u32 s90, s90, 8192")
        e("s_waitcnt vmcnt(0)")
        e("s_barrier")
        stamp(41)
        e(f"s_cmp_eq_u32 s{S_W}, 7")
    def tags():
        e(f"s_mul_i32 s{S_TAGB}, s78, 1664525")
        e(f"s_add_u32 s{S_TAGB}, s{S_TAGB}, 1013904223")
        e(f"s_add_u32 s{S_TAGA}, s79, 0x01000000")
        e(f"s_and_b32 s{S_TAGA}, s{S_TAGA}, 0xff000000")
    def p_reads():
        for ks in range(4):
            e(f"ds_read_b64_tr_b16 {vr(88+4*ks,2)}, v50 offset:{L_W1S+4096*ks}")
            e(f"ds_read_b64_tr_b16 {vr(90+4*ks,2)}, v50 offset:{L_W1S+4096*ks+1024}")
            e(f"ds_read_b128 {vr(160+4*ks,4)}, v{51+(ks&1)} offset:{64*(ks>>1)}")
    def p_mfma(counted=False):
        for ks in range(4):
            if counted: e(f"s_waitcnt lgkmcnt({9-3*ks})")
            e(mf16(144, 88 + 4*ks, 160 + 4*ks, "0" if ks == 0 else vr(144, 16)))
    def p_fin():
        for i in range(8): e(f"v_pk_mul_f32 {vr(144+2*i,2)}, {vr(144+2*i,2)}, s[80:81]")
        for i in range(8): e(f"v_cvt_pk_bf16_f32 v{88+i}, v{144+2*i}, v{145+2*i}")
        e("s_mov_b64 exec, s[88:89]")
        for q in range(4): e(f"ds_write_b64 v53, {vr(88+2*q,2)} offset:{16*q}")
        e("s_mov_b64 exec, -1")
    def late():
        for k in range(2): e(f"buffer_load_dwordx4 v31, {sr(S_W1)}, s86 offen offset:{1024*k} lds")
    e("s_cbranch_scc1 P1_SCAN")
    p_reads()
    p_mfma(True)
    tags()
    e(f"s_cmp_eq_u32 s{S_W}, 6")
    e("s_cbranch_scc0 P1_H6")
    e(f"buffer_load_dword v20, v36, {sr(S_W1)}, s87 offen")
    e(f"buffer_load_ushort v21, v23, {sr(S_B2)}, 0 offen")
    e(f"buffer_load_dword v19, v36, {sr(S_B1)}, 0 offen")
    lab("P1_H6")
    e("s_nop 3")
    e("s_branch P1_HJ")
    lab("P1_SCAN")
    e("s_setprio 3")
    e(f"ds_read_b128 v[136:139], v58 offset:{L_CNT1}")
    p_reads()
    tags()
    e(f"s_mul_i32 s7, s2, {DS}")
    e(f"s_add_u32 s7, s7, {WS_DESC}")
    e("s_waitcnt lgkmcnt(0)")
    p_mfma()
    e("v_add_u32 v57, v136, v137")
    e("v_add_u32 v56, v57, v138")
    e("v_add_u32 v59, v56, v139")
    e("v_mov_b32 v60, v59")
    scan64(59)
    e("v_sub_u32 v140, v59, v60")
    e("v_add_u32 v141, v140, v136")
    e("v_add_u32 v142, v140, v57")
    e("v_add_u32 v143, v140, v56")
    e(f"ds_write_b128 v58, v[140:143] offset:{L_BASE1}")
    lab("P1_HJ")
    late()
    p_fin()
    e("s_waitcnt lgkmcnt(0)")
    e("s_barrier")
    e("s_setprio 0")
    stamp(5)
    e("ds_read_b128 v[104:107], v62")
    e("ds_read_b128 v[108:111], v22")
    for j in range(4): e(f"ds_read_b32 v{112+j}, v{112+j} offset:{L_BASE1}")
    e("s_waitcnt lgkmcnt(4)")
    e(f"buffer_store_dwordx4 v[104:107], v61, {sr(S_WS)}, s6 offen {PSF}")
    e("s_bfm_b64 exec, s71, 0")
    e(f"buffer_store_dwordx4 v[108:111], v63, {sr(S_WS)}, s6 offen {PSF}")
    def w(j):
        e(f"v_add_lshl_u32 v{112+j}, v{112+j}, v{120+j}, 3")
        e(f"ds_write_b64 v{112+j}, {vr(128+2*j,2)} offset:{L_STG}")
    def partA():
        for j in range(4): binB(j)
        e("s_waitcnt lgkmcnt(0)")
        for j in range(4): w(j)
    e("s_mov_b64 exec, s[74:75]")
    e("s_cbranch_execz P1_S1")
    for j in range(4, 8): e(f"ds_read_b32 v{112+j}, v{112+j} offset:{L_BASE1}")
    e("s_mov_b64 exec, -1")
    e("s_waitcnt vmcnt(6)")
    partA()
    e("s_mov_b64 exec, s[74:75]")
    e("s_waitcnt vmcnt(4)")
    for j in range(4, 8): binB(j)
    for j in range(4, 8): w(j)
    e("s_mov_b64 exec, -1")
    e("s_branch P1_JOIN")
    lab("P1_S1")
    e("s_mov_b64 exec, -1")
    e(f"s_cmp_eq_u32 s{S_W}, 7")
    e("s_cbranch_scc0 P1_S2")
    for j in range(4):
        e(f"v_lshl_or_b32 v{96+2*j}, v{136+j}, 12, v{140+j}")
        e(f"v_or_b32 v{96+2*j}, s{S_TAGA}, v{96+2*j}")
        e(f"v_mov_b32 v{97+2*j}, s{S_TAGB}")
    e(f"buffer_store_dwordx4 v[96:99], v58, {sr(S_WS)}, s7 offen sc1")
    e(f"buffer_store_dwordx4 v[100:103], v58, {sr(S_WS)}, s7 offen offset:1024 sc1")
    lab("P1_S2")
    e(f"s_cmp_ge_u32 s{S_W}, 6")
    e("s_waitcnt vmcnt(6)")
    e("s_cbranch_scc1 P1_S3")
    e("s_waitcnt vmcnt(4)")
    lab("P1_S3")
    partA()
    lab("P1_JOIN")
    e(f"s_mul_i32 s5, s2, {GCS}")
    e(f"s_add_u32 s5, s5, {WS_ENT}")
    e("s_waitcnt lgkmcnt(0)")
    e("s_barrier")
    stamp(6)
    for k in range(3): e(f"ds_read_b128 {vr(64+4*k,4)}, v61 offset:{L_STG+8192*k}")
    e(f"s_cmp_eq_u32 s{S_W}, 7")
    e("s_cbranch_scc0 P1_C")
    e(f"ds_read_b128 v[76:79], v58 offset:{L_STG+24576}")
    e("s_add_u32 s7, s5, 24576")
    e("s_bfm_b64 exec, 32, 0")
    e("s_waitcnt lgkmcnt(0)")
    e(f"buffer_store_dwordx4 v[76:79], v58, {sr(S_WS)}, s7 offen {STF}")
    e("s_mov_b64 exec, -1")
    lab("P1_C")
    for k in range(3):
        e(f"s_waitcnt lgkmcnt({2-k})")
        e(f"buffer_store_dwordx4 {vr(64+4*k,4)}, v61, {sr(S_WS)}, s5 offen {STF}")
        if k < 2: e("s_add_u32 s5, s5, 8192")
    def loop_consts():
        e("v_lshlrev_b32 v58, 1, v39")
        e("v_lshl_add_u32 v58, v38, 9, v58")
        e(f"v_add_u32 v{V_CA}, s{S_M0[0]}, v58")
        e("v_lshlrev_b32 v58, 4, v48")
        e(f"v_add_u32 v{V_DMAC}, 0x800000, v58")
        e("v_and_b32 v58, 1, v47")
        e("v_lshlrev_b32 v58, 4, v58")
        e(f"v_add_u32 v{V_LIO}, {L_LIST}, v58")
        e("v_lshl_add_u32 v58, v42, 1, v43")
        e("v_lshlrev_b32 v58, 2, v58")
        e(f"v_add_u32 v{V_LMO}, {L_LIST}, v58")
        e(f"s_sub_u32 s76, {GTH+7}, s{S_W}")
        e(f"s_sub_u32 s77, {HT+7}, s{S_W}")
        e(f"s_cmp_lt_u32 s{S_W}, 4")
        e(f"s_cselect_b32 s76, s{S_W}, s76")
        e(f"s_cselect_b32 s77, s{S_W}, s77")
        e("s_lshl_b32 s76, s76, 4")
        e(f"s_add_u32 s76, s76, {L_GT}")
        e(f"s_mul_i32 s77, s77, {SELS}")
        e(f"s_add_u32 s77, s77, {L_SEL}")
        e(f"v_lshl_add_u32 v{V_SAVE}, v37, 2, s76")
        e(f"v_lshl_add_u32 v{V_SAVE+1}, v40, 2, s76")
        e(f"v_lshl_add_u32 v{V_SAVE+2}, v44, 2, s76")
        e(f"v_mul_u32_u24 v58, {SELS//2}, v38")
        e("v_lshl_add_u32 v58, v39, 2, v58")
        e(f"v_add_u32 v{V_SAVE+3}, s77, v58")
        e("v_cmp_eq_u32 vcc, 0, v38")
        e("v_mov_b32 v59, 0x03020100")
        e("v_mov_b32 v58, 0x0c080c0c")
        e(f"v_cndmask_b32 v{V_PSEL}, v59, v58, vcc")
        e(f"v_cndmask_b32 v{V_QMUL}, 0, 1, vcc")
        e("v_add_u32 v58, 1, v44")
        e("v_lshrrev_b32 v58, 1, v58")
        e("v_and_b32 v59, 1, v44")
        e("v_mul_u32_u24 v58, v58, v59")
        e("v_mul_u32_u24 v58, 320, v58")
        e(f"v_add_u32 v58, {L_EXT}, v58")
        e(f"v_mov_b32 v59, {L_QT}")
        e("v_cndmask_b32 v58, v58, v59, vcc")
        e(f"v_add_u32 v{V_QC}, v46, v58")
        e(f"v_mov_b32 v58, {hex(find_cx(0x00803F80))}")
        e(f"v_mov_b32 v59, {hex(find_cx(0x3F800000))}")
        e("v_cmp_eq_u32 s[6:7], 1, v41")
        e("v_cmp_gt_u32 s[76:77], 2, v40")
        e("s_nop 0")
        e("v_cndmask_b32 v58, v58, v59, s[6:7]")
        e("v_cndmask_b32 v59, 0, v58, s[76:77]")
        e("v_cndmask_b32 v58, v58, 0, s[76:77]")
        e(f"v_cndmask_b32 v{CX}, 1.0, v59, vcc")
        e(f"v_cndmask_b32 v{CX+1}, 1.0, v58, vcc")
        e("v_lshl_add_u32 v58, v38, 2, v44")
        e("v_lshl_add_u32 v58, v58, 7, v46")
        e("v_lshrrev_b32 v59, 1, v44")
        e("v_lshl_add_u32 v58, v59, 6, v58")
        e(f"v_add_u32 v{V_W2A}, {L_W2}, v58")
    if PFL == 1:
        e(f"s_lshl_b32 s5, s{S_W}, 5")
        e("s_lshr_b32 s6, s2, 3")
        e("s_add_u32 s90, s5, s6")
        e("s_and_b32 s6, s2, 7")
        e(f"s_mul_i32 s6, s6, {DS}")
        e("s_lshl_b32 s5, s90, 3")
        e("s_add_u32 s5, s5, s6")
        e(f"s_add_u32 s91, s5, {WS_PFLAG}")
    if LATEI: init_tables(120)
    e("v_lshlrev_b32 v31, 2, v45")
    e(f"v_xor_b32 v31, v31, v{V_LANE}")
    e("v_lshlrev_b32 v31, 4, v31")
    e(f"s_mov_b32 s{S_EARLY}, 2")
    e(f"s_cmp_eq_u32 s{S_W}, 6")
    e("s_cbranch_scc0 P0_NOEXT")
    e("s_waitcnt vmcnt(5)")
    e("v_lshlrev_b32 v118, 16, v19")
    e("v_and_b32 v119, 0xffff0000, v19")
    e("v_lshlrev_b32 v117, 1, v36")
    e(f"ds_write_b64 v117, v[118:119] offset:{L_B1}")
    e("v_lshlrev_b32 v112, 16, v20")
    e("v_and_b32 v113, 0xffff0000, v20")
    e("v_mul_f32 v112, s80, v112")
    e("v_mul_f32 v113, s80, v113")
    e("v_cvt_pk_bf16_f32 v114, v112, v113")
    e("v_lshlrev_b32 v115, 16, v114")
    e("v_and_b32 v116, 0xffff0000, v114")
    e("v_sub_f32 v115, v112, v115")
    e("v_sub_f32 v116, v113, v116")
    e("v_cvt_pk_bf16_f32 v115, v115, v116")
    e("v_lshlrev_b32 v116, 16, v21")
    e(f"ds_write_b32 v36, v114 offset:{L_EXT+320}")
    e(f"ds_write_b32 v36, v115 offset:{L_EXT+640}")
    e(f"ds_write_b32 v36, v116 offset:{L_B2}")
    lab("P0_NOEXT")
    e(f"s_add_u32 s{S_P}, s{S_WS}, {WS_PT - PSH}")
    e(f"s_addc_u32 s{S_P+1}, s{S_WS+1}, 0")
    e(f"v_mov_b32 v252, s{S_TAGA}")
    e(f"v_mov_b32 v253, s{S_TAGB}")
    e(f"v_mul_u32_u24 v254, {DS}, v{V_LANE}")
    e("v_lshlrev_b32 v49, 1, v49")
    for j in range(8): e(f"s_movk_i32 s{S_SOFF+j}, {PSH - 1024*(j&3) + 128*(j>>2)}")
    e(f"s_movk_i32 s{S_256}, 256")
    e(f"s_mul_i32 s{S_M0[0]}, s{S_W}, {TBW}")
    e(f"s_add_u32 s{S_M0[0]}, s{S_M0[0]}, {L_TB}")
    e(f"s_add_u32 s{S_M0[1]}, s{S_M0[0]}, 4096")
    e(f"s_mov_b32 s{S_WN}, 32")
    e(f"s_mov_b32 s{S_RB}, 0")
    e(f"s_mov_b32 s{S_SAFE}, 0")
    e(f"s_mov_b32 s{S_SPIN}, 0x40000")
    e(f"v_cmp_le_u32 vcc, {SPLIT}, v{V_LANE}")
    e(f"v_mul_u32_u24 v56, {LS}, v{V_LANE}")
    e(f"v_mul_u32_u24 v57, {QS}, v{V_LANE}")
    e(f"v_add_u32 v{V_L0}, {L_LIST}, v56")
    e(f"v_lshl_or_b32 v{V_GV}, v57, 16, v56")
    e("v_cndmask_b32 v56, 0, 1, vcc")
    e(f"v_mul_u32_u24 v57, {SPLIT}, v56")
    e(f"v_sub_u32 v{V_COL}, v{V_LANE}, v57")
    e(f"v_mul_u32_u24 v57, {GTH*16}, v56")
    e(f"v_add_u32 v{V_GB}, {L_GT}, v57")
    e(f"v_mul_u32_u24 v57, {HT*SELS}, v56")
    e(f"v_lshl_add_u32 v57, v{V_COL}, 2, v57")
    e(f"v_add_u32 v{V_SB}, {L_SEL}, v57")
    if PFL == 1:
        e(f"s_load_dwordx2 s[92:93], {sr(S_WS,2)}, s91 glc")
    if not CL: loop_consts()
    if LATEI:
        e("s_waitcnt lgkmcnt(0)")
        e("s_barrier")
    static_writes(56, "A")
    e("v_lshl_add_u32 v56, v37, 3, v48")
    e(f"s_lshl_b32 s5, s{S_W}, 5")
    e(f"v_add_u32 v{V_CHK}, s5, v56")
    e(f"v_and_b32 v{V_J0}, 15, v{V_LANE}")
    e(f"v_mul_u32_u24 v33, {DS}, v{V_CHK}")
    desc_soff()
    e(f"buffer_load_dwordx2 v[34:35], v33, {sr(S_WS)}, s5 offen sc1")
    nyoung = 1
    if PFL == 1:
        e("s_and_b32 s6, s90, 7")
        e("s_lshl_b32 s6, s6, 5")
        e("s_lshr_b32 s7, s90, 3")
        e("s_add_u32 s6, s6, s7")
        e(f"s_mul_i32 s6, s6, {NPB*256}")
        e(f"s_add_u32 s6, s6, {PSH}")
        e(f"v_min_u32 v56, {NPB-1}, v{V_LANE}")
        e("v_lshlrev_b32 v56, 8, v56")
        e("s_waitcnt lgkmcnt(0)")
        e(f"s_cmp_eq_u64 s[92:93], s[{S_TAGA}:{S_TAGB}]")
        e("s_cselect_b32 s6, s6, 0x7f000000")
        e("v_add_u32 v56, s6, v56")
        e(f"buffer_load_dword v57, v56, {sr(S_P)}, 0 offen")
        e(f"buffer_load_dword v58, v56, {sr(S_P)}, 0 offen offset:128")
        nyoung = 3
    e("s_lshl_b32 s6, s2, 3")
    e(f"s_add_u32 s6, s6, {WS_FLAG}")
    stamp(18)
    e(f"s_waitcnt vmcnt({nyoung}) lgkmcnt(0)")
    e("s_barrier")
    stamp(7)
    e(f"s_cmp_eq_u32 s{S_W}, 0")
    e("s_cbranch_scc0 P1_NF")
    e("s_mov_b64 exec, 0xff")
    e(f"buffer_store_dwordx2 v[252:253], v254, {sr(S_WS)}, s6 offen sc1")
    e("s_mov_b64 exec, -1")
    lab("P1_NF")
    if OWN:
        e(f"s_mul_i32 s6, s{S_B}, {NPB*256}")
        e(f"s_mul_i32 s7, s{S_W}, 13")
        e(f"v_add_u32 v56, s7, v{V_LANE}")
        e(f"v_min_u32 v56, {2*NPB-1}, v56")
        e("v_lshl_add_u32 v56, v56, 7, s6")
        e("s_bfm_b64 exec, 13, 0")
        e(f"buffer_load_dword v57, v56, {sr(S_P)}, s{S_SOFF} offen")
        e("s_mov_b64 exec, -1")
    for q in range(4): e(f"ds_read_b128 {vr(144+4*q,4)}, v49 offset:{L_B1+32*q}")
    for ks in range(4):
        e(f"ds_read_b64_tr_b16 {vr(80+4*ks,2)}, v50 offset:{L_W1S+16384+4096*ks}")
        e(f"ds_read_b64_tr_b16 {vr(82+4*ks,2)}, v50 offset:{L_W1S+16384+4096*ks+1024}")
    for ks in range(4):
        e(f"s_waitcnt lgkmcnt({6-2*ks})")
        e(mf16(144, 80 + 4*ks, 160 + 4*ks, vr(144, 16)))
    e("s_nop 7")
    e("s_nop 3")
    for i in range(8): e(f"v_pk_mul_f32 {vr(144+2*i,2)}, {vr(144+2*i,2)}, s[80:81]")
    for i in range(8): e(f"v_cvt_pk_bf16_f32 v{64+i}, v{144+2*i}, v{145+2*i}")
    e("s_mov_b64 exec, s[88:89]")
    for q in range(4): e(f"ds_write_b64 v54, {vr(64+2*q,2)} offset:{16*q}")
    e("s_mov_b64 exec, -1")
    stamp(19)
    if CL: loop_consts()

    lab("POLL1")
    e(f"v_mul_u32_u24 v32, {GCS}, v{V_CHK}")
    e(f"v_add_u32 v37, 16, v{V_J0}")
    e("v_bfrev_b32 v43, -2")
    e(f"v_cmp_gt_u32 vcc, s{S_WN}, v{V_J0}")
    e(f"v_add_u32 v38, s{S_RB}, v{V_J0}")
    e(f"v_add_u32 v39, s{S_RB}, v37")
    e("v_lshlrev_b32 v36, 3, v38")
    e("v_cndmask_b32 v38, v43, v38, vcc")
    e(f"v_cmp_gt_u32 vcc, s{S_WN}, v37")
    e(f"s_mov_b32 s7, {WS_ENT}")
    e("v_mov_b32 v55, 4")
    e("v_cndmask_b32 v39, v43, v39, vcc")
    e(f"s_waitcnt vmcnt({OWN})")
    lab("POLL")
    e(f"v_xor_b32 v34, s{S_TAGA}, v34")
    e(f"v_cmp_ne_u32 s[76:77], s{S_TAGB}, v35")
    e("v_cmp_le_u32 vcc, 0x1000000, v34")
    e("s_or_b64 vcc, vcc, s[76:77]")
    e("s_cbranch_scc0 POLLED")
    e(f"s_sub_u32 s{S_SPIN}, s{S_SPIN}, 1")
    e("s_cbranch_scc1 K_END")
    e(f"s_sleep {SLP}")
    e(f"buffer_load_dwordx2 v[34:35], v33, {sr(S_WS)}, s5 offen sc1")
    e("s_waitcnt vmcnt(0)")
    e("s_branch POLL")
    lab("POLLED")
    stamp(8)
    e("v_and_b32 v35, 0xfff, v34")
    e("v_lshrrev_b32 v34, 12, v34")
    e("v_lshl_add_u32 v35, v35, 3, v32")
    e(f"s_add_u32 s5, s{S_RB}, s{S_WN}")
    e("v_cmp_lt_u32 s[74:75], s5, v34")
    DP = "row_mask:0xf bank_mask:0xf"
    for i in range(8):
        e(f"v_mov_b32_dpp v43, v34 row_newbcast:{i} {DP}")
        e(f"v_add_u32_dpp v{44+i}, v35, v36 row_newbcast:{i} {DP}")
        e(f"v_cmp_lt_u32 {sr(S_MASK+2*i,2)}, v38, v43")
        e(f"v_cmp_lt_u32 {sr(S_MASK+16+2*i,2)}, v39, v43")
    e(f"v_lshlrev_b32 v54, 2, v{V_LANE}")
    e("v_mov_b32 v53, 0")
    e("s_mov_b64 exec, s[74:75]")
    e(f"ds_write_b32 v53, v55 offset:{L_FLAG}")
    e("s_mov_b64 exec, -1")
    if not W5: wave_reset()
    flag_load(True)
    lab("FPOLL")
    e("s_waitcnt vmcnt(0)")
    e(f"v_cmp_ne_u32 s[76:77], s{S_TAGB}, v61")
    e(f"v_cmp_ne_u32 vcc, s{S_TAGA}, v60")
    e("s_or_b64 vcc, vcc, s[76:77]")
    e("s_cbranch_scc0 FPOLLED")
    e(f"s_sub_u32 s{S_SPIN}, s{S_SPIN}, 1")
    e("s_cbranch_scc1 K_END")
    e(f"s_sleep {SLP}")
    flag_load()
    e("s_branch FPOLL")
    lab("FPOLLED")
    stamp(17)
    for k in range(8, 16):
        e(f"s_mov_b64 exec, {sr(S_MASK+2*k,2)}")
        e(f"s_cbranch_execz R_L{k}")
        e(f"buffer_load_dwordx2 {vr(112+2*k,2)}, v{44+(k&7)}, {sr(S_WS)}, s7 offen offset:128 {ELF}")
        lab(f"R_L{k}")
    for k in range(8):
        e(f"s_or_b64 exec, {sr(S_MASK+2*k,2)}, 1")
        e(f"buffer_load_dwordx2 {vr(112+2*k,2)}, v{44+k}, {sr(S_WS)}, s7 offen {ELF}")
    e("s_mov_b64 exec, -1")
    if W5: wave_reset()
    e(f"s_cmp_eq_u32 s{S_EARLY}, 2")
    e("s_cbranch_scc0 R_NH")
    for i in range(32): e(f"v_pk_mul_f32 {vr(H+2*i,2)}, {vr(NN,2)}, {vr(NN,2)}")
    lab("R_NH")
    e("s_waitcnt vmcnt(8)")
    for k in list(range(8, 16)) + list(range(8)):
        e(f"s_mov_b64 exec, {sr(S_MASK+2*k,2)}")
        if k >= 8: e(f"s_cbranch_execz R_A{k}")
        else: e(f"s_waitcnt vmcnt({7-k})")
        e(f"ds_add_rtn_u32 v{T+k}, v{113+2*k}, v55 offset:{L_CNT2}")
        if k >= 8: lab(f"R_A{k}")
    def list_writes(tag):
        for k in list(range(8, 16)) + list(range(8)):
            e(f"s_mov_b64 exec, {sr(S_MASK+2*k,2)}")
            if k >= 8: e(f"s_cbranch_execz {tag}{k}")
            e(f"ds_write_b32 v{T+k}, v{112+2*k}")
            if k >= 8: lab(f"{tag}{k}")
        e("s_mov_b64 exec, -1")
    e("s_mov_b64 exec, -1")
    e(f"s_cmp_eq_u32 s{S_EARLY}, 2")
    e("s_cbranch_scc0 R_NW2")
    e(f"s_add_u32 m0, s85, {L_W2}")
    e(f"s_mov_b32 s{S_EARLY}, 0")
    for k in range(2): e(f"buffer_load_dwordx4 v31, {sr(S_W2)}, s85 offen offset:{1024*k} lds")
    if POST:
        e("s_lshr_b32 s6, s2, 3")
        e("s_and_b32 s7, s6, 7")
        e("s_lshl_b32 s7, s7, 5")
        e("s_lshr_b32 s6, s6, 3")
        e(f"s_lshl2_add_u32 s6, s{S_W}, s6")
        e("s_add_u32 s6, s6, s7")
        e(f"s_mul_i32 s6, s6, {NPB*256}")
        e(f"v_lshl_add_u32 v56, v{V_LANE}, 7, s6")
        e(f"s_bfm_b64 exec, {POST}, 0")
        e(f"buffer_load_dword v57, v56, {sr(S_P)}, s{S_SOFF} offen")
        e("s_mov_b64 exec, -1")
    lab("R_NW2")
    e("s_waitcnt lgkmcnt(0)")
    stamp(20)
    list_writes("R_C")
    e("s_waitcnt lgkmcnt(0)")
    e("s_barrier")
    stamp(9)
    def mid():
        e(f"ds_read_b32 v32, v54 offset:{L_CNT2}")
        e(f"ds_read_b32 v33, v53 offset:{L_FLAG}")
        e(f"ds_read_b32 v34, v54 offset:{L_DEG}")
        return 3
    first_tile(mid)
    e("s_waitcnt lgkmcnt(0)")
    e(f"v_sub_u32 v32, v32, v{V_L0}")
    e("v_max_u32 v35, 4, v32")
    e("v_subrev_u32 v35, 4, v35")
    e("v_lshrrev_b32 v35, 5, v35")
    e("v_mov_b32 v36, v35")
    e(f"v_cmp_lt_u32 s[76:77], {LCAP//8-1}, v35")
    scan64(36)
    e(f"v_readfirstlane_b32 s{S_MORE}, v33")
    e(f"v_readlane_b32 s6, v36, {SPLIT-1}")
    e("v_readlane_b32 s7, v36, 63")
    e(f"v_cmp_le_u32 vcc, {SPLIT}, v{V_LANE}")
    e("v_sub_u32 v36, v36, v35")
    e("v_lshrrev_b32 v32, 2, v32")
    e("s_sub_u32 s7, s7, s6")
    e(f"s_add_u32 s82, s6, {SPLIT+3}")
    e(f"s_add_u32 s83, s7, {NPB-SPLIT+3}")
    e("s_max_u32 s5, s82, s83")
    e(f"s_cmp_ge_u32 s5, {4*HT+4}")
    e("s_cbranch_scc0 R_FITS")
    e(f"s_mov_b32 s{S_WN}, {WSLOW}")
    e("s_branch NEXT_ROUND")
    lab("R_FITS")
    e(f"s_sub_u32 s6, {NPB-SPLIT-1}, s6")
    e(f"v_add_u32 v37, {SPLIT-1}, v36")
    e("v_add_u32 v38, s6, v36")
    e("v_cndmask_b32 v37, v37, v38, vcc")
    e(f"v_mov_b32 v39, v{V_GV}")
    e(f"s_mov_b32 s{S_EARLY}, 1")
    e("s_cmp_eq_u64 s[76:77], 0")
    e("s_cbranch_scc0 R_COMPACT")
    lab("R_TABLE")
    e("v_mov_b32 v41, 0x3f80")
    e(f"s_add_u32 s6, s{S_W}, 1")
    lab("R_GT")
    e("v_cmp_le_u32 vcc, s6, v35")
    e("s_and_b64 exec, exec, vcc")
    e("s_cbranch_execz R_GTE")
    e("v_add_u32 v44, s6, v37")
    e("s_lshl_b32 s7, s6, 5")
    e(f"v_lshl_add_u32 v45, v44, 2, v{V_GB}")
    e("v_add_u32 v47, s7, v39")
    e("ds_write_b32 v45, v47")
    e("v_lshrrev_b32 v46, 1, v44")
    e(f"v_mul_u32_u24 v46, {SELS//2}, v46")
    e("v_and_b32 v44, 1, v44")
    e("v_lshl_add_u32 v46, v44, 1, v46")
    e(f"v_add_u32 v46, v46, v{V_SB}")
    e("ds_write_b16 v46, v41")
    e("s_add_u32 s6, s6, 8")
    e("s_branch R_GT")
    lab("R_GTE")
    e("s_mov_b64 exec, -1")
    e("s_waitcnt vmcnt(4) lgkmcnt(0)")
    e("s_barrier")
    stamp(10)
    e(f"s_cmp_eq_u32 s{S_W}, 0")
    e("s_cbranch_scc0 R_ND")
    e("v_add_u32 v34, v34, v32")
    e(f"ds_write_b32 v54, v34 offset:{L_DEG}")
    lab("R_ND")
    e(f"s_sub_u32 s5, 7, s{S_W}")
    e(f"s_cmp_lt_u32 s{S_W}, 4")
    e(f"s_cselect_b32 s5, s{S_W}, s5")
    e("s_cselect_b32 s6, s82, s83")
    e("s_lshr_b32 s6, s6, 2")
    e("s_sub_u32 s6, s6, s5")
    e("s_add_u32 s6, s6, 3")
    e(f"s_lshr_b32 s{S_NT}, s6, 2")
    e(f"s_or_b32 s6, s{S_MORE}, s{S_RB}")
    e(f"s_or_b32 s{S_SAFE}, s{S_SAFE}, s6")
    e(f"s_cmp_eq_u32 s{S_EARLY}, 0")
    e("s_cbranch_scc1 WAVE_REDO")
    lab("WAVE_GO")
    e(f"ds_read_u16 v{V_LI}, v{V_GIA} offset:64")
    e(f"s_mov_b32 m0, s{S_M0[1]}")
    e(f"s_sub_u32 s{S_REM}, s{S_NT}, 1")
    e("s_waitcnt lgkmcnt(0)")
    e(f"v_add_u32 v{V_LI}, v{V_LI}, v{V_LIO}")
    e(f"ds_read_b128 {vr(IDR,4)}, v{V_LI}")
    e(PERM)
    e(AXB)
    if PEEL:
        e("s_waitcnt vmcnt(0)")
        for s in c_reads(0)[:16] + [tr_read(0)]: e(s)
        for s in dma(1): e(s)
        for s in memphase(0, 0)[2+16:-4]:
            if s != tr_read(0): e(s)
        e(mfext(0))
        for s in mads(): e(s)
        e("s_nop 5")
        stamp(11); stamp(28, True)
        e(f"s_cmp_lg_u32 s{S_SAFE}, 0")
        e("s_cbranch_scc1 PEELS")
        for safe in (False, True):
            out.append(".p2align 3")
            if safe: lab("PEELS")
            emit(block(0, 0, safe))
            for s in dma(0): e(s)
            e(f"s_branch ENTER{'S' if safe else 'F'}")
    else:
        for s in dma(1): e(s)
        e("s_waitcnt lgkmcnt(0)")
        for s in mads(): e(s)
        for s in memphase(0, 0): e(s)
        e(mfext(0))
        e("s_nop 7")
        e("s_nop 1")
        stamp(11); stamp(28, True)
        e(f"s_cmp_lg_u32 s{S_SAFE}, 0")
        e("s_cbranch_scc1 ENTERS")
        e("s_branch ENTERF")

    lab("R_COMPACT")
    e("s_barrier")
    fill_list(40)
    e(f"v_add_lshl_u32 v38, v36, v{V_LANE}, 5")
    e(f"v_add_u32 v38, {L_LIST}, v38")
    e(f"v_sub_u32 v38, v38, v{V_L0}")
    e("v_add_u32 v39, v39, v38")
    for k in range(16): e(f"ds_bpermute_b32 v{113+2*k}, v{113+2*k}, v38")
    e(f"v_lshl_add_u32 v45, v{V_COL}, 2, v{V_GB}")
    e(f"s_bfm_b64 exec, {NPB}, 0")
    e("ds_write_b32 v45, v39")
    e("s_mov_b64 exec, -1")
    e("s_waitcnt lgkmcnt(0)")
    e("s_barrier")
    for k in range(16): e(f"v_add_u32 v{T+k}, v{T+k}, v{113+2*k}")
    list_writes("R_D")
    e(f"s_mov_b32 s{S_EARLY}, 0")
    e("s_branch R_TABLE")
    lab("WAVE_REDO")
    e("s_waitcnt vmcnt(0)")
    wave_reset()
    first_tile()
    e("s_branch WAVE_GO")

    mainloop(False)
    mainloop(True)

    lab("NEXTR")
    e(f"s_add_u32 s{S_RB}, s{S_RB}, s{S_WN}")
    lab("NEXT_ROUND")
    e("s_setprio 0")
    e("s_waitcnt vmcnt(0) lgkmcnt(0)")
    e("s_barrier")
    init_tables(32)
    e("s_waitcnt lgkmcnt(0)")
    e("s_barrier")
    static_writes(32, "B")
    e(f"v_mul_u32_u24 v33, {DS}, v{V_CHK}")
    desc_soff()
    e(f"buffer_load_dwordx2 v[34:35], v33, {sr(S_WS)}, s5 offen sc1")
    e("s_waitcnt vmcnt(0) lgkmcnt(0)")
    e("s_barrier")
    e("s_branch POLL1")

    out.append(".p2align 3")
    lab("DRAIN")
    e("s_waitcnt lgkmcnt(0)")
    e(f"s_cmp_lg_u32 s{S_MORE}, 0")
    for ct in range(4): e(mfsel(ct))
    stamp(12); stamp(29, True)
    e("s_cbranch_scc1 NEXTR")
    e(f"v_lshrrev_b32 v96, 5, v{V_LANE}")
    e(f"v_and_b32 v97, 31, v{V_LANE}")
    e("v_mul_u32_u24 v97, 272, v97")
    e("v_lshl_add_u32 v97, v96, 4, v97")
    e(f"v_add_u32 v97, s{S_M0[0]}, v97")
    e(f"s_mov_b32 s6, {hex(f2u(2.0**120))}")
    e(f"v_cmp_nge_f32 s[76:77], s6, v{V_DMAX}")
    e(f"v_lshrrev_b32 v98, 3, v{V_TID}")
    e(f"v_and_b32 v99, 7, v{V_TID}")
    O = D
    cv = lambda ct: [f"v_cvt_pk_bf16_f32 v{64+8*ct+i}, v{H+16*ct+2*i}, v{H+16*ct+2*i+1}" for i in range(8)]
    for s in cv(0): e(s)
    rest = [f"v_cmp_le_u32 vcc, {SPLIT}, v98", "v_mul_u32_u24 v100, 272, v98", "v_lshl_add_u32 v100, v99, 5, v100",
            f"v_add_u32 v101, {4*TBW - SPLIT*272}, v100", "v_cndmask_b32 v100, v100, v101, vcc",
            "v_lshlrev_b32 v101, 2, v98", "v_lshlrev_b32 v102, 5, v99", "v_lshlrev_b32 v103, 15, v98"]
    for ct in range(4):
        nxt = cv(ct + 1) if ct < 3 else rest
        for s in range(2):
            for mt in range(2):
                ks = 2 * ct + s
                for x in nxt[4*s + 2*mt: 4*s + 2*mt + 2]: e(x)
                e(mf16(O[mt], w2f(ks, mt), 64 + 4*ks, "0" if ks == 0 else vr(O[mt], 16)))
    e("v_lshl_add_u32 v103, v99, 4, v103")
    e(f"s_lshl_b32 s5, s{S_B}, 7")
    e("v_add_u32 v103, s5, v103")
    e("s_movk_i32 s7, 0x207")
    e("s_waitcnt vmcnt(0)")
    e("s_nop 5")
    e(f"v_cmp_class_f32 vcc, v{O[0]}, s7")
    e("s_or_b64 s[76:77], s[76:77], vcc")
    e("s_cbranch_scc0 EPI_OK")
    e(f"s_cmp_lg_u32 s{S_SAFE}, 0")
    e("s_cbranch_scc1 EPI_OK")
    e(f"s_mov_b32 s{S_SAFE}, 1")
    for i in range(64): e(f"v_mov_b32 v{H+i}, 0")
    e("s_branch WAVE_REDO")
    lab("EPI_OK")
    for mt in range(2):
        for q in range(4):
            e(f"ds_write_b128 v97, {vr(O[mt]+4*q,4)} offset:{128*mt+32*q}")
    e(f"ds_read_b128 v[32:35], v102 offset:{L_B2}")
    e(f"ds_read_b128 v[36:39], v102 offset:{L_B2+16}")
    e(f"v_cmp_gt_u32 vcc, {NPB}, v98")
    e(f"s_or_b32 s6, s2, s{S_W}")
    e("s_cbranch_scc1 EPI_NE")
    e(f"v_mov_b32 v42, s{S_TAGB}")
    e(f"v_mov_b32 v43, s{S_TAGA}")
    e("v_mov_b32 v44, 0")
    e("s_mov_b64 exec, 1")
    e(f"buffer_store_dwordx2 v[42:43], v44, {sr(S_WS)}, 0 offen offset:{WS_EPOCH}")
    e("s_mov_b64 exec, -1")
    lab("EPI_NE")
    e("s_waitcnt lgkmcnt(0)")
    e("s_barrier")
    stamp(13)
    e("s_and_b64 exec, exec, vcc")
    e("s_cbranch_execz K_FIN")
    e(f"ds_read_b32 v40, v101 offset:{L_DEG}")
    for s in range(4):
        e(f"ds_read_b128 {vr(64+8*s,4)}, v100 offset:{L_TB+s*TBW}")
        e(f"ds_read_b128 {vr(68+8*s,4)}, v100 offset:{L_TB+s*TBW+16}")
    e(f"s_mov_b32 s6, {hex(f2u(-LN2))}")
    e("s_mov_b32 s7, s6")
    e("s_waitcnt lgkmcnt(8)")
    e("v_cvt_f32_u32 v40, v40")
    for i in range(4): e(f"v_pk_mul_f32 {vr(32+2*i,2)}, {vr(32+2*i,2)}, v[40:41] op_sel_hi:[1,0]")
    for s in range(4):
        e(f"s_waitcnt lgkmcnt({6-2*s})")
        for i in range(4): e(f"v_pk_fma_f32 {vr(32+2*i,2)}, {vr(64+8*s+2*i,2)}, s[6:7], {vr(32+2*i,2)}")
    for i in range(4): e(f"v_cvt_pk_bf16_f32 v{44+i}, v{32+2*i}, v{33+2*i}")
    e(f"buffer_store_dwordx4 v[44:47], v103, {sr(S_OUT)}, 0 offen")
    lab("K_FIN")
    if MODE:
        e("s_xor_b32 s100, s100, s79")
        e("s_xor_b32 s101, s101, s78")
        e("s_or_b32 s100, s100, s101")
        e("s_cmp_eq_u32 s100, 0")
        e("s_cselect_b32 s100, 3, 4")
        e("s_cmp_eq_u32 s78, s79")
        e("s_cselect_b32 s100, 2, s100")
        e(f"s_cmp_eq_u32 s100, {MODE}")
        e("s_cbranch_scc0 MODE_E")
        e("s_waitcnt vmcnt(0)")
        e("s_memrealtime s[96:97]")
        e("s_waitcnt lgkmcnt(0)")
        lab("MODE_L")
        e("s_memrealtime s[98:99]")
        e("s_waitcnt lgkmcnt(0)")
        e("s_sub_u32 s98, s98, s96")
        e("s_cmp_lt_u32 s98, 10000")
        e("s_cbranch_scc1 MODE_L")
        lab("MODE_E")
    if AMP[0] >= 0:
        if AMP[1] == 14:
            e("s_waitcnt vmcnt(0)")
            stamp(14)
        e("s_sub_u32 s100, s100, s98")
        if AMP[2] >= 0:
            e(f"s_cmp_eq_u32 s2, {AMP[2]}")
            e("s_cselect_b32 s100, s100, 0")
        e("s_add_u32 s100, s100, 6000")
        if AMPM:
            e("s_xor_b32 s90, s90, s79")
            e("s_xor_b32 s91, s91, s78")
            e("s_or_b32 s90, s90, s91")
            e("s_cmp_eq_u32 s90, 0")
            e("s_cselect_b32 s90, 3, 4")
            e("s_cmp_eq_u32 s78, s79")
            e("s_cselect_b32 s90, 2, s90")
            e(f"s_cmp_eq_u32 s90, {AMPM}")
            e("s_cselect_b32 s100, s100, 0")
        lab("AMPL")
        e("s_memrealtime s[98:99]")
        e("s_waitcnt lgkmcnt(0)")
        e("s_sub_u32 s98, s98, s96")
        e("s_cmp_lt_u32 s98, s100")
        e("s_cbranch_scc1 AMPL")
    if SPIN >= 0:
        lab("SPINL")
        e("s_memrealtime s[98:99]")
        e("s_waitcnt lgkmcnt(0)")
        e("s_sub_u32 s98, s98, s96")
        e("s_cmp_lt_u32 s98, 6000")
        e("s_cbranch_scc1 SPINL")
    if DIAG:
        e("s_mov_b64 exec, -1")
        e("s_waitcnt vmcnt(0)")
        stamp(14); stamp(31, True)
        e(f"v_writelane_b32 v255, s{S_NT}, 27")
        e("s_lshl_b32 s5, s2, 11")
        e(f"s_add_u32 s5, s5, {WS_STAMP}")
        e(f"v_lshlrev_b32 v1, 2, v{V_TID}")
        e(f"buffer_store_dword v255, v1, {sr(S_WS)}, s5 offen")
    lab("K_END")
    e("s_endpgm")
    if CPF: out.append(".set CODE_REST, K_END - CPF_PC")

hdr = open("standalone__edge_featured_mpnn_mpnn__graph.s.ref").read().split("; Override")[0]
out.append(hdr.rstrip())
out.append(f"; @launch grid=(256,1,1) block=(512,1,1) lds={L_END}")
out.append('.amdgcn_target "amdgcn-amd-amdhsa--gfx950"')
out.append(".text")
out.append(f".globl {KN}")
out.append(f".p2align {AL}")
out.append(f".type {KN},@function")
kernel()
out.append(f""".section .rodata,"a"
.p2align 6
.amdhsa_kernel {KN}
  .amdhsa_next_free_vgpr 256
  .amdhsa_next_free_sgpr 102
  .amdhsa_accum_offset 256
  .amdhsa_group_segment_fixed_size 0
  .amdhsa_kernarg_size 88
  .amdhsa_user_sgpr_count 2
  .amdhsa_user_sgpr_kernarg_segment_ptr 1
  .amdhsa_system_sgpr_workgroup_id_x 1
.end_amdhsa_kernel""")
dst = sys.argv[1] if len(sys.argv) > 1 else "standalone__edge_featured_mpnn_mpnn__graph.s"
open(dst, "w").write("\n".join(out) + "\n")
print("written", dst, "LDS", L_END)
```

```python
import struct, sys, os
import numpy as np
from align import align, isize

N, E = 12500, 800000
NPB, SPLIT = 49, 25
CH, CHS, GCS, DS = 3128, 25088, 25216, 2176
NQ, NQL = CH // 4, (E - 255 * CH) // 4
LOG2E = 1.4426950408889634
LN2 = 0.6931471805599453
KN = "standalone__edge_featured_mpnn_mpnn__graph_kernel"
DIAG = int(os.environ.get("DIAG", "0"))
PREF = int(os.environ.get("PREF", "0"))
X_NOP = int(os.environ.get("X_NOP", "0"))
STF = os.environ.get("STF", "sc1")
LDF = os.environ.get("LDF", "")
TRANS = int(os.environ.get("TRANS", "0"))
ELF = os.environ.get("ELF", "")
SLP = int(os.environ.get("SLP", "1"))
ORD = int(os.environ.get("ORD", "2"))
PFL = 0
OF = os.environ.get("OF", "")
AMPM = int(os.environ.get("AMPM", "0"))
MODE = int(os.environ.get("MODE", "0"))
PSF = os.environ.get("PSF", "sc1")
CL = int(os.environ.get("CL", "1"))
W5 = int(os.environ.get("W5", "0"))
OWN = int(os.environ.get("OWN", "1"))
POST = int(os.environ.get("POST", "16"))
LATEI = int(os.environ.get("LATEI", "1"))
AL = int(os.environ.get("AL", "12"))
CPF = int(os.environ.get("CPF", "1"))
CPF0 = int(os.environ.get("CPF0", "0"))
PEEL = int(os.environ.get("PEEL", "1"))
STOUCH = int(os.environ.get("STOUCH", "0"))
TOUCH = int(os.environ.get("TOUCH", "0"))

def f2u(x): return struct.unpack("<I", struct.pack("<f", x))[0]
def u2f(u): return struct.unpack("<f", struct.pack("<I", u))[0]

WS_EPOCH = 0
WSOFF = int(os.environ.get("WSOFF", "0")) << 20
WS_PT = WSOFF + 4096
WS_DESC = WS_PT + 12544 * 256
WS_FLAG = WS_DESC + 256 * DS
WS_PFLAG = WS_FLAG + 8 * DS
WS_ENT = WS_PFLAG + 8 * DS
WS_SIZE = WS_ENT + 256 * GCS
XT = os.environ.get("XT", "")
if XT: WS_SIZE += 256 * GCS
WS_STAMP = 12 << 20
if DIAG: WS_SIZE = 16 << 20

L_CNT1, L_BASE1 = 0, 1024
L_CNT2, L_FLAG, L_DEG, L_B2 = 2048, 2304, 2368, 2816
L_B1 = 0
L_EXT = 3072
L_TB = 4096
TBW = 8704
L_STG, L_W1S, L_XS = L_TB, L_TB + CHS, L_TB + CHS + 32768
PS = 272
assert L_XS + 8704 <= L_TB + 8 * TBW and L_W1S % 256 == 0
HT, GTH = 60, 72
L_SEL = L_TB + 8 * TBW
SELS, SELSZ = 200, 24576
assert 2 * HT * SELS + 56 <= SELSZ
L_GT = L_SEL + SELSZ
L_QT = L_GT + 2 * GTH * 16
QS = 328
L_PS = L_QT
assert L_PS % 16 == 0
L_W2 = (L_QT + NPB * QS + 255) // 256 * 256
L_LIST = L_W2 + 16384
LS, LCAP = 528, 128
LISTSZ = (NPB + 1) * LS
L_END = L_LIST + LISTSZ
assert L_END <= 163840, L_END
PADENT = 0x00007000
PSH = 3072
WSLOW = 6

out = []
def e(s): out.append("    " + s)
def lab(s): out.append(s + ":")
def c(s): out.append("    ; " + s)
def vr(a, n): return f"v[{a}:{a+n-1}]"
def sr(a, n=4): return f"s[{a}:{a+n-1}]"

SPIN = int(os.environ.get("SPIN", "-1"))
AMP = [int(x) for x in os.environ.get("AMP", "-1,-1,-1").split(",")]
def stamp(i, real=False):
    if AMP[0] >= 0:
        if i == 0: e("s_memrealtime s[96:97]")
        if i == AMP[0]:
            if i: e("s_waitcnt lgkmcnt(0)")
            e("s_memtime s[98:99]")
            if i: e("s_waitcnt lgkmcnt(0)")
        if i == AMP[1]:
            e("s_waitcnt lgkmcnt(0)")
            e("s_memtime s[100:101]")
            e("s_waitcnt lgkmcnt(0)")
    if SPIN == i:
        e("s_waitcnt lgkmcnt(0)")
        e("s_memrealtime s[96:97]")
        e("s_waitcnt lgkmcnt(0)")
    if not DIAG: return
    if DIAG in (2, 4) and i not in (0, 30, 28, 29, 31, 11, 12, 14, 9): return
    if DIAG == 3 and i in (0, 30, 15, 16): return
    e("s_waitcnt lgkmcnt(0)")
    e(f"{'s_memrealtime' if real else 's_memtime'} s[98:99]")
    e("s_waitcnt lgkmcnt(0)")
    e(f"v_writelane_b32 v255, s98, {i}")

lazy = []
def lstamp(i):
    if DIAG != 3: return
    r = 52 + 2 * len(lazy)
    e(f"s_memtime s[{r}:{r+1}]")
    lazy.append((i, r))
def lflush():
    for i, r in lazy: e(f"v_writelane_b32 v255, s{r}, {i}")

def scan64(v):
    for sh in (1, 2, 4, 8):
        e("s_nop 1")
        e(f"v_add_u32_dpp v{v}, v{v}, v{v} row_shr:{sh} row_mask:0xf bank_mask:0xf bound_ctrl:1")
    e("s_nop 1")
    e(f"v_add_u32_dpp v{v}, v{v}, v{v} row_bcast:15 row_mask:0xa bank_mask:0xf")
    e("s_nop 1")
    e(f"v_add_u32_dpp v{v}, v{v}, v{v} row_bcast:31 row_mask:0xc bank_mask:0xf")

H = 176
C = (144, 160)
D = (112, 128)
T = 96
P = 80
SL = 76
BX = (72, 74)
IDX, IDR = 64, 68
NN, DD, RR, AX, CX, V_M = 16, 18, 20, 22, 24, 26
V_CA, V_DMAC, V_LI, V_LM, V_GQA, V_SELA, V_PSEL, V_QMUL, V_QC, V_GQ, V_QA, V_DMAX, V_TID, V_LANE, V_GIA = range(1, 16)
V_GMA, V_LIO, V_LMO = 28, 29, 30
V_SAVE = 240
V_CHK, V_J0, V_W2A = 244, 245, 246
S_X, S_E, S_SRC, S_DST, S_W1, S_B1, S_W2, S_B2, S_OUT, S_WS, S_P = 8, 12, 16, 20, 24, 28, 92, 36, 40, 44, 48
S_MASK = 8
S_SOFF = 52
S_256, S_REM, S_M0, S_WN, S_RB, S_MORE, S_SAFE, S_NT, S_EARLY, S_TAGA, S_TAGB, S_SPIN = 60, 61, (62, 63), 64, 65, 66, 67, 68, 69, 72, 73, 70
S_B, S_W = 3, 4

def mf16(d, a, b, cc): return f"v_mfma_f32_32x32x16_bf16 {vr(d,16)}, {vr(a,4)}, {vr(b,4)}, {cc}"
def mfext(ct): return f"v_mfma_f32_32x32x8_bf16 {vr(D[ct&1],16)}, {vr(AX,2)}, {vr(BX[ct&1],2)}, {vr(C[ct&1],16)}"
def mfsel(ct): return mf16(H + 16 * ct, P + 4 * ct, SL, vr(H + 16 * ct, 16))
def dma(half):
    return [f"buffer_load_dwordx4 v{IDX+j}, {sr(S_P)}, s{S_SOFF+4*half+j} offen offset:{1024*j} lds" for j in range(4)]
def mads(src=IDR): return [f"v_mad_i32_i16 v{IDX+j}, v{src+j}, s{S_256}, v{V_DMAC}" for j in range(4)]
def c_reads(half):
    L = []
    for ctl in range(2):
        for r in range(16):
            mm = r >> 1
            L.append(f"ds_read_u16_d16_hi v{C[ctl]+r}, v{V_CA} offset:{half*4096 + (mm&3)*1024 + (2*(r&1) + (mm>>2))*128 + ctl*64}")
    return L
def tr_read(ct): return f"ds_read_b64_tr_b16 {vr(BX[ct&1],2)}, v{V_QA} offset:{64*ct}"
AXB = f"v_pk_mul_f32 {vr(AX,2)}, {vr(CX,2)}, {vr(V_M,2)} op_sel_hi:[1,0]"
QAB = f"v_mad_u32_u24 v{V_QA}, v{V_GQ}, v{V_QMUL}, v{V_QC}"
PERM = f"v_perm_b32 v{V_M}, v{V_M}, v{V_M}, v{V_PSEL}"

def block(tau, ct, safe, gate=False, last=False):
    cur = D[ct & 1]
    pc, pt = (ct - 1) & 3, (tau if ct > 0 else (tau - 1) & 3)
    tr = [f"v_exp_f32 v{T+i}, v{cur+i}" for i in range(16)] + [f"v_rcp_f32 v{RR}, v{DD}", f"v_rcp_f32 v{RR+1}, v{DD+1}"]
    mf = [] if last else [mfext((ct + 1) & 3)]
    if tau == 0: mf.append(mfsel(ct))
    fill = []
    if ct == 0: fill += [f"v_add_u32 v{V_LI}, v{V_LI}, v{V_LIO}", f"v_add_u32 v{V_LM}, v{V_LM}, v{V_LMO}"]
    if ct == 1: fill += mads() + [PERM]
    if ct == 2:
        fill += [QAB]
        if tau == 3:
            fill += [f"v_add_u32 v{V_GIA}, 256, v{V_GIA}", f"v_add_u32 v{V_GMA}, 256, v{V_GMA}",
                     f"v_add_u32 v{V_GQA}, 256, v{V_GQA}", f"v_add_u32 v{V_SELA}, {16*SELS}, v{V_SELA}"]
    fill.append(f"v_max3_f32 v{V_DMAX}, v{DD}, v{DD+1}, v{V_DMAX}")
    L = []
    k = 0
    if gate:
        L += [tr[0], "s_setprio 3"]; k = 1
    for m in mf:
        L.append(m); L += tr[k:k+4]; k += 4
    L += tr[k:] + fill
    L.append(f"v_pk_mul_f32 {vr(RR,2)}, {vr(NN,2)}, {vr(RR,2)}")
    cvt = f"v_cvt_pk_bf16_f32 v{P+4*pc+pt}, v{RR}, v{RR+1}"
    if not safe:
        L += [f"v_pk_add_f32 {vr(DD,2)}, {vr(T,2)}, 1.0 op_sel_hi:[1,0]", cvt]
        if ct == 2: L.append(AXB)
        for j in range(1, 8):
            n_in = vr(cur, 2) if j == 1 else vr(NN, 2)
            L += [f"v_pk_fma_f32 {vr(NN,2)}, {n_in}, {vr(T+2*j,2)}, {n_in}",
                  f"v_pk_fma_f32 {vr(NN,2)}, {vr(cur+2*j,2)}, {vr(DD,2)}, {vr(NN,2)}",
                  f"v_pk_fma_f32 {vr(DD,2)}, {vr(DD,2)}, {vr(T+2*j,2)}, {vr(DD,2)}"]
    else:
        L += [f"v_pk_add_f32 {vr(T+2*j,2)}, {vr(T+2*j,2)}, 1.0 op_sel_hi:[1,0]" for j in range(8)] + [cvt]
        if ct == 2: L.append(AXB)
        L += [f"v_rcp_f32 v{T+i}, v{T+i}" for i in range(16)]
        L.append(f"v_pk_mul_f32 {vr(NN,2)}, {vr(cur,2)}, {vr(T,2)}")
        L += [f"v_pk_fma_f32 {vr(NN,2)}, {vr(cur+2*j,2)}, {vr(T+2*j,2)}, {vr(NN,2)}" for j in range(1, 8)]
    return L

def memphase(tau, half):
    L = ["s_setprio 0", "s_waitcnt vmcnt(4)"]
    L += c_reads(half) + [tr_read(2 * half), tr_read(2 * half + 1)]
    if half == 0:
        L += [f"ds_read_u16 v{V_LI}, v{V_GIA} offset:{(tau+2)*64}",
              f"ds_read_u16 v{V_LM}, v{V_GMA} offset:{(tau+1)*64}"]
    if half == 1:
        L += [f"ds_read_b128 {vr(IDR,4)}, v{V_LI}",
              f"ds_read_b32 v{V_M}, v{V_LM}",
              f"ds_read_u16 v{V_GQ}, v{V_GQA} offset:{(tau+1)*64+2}"]
        if tau == 1: L.append(f"ds_read_b32 v{SL}, v{V_SELA}")
        if tau >= 1: L.append(f"ds_read_b32 v{SL+tau}, v{V_SELA} offset:{tau*4*SELS}")
    if DIAG == 4 and half == 1: L = ["s_memtime s[98:99]"] + L
    L += [f"s_mov_b32 m0, s{S_M0[half]}", "s_waitcnt lgkmcnt(0)"]
    L += dma(half)
    if DIAG == 4 and half == 1: L += [f"s_add_u32 m0, s{S_REM}, 32", "s_nop 0", "v_writelane_b32 v255, s98, m0"]
    return L

def w2f(ks, mt): return (32 if ks < 4 else 144) + 8 * (ks & 3) + 4 * mt
def w2_reads():
    return [f"ds_read_b64_tr_b16 {vr(w2f(ks,mt)+2*t,2)}, v{27 if mt else V_W2A} offset:{2048*ks+1024*t}"
            for ks in range(8) for mt in range(2) for t in range(2)]

def emit(L):
    L = align(L)
    assert sum(isize(x) for x in L) % 8 == 0
    for s in L: e(s)

def mainloop(safe):
    x = "S" if safe else "F"
    out.append(".p2align 6")
    lab(f"LOOP{x}")
    for tau in range(4):
        c(f"==== tile slot {tau}")
        emit(memphase(tau, 0))
        emit(block((tau - 1) & 3, 3, safe, gate=True))
        if tau == 0 and not PEEL: lab(f"ENTER{x}")
        emit(block(tau, 0, safe))
        if tau == 0 and PEEL: lab(f"ENTER{x}")
        emit(memphase(tau, 1))
        emit(block(tau, 1, safe, gate=True))
        emit(block(tau, 2, safe))
        e(f"s_sub_u32 s{S_REM}, s{S_REM}, 1")
        if tau < 3: e(f"s_cbranch_scc1 TAIL{x}{tau}")
        else: e(f"s_cbranch_scc0 LOOP{x}")
    for tau in (3, 0, 1, 2):
        lab(f"TAIL{x}{tau}")
        emit(["s_setprio 0", f"v_xor_b32 v27, 64, v{V_W2A}"] + w2_reads())
        emit(block(tau, 3, safe, gate=True, last=True))
        if tau == 0: e(f"ds_read_b32 v{SL}, v{V_SELA}")
        e(f"v_rcp_f32 v{RR}, v{DD}")
        e(f"v_rcp_f32 v{RR+1}, v{DD+1}")
        e(f"v_max3_f32 v{V_DMAX}, v{DD}, v{DD+1}, v{V_DMAX}")
        e(f"v_pk_mul_f32 {vr(RR,2)}, {vr(NN,2)}, {vr(RR,2)}")
        for t2 in range(tau + 1, 4): e(f"v_mov_b32_e64 v{SL+t2}, 0")
        e(f"v_cvt_pk_bf16_f32 v{P+12+tau}, v{RR}, v{RR+1}")
        e("s_nop 0")
        e("s_branch DRAIN")

def find_cx(target):
    m = np.float64(u2f(0x00FF0000))
    g = f2u(float(np.float32(np.float64(u2f(target)) / m)))
    for d in range(-3, 4):
        if f2u(float(np.float32(np.float64(u2f(g + d)) * m))) == target: return g + d
    raise SystemExit("no cx")

V_GV, V_GB, V_SB, V_L0, V_COL = 247, 248, 249, 250, 251

def fill_list(t):
    e(f"v_lshlrev_b32 v{t+8}, 4, v{V_TID}")
    e(f"v_add_u32 v{t+9}, {L_LIST}, v{t+8}")
    for i in range(4): e(f"v_mov_b32 v{t+i}, {hex(PADENT)}")
    for o in (0, 8192, 16384, LISTSZ - 8192): e(f"ds_write_b128 v{t+9}, {vr(t,4)} offset:{o}")

def init_tables(t):
    fill_list(t)
    for i in range(4): e(f"v_mov_b32 v{t+4+i}, 0")
    e(f"v_add_u32 v{t+8}, {L_SEL}, v{t+8}")
    for o in (0, 8192, 16384): e(f"ds_write_b128 v{t+8}, {vr(t+4,4)} offset:{o}")
    e(f"v_min_u32 v{t+8}, {GTH*4-1}, v{V_TID}")
    e(f"v_lshlrev_b32 v{t+8}, 3, v{t+8}")
    e(f"v_add_u32 v{t+8}, {L_GT}, v{t+8}")
    e(f"v_mov_b32 v{t+10}, {NPB*LS}")
    e(f"v_mov_b32 v{t+11}, {NPB*LS}")
    e(f"ds_write_b64 v{t+8}, {vr(t+10,2)}")

def static_writes(t, tag):
    e(f"s_cmp_eq_u32 s{S_W}, 1")
    e(f"s_cbranch_scc0 STW{tag}")
    e(f"v_lshlrev_b32 v{t}, 2, v{V_LANE}")
    e(f"v_mov_b32 v{t+1}, 0")
    e(f"ds_write_b32 v{t}, v{V_L0} offset:{L_CNT2}")
    e(f"ds_write_b32 v{t+1}, v{t+1} offset:{L_FLAG}")
    e(f"v_lshl_add_u32 v{t}, v{V_COL}, 2, v{V_GB}")
    e(f"v_lshrrev_b32 v{t+1}, 1, v{V_COL}")
    e(f"v_mul_u32_u24 v{t+1}, {SELS//2}, v{t+1}")
    e(f"v_and_b32 v{t+2}, 1, v{V_COL}")
    e(f"v_lshl_add_u32 v{t+1}, v{t+2}, 1, v{t+1}")
    e(f"v_add_u32 v{t+1}, v{t+1}, v{V_SB}")
    e(f"v_mov_b32 v{t+2}, 0x3f80")
    e(f"s_bfm_b64 exec, {NPB}, 0")
    e(f"ds_write_b32 v{t}, v{V_GV}")
    e(f"ds_write_b16 v{t+1}, v{t+2}")
    e("s_mov_b64 exec, -1")
    lab(f"STW{tag}")

def desc_soff():
    e(f"s_lshr_b32 s5, s{S_B}, 2")
    e(f"s_and_b32 s7, s{S_B}, 1")
    e("s_lshl1_add_u32 s5, s5, s7")
    e(f"s_and_b32 s7, s{S_B}, 2")
    e("s_lshl_b32 s7, s7, 6")
    e("s_add_u32 s5, s5, s7")
    e(f"s_lshl3_add_u32 s5, s5, {WS_DESC}")

def flag_load(first=False):
    if first:
        e(f"v_and_b32 v62, -8, v{V_CHK}")
        e("s_and_b32 s84, s2, 7")
        e(f"s_mul_i32 s84, s84, {DS}")
        e(f"s_lshl_b32 s83, s{S_W}, 8")
        e("s_add_u32 s84, s84, s83")
        e(f"s_add_u32 s84, s84, {WS_FLAG}")
    e(f"buffer_load_dwordx2 v[60:61], v62, {sr(S_WS)}, s84 offen sc1")

def wave_reset():
    e(f"v_mov_b32 v{V_GIA}, v{V_SAVE}")
    e(f"v_mov_b32 v{V_GMA}, v{V_SAVE+1}")
    e(f"v_mov_b32 v{V_GQA}, v{V_SAVE+2}")
    e(f"v_mov_b32 v{V_SELA}, v{V_SAVE+3}")
    e(f"ds_read_u16 v{V_LI}, v{V_GIA}")
    e(f"ds_read_u16 v{V_LM}, v{V_GMA}")
    e(f"ds_read_u16 v{V_GQ}, v{V_GQA} offset:2")
    for i in range(2):
        e(f"v_mov_b32 v{NN+i}, 0")
        e(f"v_mov_b32 v{DD+i}, 1.0")
    e(f"v_mov_b32 v{V_DMAX}, 0")
    for r in list(range(SL, SL + 20, 2)) + list(range(C[0], C[0] + 32, 2)):
        e(f"v_pk_mul_f32 {vr(r,2)}, {vr(NN,2)}, {vr(NN,2)}")
    e("s_waitcnt lgkmcnt(0)")
    e(f"v_add_u32 v{V_LI}, v{V_LI}, v{V_LIO}")
    e(f"v_add_u32 v{V_LM}, v{V_LM}, v{V_LMO}")
    e(QAB)

def first_tile(mid=None):
    e(f"ds_read_b128 {vr(IDX,4)}, v{V_LI}")
    e(f"ds_read_b32 v{V_M}, v{V_LM}")
    n = 1
    if mid: n += mid()
    e(f"s_mov_b32 m0, s{S_M0[0]}")
    e(f"s_waitcnt lgkmcnt({n})")
    for s in mads(IDX): e(s)
    for s in dma(0): e(s)

def kernel():
    lab(KN)
    e("s_cmpk_ge_u32 s2, 256")
    e("s_cbranch_scc1 K_END")
    if DIAG: e("v_mov_b32 v255, 0")
    stamp(30, True); stamp(0); lstamp(0)
    for s, off in ((S_DST, 24), (S_X, 0), (S_W1, 32), (S_WS, 80), (S_SRC, 16), (S_E, 8)):
        e(f"s_load_dwordx2 {sr(s,2)}, s[0:1], {off}")
    if CPF == 1:
        e("s_getpc_b64 s[90:91]")
        lab("CPF_PC")
        e("s_and_b32 s5, s2, -8")
        e("v_subrev_u32 v18, 504, v0")
        e("v_add_lshl_u32 v16, v18, s5, 7")
        e("v_add_u32 v16, 2048, v16")
        e("v_min_u32 v16, CODE_REST, v16")
        e("v_mov_b32 v17, s91")
        e("v_add_co_u32 v16, vcc, s90, v16")
        e("v_cmp_gt_u32 s[76:77], 8, v18")
        e("s_nop 0")
        e("v_addc_co_u32 v17, vcc, 0, v17, vcc")
        e("s_mov_b64 exec, s[76:77]")
        e("s_cbranch_execz CPF_E")
        e("global_load_dword v18, v[16:17], off")
        lab("CPF_E")
        e("s_mov_b64 exec, -1")
    e(f"v_readfirstlane_b32 s{S_W}, v0")
    e(f"v_and_b32 v{V_LANE}, 63, v0")
    e("v_mov_b32 v88, 0")
    e("v_mov_b32 v89, 0")
    e("v_lshlrev_b32 v92, 3, v0")
    e("ds_write_b64 v92, v[88:89]")
    e(f"s_mov_b32 s{S_DST+3}, 0x00020000")
    e(f"s_mov_b32 s{S_DST+2}, {E*4}")
    e(f"s_mov_b32 s{S_X+2}, {N*128}")
    e(f"s_mov_b32 s{S_X+3}, s{S_DST+3}")
    e(f"s_mov_b32 s{S_W1+2}, {129*256}")
    e(f"s_mov_b32 s{S_W1+3}, s{S_DST+3}")
    e(f"s_lshr_b32 s{S_W}, s{S_W}, 6")
    e(f"s_and_b32 s{S_B}, s2, 7")
    e(f"s_lshl_b32 s{S_B}, s{S_B}, 5")
    e("s_lshr_b32 s5, s2, 3")
    e(f"s_add_u32 s{S_B}, s{S_B}, s5")
    e(f"s_mul_i32 s5, s2, {CH*4}")
    e("v_lshl_add_u32 v32, v0, 4, s5")
    e("s_cmpk_eq_u32 s2, 255")
    e(f"s_movk_i32 s6, {NQ-512}")
    e(f"s_cmovk_i32 s6, {NQL-512}")
    e("v_cmp_gt_u32 s[74:75], s6, v0")
    e(f"v_lshrrev_b32 v37, 4, v{V_LANE}")
    e(f"v_lshrrev_b32 v47, 3, v{V_LANE}")
    e(f"v_and_b32 v48, 7, v{V_LANE}")
    e("v_and_b32 v45, 1, v37")
    e("v_and_b32 v58, 4, v47")
    e("v_and_b32 v59, 1, v47")
    e("v_lshl_add_u32 v58, v59, 1, v58")
    e("v_add_u32 v58, v58, v45")
    e("v_xor_b32 v59, v48, v37")
    e("v_lshlrev_b32 v59, 4, v59")
    e("v_lshl_add_u32 v58, v58, 15, v59")
    e(f"s_lshl_b32 s85, s{S_W}, 11")
    e(f"s_add_u32 s5, s85, s{S_B}")
    e("s_lshl_b32 s5, s5, 7")
    e("v_add_u32 v58, s5, v58")
    e("v_lshlrev_b32 v31, 2, v37")
    e(f"v_xor_b32 v31, v31, v{V_LANE}")
    e("v_lshlrev_b32 v31, 4, v31")
    e(f"s_mul_i32 s84, s{S_W}, 1088")
    e(f"s_add_u32 m0, s84, {L_XS}")
    e("s_movk_i32 s86, 8192")
    lstamp(21)
    e("s_waitcnt lgkmcnt(0)")
    lstamp(22)
    e(f"buffer_load_dwordx4 v[64:67], v32, {sr(S_DST)}, 0 offen {LDF}")
    e("s_mov_b64 exec, s[74:75]")
    e("s_cbranch_execz P0_ND")
    e(f"buffer_load_dwordx4 v[68:71], v32, {sr(S_DST)}, s86 offen {LDF}")
    lab("P0_ND")
    e("s_mov_b64 exec, -1")
    e("s_barrier")
    e(f"buffer_load_dwordx4 v58, {sr(S_X)}, 0 offen lds")
    e(f"s_add_u32 m0, s85, {L_W1S}")
    e(f"s_load_dwordx2 s[78:79], {sr(S_WS,2)}, {WS_EPOCH}")
    for k in range(2): e(f"buffer_load_dwordx4 v31, {sr(S_W1)}, s85 offen offset:{1024*k} lds")
    if MODE:
        e(f"s_lshl3_add_u32 s96, s{S_B}, {WS_FLAG}")
        e(f"s_load_dwordx2 s[100:101], {sr(S_WS,2)}, s96")
    if AMPM:
        e(f"s_lshl3_add_u32 s5, s{S_B}, {WS_FLAG}")
        e(f"s_load_dwordx2 s[90:91], {sr(S_WS,2)}, s5")
    lab("P0_ISS")
    stamp(15); lstamp(15)
    for s, off in ((S_B1, 40), (S_W2, 48), (S_B2, 56), (S_OUT, 64)):
        e(f"s_load_dwordx2 {sr(s,2)}, s[0:1], {off}")
    e(f"v_mov_b32 v{V_TID}, v0")
    for s, sz in ((S_SRC, E*4), (S_E, E*2), (S_B1, 256), (S_W2, 16384), (S_B2, 128), (S_WS, WS_SIZE), (S_OUT, N*128), (S_P, 256*NPB*256 + PSH)):
        e(f"s_mov_b32 s{s+2}, {sz}")
        e(f"s_mov_b32 s{s+3}, s{S_DST+3}")
    e(f"s_mov_b32 s80, {hex(f2u(-LOG2E))}")
    e("s_mov_b32 s81, s80")
    e(f"v_lshrrev_b32 v38, 5, v{V_LANE}")
    e(f"v_and_b32 v39, 31, v{V_LANE}")
    e("v_bfe_u32 v40, v39, 2, 1")
    e("v_and_b32 v41, 1, v39")
    e("v_lshl_add_u32 v40, v40, 1, v41")
    e("v_lshrrev_b32 v42, 3, v39")
    e("v_bfe_u32 v43, v39, 1, 1")
    e(f"v_bfe_u32 v44, v{V_LANE}, 2, 2")
    e(f"v_and_b32 v46, 3, v{V_LANE}")
    e("v_lshlrev_b32 v46, 3, v46")
    e("v_lshl_add_u32 v46, v45, 5, v46")
    e(f"s_and_b32 s82, s{S_W}, 3")
    e(f"s_lshr_b32 s83, s{S_W}, 2")
    e("v_xor_b32 v50, s82, v44")
    e("v_lshl_add_u32 v50, v50, 6, v46")
    e("v_lshl_add_u32 v51, v38, 3, v44")
    e("v_lshl_add_u32 v50, v51, 8, v50")
    e("v_lshl_add_u32 v51, v40, 1, v43")
    e("v_mul_u32_u24 v52, 1088, v42")
    e("v_lshl_add_u32 v52, v51, 7, v52")
    e("s_mul_i32 s5, s83, 4352")
    e(f"s_add_u32 s5, s5, {L_XS}")
    e("v_add_u32 v52, s5, v52")
    e("v_xor_b32 v53, v38, v40")
    e("v_lshl_add_u32 v51, v53, 4, v52")
    e("v_xor_b32 v53, 2, v53")
    e("v_lshl_add_u32 v52, v53, 4, v52")
    e("s_lshl_b32 s5, s83, 5")
    e("v_add_u32 v55, s5, v39")
    e(f"v_cmp_gt_u32 s[88:89], {NPB}, v55")
    e("s_lshl_b32 s82, s82, 6")
    e("v_lshl_add_u32 v49, v38, 3, s82")
    e(f"v_add_u32 v56, {L_QT}, v49")
    e(f"v_mul_u32_u24 v53, {PS}, v55")
    e("v_add_u32 v53, v53, v56")
    e(f"v_mul_u32_u24 v54, {QS}, v55")
    e("v_add_u32 v54, v54, v56")
    assert PS == 272
    e(f"s_mov_b32 s7, {L_PS}")
    e("v_lshlrev_b32 v61, 4, v0")
    e("v_and_b32 v56, -16, v0")
    e("v_add3_u32 v62, v61, v56, s7")
    e(f"s_min_u32 s5, s{S_W}, 2")
    e(f"s_lshl2_add_u32 s5, s{S_W}, s5")
    e("s_add_u32 s5, s5, 64")
    e("s_lshl_b32 s5, s5, 3")
    e(f"v_add_u32 v55, s5, v{V_LANE}")
    e("v_lshlrev_b32 v63, 4, v55")
    e("v_and_b32 v56, -16, v55")
    e("v_add3_u32 v22, v63, v56, s7")
    e(f"s_cmp_lt_u32 s{S_W}, 2")
    e("s_cselect_b32 s71, 40, 32")
    lstamp(23)
    if not LATEI: init_tables(84)
    e(f"s_mul_i32 s6, s{S_B}, {NPB*256}")
    e(f"s_add_u32 s6, s6, {WS_PT}")
    e(f"s_mov_b32 s87, {128*256}")
    e("v_mov_b32 v55, 1")
    e(f"v_lshlrev_b32 v36, 2, v{V_LANE}")
    e("v_lshrrev_b32 v34, 1, v32")
    e("s_movk_i32 s84, 4096")
    stamp(16); lstamp(16)
    SD = "dst_sel:DWORD dst_unused:UNUSED_PAD src0_sel:DWORD"
    def binA(j):
        e(f"v_lshlrev_b32_sdwa v{112+j}, 2, v{64+j} {SD} src1_sel:BYTE_0")
        e(f"ds_add_rtn_u32 v{120+j}, v{112+j}, v55 offset:{L_CNT1}")
    def binB(j):
        e(f"v_lshlrev_b32_sdwa v{129+2*j}, 2, v{64+j} {SD} src1_sel:BYTE_1")
        if j % 2 == 0: e(f"v_lshlrev_b32 v56, 16, v{80+j//2}")
        else: e(f"v_and_b32 v56, 0xffff0000, v{80+j//2}")
        e(f"v_mul_u32_u24_sdwa v57, {NPB}, v{72+j} {SD} src1_sel:BYTE_0")
        e(f"v_add_u32_sdwa v57, v57, v{72+j} {SD} src1_sel:BYTE_1")
        e(f"v_or3_b32 v{128+2*j}, v56, v57, s87")
    def masked(tag, f):
        e("s_mov_b64 exec, s[74:75]")
        e(f"s_cbranch_execz {tag}")
        f()
        lab(tag)
        e("s_mov_b64 exec, -1")
    assert 128 * 256 == 0x8000
    e(f"v_lshlrev_b32 v58, 4, v{V_LANE}")
    e(f"v_lshlrev_b32 v23, 1, v{V_LANE}")
    e("s_waitcnt vmcnt(3)")
    stamp(3)
    def ldA():
        e(f"buffer_load_dwordx4 v[72:75], v32, {sr(S_SRC)}, 0 offen {LDF}")
        e(f"buffer_load_dwordx2 v[80:81], v34, {sr(S_E)}, 0 offen {LDF}")
    def ldB():
        e(f"buffer_load_dwordx4 v[76:79], v32, {sr(S_SRC)}, s86 offen {LDF}")
        e(f"buffer_load_dwordx2 v[82:83], v34, {sr(S_E)}, s84 offen {LDF}")
    if ORD == 1: ldA()
    for j in range(4): binA(j)
    if ORD == 2: ldA()
    e("s_mov_b64 exec, s[74:75]")
    e("s_cbranch_execz P1_A")
    if ORD == 1: ldB()
    for j in range(4, 8): binA(j)
    if ORD == 2: ldB()
    e("s_mov_b64 exec, -1")
    e("s_waitcnt vmcnt(4)")
    e("s_branch P1_A2")
    lab("P1_A")
    e("s_mov_b64 exec, -1")
    e("s_waitcnt vmcnt(2)")
    lab("P1_A2")
    e("s_add_u32 s86, s85, 16384")
    e(f"s_add_u32 m0, s86, {L_W1S}")
    e(f"s_cmp_eq_u32 s{S_W}, 7")
    e("s_waitcnt lgkmcnt(0)")
    e("s_barrier")
    stamp(4); lflush()
    if os.environ.get("PRES"):
        e(f"s_mov_b32 s90, {eval(os.environ.get('PRESA', 'WS_FLAG + 8 * 200'))}")
        e(f"s_load_dwordx2 s[98:99], {sr(S_WS,2)}, s90")
        e("s_waitcnt lgkmcnt(0)")
        mode = os.environ["PRES"]
        if mode == "1":
            e("s_xor_b32 s98, s98, s79")
            e("s_xor_b32 s99, s99, s78")
            e("s_or_b32 s98, s98, s99")
        elif mode == "3":
            e("s_xor_b32 s98, s98, s79")
            e("s_xor_b32 s99, s99, s78")
            e("s_or_b32 s98, s98, s99")
            e("s_cmp_eq_u32 s78, s79")
            e("s_cselect_b32 s98, 1, s98")
        elif mode == "4":
            e("s_xor_b32 s98, s98, s79")
            e("s_xor_b32 s99, s99, s78")
            e("s_or_b32 s98, s98, s99")
            e("s_cmp_eq_u32 s98, 0")
            e("s_cselect_b32 s98, 1, 0")
        elif mode == "2":
            e("s_xor_b32 s98, s78, s79")
        e("s_cmp_eq_u32 s98, 0")
        e("s_cselect_b32 s100, 10000, 0")
        e("s_mov_b32 s98, 0")
        e(f"s_cmp_eq_u32 s{S_W}, 7")
    if XT:
        reg, n, fl = XT.split(",")
        base, stride = {"fresh": (WS_SIZE - 256 * GCS, GCS), "pt": (WS_PT, NPB * 256), "ent": (WS_ENT, GCS), "ptf": (WS_SIZE - 256 * GCS, NPB * 256), "wpt": (WS_PT, NPB * 256), "wptf": (WS_SIZE - 256 * GCS, NPB * 256)}[reg]
        e("s_waitcnt vmcnt(0)")
        e("s_barrier")
        stamp(40)
        e(f"s_mul_i32 s90, s{S_B if reg[:2] == 'pt' else 2}, {stride}")
        e(f"s_add_u32 s90, s90, {base}")
        for k in range(int(n)):
            e(f"buffer_store_dwordx4 v[64:67], v61, {sr(S_WS)}, s90 offen {fl}")
            e("s_add_u32 s90, s90, 8192")
        e("s_waitcnt vmcnt(0)")
        e("s_barrier")
        stamp(41)
        e(f"s_cmp_eq_u32 s{S_W}, 7")
    def tags():
        e(f"s_mul_i32 s{S_TAGB}, s78, 1664525")
        e(f"s_add_u32 s{S_TAGB}, s{S_TAGB}, 1013904223")
        e(f"s_add_u32 s{S_TAGA}, s79, 0x01000000")
        e(f"s_and_b32 s{S_TAGA}, s{S_TAGA}, 0xff000000")
    def p_reads():
        for ks in range(4):
            e(f"ds_read_b64_tr_b16 {vr(88+4*ks,2)}, v50 offset:{L_W1S+4096*ks}")
            e(f"ds_read_b64_tr_b16 {vr(90+4*ks,2)}, v50 offset:{L_W1S+4096*ks+1024}")
            e(f"ds_read_b128 {vr(160+4*ks,4)}, v{51+(ks&1)} offset:{64*(ks>>1)}")
    def p_mfma(counted=False):
        for ks in range(4):
            if counted: e(f"s_waitcnt lgkmcnt({9-3*ks})")
            e(mf16(144, 88 + 4*ks, 160 + 4*ks, "0" if ks == 0 else vr(144, 16)))
    def p_fin():
        for i in range(8): e(f"v_pk_mul_f32 {vr(144+2*i,2)}, {vr(144+2*i,2)}, s[80:81]")
        for i in range(8): e(f"v_cvt_pk_bf16_f32 v{88+i}, v{144+2*i}, v{145+2*i}")
        e("s_mov_b64 exec, s[88:89]")
        for q in range(4): e(f"ds_write_b64 v53, {vr(88+2*q,2)} offset:{16*q}")
        e("s_mov_b64 exec, -1")
    def late():
        for k in range(2): e(f"buffer_load_dwordx4 v31, {sr(S_W1)}, s86 offen offset:{1024*k} lds")
    e("s_cbranch_scc1 P1_SCAN")
    p_reads()
    p_mfma(True)
    tags()
    e(f"s_cmp_eq_u32 s{S_W}, 6")
    e("s_cbranch_scc0 P1_H6")
    e(f"buffer_load_dword v20, v36, {sr(S_W1)}, s87 offen")
    e(f"buffer_load_ushort v21, v23, {sr(S_B2)}, 0 offen")
    e(f"buffer_load_dword v19, v36, {sr(S_B1)}, 0 offen")
    lab("P1_H6")
    e("s_nop 3")
    e("s_branch P1_HJ")
    lab("P1_SCAN")
    e("s_setprio 3")
    e(f"ds_read_b128 v[136:139], v58 offset:{L_CNT1}")
    p_reads()
    tags()
    e(f"s_mul_i32 s7, s2, {DS}")
    e(f"s_add_u32 s7, s7, {WS_DESC}")
    e("s_waitcnt lgkmcnt(0)")
    p_mfma()
    e("v_add_u32 v57, v136, v137")
    e("v_add_u32 v56, v57, v138")
    e("v_add_u32 v59, v56, v139")
    e("v_mov_b32 v60, v59")
    scan64(59)
    e("v_sub_u32 v140, v59, v60")
    e("v_add_u32 v141, v140, v136")
    e("v_add_u32 v142, v140, v57")
    e("v_add_u32 v143, v140, v56")
    e(f"ds_write_b128 v58, v[140:143] offset:{L_BASE1}")
    lab("P1_HJ")
    late()
    p_fin()
    e("s_waitcnt lgkmcnt(0)")
    e("s_barrier")
    e("s_setprio 0")
    stamp(5)
    e("ds_read_b128 v[104:107], v62")
    e("ds_read_b128 v[108:111], v22")
    for j in range(4): e(f"ds_read_b32 v{112+j}, v{112+j} offset:{L_BASE1}")
    e("s_waitcnt lgkmcnt(4)")
    e(f"buffer_store_dwordx4 v[104:107], v61, {sr(S_WS)}, s6 offen {PSF}")
    e("s_bfm_b64 exec, s71, 0")
    e(f"buffer_store_dwordx4 v[108:111], v63, {sr(S_WS)}, s6 offen {PSF}")
    def w(j):
        e(f"v_add_lshl_u32 v{112+j}, v{112+j}, v{120+j}, 3")
        e(f"ds_write_b64 v{112+j}, {vr(128+2*j,2)} offset:{L_STG}")
    def partA():
        for j in range(4): binB(j)
        e("s_waitcnt lgkmcnt(0)")
        for j in range(4): w(j)
    e("s_mov_b64 exec, s[74:75]")
    e("s_cbranch_execz P1_S1")
    for j in range(4, 8): e(f"ds_read_b32 v{112+j}, v{112+j} offset:{L_BASE1}")
    e("s_mov_b64 exec, -1")
    e("s_waitcnt vmcnt(6)")
    partA()
    e("s_mov_b64 exec, s[74:75]")
    e("s_waitcnt vmcnt(4)")
    for j in range(4, 8): binB(j)
    for j in range(4, 8): w(j)
    e("s_mov_b64 exec, -1")
    e("s_branch P1_JOIN")
    lab("P1_S1")
    e("s_mov_b64 exec, -1")
    e(f"s_cmp_eq_u32 s{S_W}, 7")
    e("s_cbranch_scc0 P1_S2")
    for j in range(4):
        e(f"v_lshl_or_b32 v{96+2*j}, v{136+j}, 12, v{140+j}")
        e(f"v_or_b32 v{96+2*j}, s{S_TAGA}, v{96+2*j}")
        e(f"v_mov_b32 v{97+2*j}, s{S_TAGB}")
    e(f"buffer_store_dwordx4 v[96:99], v58, {sr(S_WS)}, s7 offen sc1")
    e(f"buffer_store_dwordx4 v[100:103], v58, {sr(S_WS)}, s7 offen offset:1024 sc1")
    lab("P1_S2")
    e(f"s_cmp_ge_u32 s{S_W}, 6")
    e("s_waitcnt vmcnt(6)")
    e("s_cbranch_scc1 P1_S3")
    e("s_waitcnt vmcnt(4)")
    lab("P1_S3")
    partA()
    lab("P1_JOIN")
    e(f"s_mul_i32 s5, s2, {GCS}")
    e(f"s_add_u32 s5, s5, {WS_ENT}")
    e("s_waitcnt lgkmcnt(0)")
    e("s_barrier")
    stamp(6)
    for k in range(3): e(f"ds_read_b128 {vr(64+4*k,4)}, v61 offset:{L_STG+8192*k}")
    e(f"s_cmp_eq_u32 s{S_W}, 7")
    e("s_cbranch_scc0 P1_C")
    e(f"ds_read_b128 v[76:79], v58 offset:{L_STG+24576}")
    e("s_add_u32 s7, s5, 24576")
    e("s_bfm_b64 exec, 32, 0")
    e("s_waitcnt lgkmcnt(0)")
    e(f"buffer_store_dwordx4 v[76:79], v58, {sr(S_WS)}, s7 offen {STF}")
    e("s_mov_b64 exec, -1")
    lab("P1_C")
    for k in range(3):
        e(f"s_waitcnt lgkmcnt({2-k})")
        e(f"buffer_store_dwordx4 {vr(64+4*k,4)}, v61, {sr(S_WS)}, s5 offen {STF}")
        if k < 2: e("s_add_u32 s5, s5, 8192")
    def loop_consts():
        e("v_lshlrev_b32 v58, 1, v39")
        e("v_lshl_add_u32 v58, v38, 9, v58")
        e(f"v_add_u32 v{V_CA}, s{S_M0[0]}, v58")
        e("v_lshlrev_b32 v58, 4, v48")
        e(f"v_add_u32 v{V_DMAC}, 0x800000, v58")
        e("v_and_b32 v58, 1, v47")
        e("v_lshlrev_b32 v58, 4, v58")
        e(f"v_add_u32 v{V_LIO}, {L_LIST}, v58")
        e("v_lshl_add_u32 v58, v42, 1, v43")
        e("v_lshlrev_b32 v58, 2, v58")
        e(f"v_add_u32 v{V_LMO}, {L_LIST}, v58")
        e(f"s_sub_u32 s76, {GTH+7}, s{S_W}")
        e(f"s_sub_u32 s77, {HT+7}, s{S_W}")
        e(f"s_cmp_lt_u32 s{S_W}, 4")
        e(f"s_cselect_b32 s76, s{S_W}, s76")
        e(f"s_cselect_b32 s77, s{S_W}, s77")
        e("s_lshl_b32 s76, s76, 4")
        e(f"s_add_u32 s76, s76, {L_GT}")
        e(f"s_mul_i32 s77, s77, {SELS}")
        e(f"s_add_u32 s77, s77, {L_SEL}")
        e(f"v_lshl_add_u32 v{V_SAVE}, v37, 2, s76")
        e(f"v_lshl_add_u32 v{V_SAVE+1}, v40, 2, s76")
        e(f"v_lshl_add_u32 v{V_SAVE+2}, v44, 2, s76")
        e(f"v_mul_u32_u24 v58, {SELS//2}, v38")
        e("v_lshl_add_u32 v58, v39, 2, v58")
        e(f"v_add_u32 v{V_SAVE+3}, s77, v58")
        e("v_cmp_eq_u32 vcc, 0, v38")
        e("v_mov_b32 v59, 0x03020100")
        e("v_mov_b32 v58, 0x0c080c0c")
        e(f"v_cndmask_b32 v{V_PSEL}, v59, v58, vcc")
        e(f"v_cndmask_b32 v{V_QMUL}, 0, 1, vcc")
        e("v_add_u32 v58, 1, v44")
        e("v_lshrrev_b32 v58, 1, v58")
        e("v_and_b32 v59, 1, v44")
        e("v_mul_u32_u24 v58, v58, v59")
        e("v_mul_u32_u24 v58, 320, v58")
        e(f"v_add_u32 v58, {L_EXT}, v58")
        e(f"v_mov_b32 v59, {L_QT}")
        e("v_cndmask_b32 v58, v58, v59, vcc")
        e(f"v_add_u32 v{V_QC}, v46, v58")
        e(f"v_mov_b32 v58, {hex(find_cx(0x00803F80))}")
        e(f"v_mov_b32 v59, {hex(find_cx(0x3F800000))}")
        e("v_cmp_eq_u32 s[6:7], 1, v41")
        e("v_cmp_gt_u32 s[76:77], 2, v40")
        e("s_nop 0")
        e("v_cndmask_b32 v58, v58, v59, s[6:7]")
        e("v_cndmask_b32 v59, 0, v58, s[76:77]")
        e("v_cndmask_b32 v58, v58, 0, s[76:77]")
        e(f"v_cndmask_b32 v{CX}, 1.0, v59, vcc")
        e(f"v_cndmask_b32 v{CX+1}, 1.0, v58, vcc")
        e("v_lshl_add_u32 v58, v38, 2, v44")
        e("v_lshl_add_u32 v58, v58, 7, v46")
        e("v_lshrrev_b32 v59, 1, v44")
        e("v_lshl_add_u32 v58, v59, 6, v58")
        e(f"v_add_u32 v{V_W2A}, {L_W2}, v58")
    if PFL == 1:
        e(f"s_lshl_b32 s5, s{S_W}, 5")
        e("s_lshr_b32 s6, s2, 3")
        e("s_add_u32 s90, s5, s6")
        e("s_and_b32 s6, s2, 7")
        e(f"s_mul_i32 s6, s6, {DS}")
        e("s_lshl_b32 s5, s90, 3")
        e("s_add_u32 s5, s5, s6")
        e(f"s_add_u32 s91, s5, {WS_PFLAG}")
    if LATEI: init_tables(120)
    e("v_lshlrev_b32 v31, 2, v45")
    e(f"v_xor_b32 v31, v31, v{V_LANE}")
    e("v_lshlrev_b32 v31, 4, v31")
    e(f"s_mov_b32 s{S_EARLY}, 2")
    e(f"s_cmp_eq_u32 s{S_W}, 6")
    e("s_cbranch_scc0 P0_NOEXT")
    e("s_waitcnt vmcnt(5)")
    e("v_lshlrev_b32 v118, 16, v19")
    e("v_and_b32 v119, 0xffff0000, v19")
    e("v_lshlrev_b32 v117, 1, v36")
    e(f"ds_write_b64 v117, v[118:119] offset:{L_B1}")
    e("v_lshlrev_b32 v112, 16, v20")
    e("v_and_b32 v113, 0xffff0000, v20")
    e("v_mul_f32 v112, s80, v112")
    e("v_mul_f32 v113, s80, v113")
    e("v_cvt_pk_bf16_f32 v114, v112, v113")
    e("v_lshlrev_b32 v115, 16, v114")
    e("v_and_b32 v116, 0xffff0000, v114")
    e("v_sub_f32 v115, v112, v115")
    e("v_sub_f32 v116, v113, v116")
    e("v_cvt_pk_bf16_f32 v115, v115, v116")
    e("v_lshlrev_b32 v116, 16, v21")
    e(f"ds_write_b32 v36, v114 offset:{L_EXT+320}")
    e(f"ds_write_b32 v36, v115 offset:{L_EXT+640}")
    e(f"ds_write_b32 v36, v116 offset:{L_B2}")
    lab("P0_NOEXT")
    e(f"s_add_u32 s{S_P}, s{S_WS}, {WS_PT - PSH}")
    e(f"s_addc_u32 s{S_P+1}, s{S_WS+1}, 0")
    e(f"v_mov_b32 v252, s{S_TAGA}")
    e(f"v_mov_b32 v253, s{S_TAGB}")
    e(f"v_mul_u32_u24 v254, {DS}, v{V_LANE}")
    e("v_lshlrev_b32 v49, 1, v49")
    for j in range(8): e(f"s_movk_i32 s{S_SOFF+j}, {PSH - 1024*(j&3) + 128*(j>>2)}")
    e(f"s_movk_i32 s{S_256}, 256")
    e(f"s_mul_i32 s{S_M0[0]}, s{S_W}, {TBW}")
    e(f"s_add_u32 s{S_M0[0]}, s{S_M0[0]}, {L_TB}")
    e(f"s_add_u32 s{S_M0[1]}, s{S_M0[0]}, 4096")
    e(f"s_mov_b32 s{S_WN}, 32")
    e(f"s_mov_b32 s{S_RB}, 0")
    e(f"s_mov_b32 s{S_SAFE}, 0")
    e(f"s_mov_b32 s{S_SPIN}, 0x40000")
    e(f"v_cmp_le_u32 vcc, {SPLIT}, v{V_LANE}")
    e(f"v_mul_u32_u24 v56, {LS}, v{V_LANE}")
    e(f"v_mul_u32_u24 v57, {QS}, v{V_LANE}")
    e(f"v_add_u32 v{V_L0}, {L_LIST}, v56")
    e(f"v_lshl_or_b32 v{V_GV}, v57, 16, v56")
    e("v_cndmask_b32 v56, 0, 1, vcc")
    e(f"v_mul_u32_u24 v57, {SPLIT}, v56")
    e(f"v_sub_u32 v{V_COL}, v{V_LANE}, v57")
    e(f"v_mul_u32_u24 v57, {GTH*16}, v56")
    e(f"v_add_u32 v{V_GB}, {L_GT}, v57")
    e(f"v_mul_u32_u24 v57, {HT*SELS}, v56")
    e(f"v_lshl_add_u32 v57, v{V_COL}, 2, v57")
    e(f"v_add_u32 v{V_SB}, {L_SEL}, v57")
    if PFL == 1:
        e(f"s_load_dwordx2 s[92:93], {sr(S_WS,2)}, s91 glc")
    if not CL: loop_consts()
    if LATEI:
        e("s_waitcnt lgkmcnt(0)")
        e("s_barrier")
    static_writes(56, "A")
    e("v_lshl_add_u32 v56, v37, 3, v48")
    e(f"v_lshl_add_u32 v{V_CHK}, v56, 3, s{S_W}")
    e(f"v_and_b32 v{V_J0}, 15, v{V_LANE}")
    e(f"v_mul_u32_u24 v33, {DS}, v{V_CHK}")
    desc_soff()
    e(f"buffer_load_dwordx2 v[34:35], v33, {sr(S_WS)}, s5 offen sc1")
    nyoung = 1
    if PFL == 1:
        e("s_and_b32 s6, s90, 7")
        e("s_lshl_b32 s6, s6, 5")
        e("s_lshr_b32 s7, s90, 3")
        e("s_add_u32 s6, s6, s7")
        e(f"s_mul_i32 s6, s6, {NPB*256}")
        e(f"s_add_u32 s6, s6, {PSH}")
        e(f"v_min_u32 v56, {NPB-1}, v{V_LANE}")
        e("v_lshlrev_b32 v56, 8, v56")
        e("s_waitcnt lgkmcnt(0)")
        e(f"s_cmp_eq_u64 s[92:93], s[{S_TAGA}:{S_TAGB}]")
        e("s_cselect_b32 s6, s6, 0x7f000000")
        e("v_add_u32 v56, s6, v56")
        e(f"buffer_load_dword v57, v56, {sr(S_P)}, 0 offen")
        e(f"buffer_load_dword v58, v56, {sr(S_P)}, 0 offen offset:128")
        nyoung = 3
    e(f"s_lshl3_add_u32 s6, s{S_B}, {WS_FLAG}")
    stamp(18)
    e(f"s_waitcnt vmcnt({nyoung}) lgkmcnt(0)")
    e("s_barrier")
    stamp(7)
    e(f"s_cmp_eq_u32 s{S_W}, 0")
    e("s_cbranch_scc0 P1_NF")
    e("s_mov_b64 exec, 0xff")
    e(f"buffer_store_dwordx2 v[252:253], v254, {sr(S_WS)}, s6 offen sc1")
    e("s_mov_b64 exec, -1")
    lab("P1_NF")
    if OWN:
        e(f"s_mul_i32 s6, s{S_B}, {NPB*256}")
        e(f"s_mul_i32 s7, s{S_W}, 13")
        e(f"v_add_u32 v56, s7, v{V_LANE}")
        e(f"v_min_u32 v56, {2*NPB-1}, v56")
        e("v_lshl_add_u32 v56, v56, 7, s6")
        e("s_bfm_b64 exec, 13, 0")
        e(f"buffer_load_dword v57, v56, {sr(S_P)}, s{S_SOFF} offen")
        e("s_mov_b64 exec, -1")
    for q in range(4): e(f"ds_read_b128 {vr(144+4*q,4)}, v49 offset:{L_B1+32*q}")
    for ks in range(4):
        e(f"ds_read_b64_tr_b16 {vr(80+4*ks,2)}, v50 offset:{L_W1S+16384+4096*ks}")
        e(f"ds_read_b64_tr_b16 {vr(82+4*ks,2)}, v50 offset:{L_W1S+16384+4096*ks+1024}")
    for ks in range(4):
        e(f"s_waitcnt lgkmcnt({6-2*ks})")
        e(mf16(144, 80 + 4*ks, 160 + 4*ks, vr(144, 16)))
    e("s_nop 7")
    e("s_nop 3")
    for i in range(8): e(f"v_pk_mul_f32 {vr(144+2*i,2)}, {vr(144+2*i,2)}, s[80:81]")
    for i in range(8): e(f"v_cvt_pk_bf16_f32 v{64+i}, v{144+2*i}, v{145+2*i}")
    e("s_mov_b64 exec, s[88:89]")
    for q in range(4): e(f"ds_write_b64 v54, {vr(64+2*q,2)} offset:{16*q}")
    e("s_mov_b64 exec, -1")
    stamp(19)
    if CL: loop_consts()

    lab("POLL1")
    e(f"v_mul_u32_u24 v32, {GCS}, v{V_CHK}")
    e(f"v_add_u32 v37, 16, v{V_J0}")
    e("v_bfrev_b32 v43, -2")
    e(f"v_cmp_gt_u32 vcc, s{S_WN}, v{V_J0}")
    e(f"v_add_u32 v38, s{S_RB}, v{V_J0}")
    e(f"v_add_u32 v39, s{S_RB}, v37")
    e("v_lshlrev_b32 v36, 3, v38")
    e("v_cndmask_b32 v38, v43, v38, vcc")
    e(f"v_cmp_gt_u32 vcc, s{S_WN}, v37")
    e(f"s_mov_b32 s7, {WS_ENT}")
    e("v_mov_b32 v55, 4")
    e("v_cndmask_b32 v39, v43, v39, vcc")
    e(f"s_waitcnt vmcnt({OWN})")
    lab("POLL")
    e(f"v_xor_b32 v34, s{S_TAGA}, v34")
    e(f"v_cmp_ne_u32 s[76:77], s{S_TAGB}, v35")
    e("v_cmp_le_u32 vcc, 0x1000000, v34")
    e("s_or_b64 vcc, vcc, s[76:77]")
    e("s_cbranch_scc0 POLLED")
    e(f"s_sub_u32 s{S_SPIN}, s{S_SPIN}, 1")
    e("s_cbranch_scc1 K_END")
    e(f"s_sleep {SLP}")
    e(f"buffer_load_dwordx2 v[34:35], v33, {sr(S_WS)}, s5 offen sc1")
    e("s_waitcnt vmcnt(0)")
    e("s_branch POLL")
    lab("POLLED")
    stamp(8)
    e("v_and_b32 v35, 0xfff, v34")
    e("v_lshrrev_b32 v34, 12, v34")
    e("v_lshl_add_u32 v35, v35, 3, v32")
    e(f"s_add_u32 s5, s{S_RB}, s{S_WN}")
    e("v_cmp_lt_u32 s[74:75], s5, v34")
    DP = "row_mask:0xf bank_mask:0xf"
    for i in range(8):
        e(f"v_mov_b32_dpp v43, v34 row_newbcast:{i} {DP}")
        e(f"v_add_u32_dpp v{44+i}, v35, v36 row_newbcast:{i} {DP}")
        e(f"v_cmp_lt_u32 {sr(S_MASK+2*i,2)}, v38, v43")
        e(f"v_cmp_lt_u32 {sr(S_MASK+16+2*i,2)}, v39, v43")
    e(f"v_lshlrev_b32 v54, 2, v{V_LANE}")
    e("v_mov_b32 v53, 0")
    e("s_mov_b64 exec, s[74:75]")
    e(f"ds_write_b32 v53, v55 offset:{L_FLAG}")
    e("s_mov_b64 exec, -1")
    if not W5: wave_reset()
    flag_load(True)
    lab("FPOLL")
    e("s_waitcnt vmcnt(0)")
    e(f"v_cmp_ne_u32 s[76:77], s{S_TAGB}, v61")
    e(f"v_cmp_ne_u32 vcc, s{S_TAGA}, v60")
    e("s_or_b64 vcc, vcc, s[76:77]")
    e("s_cbranch_scc0 FPOLLED")
    e(f"s_sub_u32 s{S_SPIN}, s{S_SPIN}, 1")
    e("s_cbranch_scc1 K_END")
    e(f"s_sleep {SLP}")
    flag_load()
    e("s_branch FPOLL")
    lab("FPOLLED")
    stamp(17)
    for k in range(8, 16):
        e(f"s_mov_b64 exec, {sr(S_MASK+2*k,2)}")
        e(f"s_cbranch_execz R_L{k}")
        e(f"buffer_load_dwordx2 {vr(112+2*k,2)}, v{44+(k&7)}, {sr(S_WS)}, s7 offen offset:128 {ELF}")
        lab(f"R_L{k}")
    for k in range(8):
        e(f"s_or_b64 exec, {sr(S_MASK+2*k,2)}, 1")
        e(f"buffer_load_dwordx2 {vr(112+2*k,2)}, v{44+k}, {sr(S_WS)}, s7 offen {ELF}")
    e("s_mov_b64 exec, -1")
    if W5: wave_reset()
    e(f"s_cmp_eq_u32 s{S_EARLY}, 2")
    e("s_cbranch_scc0 R_NH")
    for i in range(32): e(f"v_pk_mul_f32 {vr(H+2*i,2)}, {vr(NN,2)}, {vr(NN,2)}")
    lab("R_NH")
    e("s_waitcnt vmcnt(8)")
    for k in list(range(8, 16)) + list(range(8)):
        e(f"s_mov_b64 exec, {sr(S_MASK+2*k,2)}")
        if k >= 8: e(f"s_cbranch_execz R_A{k}")
        else: e(f"s_waitcnt vmcnt({7-k})")
        e(f"ds_add_rtn_u32 v{T+k}, v{113+2*k}, v55 offset:{L_CNT2}")
        if k >= 8: lab(f"R_A{k}")
    def list_writes(tag):
        for k in list(range(8, 16)) + list(range(8)):
            e(f"s_mov_b64 exec, {sr(S_MASK+2*k,2)}")
            if k >= 8: e(f"s_cbranch_execz {tag}{k}")
            e(f"ds_write_b32 v{T+k}, v{112+2*k}")
            if k >= 8: lab(f"{tag}{k}")
        e("s_mov_b64 exec, -1")
    e("s_mov_b64 exec, -1")
    e(f"s_cmp_eq_u32 s{S_EARLY}, 2")
    e("s_cbranch_scc0 R_NW2")
    e(f"s_add_u32 m0, s85, {L_W2}")
    e(f"s_mov_b32 s{S_EARLY}, 0")
    for k in range(2): e(f"buffer_load_dwordx4 v31, {sr(S_W2)}, s85 offen offset:{1024*k} lds")
    if POST:
        e("s_lshr_b32 s6, s2, 3")
        e(f"s_lshl_b32 s7, s{S_W}, 5")
        e("s_add_u32 s6, s6, s7")
        e(f"s_mul_i32 s6, s6, {NPB*256}")
        e(f"v_lshl_add_u32 v56, v{V_LANE}, 7, s6")
        e(f"s_bfm_b64 exec, {POST}, 0")
        e(f"buffer_load_dword v57, v56, {sr(S_P)}, s{S_SOFF} offen")
        e("s_mov_b64 exec, -1")
    lab("R_NW2")
    e("s_waitcnt lgkmcnt(0)")
    stamp(20)
    list_writes("R_C")
    e("s_waitcnt lgkmcnt(0)")
    e("s_barrier")
    stamp(9)
    def mid():
        e(f"ds_read_b32 v32, v54 offset:{L_CNT2}")
        e(f"ds_read_b32 v33, v53 offset:{L_FLAG}")
        e(f"ds_read_b32 v34, v54 offset:{L_DEG}")
        return 3
    first_tile(mid)
    e("s_waitcnt lgkmcnt(0)")
    e(f"v_sub_u32 v32, v32, v{V_L0}")
    e("v_max_u32 v35, 4, v32")
    e("v_subrev_u32 v35, 4, v35")
    e("v_lshrrev_b32 v35, 5, v35")
    e("v_mov_b32 v36, v35")
    e(f"v_cmp_lt_u32 s[76:77], {LCAP//8-1}, v35")
    scan64(36)
    e(f"v_readfirstlane_b32 s{S_MORE}, v33")
    e(f"v_readlane_b32 s6, v36, {SPLIT-1}")
    e("v_readlane_b32 s7, v36, 63")
    e(f"v_cmp_le_u32 vcc, {SPLIT}, v{V_LANE}")
    e("v_sub_u32 v36, v36, v35")
    e("v_lshrrev_b32 v32, 2, v32")
    e("s_sub_u32 s7, s7, s6")
    e(f"s_add_u32 s82, s6, {SPLIT+3}")
    e(f"s_add_u32 s83, s7, {NPB-SPLIT+3}")
    e("s_max_u32 s5, s82, s83")
    e(f"s_cmp_ge_u32 s5, {4*HT+4}")
    e("s_cbranch_scc0 R_FITS")
    e(f"s_mov_b32 s{S_WN}, {WSLOW}")
    e("s_branch NEXT_ROUND")
    lab("R_FITS")
    e(f"s_sub_u32 s6, {NPB-SPLIT-1}, s6")
    e(f"v_add_u32 v37, {SPLIT-1}, v36")
    e("v_add_u32 v38, s6, v36")
    e("v_cndmask_b32 v37, v37, v38, vcc")
    e(f"v_mov_b32 v39, v{V_GV}")
    e(f"s_mov_b32 s{S_EARLY}, 1")
    e("s_cmp_eq_u64 s[76:77], 0")
    e("s_cbranch_scc0 R_COMPACT")
    lab("R_TABLE")
    e("v_mov_b32 v41, 0x3f80")
    e(f"s_add_u32 s6, s{S_W}, 1")
    lab("R_GT")
    e("v_cmp_le_u32 vcc, s6, v35")
    e("s_and_b64 exec, exec, vcc")
    e("s_cbranch_execz R_GTE")
    e("v_add_u32 v44, s6, v37")
    e("s_lshl_b32 s7, s6, 5")
    e(f"v_lshl_add_u32 v45, v44, 2, v{V_GB}")
    e("v_add_u32 v47, s7, v39")
    e("ds_write_b32 v45, v47")
    e("v_lshrrev_b32 v46, 1, v44")
    e(f"v_mul_u32_u24 v46, {SELS//2}, v46")
    e("v_and_b32 v44, 1, v44")
    e("v_lshl_add_u32 v46, v44, 1, v46")
    e(f"v_add_u32 v46, v46, v{V_SB}")
    e("ds_write_b16 v46, v41")
    e("s_add_u32 s6, s6, 8")
    e("s_branch R_GT")
    lab("R_GTE")
    e("s_mov_b64 exec, -1")
    e("s_waitcnt vmcnt(4) lgkmcnt(0)")
    e("s_barrier")
    stamp(10)
    e(f"s_cmp_eq_u32 s{S_W}, 0")
    e("s_cbranch_scc0 R_ND")
    e("v_add_u32 v34, v34, v32")
    e(f"ds_write_b32 v54, v34 offset:{L_DEG}")
    lab("R_ND")
    e(f"s_sub_u32 s5, 7, s{S_W}")
    e(f"s_cmp_lt_u32 s{S_W}, 4")
    e(f"s_cselect_b32 s5, s{S_W}, s5")
    e("s_cselect_b32 s6, s82, s83")
    e("s_lshr_b32 s6, s6, 2")
    e("s_sub_u32 s6, s6, s5")
    e("s_add_u32 s6, s6, 3")
    e(f"s_lshr_b32 s{S_NT}, s6, 2")
    e(f"s_or_b32 s6, s{S_MORE}, s{S_RB}")
    e(f"s_or_b32 s{S_SAFE}, s{S_SAFE}, s6")
    e(f"s_cmp_eq_u32 s{S_EARLY}, 0")
    e("s_cbranch_scc1 WAVE_REDO")
    lab("WAVE_GO")
    e(f"ds_read_u16 v{V_LI}, v{V_GIA} offset:64")
    e(f"s_mov_b32 m0, s{S_M0[1]}")
    e(f"s_sub_u32 s{S_REM}, s{S_NT}, 1")
    e("s_waitcnt lgkmcnt(0)")
    e(f"v_add_u32 v{V_LI}, v{V_LI}, v{V_LIO}")
    e(f"ds_read_b128 {vr(IDR,4)}, v{V_LI}")
    e(PERM)
    e(AXB)
    if PEEL:
        e("s_waitcnt vmcnt(0)")
        for s in c_reads(0)[:16] + [tr_read(0)]: e(s)
        for s in dma(1): e(s)
        for s in memphase(0, 0)[2+16:-4]:
            if s != tr_read(0): e(s)
        e(mfext(0))
        for s in mads(): e(s)
        e("s_nop 5")
        stamp(11); stamp(28, True)
        e(f"s_cmp_lg_u32 s{S_SAFE}, 0")
        e("s_cbranch_scc1 PEELS")
        for safe in (False, True):
            out.append(".p2align 3")
            if safe: lab("PEELS")
            emit(block(0, 0, safe))
            for s in dma(0): e(s)
            e(f"s_branch ENTER{'S' if safe else 'F'}")
    else:
        for s in dma(1): e(s)
        e("s_waitcnt lgkmcnt(0)")
        for s in mads(): e(s)
        for s in memphase(0, 0): e(s)
        e(mfext(0))
        e("s_nop 7")
        e("s_nop 1")
        stamp(11); stamp(28, True)
        e(f"s_cmp_lg_u32 s{S_SAFE}, 0")
        e("s_cbranch_scc1 ENTERS")
        e("s_branch ENTERF")

    lab("R_COMPACT")
    e("s_barrier")
    fill_list(40)
    e(f"v_add_lshl_u32 v38, v36, v{V_LANE}, 5")
    e(f"v_add_u32 v38, {L_LIST}, v38")
    e(f"v_sub_u32 v38, v38, v{V_L0}")
    e("v_add_u32 v39, v39, v38")
    for k in range(16): e(f"ds_bpermute_b32 v{113+2*k}, v{113+2*k}, v38")
    e(f"v_lshl_add_u32 v45, v{V_COL}, 2, v{V_GB}")
    e(f"s_bfm_b64 exec, {NPB}, 0")
    e("ds_write_b32 v45, v39")
    e("s_mov_b64 exec, -1")
    e("s_waitcnt lgkmcnt(0)")
    e("s_barrier")
    for k in range(16): e(f"v_add_u32 v{T+k}, v{T+k}, v{113+2*k}")
    list_writes("R_D")
    e(f"s_mov_b32 s{S_EARLY}, 0")
    e("s_branch R_TABLE")
    lab("WAVE_REDO")
    e("s_waitcnt vmcnt(0)")
    wave_reset()
    first_tile()
    e("s_branch WAVE_GO")

    mainloop(False)
    mainloop(True)

    lab("NEXTR")
    e(f"s_add_u32 s{S_RB}, s{S_RB}, s{S_WN}")
    lab("NEXT_ROUND")
    e("s_setprio 0")
    e("s_waitcnt vmcnt(0) lgkmcnt(0)")
    e("s_barrier")
    init_tables(32)
    e("s_waitcnt lgkmcnt(0)")
    e("s_barrier")
    static_writes(32, "B")
    e(f"v_mul_u32_u24 v33, {DS}, v{V_CHK}")
    desc_soff()
    e(f"buffer_load_dwordx2 v[34:35], v33, {sr(S_WS)}, s5 offen sc1")
    e("s_waitcnt vmcnt(0) lgkmcnt(0)")
    e("s_barrier")
    e("s_branch POLL1")

    out.append(".p2align 3")
    lab("DRAIN")
    e("s_waitcnt lgkmcnt(0)")
    e(f"s_cmp_lg_u32 s{S_MORE}, 0")
    for ct in range(4): e(mfsel(ct))
    stamp(12); stamp(29, True)
    e("s_cbranch_scc1 NEXTR")
    e(f"v_lshrrev_b32 v96, 5, v{V_LANE}")
    e(f"v_and_b32 v97, 31, v{V_LANE}")
    e("v_mul_u32_u24 v97, 272, v97")
    e("v_lshl_add_u32 v97, v96, 4, v97")
    e(f"v_add_u32 v97, s{S_M0[0]}, v97")
    e(f"s_mov_b32 s6, {hex(f2u(2.0**120))}")
    e(f"v_cmp_nge_f32 s[76:77], s6, v{V_DMAX}")
    e(f"v_lshrrev_b32 v98, 3, v{V_TID}")
    e(f"v_and_b32 v99, 7, v{V_TID}")
    O = D
    cv = lambda ct: [f"v_cvt_pk_bf16_f32 v{64+8*ct+i}, v{H+16*ct+2*i}, v{H+16*ct+2*i+1}" for i in range(8)]
    for s in cv(0): e(s)
    rest = [f"v_cmp_le_u32 vcc, {SPLIT}, v98", "v_mul_u32_u24 v100, 272, v98", "v_lshl_add_u32 v100, v99, 5, v100",
            f"v_add_u32 v101, {4*TBW - SPLIT*272}, v100", "v_cndmask_b32 v100, v100, v101, vcc",
            "v_lshlrev_b32 v101, 2, v98", "v_lshlrev_b32 v102, 5, v99", "v_lshlrev_b32 v103, 15, v98"]
    for ct in range(4):
        nxt = cv(ct + 1) if ct < 3 else rest
        for s in range(2):
            for mt in range(2):
                ks = 2 * ct + s
                for x in nxt[4*s + 2*mt: 4*s + 2*mt + 2]: e(x)
                e(mf16(O[mt], w2f(ks, mt), 64 + 4*ks, "0" if ks == 0 else vr(O[mt], 16)))
    e("v_lshl_add_u32 v103, v99, 4, v103")
    e(f"s_lshl_b32 s5, s{S_B}, 7")
    e("v_add_u32 v103, s5, v103")
    e("s_movk_i32 s7, 0x207")
    e("s_waitcnt vmcnt(0)")
    e("s_nop 5")
    e(f"v_cmp_class_f32 vcc, v{O[0]}, s7")
    e("s_or_b64 s[76:77], s[76:77], vcc")
    e("s_cbranch_scc0 EPI_OK")
    e(f"s_cmp_lg_u32 s{S_SAFE}, 0")
    e("s_cbranch_scc1 EPI_OK")
    e(f"s_mov_b32 s{S_SAFE}, 1")
    for i in range(64): e(f"v_mov_b32 v{H+i}, 0")
    e("s_branch WAVE_REDO")
    lab("EPI_OK")
    for mt in range(2):
        for q in range(4):
            e(f"ds_write_b128 v97, {vr(O[mt]+4*q,4)} offset:{128*mt+32*q}")
    e(f"ds_read_b128 v[32:35], v102 offset:{L_B2}")
    e(f"ds_read_b128 v[36:39], v102 offset:{L_B2+16}")
    e(f"v_cmp_gt_u32 vcc, {NPB}, v98")
    e(f"s_or_b32 s6, s2, s{S_W}")
    e("s_cbranch_scc1 EPI_NE")
    e(f"v_mov_b32 v42, s{S_TAGB}")
    e(f"v_mov_b32 v43, s{S_TAGA}")
    e("v_mov_b32 v44, 0")
    e("s_mov_b64 exec, 1")
    e(f"buffer_store_dwordx2 v[42:43], v44, {sr(S_WS)}, 0 offen offset:{WS_EPOCH}")
    e("s_mov_b64 exec, -1")
    lab("EPI_NE")
    e("s_waitcnt lgkmcnt(0)")
    e("s_barrier")
    stamp(13)
    e("s_and_b64 exec, exec, vcc")
    e("s_cbranch_execz K_FIN")
    e(f"ds_read_b32 v40, v101 offset:{L_DEG}")
    for s in range(4):
        e(f"ds_read_b128 {vr(64+8*s,4)}, v100 offset:{L_TB+s*TBW}")
        e(f"ds_read_b128 {vr(68+8*s,4)}, v100 offset:{L_TB+s*TBW+16}")
    e(f"s_mov_b32 s6, {hex(f2u(-LN2))}")
    e("s_mov_b32 s7, s6")
    e("s_waitcnt lgkmcnt(8)")
    e("v_cvt_f32_u32 v40, v40")
    for i in range(4): e(f"v_pk_mul_f32 {vr(32+2*i,2)}, {vr(32+2*i,2)}, v[40:41] op_sel_hi:[1,0]")
    for s in range(4):
        e(f"s_waitcnt lgkmcnt({6-2*s})")
        for i in range(4): e(f"v_pk_fma_f32 {vr(32+2*i,2)}, {vr(64+8*s+2*i,2)}, s[6:7], {vr(32+2*i,2)}")
    for i in range(4): e(f"v_cvt_pk_bf16_f32 v{44+i}, v{32+2*i}, v{33+2*i}")
    e(f"buffer_store_dwordx4 v[44:47], v103, {sr(S_OUT)}, 0 offen {OF}")
    lab("K_FIN")
    if MODE:
        e("s_xor_b32 s100, s100, s79")
        e("s_xor_b32 s101, s101, s78")
        e("s_or_b32 s100, s100, s101")
        e("s_cmp_eq_u32 s100, 0")
        e("s_cselect_b32 s100, 3, 4")
        e("s_cmp_eq_u32 s78, s79")
        e("s_cselect_b32 s100, 2, s100")
        e(f"s_cmp_eq_u32 s100, {MODE}")
        e("s_cbranch_scc0 MODE_E")
        e("s_waitcnt vmcnt(0)")
        e("s_memrealtime s[96:97]")
        e("s_waitcnt lgkmcnt(0)")
        lab("MODE_L")
        e("s_memrealtime s[98:99]")
        e("s_waitcnt lgkmcnt(0)")
        e("s_sub_u32 s98, s98, s96")
        e("s_cmp_lt_u32 s98, 10000")
        e("s_cbranch_scc1 MODE_L")
        lab("MODE_E")
    if AMP[0] >= 0:
        if AMP[1] == 14:
            e("s_waitcnt vmcnt(0)")
            stamp(14)
        e("s_sub_u32 s100, s100, s98")
        if AMP[2] >= 0:
            e(f"s_cmp_eq_u32 s2, {AMP[2]}")
            e("s_cselect_b32 s100, s100, 0")
        e("s_add_u32 s100, s100, 6000")
        if AMPM:
            e("s_xor_b32 s90, s90, s79")
            e("s_xor_b32 s91, s91, s78")
            e("s_or_b32 s90, s90, s91")
            e("s_cmp_eq_u32 s90, 0")
            e("s_cselect_b32 s90, 3, 4")
            e("s_cmp_eq_u32 s78, s79")
            e("s_cselect_b32 s90, 2, s90")
            e(f"s_cmp_eq_u32 s90, {AMPM}")
            e("s_cselect_b32 s100, s100, 0")
        lab("AMPL")
        e("s_memrealtime s[98:99]")
        e("s_waitcnt lgkmcnt(0)")
        e("s_sub_u32 s98, s98, s96")
        e("s_cmp_lt_u32 s98, s100")
        e("s_cbranch_scc1 AMPL")
    if SPIN >= 0:
        lab("SPINL")
        e("s_memrealtime s[98:99]")
        e("s_waitcnt lgkmcnt(0)")
        e("s_sub_u32 s98, s98, s96")
        e("s_cmp_lt_u32 s98, 6000")
        e("s_cbranch_scc1 SPINL")
    if DIAG:
        e("s_mov_b64 exec, -1")
        e("s_waitcnt vmcnt(0)")
        stamp(14); stamp(31, True)
        e(f"v_writelane_b32 v255, s{S_NT}, 27")
        e("s_lshl_b32 s5, s2, 11")
        e(f"s_add_u32 s5, s5, {WS_STAMP}")
        e(f"v_lshlrev_b32 v1, 2, v{V_TID}")
        e(f"buffer_store_dword v255, v1, {sr(S_WS)}, s5 offen")
    lab("K_END")
    e("s_endpgm")
    if CPF: out.append(".set CODE_REST, K_END - CPF_PC")

hdr = open("standalone__edge_featured_mpnn_mpnn__graph.s.ref").read().split("; Override")[0]
out.append(hdr.rstrip())
out.append(f"; @launch grid=(256,1,1) block=(512,1,1) lds={L_END}")
out.append('.amdgcn_target "amdgcn-amd-amdhsa--gfx950"')
out.append(".text")
out.append(f".globl {KN}")
out.append(f".p2align {AL}")
out.append(f".type {KN},@function")
kernel()
out.append(f""".section .rodata,"a"
.p2align 6
.amdhsa_kernel {KN}
  .amdhsa_next_free_vgpr 256
  .amdhsa_next_free_sgpr 102
  .amdhsa_accum_offset 256
  .amdhsa_group_segment_fixed_size 0
  .amdhsa_kernarg_size 88
  .amdhsa_user_sgpr_count 2
  .amdhsa_user_sgpr_kernarg_segment_ptr 1
  .amdhsa_system_sgpr_workgroup_id_x 1
.end_amdhsa_kernel""")
dst = sys.argv[1] if len(sys.argv) > 1 else "standalone__edge_featured_mpnn_mpnn__graph.s"
open(dst, "w").write("\n".join(out) + "\n")
print("written", dst, "LDS", L_END)
```

```python
import struct, sys, os
import numpy as np
from align import align, isize

N, E = 12500, 800000
NPB, SPLIT = 49, 25
CH, CHS, GCS, DS = 3128, 25088, 25216, 2176
NQ, NQL = CH // 4, (E - 255 * CH) // 4
LOG2E = 1.4426950408889634
LN2 = 0.6931471805599453
KN = "standalone__edge_featured_mpnn_mpnn__graph_kernel"
DIAG = int(os.environ.get("DIAG", "0"))
PREF = int(os.environ.get("PREF", "0"))
X_NOP = int(os.environ.get("X_NOP", "0"))
STF = os.environ.get("STF", "sc1")
LDF = os.environ.get("LDF", "")
TRANS = int(os.environ.get("TRANS", "0"))
ELF = os.environ.get("ELF", "")
SLP = int(os.environ.get("SLP", "1"))
ORD = int(os.environ.get("ORD", "2"))
PFL = 0
D1 = int(os.environ.get("D1", "0"))
PG = int(os.environ.get("PG", "1"))
W2R = int(os.environ.get("W2R", "0"))
SKD = int(os.environ.get("SKD", "1"))
OF = os.environ.get("OF", "")
AMPM = int(os.environ.get("AMPM", "0"))
MODE = int(os.environ.get("MODE", "0"))
PSF = os.environ.get("PSF", "sc1")
CL = int(os.environ.get("CL", "1"))
W5 = int(os.environ.get("W5", "0"))
OWN = int(os.environ.get("OWN", "1"))
POST = int(os.environ.get("POST", "16"))
LATEI = int(os.environ.get("LATEI", "1"))
AL = int(os.environ.get("AL", "12"))
CPF = int(os.environ.get("CPF", "1"))
CPF0 = int(os.environ.get("CPF0", "0"))
PEEL = int(os.environ.get("PEEL", "1"))
STOUCH = int(os.environ.get("STOUCH", "0"))
TOUCH = int(os.environ.get("TOUCH", "0"))

def f2u(x): return struct.unpack("<I", struct.pack("<f", x))[0]
def u2f(u): return struct.unpack("<f", struct.pack("<I", u))[0]

WS_EPOCH = 0
WSOFF = int(os.environ.get("WSOFF", "0")) << 20
WS_PT = WSOFF + 4096
WS_DESC = WS_PT + 12544 * 256
WS_FLAG = WS_DESC + 256 * DS
WS_PFLAG = WS_FLAG + 8 * DS
WS_ENT = WS_PFLAG + 8 * DS
WS_SIZE = WS_ENT + 256 * GCS
XT = os.environ.get("XT", "")
if XT: WS_SIZE += 256 * GCS
WS_STAMP = 12 << 20
if DIAG: WS_SIZE = 16 << 20

L_CNT1, L_BASE1 = 0, 1024
L_CNT2, L_FLAG, L_DEG, L_B2 = 2048, 2304, 2368, 2816
L_UNS, L_PUN, L_WMX = L_FLAG + 4, L_FLAG + 8, L_FLAG + 12
BP, BE = 2.0, 10.9
L_B1 = 0
L_EXT = 3072
L_TB = 4096
TBW = 8704
L_STG, L_W1S, L_XS = L_TB, L_TB + CHS, L_TB + CHS + 32768
PS = 272
assert L_XS + 8704 <= L_TB + 8 * TBW and L_W1S % 256 == 0
TR, TW = 24, 22
L_SEL = L_TB + 8 * TBW
SELS, SELSZ = 128, 8 * TR * 128
assert SELSZ == 24576
L_GT = L_SEL + SELSZ
L_QT = L_GT + 8 * TR * 16
STATIC = sum(1 << n for n in range(48) if n % 6 >= 2)
assert all((x * 43) >> 8 == x // 6 for x in range(70))
QS = 328
L_PS = L_QT
assert L_PS % 16 == 0
L_W2 = (L_QT + NPB * QS + 255) // 256 * 256
L_LIST = L_W2 + 16384
LS, LCAP = 528, 128
LISTSZ = (NPB + 1) * LS
L_END = L_LIST + LISTSZ
assert L_END <= 163840, L_END
PADENT = 0x00007000
PSH = 3072
WSLOW = 6

out = []
def e(s): out.append("    " + s)
def lab(s): out.append(s + ":")
def c(s): out.append("    ; " + s)
def vr(a, n): return f"v[{a}:{a+n-1}]"
def sr(a, n=4): return f"s[{a}:{a+n-1}]"

SPIN = int(os.environ.get("SPIN", "-1"))
AMP = [int(x) for x in os.environ.get("AMP", "-1,-1,-1").split(",")]
def stamp(i, real=False):
    if AMP[0] >= 0:
        if i == 0: e("s_memrealtime s[96:97]")
        if i == AMP[0]:
            if i: e("s_waitcnt lgkmcnt(0)")
            e("s_memtime s[98:99]")
            if i: e("s_waitcnt lgkmcnt(0)")
        if i == AMP[1]:
            e("s_waitcnt lgkmcnt(0)")
            e("s_memtime s[100:101]")
            e("s_waitcnt lgkmcnt(0)")
    if SPIN == i:
        e("s_waitcnt lgkmcnt(0)")
        e("s_memrealtime s[96:97]")
        e("s_waitcnt lgkmcnt(0)")
    if not DIAG: return
    if DIAG in (2, 4) and i not in (0, 30, 28, 29, 31, 11, 12, 14, 9): return
    if DIAG == 3 and i in (0, 30, 15, 16): return
    e("s_waitcnt lgkmcnt(0)")
    e(f"{'s_memrealtime' if real else 's_memtime'} s[98:99]")
    e("s_waitcnt lgkmcnt(0)")
    e(f"v_writelane_b32 v255, s98, {i}")

lazy = []
def lstamp(i):
    if DIAG != 3: return
    r = 52 + 2 * len(lazy)
    e(f"s_memtime s[{r}:{r+1}]")
    lazy.append((i, r))
def lflush():
    for i, r in lazy: e(f"v_writelane_b32 v255, s{r}, {i}")

def scan64(v):
    for sh in (1, 2, 4, 8):
        e("s_nop 1")
        e(f"v_add_u32_dpp v{v}, v{v}, v{v} row_shr:{sh} row_mask:0xf bank_mask:0xf bound_ctrl:1")
    e("s_nop 1")
    e(f"v_add_u32_dpp v{v}, v{v}, v{v} row_bcast:15 row_mask:0xa bank_mask:0xf")
    e("s_nop 1")
    e(f"v_add_u32_dpp v{v}, v{v}, v{v} row_bcast:31 row_mask:0xc bank_mask:0xf")

H = 176
C = (144, 160)
D = (112, 128)
T = 96
P = 80
SL = 76
BX = (72, 74)
IDX, IDR = 64, 68
NN, DD, RR, AX, CX, V_M = 16, 18, 20, 22, 24, 26
V_CA, V_DMAC, V_LI, V_LM, V_GQA, V_SELA, V_PSEL, V_QMUL, V_QC, V_GQ, V_QA, V_DMAX, V_TID, V_LANE, V_GIA = range(1, 16)
V_GMA, V_LIO, V_LMO = 28, 29, 30
V_SAVE = 240
V_CHK, V_J0, V_W2A = 244, 245, 246
S_X, S_E, S_SRC, S_DST, S_W1, S_B1, S_W2, S_B2, S_OUT, S_WS, S_P = 8, 12, 16, 20, 24, 28, 92, 36, 40, 44, 48
S_MASK = 8
S_SOFF = 52
S_256, S_REM, S_M0, S_WN, S_RB, S_MORE, S_SAFE, S_NT, S_EARLY, S_TAGA, S_TAGB, S_SPIN = 60, 61, (62, 63), 64, 65, 66, 67, 68, 69, 72, 73, 70
S_B, S_W = 3, 4

def mf16(d, a, b, cc): return f"v_mfma_f32_32x32x16_bf16 {vr(d,16)}, {vr(a,4)}, {vr(b,4)}, {cc}"
def mfext(ct): return f"v_mfma_f32_32x32x8_bf16 {vr(D[ct&1],16)}, {vr(AX,2)}, {vr(BX[ct&1],2)}, {vr(C[ct&1],16)}"
def mfsel(ct): return mf16(H + 16 * ct, P + 4 * ct, SL, vr(H + 16 * ct, 16))
def dma(half):
    return [f"buffer_load_dwordx4 v{IDX+j}, {sr(S_P)}, s{S_SOFF+4*half+j} offen offset:{1024*j} lds" for j in range(4)]
def mads(src=IDR): return [f"v_mad_i32_i16 v{IDX+j}, v{src+j}, s{S_256}, v{V_DMAC}" for j in range(4)]
def c_reads(half):
    L = []
    for ctl in range(2):
        for r in range(16):
            mm = r >> 1
            L.append(f"ds_read_u16_d16_hi v{C[ctl]+r}, v{V_CA} offset:{half*4096 + (mm&3)*1024 + (2*(r&1) + (mm>>2))*128 + ctl*64}")
    return L
def tr_read(ct): return f"ds_read_b64_tr_b16 {vr(BX[ct&1],2)}, v{V_QA} offset:{64*ct}"
AXB = f"v_pk_mul_f32 {vr(AX,2)}, {vr(CX,2)}, {vr(V_M,2)} op_sel_hi:[1,0]"
QAB = f"v_mad_u32_u24 v{V_QA}, v{V_GQ}, v{V_QMUL}, v{V_QC}"
PERM = f"v_perm_b32 v{V_M}, v{V_M}, v{V_M}, v{V_PSEL}"

def block(tau, ct, safe, gate=False, last=False, peel=False):
    cur = D[ct & 1]
    pc, pt = (ct - 1) & 3, (tau if ct > 0 else (tau - 1) & 3)
    tr = [f"v_exp_f32 v{T+i}, v{cur+i}" for i in range(16)]
    tr[8:8] = [f"v_rcp_f32 v{RR}, v{DD}", f"v_rcp_f32 v{RR+1}, v{DD+1}"]
    mf = [] if last else [mfext((ct + 1) & 3)]
    if tau == 0 and not peel: mf.append(mfsel(ct))
    fill = []

    if ct == 0: fill += [f"v_add_u32 v{V_LI}, v{V_LI}, v{V_LIO}", f"v_add_u32 v{V_LM}, v{V_LM}, v{V_LMO}"]
    if ct == 1: fill += mads() + [PERM]
    if ct == 2:
        fill += [QAB]
        if tau == 3:
            fill += [f"v_add_u32 v{V_GIA}, 64, v{V_GIA}", f"v_add_u32 v{V_GMA}, 64, v{V_GMA}",
                     f"v_add_u32_e64 v{V_GQA}, 64, v{V_GQA}", f"v_add_u32 v{V_SELA}, {4*SELS}, v{V_SELA}"]
    L = []
    k = 0
    if gate:
        L += [tr[0], "s_setprio 3"]; k = 1
    for m in mf:
        L.append(m); L += tr[k:k+4]; k += 4
    L += tr[k:] + fill
    L.append(f"v_pk_mul_f32 {vr(RR,2)}, {vr(NN,2)}, {vr(RR,2)}")
    cvt = f"v_cvt_pk_bf16_f32 v{P+4*pc+pt}, v{RR}, v{RR+1}"
    if not safe:
        L += [f"v_pk_add_f32 {vr(DD,2)}, {vr(T,2)}, 1.0 op_sel_hi:[1,0]", cvt]
        if ct == 2: L.append(AXB)
        for j in range(1, 8):
            n_in = vr(cur, 2) if j == 1 else vr(NN, 2)
            L += [f"v_pk_fma_f32 {vr(NN,2)}, {n_in}, {vr(T+2*j,2)}, {n_in}",
                  f"v_pk_fma_f32 {vr(NN,2)}, {vr(cur+2*j,2)}, {vr(DD,2)}, {vr(NN,2)}",
                  f"v_pk_fma_f32 {vr(DD,2)}, {vr(DD,2)}, {vr(T+2*j,2)}, {vr(DD,2)}"]
    else:
        L += [f"v_pk_add_f32 {vr(T+2*j,2)}, {vr(T+2*j,2)}, 1.0 op_sel_hi:[1,0]" for j in range(8)] + [cvt]
        if ct == 2: L.append(AXB)
        L += [f"v_rcp_f32 v{T+i}, v{T+i}" for i in range(16)]
        L.append(f"v_pk_mul_f32 {vr(NN,2)}, {vr(cur,2)}, {vr(T,2)}")
        L += [f"v_pk_fma_f32 {vr(NN,2)}, {vr(cur+2*j,2)}, {vr(T+2*j,2)}, {vr(NN,2)}" for j in range(1, 8)]
    return L

def memphase(tau, half, x=""):
    L = ["s_setprio 0", "s_waitcnt vmcnt(4)"]
    L += c_reads(half) + [tr_read(2 * half), tr_read(2 * half + 1)]
    if half == 0:
        L += [f"ds_read_u16 v{V_LI}, v{V_GIA} offset:{(tau+2)*16}",
              f"ds_read_u16 v{V_LM}, v{V_GMA} offset:{(tau+1)*16}"]
    if half == 1:
        L += [f"ds_read_b128 {vr(IDR,4)}, v{V_LI}",
              f"ds_read_b32 v{V_M}, v{V_LM}",
              f"ds_read_u16 v{V_GQ}, v{V_GQA} offset:{(tau+1)*16+2}"]
        if tau == 1: L.append(f"ds_read_b32 v{SL}, v{V_SELA}")
        if tau >= 1: L.append(f"ds_read_b32 v{SL+tau}, v{V_SELA} offset:{tau*SELS}")
    if DIAG == 4 and half == 1: L = ["s_memtime s[98:99]"] + L
    L += [f"s_mov_b32 m0, s{S_M0[half]}", "s_waitcnt lgkmcnt(0)"]
    if SKD and half == 1: L[-1:-1] = [f"s_cmp_eq_u32 s{S_REM}, 0"]; L.append(f"s_cbranch_scc1 SKD{x}{tau}")
    L += dma(half)
    if DIAG == 4 and half == 1: L += [f"s_add_u32 m0, s{S_REM}, 32", "s_nop 0", "v_writelane_b32 v255, s98, m0"]
    return L

def w2f(ct, ot): return (32 if ct < 2 else 144) + 16 * (ct & 1) + 4 * ot
def w2_reads():
    return [f"ds_read_b64_tr_b16 {vr(w2f(ct,ot)+2*t,2)}, v{27 if ot & 2 else V_W2A} offset:{4096*ct+1024*t+32*(ot&1)}"
            for ct in range(4) for ot in range(4) for t in range(2)]

def emit(L):
    L = align(L)
    assert sum(isize(x) for x in L) % 8 == 0
    for s in L: e(s)

def mainloop(safe):
    x = "S" if safe else "F"
    out.append(".p2align 6")
    lab(f"LOOP{x}")
    for tau in range(4):
        c(f"==== tile slot {tau}")
        emit(memphase(tau, 0))
        emit(block((tau - 1) & 3, 3, safe, gate=True))
        if tau == 0 and not PEEL: lab(f"ENTER{x}")
        emit(block(tau, 0, safe))
        if tau == 0 and PEEL: lab(f"ENTER{x}")
        emit(memphase(tau, 1, x))
        if SKD: lab(f"SKD{x}{tau}")
        emit(block(tau, 1, safe, gate=True))
        emit(block(tau, 2, safe))
        e(f"s_sub_u32 s{S_REM}, s{S_REM}, 1")
        if tau < 3: e(f"s_cbranch_scc1 TAIL{x}{tau}")
        else: e(f"s_cbranch_scc0 LOOP{x}")
    for tau in (3, 0, 1, 2):
        lab(f"TAIL{x}{tau}")
        emit(["s_setprio 0", "s_nop 0"] + w2_reads()[16 if W2R else 0:])
        emit(block(tau, 3, safe, gate=True, last=True))
        if tau == 0: e(f"ds_read_b32 v{SL}, v{V_SELA}")
        e(f"v_rcp_f32 v{RR}, v{DD}")
        e(f"v_rcp_f32 v{RR+1}, v{DD+1}")
        for t2 in range(tau + 1, 4): e(f"v_mov_b32_e64 v{SL+t2}, 0")
        if tau == 3: e("v_mov_b32_e64 v31, 0")
        e(f"v_pk_mul_f32 {vr(RR,2)}, {vr(NN,2)}, {vr(RR,2)}")
        e(f"v_cvt_pk_bf16_f32 v{P+12+tau}, v{RR}, v{RR+1}")
        e("s_nop 0")
        e("s_branch DRAIN")

def find_cx(target):
    m = np.float64(u2f(0x00FF0000))
    g = f2u(float(np.float32(np.float64(u2f(target)) / m)))
    for d in range(-3, 4):
        if f2u(float(np.float32(np.float64(u2f(g + d)) * m))) == target: return g + d
    raise SystemExit("no cx")

V_GV, V_ZP, V_SB, V_L0, V_US, V_S32 = 247, 248, 249, 250, 251, 0

def fill_list(t):
    e(f"v_lshlrev_b32 v{t+8}, 4, v{V_TID}")
    e(f"v_add_u32 v{t+9}, {L_LIST}, v{t+8}")
    for i in range(4): e(f"v_mov_b32 v{t+i}, {hex(PADENT)}")
    for o in (0, 8192, 16384, LISTSZ - 8192): e(f"ds_write_b128 v{t+9}, {vr(t,4)} offset:{o}")

def init_tables(t):
    fill_list(t)
    for i in range(4): e(f"v_mov_b32 v{t+4+i}, 0")
    e(f"v_add_u32 v{t+8}, {L_SEL}, v{t+8}")
    for o in (0, 8192, 16384): e(f"ds_write_b128 v{t+8}, {vr(t+4,4)} offset:{o}")
    e(f"v_min_u32 v{t+8}, {TR*16-1}, v{V_TID}")
    e(f"v_lshlrev_b32 v{t+8}, 3, v{t+8}")
    e(f"v_add_u32 v{t+8}, {L_GT}, v{t+8}")
    e(f"v_mov_b32 v{t+10}, {NPB*LS}")
    e(f"v_mov_b32 v{t+11}, {NPB*LS}")
    e(f"ds_write_b64 v{t+8}, {vr(t+10,2)}")

def static_writes(t, tag):
    e(f"s_cmp_eq_u32 s{S_W}, 1")
    e(f"s_cbranch_scc0 STW{tag}")
    e(f"v_lshlrev_b32 v{t}, 2, v{V_LANE}")
    e(f"v_mov_b32 v{t+1}, 0")
    e(f"ds_write_b32 v{t}, v{V_L0} offset:{L_CNT2}")
    e(f"ds_write_b32 v{t+1}, v{t+1} offset:{L_FLAG}")
    e(f"v_lshlrev_b32 v{t}, 2, v{V_US}")
    e(f"v_add_u32 v{t}, {L_GT}, v{t}")
    e(f"v_lshrrev_b32 v{t+1}, 1, v{V_US}")
    e(f"v_lshl_add_u32 v{t+1}, v{t+1}, 6, v{V_SB}")
    e(f"v_and_b32 v{t+2}, 1, v{V_US}")
    e(f"v_lshl_add_u32 v{t+1}, v{t+2}, 1, v{t+1}")
    e(f"v_mov_b32 v{t+2}, 0x3f80")
    e(f"s_mov_b32 exec_lo, {hex(STATIC & 0xffffffff)}")
    e(f"s_mov_b32 exec_hi, {hex(STATIC >> 32)}")
    e(f"ds_write_b32 v{t}, v{V_GV}")
    e(f"ds_write_b16 v{t+1}, v{t+2}")
    e("s_mov_b64 exec, -1")
    lab(f"STW{tag}")

def desc_soff():
    e(f"s_lshr_b32 s5, s{S_B}, 2")
    e(f"s_and_b32 s7, s{S_B}, 1")
    e("s_lshl1_add_u32 s5, s5, s7")
    e(f"s_and_b32 s7, s{S_B}, 2")
    e("s_lshl_b32 s7, s7, 6")
    e("s_add_u32 s5, s5, s7")
    e(f"s_lshl3_add_u32 s5, s5, {WS_DESC}")

def flag_load(first=False):
    if first:
        e(f"v_and_b32 v62, -8, v{V_CHK}")
        e("s_and_b32 s84, s2, 7")
        e(f"s_mul_i32 s84, s84, {DS}")
        e(f"s_lshl_b32 s83, s{S_W}, 8")
        e("s_add_u32 s84, s84, s83")
        e(f"s_add_u32 s84, s84, {WS_FLAG}")
    e(f"buffer_load_dwordx2 v[60:61], v62, {sr(S_WS)}, s84 offen sc1")

def absmax16(d, b):
    e(f"v_max_f32_e64 v{d}, |v{b}|, |v{b+1}|")
    for i in range(1, 8): e(f"v_max3_f32 v{d}, |v{b+2*i}|, |v{b+2*i+1}|, v{d}")

def wave_reset():
    e(f"v_mov_b32 v{V_GIA}, v{V_SAVE}")
    e(f"v_mov_b32 v{V_GMA}, v{V_SAVE+1}")
    e(f"v_mov_b32 v{V_GQA}, v{V_SAVE+2}")
    e(f"v_mov_b32 v{V_SELA}, v{V_SAVE+3}")
    e(f"ds_read_u16 v{V_LI}, v{V_GIA}")
    e(f"ds_read_u16 v{V_LM}, v{V_GMA}")
    e(f"ds_read_u16 v{V_GQ}, v{V_GQA} offset:2")
    for i in range(2):
        e(f"v_mov_b32 v{NN+i}, 0")
        e(f"v_mov_b32 v{DD+i}, 1.0")
    e(f"v_mov_b32 v{V_DMAX}, 0")
    for r in list(range(SL, SL + 20, 2)) + list(range(C[0], C[0] + 32, 2)):
        e(f"v_pk_mul_f32 {vr(r,2)}, {vr(NN,2)}, {vr(NN,2)}")
    e("s_waitcnt lgkmcnt(0)")
    e(f"v_add_u32 v{V_LI}, v{V_LI}, v{V_LIO}")
    e(f"v_add_u32 v{V_LM}, v{V_LM}, v{V_LMO}")
    e(QAB)

def first_tile(mid=None):
    e(f"ds_read_b128 {vr(IDX,4)}, v{V_LI}")
    e(f"ds_read_b32 v{V_M}, v{V_LM}")
    n = 1
    if mid: n += mid()
    e(f"s_mov_b32 m0, s{S_M0[0]}")
    e(f"s_waitcnt lgkmcnt({n})")
    for s in mads(IDX): e(s)
    for s in dma(0): e(s)

def kernel():
    lab(KN)
    e("s_cmpk_ge_u32 s2, 256")
    e("s_cbranch_scc1 K_END")
    if DIAG: e("v_mov_b32 v255, 0")
    stamp(30, True); stamp(0); lstamp(0)
    for s, off in ((S_DST, 24), (S_X, 0), (S_W1, 32), (S_WS, 80), (S_SRC, 16), (S_E, 8)):
        e(f"s_load_dwordx2 {sr(s,2)}, s[0:1], {off}")
    if CPF == 1:
        e("s_getpc_b64 s[90:91]")
        lab("CPF_PC")
        e("s_and_b32 s5, s2, -8")
        e("v_subrev_u32 v18, 504, v0")
        e("v_add_lshl_u32 v16, v18, s5, 7")
        e("v_add_u32 v16, 2048, v16")
        e("v_min_u32 v16, CODE_REST, v16")
        e("v_mov_b32 v17, s91")
        e("v_add_co_u32 v16, vcc, s90, v16")
        e("v_cmp_gt_u32 s[76:77], 8, v18")
        e("s_nop 0")
        e("v_addc_co_u32 v17, vcc, 0, v17, vcc")
        e("s_mov_b64 exec, s[76:77]")
        e("s_cbranch_execz CPF_E")
        e("global_load_dword v18, v[16:17], off")
        lab("CPF_E")
        e("s_mov_b64 exec, -1")
    e(f"v_readfirstlane_b32 s{S_W}, v0")
    e(f"v_and_b32 v{V_LANE}, 63, v0")
    e("v_mov_b32 v88, 0")
    e("v_mov_b32 v89, 0")
    e("v_lshlrev_b32 v92, 3, v0")
    e("ds_write_b64 v92, v[88:89]")
    e(f"s_mov_b32 s{S_DST+3}, 0x00020000")
    e(f"s_mov_b32 s{S_DST+2}, {E*4}")
    e(f"s_mov_b32 s{S_X+2}, {N*128}")
    e(f"s_mov_b32 s{S_X+3}, s{S_DST+3}")
    e(f"s_mov_b32 s{S_W1+2}, {129*256}")
    e(f"s_mov_b32 s{S_W1+3}, s{S_DST+3}")
    e(f"s_lshr_b32 s{S_W}, s{S_W}, 6")
    e(f"s_and_b32 s{S_B}, s2, 7")
    e(f"s_lshl_b32 s{S_B}, s{S_B}, 5")
    e("s_lshr_b32 s5, s2, 3")
    e(f"s_add_u32 s{S_B}, s{S_B}, s5")
    e(f"s_mul_i32 s5, s2, {CH*4}")
    e("v_lshl_add_u32 v32, v0, 4, s5")
    e("s_cmpk_eq_u32 s2, 255")
    e(f"s_movk_i32 s6, {NQ-512}")
    e(f"s_cmovk_i32 s6, {NQL-512}")
    e("v_cmp_gt_u32 s[74:75], s6, v0")
    e(f"v_lshrrev_b32 v37, 4, v{V_LANE}")
    e(f"v_lshrrev_b32 v47, 3, v{V_LANE}")
    e(f"v_and_b32 v48, 7, v{V_LANE}")
    e("v_and_b32 v45, 1, v37")
    e("v_and_b32 v58, 4, v47")
    e("v_and_b32 v59, 1, v47")
    e("v_lshl_add_u32 v58, v59, 1, v58")
    e("v_add_u32 v58, v58, v45")
    e("v_xor_b32 v59, v48, v37")
    e("v_lshlrev_b32 v59, 4, v59")
    e("v_lshl_add_u32 v58, v58, 15, v59")
    e(f"s_lshl_b32 s85, s{S_W}, 11")
    e(f"s_add_u32 s5, s85, s{S_B}")
    e("s_lshl_b32 s5, s5, 7")
    e("v_add_u32 v58, s5, v58")
    e("v_lshlrev_b32 v31, 2, v37")
    e(f"v_xor_b32 v31, v31, v{V_LANE}")
    e("v_lshlrev_b32 v31, 4, v31")
    e(f"s_mul_i32 s84, s{S_W}, 1088")
    e(f"s_add_u32 m0, s84, {L_XS}")
    e("s_movk_i32 s86, 8192")
    lstamp(21)
    e("s_waitcnt lgkmcnt(0)")
    lstamp(22)
    e(f"buffer_load_dwordx4 v[64:67], v32, {sr(S_DST)}, 0 offen {LDF}")
    e("s_mov_b64 exec, s[74:75]")
    e("s_cbranch_execz P0_ND")
    e(f"buffer_load_dwordx4 v[68:71], v32, {sr(S_DST)}, s86 offen {LDF}")
    lab("P0_ND")
    e("s_mov_b64 exec, -1")
    e("s_barrier")
    e(f"buffer_load_dwordx4 v58, {sr(S_X)}, 0 offen lds")
    e(f"s_add_u32 m0, s85, {L_W1S}")
    e(f"s_load_dwordx2 s[78:79], {sr(S_WS,2)}, {WS_EPOCH}")
    for k in range(2): e(f"buffer_load_dwordx4 v31, {sr(S_W1)}, s85 offen offset:{1024*k} lds")
    if MODE:
        e(f"s_lshl3_add_u32 s96, s{S_B}, {WS_FLAG}")
        e(f"s_load_dwordx2 s[100:101], {sr(S_WS,2)}, s96")
    if AMPM:
        e(f"s_lshl3_add_u32 s5, s{S_B}, {WS_FLAG}")
        e(f"s_load_dwordx2 s[90:91], {sr(S_WS,2)}, s5")
    lab("P0_ISS")
    stamp(15); lstamp(15)
    for s, off in ((S_B1, 40), (S_W2, 48), (S_B2, 56), (S_OUT, 64)):
        e(f"s_load_dwordx2 {sr(s,2)}, s[0:1], {off}")
    e(f"v_mov_b32 v{V_TID}, v0")
    for s, sz in ((S_SRC, E*4), (S_E, E*2), (S_B1, 256), (S_W2, 16384), (S_B2, 128), (S_WS, WS_SIZE), (S_OUT, N*128), (S_P, 256*NPB*256 + PSH)):
        e(f"s_mov_b32 s{s+2}, {sz}")
        e(f"s_mov_b32 s{s+3}, s{S_DST+3}")
    e(f"s_mov_b32 s80, {hex(f2u(-LOG2E))}")
    e("s_mov_b32 s81, s80")
    e(f"v_lshrrev_b32 v38, 5, v{V_LANE}")
    e(f"v_and_b32 v39, 31, v{V_LANE}")
    e("v_bfe_u32 v40, v39, 2, 1")
    e("v_and_b32 v41, 1, v39")
    e("v_lshl_add_u32 v40, v40, 1, v41")
    e("v_lshrrev_b32 v42, 3, v39")
    e("v_bfe_u32 v43, v39, 1, 1")
    e(f"v_bfe_u32 v44, v{V_LANE}, 2, 2")
    e(f"v_and_b32 v46, 3, v{V_LANE}")
    e("v_lshlrev_b32 v46, 3, v46")
    e("v_lshl_add_u32 v46, v45, 5, v46")
    e(f"s_and_b32 s82, s{S_W}, 3")
    e(f"s_lshr_b32 s83, s{S_W}, 2")
    e("v_xor_b32 v50, s82, v44")
    e("v_lshl_add_u32 v50, v50, 6, v46")
    e("v_lshl_add_u32 v51, v38, 3, v44")
    e("v_lshl_add_u32 v50, v51, 8, v50")
    e("v_lshl_add_u32 v51, v40, 1, v43")
    e("v_mul_u32_u24 v52, 1088, v42")
    e("v_lshl_add_u32 v52, v51, 7, v52")
    e("s_mul_i32 s5, s83, 4352")
    e(f"s_add_u32 s5, s5, {L_XS}")
    e("v_add_u32 v52, s5, v52")
    e("v_xor_b32 v53, v38, v40")
    e("v_lshl_add_u32 v51, v53, 4, v52")
    e("v_xor_b32 v53, 2, v53")
    e("v_lshl_add_u32 v52, v53, 4, v52")
    e("s_lshl_b32 s5, s83, 5")
    e("v_add_u32 v55, s5, v39")
    e(f"v_cmp_gt_u32 s[88:89], {NPB}, v55")
    e("s_lshl_b32 s82, s82, 6")
    e("v_lshl_add_u32 v49, v38, 3, s82")
    e(f"v_add_u32 v56, {L_QT}, v49")
    e(f"v_mul_u32_u24 v53, {PS}, v55")
    e("v_add_u32 v53, v53, v56")
    e(f"v_mul_u32_u24 v54, {QS}, v55")
    e("v_add_u32 v54, v54, v56")
    assert PS == 272
    e(f"s_mov_b32 s7, {L_PS}")
    e("v_lshlrev_b32 v61, 4, v0")
    e("v_and_b32 v56, -16, v0")
    e("v_add3_u32 v62, v61, v56, s7")
    e(f"s_min_u32 s5, s{S_W}, 2")
    e(f"s_lshl2_add_u32 s5, s{S_W}, s5")
    e("s_add_u32 s5, s5, 64")
    e("s_lshl_b32 s5, s5, 3")
    e(f"v_add_u32 v55, s5, v{V_LANE}")
    e("v_lshlrev_b32 v63, 4, v55")
    e("v_and_b32 v56, -16, v55")
    e("v_add3_u32 v22, v63, v56, s7")
    e(f"s_cmp_lt_u32 s{S_W}, 2")
    e("s_cselect_b32 s71, 40, 32")
    lstamp(23)
    if not LATEI: init_tables(84)
    e(f"s_mul_i32 s6, s{S_B}, {NPB*256}")
    e(f"s_add_u32 s6, s6, {WS_PT}")
    e(f"s_mov_b32 s87, {128*256}")
    e("v_mov_b32 v55, 1")
    e(f"v_lshlrev_b32 v36, 2, v{V_LANE}")
    e("v_lshrrev_b32 v34, 1, v32")
    e("s_movk_i32 s84, 4096")
    stamp(16); lstamp(16)
    SD = "dst_sel:DWORD dst_unused:UNUSED_PAD src0_sel:DWORD"
    def binA(j):
        e(f"v_lshlrev_b32_sdwa v{112+j}, 2, v{64+j} {SD} src1_sel:BYTE_0")
        e(f"ds_add_rtn_u32 v{120+j}, v{112+j}, v55 offset:{L_CNT1}")
    def binB(j):
        e(f"v_lshlrev_b32_sdwa v{129+2*j}, 2, v{64+j} {SD} src1_sel:BYTE_1")
        if j % 2 == 0: e(f"v_lshlrev_b32 v56, 16, v{80+j//2}")
        else: e(f"v_and_b32 v56, 0xffff0000, v{80+j//2}")
        e(f"v_mul_u32_u24_sdwa v57, {NPB}, v{72+j} {SD} src1_sel:BYTE_0")
        e(f"v_add_u32_sdwa v57, v57, v{72+j} {SD} src1_sel:BYTE_1")
        e(f"v_or3_b32 v{128+2*j}, v56, v57, s87")
    def masked(tag, f):
        e("s_mov_b64 exec, s[74:75]")
        e(f"s_cbranch_execz {tag}")
        f()
        lab(tag)
        e("s_mov_b64 exec, -1")
    assert 128 * 256 == 0x8000
    e(f"v_lshlrev_b32 v58, 4, v{V_LANE}")
    e(f"v_lshlrev_b32 v23, 1, v{V_LANE}")
    e("s_waitcnt vmcnt(3)")
    stamp(3)
    def ldA():
        e(f"buffer_load_dwordx4 v[72:75], v32, {sr(S_SRC)}, 0 offen {LDF}")
        e(f"buffer_load_dwordx2 v[80:81], v34, {sr(S_E)}, 0 offen {LDF}")
    def ldB():
        e(f"buffer_load_dwordx4 v[76:79], v32, {sr(S_SRC)}, s86 offen {LDF}")
        e(f"buffer_load_dwordx2 v[82:83], v34, {sr(S_E)}, s84 offen {LDF}")
    if ORD == 1: ldA()
    for j in range(4): binA(j)
    if ORD == 2: ldA()
    e("s_mov_b64 exec, s[74:75]")
    e("s_cbranch_execz P1_A")
    if ORD == 1: ldB()
    for j in range(4, 8): binA(j)
    if ORD == 2: ldB()
    e("s_mov_b64 exec, -1")
    e("s_waitcnt vmcnt(4)")
    e("s_branch P1_A2")
    lab("P1_A")
    e("s_mov_b64 exec, -1")
    e("s_waitcnt vmcnt(2)")
    lab("P1_A2")
    e("s_add_u32 s86, s85, 16384")
    e(f"s_add_u32 m0, s86, {L_W1S}")
    e(f"s_cmp_eq_u32 s{S_W}, 7")
    e("s_waitcnt lgkmcnt(0)")
    e("s_barrier")
    stamp(4); lflush()
    if os.environ.get("PRES"):
        e(f"s_mov_b32 s90, {eval(os.environ.get('PRESA', 'WS_FLAG + 8 * 200'))}")
        e(f"s_load_dwordx2 s[98:99], {sr(S_WS,2)}, s90")
        e("s_waitcnt lgkmcnt(0)")
        mode = os.environ["PRES"]
        if mode == "1":
            e("s_xor_b32 s98, s98, s79")
            e("s_xor_b32 s99, s99, s78")
            e("s_or_b32 s98, s98, s99")
        elif mode == "3":
            e("s_xor_b32 s98, s98, s79")
            e("s_xor_b32 s99, s99, s78")
            e("s_or_b32 s98, s98, s99")
            e("s_cmp_eq_u32 s78, s79")
            e("s_cselect_b32 s98, 1, s98")
        elif mode == "4":
            e("s_xor_b32 s98, s98, s79")
            e("s_xor_b32 s99, s99, s78")
            e("s_or_b32 s98, s98, s99")
            e("s_cmp_eq_u32 s98, 0")
            e("s_cselect_b32 s98, 1, 0")
        elif mode == "2":
            e("s_xor_b32 s98, s78, s79")
        e("s_cmp_eq_u32 s98, 0")
        e("s_cselect_b32 s100, 10000, 0")
        e("s_mov_b32 s98, 0")
        e(f"s_cmp_eq_u32 s{S_W}, 7")
    if XT:
        reg, n, fl = XT.split(",")
        base, stride = {"fresh": (WS_SIZE - 256 * GCS, GCS), "pt": (WS_PT, NPB * 256), "ent": (WS_ENT, GCS), "ptf": (WS_SIZE - 256 * GCS, NPB * 256), "wpt": (WS_PT, NPB * 256), "wptf": (WS_SIZE - 256 * GCS, NPB * 256)}[reg]
        e("s_waitcnt vmcnt(0)")
        e("s_barrier")
        stamp(40)
        e(f"s_mul_i32 s90, s{S_B if reg[:2] == 'pt' else 2}, {stride}")
        e(f"s_add_u32 s90, s90, {base}")
        for k in range(int(n)):
            e(f"buffer_store_dwordx4 v[64:67], v61, {sr(S_WS)}, s90 offen {fl}")
            e("s_add_u32 s90, s90, 8192")
        e("s_waitcnt vmcnt(0)")
        e("s_barrier")
        stamp(41)
        e(f"s_cmp_eq_u32 s{S_W}, 7")
    def tags():
        e(f"s_mul_i32 s{S_TAGB}, s78, 1664525")
        e(f"s_add_u32 s{S_TAGB}, s{S_TAGB}, 1013904223")
        e(f"s_add_u32 s{S_TAGA}, s79, 0x01000000")
        e(f"s_and_b32 s{S_TAGA}, s{S_TAGA}, 0xff000000")
    def p_reads():
        for ks in range(4):
            e(f"ds_read_b64_tr_b16 {vr(88+4*ks,2)}, v50 offset:{L_W1S+4096*ks}")
            e(f"ds_read_b64_tr_b16 {vr(90+4*ks,2)}, v50 offset:{L_W1S+4096*ks+1024}")
            e(f"ds_read_b128 {vr(160+4*ks,4)}, v{51+(ks&1)} offset:{64*(ks>>1)}")
    def p_mfma(counted=False):
        for ks in range(4):
            if counted: e(f"s_waitcnt lgkmcnt({9-3*ks})")
            e(mf16(144, 88 + 4*ks, 160 + 4*ks, "0" if ks == 0 else vr(144, 16)))
    def p_fin():
        for i in range(8): e(f"v_pk_mul_f32 {vr(144+2*i,2)}, {vr(144+2*i,2)}, s[80:81]")
        for i in range(8): e(f"v_cvt_pk_bf16_f32 v{88+i}, v{144+2*i}, v{145+2*i}")
        e("s_mov_b64 exec, s[88:89]")
        for q in range(4): e(f"ds_write_b64 v53, {vr(88+2*q,2)} offset:{16*q}")
        e("s_mov_b64 exec, -1")
    def late():
        for k in range(2): e(f"buffer_load_dwordx4 v31, {sr(S_W1)}, s86 offen offset:{1024*k} lds")
    e("s_cbranch_scc1 P1_SCAN")
    p_reads()
    p_mfma(True)
    tags()
    e(f"s_cmp_eq_u32 s{S_W}, 6")
    e("s_cbranch_scc0 P1_H6")
    e(f"buffer_load_dword v20, v36, {sr(S_W1)}, s87 offen")
    e(f"buffer_load_ushort v21, v23, {sr(S_B2)}, 0 offen")
    e(f"buffer_load_dword v19, v36, {sr(S_B1)}, 0 offen")
    lab("P1_H6")
    e("s_nop 3")
    e("s_branch P1_HJ")
    lab("P1_SCAN")
    e("s_setprio 3")
    e(f"ds_read_b128 v[136:139], v58 offset:{L_CNT1}")
    p_reads()
    tags()
    e(f"s_mul_i32 s7, s2, {DS}")
    e(f"s_add_u32 s7, s7, {WS_DESC}")
    e("s_waitcnt lgkmcnt(0)")
    p_mfma()
    e("v_add_u32 v57, v136, v137")
    e("v_add_u32 v56, v57, v138")
    e("v_add_u32 v59, v56, v139")
    e("v_mov_b32 v60, v59")
    scan64(59)
    e("v_sub_u32 v140, v59, v60")
    e("v_add_u32 v141, v140, v136")
    e("v_add_u32 v142, v140, v57")
    e("v_add_u32 v143, v140, v56")
    e(f"ds_write_b128 v58, v[140:143] offset:{L_BASE1}")
    lab("P1_HJ")
    late()
    p_fin()
    e("s_waitcnt lgkmcnt(0)")
    e("s_barrier")
    e("s_setprio 0")
    stamp(5)
    e("ds_read_b128 v[104:107], v62")
    e("ds_read_b128 v[108:111], v22")
    for j in range(4): e(f"ds_read_b32 v{112+j}, v{112+j} offset:{L_BASE1}")
    e("s_waitcnt lgkmcnt(4)")
    e(f"buffer_store_dwordx4 v[104:107], v61, {sr(S_WS)}, s6 offen {PSF}")
    e("s_bfm_b64 exec, s71, 0")
    e(f"buffer_store_dwordx4 v[108:111], v63, {sr(S_WS)}, s6 offen {PSF}")
    def w(j):
        e(f"v_add_lshl_u32 v{112+j}, v{112+j}, v{120+j}, 3")
        e(f"ds_write_b64 v{112+j}, {vr(128+2*j,2)} offset:{L_STG}")
    def partA():
        for j in range(4): binB(j)
        e("s_waitcnt lgkmcnt(0)")
        for j in range(4): w(j)
    e("s_mov_b64 exec, s[74:75]")
    e("s_cbranch_execz P1_S1")
    for j in range(4, 8): e(f"ds_read_b32 v{112+j}, v{112+j} offset:{L_BASE1}")
    e("s_mov_b64 exec, -1")
    e("s_waitcnt vmcnt(6)")
    partA()
    e("s_mov_b64 exec, s[74:75]")
    e("s_waitcnt vmcnt(4)")
    for j in range(4, 8): binB(j)
    for j in range(4, 8): w(j)
    e("s_mov_b64 exec, -1")
    e("s_branch P1_JOIN")
    lab("P1_S1")
    e("s_mov_b64 exec, -1")
    e(f"s_cmp_eq_u32 s{S_W}, 7")
    e("s_cbranch_scc0 P1_S2")
    for j in range(4):
        e(f"v_lshl_or_b32 v{96+2*j}, v{136+j}, 12, v{140+j}")
        e(f"v_or_b32 v{96+2*j}, s{S_TAGA}, v{96+2*j}")
        e(f"v_mov_b32 v{97+2*j}, s{S_TAGB}")
    e(f"buffer_store_dwordx4 v[96:99], v58, {sr(S_WS)}, s7 offen sc1")
    e(f"buffer_store_dwordx4 v[100:103], v58, {sr(S_WS)}, s7 offen offset:1024 sc1")
    lab("P1_S2")
    e(f"s_cmp_ge_u32 s{S_W}, 6")
    e("s_waitcnt vmcnt(6)")
    e("s_cbranch_scc1 P1_S3")
    e("s_waitcnt vmcnt(4)")
    lab("P1_S3")
    partA()
    lab("P1_JOIN")
    e(f"s_mul_i32 s5, s2, {GCS}")
    e(f"s_add_u32 s5, s5, {WS_ENT}")
    e("s_waitcnt lgkmcnt(0)")
    e("s_barrier")
    stamp(6)
    if AMPM:
        e("s_xor_b32 s90, s90, s79")
        e("s_xor_b32 s91, s91, s78")
        e("s_or_b32 s90, s90, s91")
        e("s_cmp_eq_u32 s90, 0")
        e("s_cselect_b32 s90, 3, 4")
        e("s_cmp_eq_u32 s78, s79")
        e("s_cselect_b32 s97, 2, s90")
    for k in range(3): e(f"ds_read_b128 {vr(64+4*k,4)}, v61 offset:{L_STG+8192*k}")
    e(f"s_cmp_eq_u32 s{S_W}, 7")
    e("s_cbranch_scc0 P1_C")
    e(f"ds_read_b128 v[76:79], v58 offset:{L_STG+24576}")
    e("s_add_u32 s7, s5, 24576")
    e("s_bfm_b64 exec, 32, 0")
    e("s_waitcnt lgkmcnt(0)")
    e(f"buffer_store_dwordx4 v[76:79], v58, {sr(S_WS)}, s7 offen {STF}")
    e("s_mov_b64 exec, -1")
    lab("P1_C")
    for k in range(3):
        e(f"s_waitcnt lgkmcnt({2-k})")
        e(f"buffer_store_dwordx4 {vr(64+4*k,4)}, v61, {sr(S_WS)}, s5 offen {STF}")
        if k < 2: e("s_add_u32 s5, s5, 8192")
    def loop_consts():
        e("v_lshlrev_b32 v58, 1, v39")
        e("v_lshl_add_u32 v58, v38, 9, v58")
        e(f"v_add_u32 v{V_CA}, s{S_M0[0]}, v58")
        e("v_lshlrev_b32 v58, 4, v48")
        e(f"v_add_u32 v{V_DMAC}, 0x800000, v58")
        e("v_and_b32 v58, 1, v47")
        e("v_lshlrev_b32 v58, 4, v58")
        e(f"v_add_u32 v{V_LIO}, {L_LIST}, v58")
        e("v_lshl_add_u32 v58, v42, 1, v43")
        e("v_lshlrev_b32 v58, 2, v58")
        e(f"v_add_u32 v{V_LMO}, {L_LIST}, v58")
        e(f"s_mul_i32 s76, s{S_W}, {TR*16}")
        e(f"s_add_u32 s76, s76, {L_GT}")
        e(f"s_mul_i32 s77, s{S_W}, {TR*SELS}")
        e(f"v_lshl_add_u32 v{V_SAVE}, v37, 2, s76")
        e(f"v_lshl_add_u32 v{V_SAVE+1}, v40, 2, s76")
        e(f"v_lshl_add_u32 v{V_SAVE+2}, v44, 2, s76")
        e(f"v_lshl_add_u32 v58, v38, 6, v{V_SB}")
        e(f"v_add_u32 v{V_SAVE+3}, s77, v58")
        e("v_cmp_eq_u32 vcc, 0, v38")
        e("v_mov_b32 v59, 0x03020100")
        e("v_mov_b32 v58, 0x0c080c0c")
        e(f"v_cndmask_b32 v{V_PSEL}, v59, v58, vcc")
        e(f"v_cndmask_b32 v{V_QMUL}, 0, 1, vcc")
        e("v_add_u32 v58, 1, v44")
        e("v_lshrrev_b32 v58, 1, v58")
        e("v_and_b32 v59, 1, v44")
        e("v_mul_u32_u24 v58, v58, v59")
        e("v_mul_u32_u24 v58, 320, v58")
        e(f"v_add_u32 v58, {L_EXT}, v58")
        e(f"v_mov_b32 v59, {L_QT}")
        e("v_cndmask_b32 v58, v58, v59, vcc")
        e(f"v_add_u32 v{V_QC}, v46, v58")
        e(f"v_mov_b32 v58, {hex(find_cx(0x00803F80))}")
        e(f"v_mov_b32 v59, {hex(find_cx(0x3F800000))}")
        e("v_cmp_eq_u32 s[6:7], 1, v41")
        e("v_cmp_gt_u32 s[76:77], 2, v40")
        e("s_nop 0")
        e("v_cndmask_b32 v58, v58, v59, s[6:7]")
        e("v_cndmask_b32 v59, 0, v58, s[76:77]")
        e("v_cndmask_b32 v58, v58, 0, s[76:77]")
        e(f"v_cndmask_b32 v{CX}, 1.0, v59, vcc")
        e(f"v_cndmask_b32 v{CX+1}, 1.0, v58, vcc")
        e("v_lshl_add_u32 v58, v38, 2, v44")
        e("v_lshl_add_u32 v58, v45, 4, v58")
        e("v_lshrrev_b32 v59, 1, v44")
        e("v_lshl_add_u32 v58, v58, 1, v59")
        e("v_and_b32 v59, 31, v46")
        e("v_lshl_add_u32 v58, v58, 6, v59")
        e(f"v_add_u32 v{V_W2A}, {L_W2}, v58")
    if LATEI: init_tables(120)
    absmax16(56, 144)
    e("v_mov_b32 v57, 0")
    e(f"v_cmp_nge_f32 vcc, {BP}, v56")
    e("s_mov_b64 exec, vcc")
    e(f"ds_write_b32 v57, v55 offset:{L_PUN}")
    e("s_mov_b64 exec, -1")
    e("v_lshlrev_b32 v31, 2, v45")
    e(f"v_xor_b32 v31, v31, v{V_LANE}")
    e("v_lshlrev_b32 v31, 4, v31")
    e(f"s_mov_b32 s{S_EARLY}, 2")
    e(f"s_cmp_eq_u32 s{S_W}, 6")
    e("s_cbranch_scc0 P0_NOEXT")
    e("s_waitcnt vmcnt(5)")
    e("v_lshlrev_b32 v118, 16, v19")
    e("v_and_b32 v119, 0xffff0000, v19")
    e("v_lshlrev_b32 v117, 1, v36")
    e(f"ds_write_b64 v117, v[118:119] offset:{L_B1}")
    e("v_lshlrev_b32 v112, 16, v20")
    e("v_and_b32 v113, 0xffff0000, v20")
    e("v_mul_f32 v112, s80, v112")
    e("v_mul_f32 v113, s80, v113")
    e("v_cvt_pk_bf16_f32 v114, v112, v113")
    e("v_lshlrev_b32 v115, 16, v114")
    e("v_and_b32 v116, 0xffff0000, v114")
    e("v_sub_f32 v115, v112, v115")
    e("v_sub_f32 v116, v113, v116")
    e("v_cvt_pk_bf16_f32 v115, v115, v116")
    e("v_max_f32_e64 v117, |v112|, |v113|")
    e(f"ds_max_u32 v57, v117 offset:{L_WMX}")
    e("v_lshlrev_b32 v116, 16, v21")
    e(f"ds_write_b32 v36, v114 offset:{L_EXT+320}")
    e(f"ds_write_b32 v36, v115 offset:{L_EXT+640}")
    e(f"ds_write_b32 v36, v116 offset:{L_B2}")
    lab("P0_NOEXT")
    e(f"s_add_u32 s{S_P}, s{S_WS}, {WS_PT - PSH}")
    e(f"s_addc_u32 s{S_P+1}, s{S_WS+1}, 0")
    e(f"v_mov_b32 v252, s{S_TAGA}")
    e(f"v_mov_b32 v253, s{S_TAGB}")
    e(f"v_mul_u32_u24 v254, {DS}, v{V_LANE}")
    e("v_lshlrev_b32 v49, 1, v49")
    for j in range(8): e(f"s_movk_i32 s{S_SOFF+j}, {PSH - 1024*(j&3) + 128*(j>>2)}")
    e(f"s_movk_i32 s{S_256}, 256")
    e(f"s_mul_i32 s{S_M0[0]}, s{S_W}, {TBW}")
    e(f"s_add_u32 s{S_M0[0]}, s{S_M0[0]}, {L_TB}")
    e(f"s_add_u32 s{S_M0[1]}, s{S_M0[0]}, 4096")
    e(f"s_mov_b32 s{S_WN}, 32")
    e(f"s_mov_b32 s{S_RB}, 0")
    e(f"s_mov_b32 s{S_SPIN}, 0x40000")
    e(f"v_mul_u32_u24 v56, {LS}, v{V_LANE}")
    e(f"v_mul_u32_u24 v57, {QS}, v{V_LANE}")
    e(f"v_add_u32 v{V_L0}, {L_LIST}, v56")
    e(f"v_lshl_or_b32 v{V_GV}, v57, 16, v56")
    e(f"v_and_b32 v{V_J0}, 15, v{V_LANE}")
    e(f"v_lshlrev_b32 v56, 2, v{V_J0}")
    e(f"v_add_u32 v{V_SB}, {L_SEL}, v56")
    e(f"v_mul_u32_u24 v56, 43, v{V_LANE}")
    e("v_lshrrev_b32 v57, 8, v56")
    e(f"v_mul_u32_u24 v57, {4*TR-6}, v57")
    e(f"v_add3_u32 v{V_US}, v57, v{V_LANE}, -2")
    e(f"v_mov_b32 v{V_S32}, 0")
    e(f"s_mov_b32 exec_lo, {hex(STATIC & 0xffffffff)}")
    e(f"s_mov_b32 exec_hi, {hex(STATIC >> 32)}")
    e(f"v_mov_b32 v{V_S32}, 32")
    e("s_mov_b64 exec, -1")
    e("v_add_u32 v56, 86, v56")
    e("v_lshrrev_b32 v56, 8, v56")
    e("v_med3_u32 v56, v56, 2, 7")
    e(f"s_mov_b32 s5, {hex(0x01181818)}")
    e("v_mul_lo_u32 v56, v56, s5")
    e(f"v_add_u32 v{V_ZP}, {hex((-32 + -8 * 256 + 16 * 65536) & 0xffffffff)}, v56")
    def zp(k):
        st = lambda z: 0 if z <= 1 else (NPB if z >= 8 else 6 * z - 2)
        return 4 * st(k - 1) | 4 * st(k) << 8 | 4 * st(k + 1) << 16 | k << 24
    for k in range(3, 7): assert zp(k) == (k * 0x01181818 - 32 - 8 * 256 + 16 * 65536)
    for k, lo, n in ((1, 0, 10), (2, 10, 6), (7, 40, 9), (8, 49, 15)):
        e(f"s_bfm_b64 exec, {n}, {lo}")
        e(f"v_mov_b32 v{V_ZP}, {hex(zp(k))}")
    e("s_mov_b64 exec, -1")
    if not CL: loop_consts()
    if LATEI:
        e("s_waitcnt lgkmcnt(0)")
        e("s_barrier")
    assert LATEI
    e("v_mov_b32 v59, 0")
    e(f"ds_read_b64 v[22:23], v59 offset:{L_PUN}")
    static_writes(56, "A")
    e("v_lshl_add_u32 v56, v37, 3, v48")
    e(f"v_lshl_add_u32 v{V_CHK}, v56, 3, s{S_W}")
    e(f"v_mul_u32_u24 v33, {DS}, v{V_CHK}")
    desc_soff()
    e(f"buffer_load_dwordx2 v[34:35], v33, {sr(S_WS)}, s5 offen sc1")
    nyoung = 1
    e(f"s_lshl3_add_u32 s6, s{S_B}, {WS_FLAG}")
    stamp(18)
    e("s_waitcnt lgkmcnt(0)")
    e("v_or_b32 v252, v252, v22")
    e("v_readfirstlane_b32 s86, v23")
    e(f"s_waitcnt vmcnt({nyoung})")
    e("s_barrier")
    stamp(7)
    e(f"s_cmp_eq_u32 s{S_W}, 0")
    e("s_cbranch_scc0 P1_NF")
    e("s_mov_b64 exec, 0xff")
    e(f"buffer_store_dwordx2 v[252:253], v254, {sr(S_WS)}, s6 offen sc1")
    e("s_mov_b64 exec, -1")
    lab("P1_NF")
    if OWN:
        e(f"s_mul_i32 s6, s{S_B}, {NPB*256}")
        e(f"s_mul_i32 s7, s{S_W}, 13")
        e(f"v_add_u32 v56, s7, v{V_LANE}")
        e(f"v_min_u32 v56, {2*NPB-1}, v56")
        e("v_lshl_add_u32 v56, v56, 7, s6")
        e("s_bfm_b64 exec, 13, 0")
        e(f"buffer_load_dword v57, v56, {sr(S_P)}, s{S_SOFF} offen")
        e("s_mov_b64 exec, -1")
    for q in range(4): e(f"ds_read_b128 {vr(144+4*q,4)}, v49 offset:{L_B1+32*q}")
    for ks in range(4):
        e(f"ds_read_b64_tr_b16 {vr(80+4*ks,2)}, v50 offset:{L_W1S+16384+4096*ks}")
        e(f"ds_read_b64_tr_b16 {vr(82+4*ks,2)}, v50 offset:{L_W1S+16384+4096*ks+1024}")
    for ks in range(4):
        e(f"s_waitcnt lgkmcnt({6-2*ks})")
        e(mf16(144, 80 + 4*ks, 160 + 4*ks, vr(144, 16)))
    e("s_nop 7")
    e("s_nop 3")
    for i in range(8): e(f"v_pk_mul_f32 {vr(144+2*i,2)}, {vr(144+2*i,2)}, s[80:81]")
    for i in range(8): e(f"v_cvt_pk_bf16_f32 v{64+i}, v{144+2*i}, v{145+2*i}")
    absmax16(58, 144)
    e(f"v_cmp_nge_f32 s[90:91], {BP}, v58")
    e("s_mov_b64 exec, s[88:89]")
    for q in range(4): e(f"ds_write_b64 v54, {vr(64+2*q,2)} offset:{16*q}")
    e("s_mov_b64 exec, -1")
    stamp(19)
    if CL: loop_consts()

    lab("POLL1")
    e(f"v_mul_u32_u24 v32, {GCS}, v{V_CHK}")
    e(f"v_add_u32 v37, 16, v{V_J0}")
    e("v_bfrev_b32 v43, -2")
    e(f"v_cmp_gt_u32 vcc, s{S_WN}, v{V_J0}")
    e(f"v_add_u32 v38, s{S_RB}, v{V_J0}")
    e(f"v_add_u32 v39, s{S_RB}, v37")
    e("v_lshlrev_b32 v36, 3, v38")
    e("v_cndmask_b32 v38, v43, v38, vcc")
    e(f"v_cmp_gt_u32 vcc, s{S_WN}, v37")
    e(f"s_mov_b32 s7, {WS_ENT}")
    e("v_mov_b32 v55, 4")
    e("v_cndmask_b32 v39, v43, v39, vcc")
    e(f"s_waitcnt vmcnt({OWN})")
    lab("POLL")
    e(f"v_xor_b32 v34, s{S_TAGA}, v34")
    e(f"v_cmp_ne_u32 s[76:77], s{S_TAGB}, v35")
    e("v_cmp_le_u32 vcc, 0x1000000, v34")
    e("s_or_b64 vcc, vcc, s[76:77]")
    e("s_cbranch_scc0 POLLED")
    e(f"s_sub_u32 s{S_SPIN}, s{S_SPIN}, 1")
    e("s_cbranch_scc1 K_END")
    e(f"s_sleep {SLP}")
    e(f"buffer_load_dwordx2 v[34:35], v33, {sr(S_WS)}, s5 offen sc1")
    e("s_waitcnt vmcnt(0)")
    e("s_branch POLL")
    lab("POLLED")
    stamp(8)
    e("v_and_b32 v35, 0xfff, v34")
    e("v_lshrrev_b32 v34, 12, v34")
    e("v_lshl_add_u32 v35, v35, 3, v32")
    e(f"s_add_u32 s5, s{S_RB}, s{S_WN}")
    e("v_cmp_lt_u32 s[74:75], s5, v34")
    DP = "row_mask:0xf bank_mask:0xf"
    for i in range(8):
        e(f"v_mov_b32_dpp v43, v34 row_newbcast:{i} {DP}")
        e(f"v_add_u32_dpp v{44+i}, v35, v36 row_newbcast:{i} {DP}")
        e(f"v_cmp_lt_u32 {sr(S_MASK+2*i,2)}, v38, v43")
        e(f"v_cmp_lt_u32 {sr(S_MASK+16+2*i,2)}, v39, v43")
    e(f"v_lshlrev_b32 v54, 2, v{V_LANE}")
    e("v_mov_b32 v53, 0")
    e("s_mov_b64 exec, s[74:75]")
    e(f"ds_write_b32 v53, v55 offset:{L_FLAG}")
    e("s_mov_b64 exec, -1")
    if not W5: wave_reset()
    flag_load(True)
    lab("FPOLL")
    e("s_waitcnt vmcnt(0)")
    e(f"v_cmp_ne_u32 s[76:77], s{S_TAGB}, v61")
    e(f"v_xor_b32 v60, s{S_TAGA}, v60")
    e("v_cmp_lt_u32 vcc, 1, v60")
    e("s_or_b64 vcc, vcc, s[76:77]")
    e("s_cbranch_scc0 FPOLLED")
    e(f"s_sub_u32 s{S_SPIN}, s{S_SPIN}, 1")
    e("s_cbranch_scc1 K_END")
    e(f"s_sleep {SLP}")
    flag_load()
    e("s_branch FPOLL")
    lab("FPOLLED")
    stamp(17)
    for k in range(8, 16):
        e(f"s_mov_b64 exec, {sr(S_MASK+2*k,2)}")
        e(f"s_cbranch_execz R_L{k}")
        e(f"buffer_load_dwordx2 {vr(112+2*k,2)}, v{44+(k&7)}, {sr(S_WS)}, s7 offen offset:128 {ELF}")
        lab(f"R_L{k}")
    for k in range(8):
        e(f"s_or_b64 exec, {sr(S_MASK+2*k,2)}, 1")
        e(f"buffer_load_dwordx2 {vr(112+2*k,2)}, v{44+k}, {sr(S_WS)}, s7 offen {ELF}")
    e("s_mov_b64 exec, -1")
    if W5: wave_reset()
    e(f"s_cmp_eq_u32 s{S_EARLY}, 2")
    e("s_cbranch_scc0 R_NH")
    for i in range(32): e(f"v_pk_mul_f32 {vr(H+2*i,2)}, {vr(NN,2)}, {vr(NN,2)}")
    lab("R_NH")
    e("s_waitcnt vmcnt(8)")
    for k in list(range(8, 16)) + list(range(8)):
        e(f"s_mov_b64 exec, {sr(S_MASK+2*k,2)}")
        if k >= 8: e(f"s_cbranch_execz R_A{k}")
        else: e(f"s_waitcnt vmcnt({7-k})")
        e(f"ds_add_rtn_u32 v{T+k}, v{113+2*k}, v55 offset:{L_CNT2}")
        e(f"v_max_f32_e64 v{V_DMAX}, |v{112+2*k}|, v{V_DMAX}")
        if k >= 8: lab(f"R_A{k}")
    def list_writes(tag):
        for k in list(range(8, 16)) + list(range(8)):
            e(f"s_mov_b64 exec, {sr(S_MASK+2*k,2)}")
            if k >= 8: e(f"s_cbranch_execz {tag}{k}")
            e(f"ds_write_b32 v{T+k}, v{112+2*k}")
            if k >= 8: lab(f"{tag}{k}")
        e("s_mov_b64 exec, -1")
    e("s_mov_b64 exec, -1")
    e(f"s_cmp_eq_u32 s{S_EARLY}, 2")
    e("s_cbranch_scc0 R_NW2")
    e(f"s_add_u32 m0, s85, {L_W2}")
    e(f"s_mov_b32 s{S_EARLY}, 0")
    for k in range(2): e(f"buffer_load_dwordx4 v31, {sr(S_W2)}, s85 offen offset:{1024*k} lds")
    if POST:
        e("s_lshr_b32 s6, s2, 3")
        e(f"s_lshl_b32 s7, s{S_W}, 5")
        e("s_add_u32 s6, s6, s7")
        e(f"s_mul_i32 s6, s6, {NPB*256}")
        e(f"v_lshl_add_u32 v56, v{V_LANE}, 7, s6")
        e(f"s_bfm_b64 exec, {POST}, 0")
        e(f"buffer_load_dword v57, v56, {sr(S_P)}, s{S_SOFF} offen")
        e("s_mov_b64 exec, -1")
    lab("R_NW2")
    e(f"v_mul_f32 v{V_DMAX}, s86, v{V_DMAX}")
    e("v_cmp_ne_u32 s[76:77], 0, v60")
    e(f"v_cmp_nge_f32 vcc, {hex(f2u(BE))}, v{V_DMAX}")
    e("s_or_b64 s[76:77], s[76:77], s[90:91]")
    e("s_or_b64 exec, s[76:77], vcc")
    e(f"ds_write_b32 v53, v55 offset:{L_UNS}")
    e("s_mov_b64 exec, -1")
    e("s_waitcnt lgkmcnt(0)")
    stamp(20)
    list_writes("R_C")
    e("s_waitcnt lgkmcnt(0)")
    e("s_barrier")
    stamp(9)
    def mid():
        e(f"ds_read_b32 v32, v54 offset:{L_CNT2}")
        e(f"ds_read_b64 v[46:47], v53 offset:{L_FLAG}")
        e(f"ds_read_b32 v34, v54 offset:{L_DEG}")
        return 3
    first_tile(mid)
    e("s_waitcnt lgkmcnt(0)")
    e(f"v_sub_u32 v32, v32, v{V_L0}")
    e("v_add_u32 v35, 28, v32")
    e(f"v_max_u32 v35, v35, v{V_S32}")
    e(f"v_sub_u32 v35, v35, v{V_S32}")
    e("v_lshrrev_b32 v35, 5, v35")
    e("v_mov_b32 v36, v35")
    e("v_lshrrev_b32 v32, 2, v32")
    scan64(36)
    e(f"v_readfirstlane_b32 s{S_MORE}, v46")
    e(f"v_readfirstlane_b32 s{S_SAFE}, v47")
    e("v_readlane_b32 s7, v36, 63")
    e("v_sub_u32 v36, v36, v35")
    e(f"v_lshrrev_b32 v41, 8, v{V_ZP}")
    e(f"v_lshrrev_b32 v42, 16, v{V_ZP}")
    e(f"ds_bpermute_b32 v40, v{V_ZP}, v36")
    e("ds_bpermute_b32 v41, v41, v36")
    e("ds_bpermute_b32 v42, v42, v36")
    e(f"v_lshrrev_b32 v43, 24, v{V_ZP}")
    e("s_add_u32 s7, s7, 3")
    e("s_bfe_u32 s6, s7, 0x30002")
    e("s_lshr_b32 s7, s7, 5")
    e("v_add_u32 v44, -1, v43")
    e("v_min_u32 v37, s6, v44")
    e("v_min_u32 v38, s6, v43")
    e("v_mad_u32_u24 v37, v44, s7, v37")
    e("v_mad_u32_u24 v38, v43, s7, v38")
    e("v_lshlrev_b32 v37, 2, v37")
    e("v_lshlrev_b32 v38, 2, v38")
    e(f"v_mul_u32_u24 v44, {4*TR}, v44")
    e(f"s_movk_i32 s5, {LCAP}")
    e("v_cmp_lt_u32 s[76:77], s5, v32")
    e(f"s_mul_i32 s5, s{S_W}, 6")
    e("s_add_u32 s5, s5, 7")
    e(f"v_add_u32 v39, v{V_GV}, v{V_S32}")
    e("s_waitcnt lgkmcnt(0)")
    e("v_med3_u32 v37, v37, v40, v41")
    e("v_med3_u32 v38, v38, v41, v42")
    e("v_sub_u32 v45, v38, v37")
    e(f"v_cmp_lt_u32 vcc, {4*(TW-1)}, v45")
    e("v_sub_u32 v37, v44, v37")
    e(f"v_readlane_b32 s{S_NT}, v45, s5")
    e("v_sub_u32 v33, v44, v38")
    e("v_add_u32 v37, 4, v37")
    e(f"v_add_u32 v33, {4*TR+4}, v33")
    e("s_cbranch_vccz R_FITS")
    e(f"s_lshr_b32 s{S_WN}, s{S_WN}, 2")
    e(f"s_max_u32 s{S_WN}, s{S_WN}, 1")
    e("s_branch NEXT_ROUND")
    lab("R_FITS")
    e(f"s_mov_b32 s{S_EARLY}, 1")
    e("s_cmp_eq_u64 s[76:77], 0")
    e("s_cbranch_scc0 R_COMPACT")
    lab("R_TABLE")
    e("v_mov_b32 v41, 0x3f80")
    e(f"s_mov_b32 s6, s{S_W}")
    e(f"s_mov_b32 s82, {L_GT}")
    lab("R_GT")
    e("v_cmp_lt_u32 vcc, s6, v35")
    e("s_and_b64 exec, exec, vcc")
    e("s_cbranch_execz R_GTE")
    e("v_add_u32 v44, s6, v36")
    e("v_cmp_lt_u32 vcc, v44, v38")
    e("s_lshl_b32 s7, s6, 5")
    e("v_add_u32 v47, s7, v39")
    e("v_cndmask_b32 v45, v33, v37, vcc")
    e("v_add_u32 v44, v44, v45")
    e("v_lshl_add_u32 v45, v44, 2, s82")
    e("ds_write_b32 v45, v47")
    e("v_lshrrev_b32 v46, 1, v44")
    e(f"v_lshl_add_u32 v46, v46, 6, v{V_SB}")
    e("v_and_b32 v44, 1, v44")
    e("v_lshl_add_u32 v46, v44, 1, v46")
    e("ds_write_b16 v46, v41")
    e("s_add_u32 s6, s6, 8")
    e("s_branch R_GT")
    lab("R_GTE")
    e("s_mov_b64 exec, -1")
    e(f"s_add_u32 s{S_NT}, s{S_NT}, 7")
    e(f"s_lshr_b32 s{S_NT}, s{S_NT}, 2")
    e(f"s_cmp_eq_u32 s{S_W}, 0")
    e("s_cbranch_scc0 R_ND")
    e("v_add_u32 v34, v34, v32")
    e(f"ds_write_b32 v54, v34 offset:{L_DEG}")
    lab("R_ND")
    e(f"s_cmp_eq_u32 s{S_EARLY}, 0")
    e("s_waitcnt vmcnt(4) lgkmcnt(0)")
    e("s_barrier")
    stamp(10)
    e("s_cbranch_scc1 WAVE_REDO")
    lab("WAVE_GO")
    e(f"ds_read_u16 v31, v{V_GIA} offset:16")
    e(f"ds_read_u16 v{V_LI}, v{V_GIA} offset:32")
    e(f"ds_read_u16 v{V_LM}, v{V_GMA} offset:16")
    e(f"s_mov_b32 m0, s{S_M0[1]}")
    e(PERM)
    e(f"v_xor_b32 v27, 64, v{V_W2A}")
    e(AXB)
    e("s_waitcnt vmcnt(0)")
    for s in c_reads(0)[:16] + [tr_read(0)]: e(s)
    if D1 == 0:
        for s in dma(1): e(s)
    for s in c_reads(0)[16:27]: e(s)
    e("s_waitcnt lgkmcnt(11)")
    e(mfext(0))
    for s in c_reads(0)[27:] + [tr_read(1)]: e(s)
    if D1 == 1:
        for s in dma(1): e(s)
    e(f"s_sub_u32 s{S_REM}, s{S_NT}, 1")
    e(f"s_mov_b32 m0, s{S_M0[0]}")
    e(f"v_add_u32 v31, v31, v{V_LIO}")
    e(f"ds_read_b128 {vr(IDR,4)}, v31")
    stamp(11); stamp(28, True)
    e(f"s_cmp_lg_u32 s{S_SAFE}, 0")
    e("s_waitcnt lgkmcnt(1)")
    e("s_cbranch_scc1 PEELS")
    for safe in (False, True):
        out.append(".p2align 3")
        if safe: lab("PEELS")
        emit(block(0, 0, safe, gate=PG, peel=True))
        e("s_waitcnt lgkmcnt(0)")
        e("s_nop 0")
        for s in mads(): e(s)
        e("s_setprio 0")
        e("s_nop 0")
        for s in dma(0): e(s)
        e(f"s_branch ENTER{'S' if safe else 'F'}")

    lab("R_COMPACT")
    e("s_barrier")
    fill_list(40)
    e(f"v_add_lshl_u32 v44, v36, v{V_LANE}, 5")
    e(f"v_add_u32 v44, {L_LIST}, v44")
    e(f"v_sub_u32 v44, v44, v{V_L0}")
    e("v_add_u32 v39, v39, v44")
    for k in range(16): e(f"ds_bpermute_b32 v{113+2*k}, v{113+2*k}, v44")
    e(f"v_lshlrev_b32 v45, 2, v{V_US}")
    e(f"v_add_u32 v45, {L_GT}, v45")
    e(f"v_add_u32 v46, v{V_GV}, v44")
    e(f"s_mov_b32 exec_lo, {hex(STATIC & 0xffffffff)}")
    e(f"s_mov_b32 exec_hi, {hex(STATIC >> 32)}")
    e("ds_write_b32 v45, v46")
    e("s_mov_b64 exec, -1")
    e("s_waitcnt lgkmcnt(0)")
    e("s_barrier")
    for k in range(16): e(f"v_add_u32 v{T+k}, v{T+k}, v{113+2*k}")
    list_writes("R_D")
    e(f"s_mov_b32 s{S_EARLY}, 0")
    e("s_branch R_TABLE")
    lab("WAVE_REDO")
    e("s_setprio 0")
    e("s_waitcnt vmcnt(0)")
    wave_reset()
    first_tile()
    e("s_waitcnt lgkmcnt(0)")
    e("s_branch WAVE_GO")

    mainloop(False)
    mainloop(True)

    lab("NEXTR")
    e(f"s_add_u32 s{S_RB}, s{S_RB}, s{S_WN}")
    lab("NEXT_ROUND")
    e("s_setprio 0")
    e("s_waitcnt vmcnt(0) lgkmcnt(0)")
    e("s_barrier")
    init_tables(32)
    e("s_waitcnt lgkmcnt(0)")
    e("s_barrier")
    static_writes(32, "B")
    e(f"v_mul_u32_u24 v33, {DS}, v{V_CHK}")
    desc_soff()
    e(f"buffer_load_dwordx2 v[34:35], v33, {sr(S_WS)}, s5 offen sc1")
    e("s_waitcnt vmcnt(0) lgkmcnt(0)")
    e("s_barrier")
    e("s_branch POLL1")

    out.append(".p2align 3")
    lab("DRAIN")
    e("s_waitcnt lgkmcnt(0)")
    e(f"s_cmp_lg_u32 s{S_MORE}, 0")
    for ct in range(4): e(mfsel(ct))
    stamp(12); stamp(29, True)
    e("s_cbranch_scc1 NEXTR")
    e(f"v_lshrrev_b32 v96, 4, v{V_LANE}")
    e(f"v_mul_u32_u24 v97, 272, v{V_J0}")
    e("v_lshl_add_u32 v97, v96, 4, v97")
    e(f"v_add_u32 v97, s{S_M0[0]}, v97")
    e(f"v_lshrrev_b32 v98, 3, v{V_TID}")
    e(f"v_and_b32 v99, 7, v{V_TID}")
    e("s_mov_b32 s6, 0xffff0000")
    e("s_mov_b32 s7, s6")
    O = D[0]
    def cv(ct):
        return ([f"v_cvt_pk_bf16_f32 v{64+4*ct+i}, v{H+16*ct+2*i}, v{H+16*ct+2*i+1}" for i in range(4)] + ["s_mov_b64 exec, s[6:7]"] +
                [f"v_cvt_pk_bf16_f32 v{64+4*ct+i}, v{H+16*ct+8+2*i}, v{H+16*ct+9+2*i}" for i in range(4)] + ["s_mov_b64 exec, -1"])
    rest = ["v_mul_u32_u24 v100, 43, v98", "v_add_u32 v100, 86, v100", "v_lshrrev_b32 v100, 8, v100", "v_med3_u32 v100, v100, 1, 7",
            f"v_mul_u32_u24 v100, {TBW}, v100", "v_and_b32 v101, 15, v98", "v_mul_u32_u24 v101, 272, v101", "v_lshlrev_b32 v102, 5, v99",
            "v_add3_u32 v100, v100, v101, v102", f"v_subrev_u32 v100, {TBW}, v100", "v_lshlrev_b32 v101, 2, v98", "v_lshlrev_b32 v103, 15, v98"]
    for s in cv(0) + cv(1): e(s)
    for ct in range(4):
        for ot in range(4):
            e(f"v_mfma_f32_16x16x32_bf16 {vr(O+4*ot,4)}, {vr(w2f(ct,ot),4)}, {vr(64+4*ct,4)}, " + ("0" if ct == 0 else vr(O+4*ot,4)))
            if ct >= 1:
                e(rest[4*(ct-1)+ot])
        if ct < 2:
            for s in cv(ct + 2): e(s)
    e("v_lshl_add_u32 v103, v99, 4, v103")
    e(f"s_lshl_b32 s5, s{S_B}, 7")
    e("v_add_u32 v103, s5, v103")
    e("s_waitcnt vmcnt(0)")
    for ot in range(4): e(f"ds_write_b128 v97, {vr(O+4*ot,4)} offset:{64*ot}")
    e(f"ds_read_b128 v[32:35], v102 offset:{L_B2}")
    e(f"ds_read_b128 v[36:39], v102 offset:{L_B2+16}")
    e(f"v_cmp_gt_u32 vcc, {NPB}, v98")
    e(f"s_or_b32 s6, s2, s{S_W}")
    e("s_cbranch_scc1 EPI_NE")
    e(f"v_mov_b32 v42, s{S_TAGB}")
    e(f"v_mov_b32 v43, s{S_TAGA}")
    e("v_mov_b32 v44, 0")
    e("s_mov_b64 exec, 1")
    e(f"buffer_store_dwordx2 v[42:43], v44, {sr(S_WS)}, 0 offen offset:{WS_EPOCH}")
    e("s_mov_b64 exec, -1")
    lab("EPI_NE")
    e("s_waitcnt lgkmcnt(0)")
    e("s_barrier")
    stamp(13)
    e("s_and_b64 exec, exec, vcc")
    e("s_cbranch_execz K_FIN")
    e(f"ds_read_b32 v40, v101 offset:{L_DEG}")
    for s in range(2):
        e(f"ds_read_b128 {vr(64+8*s,4)}, v100 offset:{L_TB+s*TBW}")
        e(f"ds_read_b128 {vr(68+8*s,4)}, v100 offset:{L_TB+s*TBW+16}")
    e(f"s_mov_b32 s6, {hex(f2u(-LN2))}")
    e("s_mov_b32 s7, s6")
    e("s_waitcnt lgkmcnt(4)")
    e("v_cvt_f32_u32 v40, v40")
    for i in range(4): e(f"v_pk_mul_f32 {vr(32+2*i,2)}, {vr(32+2*i,2)}, v[40:41] op_sel_hi:[1,0]")
    for s in range(2):
        e(f"s_waitcnt lgkmcnt({2-2*s})")
        for i in range(4): e(f"v_pk_fma_f32 {vr(32+2*i,2)}, {vr(64+8*s+2*i,2)}, s[6:7], {vr(32+2*i,2)}")
    for i in range(4): e(f"v_cvt_pk_bf16_f32 v{44+i}, v{32+2*i}, v{33+2*i}")
    e(f"buffer_store_dwordx4 v[44:47], v103, {sr(S_OUT)}, 0 offen {OF}")
    lab("K_FIN")
    if MODE:
        e("s_xor_b32 s100, s100, s79")
        e("s_xor_b32 s101, s101, s78")
        e("s_or_b32 s100, s100, s101")
        e("s_cmp_eq_u32 s100, 0")
        e("s_cselect_b32 s100, 3, 4")
        e("s_cmp_eq_u32 s78, s79")
        e("s_cselect_b32 s100, 2, s100")
        e(f"s_cmp_eq_u32 s100, {MODE}")
        e("s_cbranch_scc0 MODE_E")
        e("s_waitcnt vmcnt(0)")
        e("s_memrealtime s[96:97]")
        e("s_waitcnt lgkmcnt(0)")
        lab("MODE_L")
        e("s_memrealtime s[98:99]")
        e("s_waitcnt lgkmcnt(0)")
        e("s_sub_u32 s98, s98, s96")
        e("s_cmp_lt_u32 s98, 10000")
        e("s_cbranch_scc1 MODE_L")
        lab("MODE_E")
    if AMP[0] >= 0:
        if AMP[1] == 14:
            e("s_waitcnt vmcnt(0)")
            stamp(14)
        e("s_sub_u32 s100, s100, s98")
        if AMP[2] >= 0:
            e(f"s_cmp_eq_u32 s2, {AMP[2]}")
            e("s_cselect_b32 s100, s100, 0")
        e("s_add_u32 s100, s100, 6000")
        if AMPM:
            e(f"s_cmp_eq_u32 s97, {AMPM}")
            e("s_cselect_b32 s100, s100, 0")
        lab("AMPL")
        e("s_memrealtime s[98:99]")
        e("s_waitcnt lgkmcnt(0)")
        e("s_sub_u32 s98, s98, s96")
        e("s_cmp_lt_u32 s98, s100")
        e("s_cbranch_scc1 AMPL")
    if SPIN >= 0:
        lab("SPINL")
        e("s_memrealtime s[98:99]")
        e("s_waitcnt lgkmcnt(0)")
        e("s_sub_u32 s98, s98, s96")
        e("s_cmp_lt_u32 s98, 6000")
        e("s_cbranch_scc1 SPINL")
    if DIAG:
        e("s_mov_b64 exec, -1")
        e("s_waitcnt vmcnt(0)")
        stamp(14); stamp(31, True)
        e(f"v_writelane_b32 v255, s{S_NT}, 27")
        e("s_lshl_b32 s5, s2, 11")
        e(f"s_add_u32 s5, s5, {WS_STAMP}")
        e(f"v_lshlrev_b32 v1, 2, v{V_TID}")
        e(f"buffer_store_dword v255, v1, {sr(S_WS)}, s5 offen")
    lab("K_END")
    e("s_endpgm")
    if CPF: out.append(".set CODE_REST, K_END - CPF_PC")

hdr = open("standalone__edge_featured_mpnn_mpnn__graph.s.ref").read().split("; Override")[0]
out.append(hdr.rstrip())
out.append(f"; @launch grid=(256,1,1) block=(512,1,1) lds={L_END}")
out.append('.amdgcn_target "amdgcn-amd-amdhsa--gfx950"')
out.append(".text")
out.append(f".globl {KN}")
out.append(f".p2align {AL}")
out.append(f".type {KN},@function")
kernel()
out.append(f""".section .rodata,"a"
.p2align 6
.amdhsa_kernel {KN}
  .amdhsa_next_free_vgpr 256
  .amdhsa_next_free_sgpr 102
  .amdhsa_accum_offset 256
  .amdhsa_group_segment_fixed_size 0
  .amdhsa_kernarg_size 88
  .amdhsa_user_sgpr_count 2
  .amdhsa_user_sgpr_kernarg_segment_ptr 1
  .amdhsa_system_sgpr_workgroup_id_x 1
.end_amdhsa_kernel""")
dst = sys.argv[1] if len(sys.argv) > 1 else "standalone__edge_featured_mpnn_mpnn__graph.s"
open(dst, "w").write("\n".join(out) + "\n")
print("written", dst, "LDS", L_END)
```
